```python
import torch

def _softmax(x, axis=-1):
    return torch.softmax(x, dim=axis)

def _gelu(x):
    return torch.nn.functional.gelu(x, approximate='tanh')

def _silu(x):
    return torch.nn.functional.silu(x)

def _sigmoid(x):
    return torch.sigmoid(x)

def _layernorm(x, axis=-1, eps=1e-05):
    m = x.mean(dim=axis, keepdim=True)
    v = x.var(dim=axis, keepdim=True, unbiased=False)
    return (x - m) / torch.sqrt(v + eps)

def _scatter_add(tgt, idx, src, axis=0):
    return tgt.clone().index_add_(axis, idx, src)

def _segment_sum(src, seg, n):
    out = torch.zeros((n,) + src.shape[1:], dtype=src.dtype)
    return out.index_add_(0, seg, src)

def _pad(x, pw):
    flat = tuple((v for pair in reversed(pw) for v in pair))
    return torch.nn.functional.pad(x, flat)
kernel_name = 'sequential_preLN__memory_aug_recurrent_mem_tr__dense_activation_silu__prompt'

def setup_inputs():

    _w = lambda a: (lambda t: t.to(torch.bfloat16) if t.is_floating_point() else t)(torch.as_tensor(a))

    def _A_setup():
        B, S, Dm = (1, 2048, 1024)
        H, Dh = (32, 128)
        M, seg = (8, 32)
        seg = min(seg, S)
        S = S // seg * seg
        return {'x': _w((lambda *s: torch.randn(*s, dtype=torch.bfloat16) * 0.05)(B, S, Dm)), 'mem0': _w((lambda *s: torch.randn(*s, dtype=torch.bfloat16) * 0.2)(B, M, Dm)), 'Wq': _w((lambda *s: torch.randn(*s, dtype=torch.bfloat16) * 1.6)(Dm, H, Dh) * Dm ** (-0.5)), 'Wk': _w((lambda *s: torch.randn(*s, dtype=torch.bfloat16) * 1.6)(Dm, H, Dh) * Dm ** (-0.5)), 'Wv': _w((lambda *s: torch.randn(*s, dtype=torch.bfloat16) * 0.2)(Dm, H, Dh) * Dm ** (-0.5)), 'Wo': _w((lambda *s: torch.randn(*s, dtype=torch.bfloat16) * 0.2)(H, Dh, Dm) * (H * Dh) ** (-0.5)), 'seg_len': seg}
    _A_in = _A_setup()

    def _B_setup():
        B, S, D, F = (1, 2048, 1024, 3584)
        return {'x': _w((lambda *s: torch.randn(*s, dtype=torch.bfloat16) * 0.05)(B, S, D)), 'w1': _w((lambda *s: torch.randn(*s, dtype=torch.bfloat16) * 0.8)(D, F) * D ** (-0.5)), 'w2': _w((lambda *s: torch.randn(*s, dtype=torch.bfloat16) * 0.1)(F, D) * F ** (-0.5))}
    _B_in = _B_setup()
    return {'A_x': _A_in['x'], 'A_mem0': _A_in['mem0'], 'A_Wq': _A_in['Wq'], 'A_Wk': _A_in['Wk'], 'A_Wv': _A_in['Wv'], 'A_Wo': _A_in['Wo'], 'A_seg_len': _A_in['seg_len'], 'B_x': _B_in['x'], 'B_w1': _B_in['w1'], 'B_w2': _B_in['w2']}

def reference(A_x, A_mem0, A_Wq, A_Wk, A_Wv, A_Wo, A_seg_len, B_x, B_w1, B_w2):

    def _A_ref(x, mem0, Wq, Wk, Wv, Wo, seg_len):
        B, S, Dm = x.shape
        H, Dh = (Wq.shape[1], Wq.shape[2])
        M = mem0.shape[1]
        scale = Dh ** (-0.5)
        n_seg = S // seg_len
        L = M + seg_len
        idx = torch.arange(L)
        mask = (idx[:, None] < M) | (idx[:, None] >= idx[None, :])
        mem = mem0
        outs = []
        for s in range(n_seg):
            xs = x[:, s * seg_len:(s + 1) * seg_len, :].clone()
            h = torch.concatenate([mem, xs], axis=1)
            q = torch.einsum('btd,dhe->bhte', h, Wq)
            k = torch.einsum('btd,dhe->bhte', h, Wk)
            v = torch.einsum('btd,dhe->bhte', h, Wv)
            scores = torch.einsum('bhqe,bhke->bhqk', q, k) * scale
            scores = torch.where(mask[None, None], scores, -1000000000.0)
            p = _softmax(scores, axis=-1)
            o = torch.einsum('bhqk,bhke->bhqe', p, v)
            o = torch.einsum('bhte,hed->btd', o, Wo)
            mem = o[:, :M, :].clone()
            outs.append(o[:, M:, :])
        return torch.concatenate(outs, axis=1)

    def _B_ref(x, w1, w2):
        h = torch.einsum('bsd,df->bsf', x, w1)
        h = _silu(h)
        out = torch.einsum('bsf,fd->bsd', h, w2)
        return out
    x = A_x
    h = x + _A_ref(_layernorm(x, axis=-1), A_mem0, A_Wq, A_Wk, A_Wv, A_Wo, A_seg_len)
    h2 = h + _B_ref(_layernorm(h, axis=-1), B_w1, B_w2)
    return h2
```

```python
class Asm:
    def __init__(self):
        self.lines = []
        self._lab = 0
    def __call__(self, s):
        for l in s.strip("\n").split("\n"):
            l = l.strip()
            if not l:
                continue
            if l.endswith(":"):
                self.lines.append(l)
            else:
                self.lines.append("    " + l)
    def label(self, name):
        self.lines.append(name + ":")
    def newlabel(self, pfx="L"):
        self._lab += 1
        return f"{pfx}_{self._lab}"
    def raw(self, s):
        self.lines.append(s)
    def text(self):
        return "\n".join(self.lines) + "\n"

def vr(a, n=1):
    return f"v{a}" if n == 1 else f"v[{a}:{a+n-1}]"
def sr(a, n=1):
    return f"s{a}" if n == 1 else f"s[{a}:{a+n-1}]"
def ar(a, n=1):
    return f"a{a}" if n == 1 else f"a[{a}:{a+n-1}]"

def kernel_begin(A, name):
    A.raw(".text")
    A.raw(f".globl {name}")
    A.raw(".p2align 8")
    A.raw(f".type {name},@function")
    A.raw(f"{name}:")

def kernel_desc(A, name, vgpr, sgpr=102, accum=None, kernarg=104, wgy=False):
    if accum is None:
        accum = (vgpr + 3) // 4 * 4
        if accum > 256: accum = 256
    A.raw('.section .rodata,"a"')
    A.raw(".p2align 6")
    A.raw(f".amdhsa_kernel {name}")
    A.raw(f"  .amdhsa_next_free_vgpr {vgpr}")
    A.raw(f"  .amdhsa_next_free_sgpr {sgpr}")
    A.raw(f"  .amdhsa_accum_offset {accum}")
    A.raw("  .amdhsa_group_segment_fixed_size 0")
    A.raw(f"  .amdhsa_kernarg_size {kernarg}")
    A.raw("  .amdhsa_user_sgpr_count 2")
    A.raw("  .amdhsa_user_sgpr_kernarg_segment_ptr 1")
    A.raw("  .amdhsa_system_sgpr_workgroup_id_x 1")
    if wgy:
        A.raw("  .amdhsa_system_sgpr_workgroup_id_y 1")
    A.raw(".end_amdhsa_kernel")

def make_srd(A, d, b, nbytes):
    A(f"s_mov_b32 s{d}, s{b}")
    A(f"s_and_b32 s{d+1}, s{b+1}, 0xffff")
    A(f"s_mov_b32 s{d+2}, {nbytes:#x}")
    A(f"s_mov_b32 s{d+3}, 0x00020000")
```

```python
from asmlib import *

class Gemm:
    def __init__(self, A, pfx, BM, BN, WM, WN, NS, K, ldx, ldw, vbase, sbase, lds_base=0, kperm=False):
        self.A = A; self.pfx = pfx
        self.BM, self.BN, self.WM, self.WN, self.NS, self.K = BM, BN, WM, WN, NS, K
        self.ldx, self.ldw = ldx, ldw
        self.NW = WM * WN
        self.TM = BM // WM; self.TN = BN // WN
        self.nt = self.TM // 16; self.mt = self.TN // 16
        self.mh = min(4, self.mt)
        self.UPK = self.mt // self.mh
        self.U = 2 * self.UPK
        self.XS = BM * 128; self.WS = 64 * BN * 2
        self.ldsX = lds_base; self.ldsW = lds_base + NS * self.XS
        self.lds_bytes = NS * (self.XS + self.WS)
        assert NS * self.XS <= 65536 and NS * self.WS <= 65536
        self.nX = BM // 8 // self.NW; self.nW = BN // 8 // self.NW
        assert self.nX * 8 * self.NW == BM and self.nW * 8 * self.NW == BN
        self.nD = self.nX + self.nW
        self.KS = K // 64
        assert self.KS % NS == 0
        self.kperm = kperm
        v = vbase
        self.v_acc = v; v += self.mt * self.nt * 4
        self.v_wa = [v, v + self.mh * 4]; v += 2 * self.mh * 4
        self.v_xb = [v, v + self.nt * 4]; v += 2 * self.nt * 4
        self.v_xr = v; v += 2
        self.v_xr2 = v; v += 2
        self.v_wr = v; v += self.mt
        self.v_dx = v; v += self.nX
        self.v_dw = v; v += self.nW
        self.v_tmp = v; v += 6
        self.v_end = v
        s = sbase
        self.s_mx = s; self.s_mw = s + 1; self.s_cnt = s + 2; self.s_wm = s + 3; self.s_wn = s + 4; self.s_t = s + 5
        self.s_end = s + 8

    def acc(self, m, n):
        return self.v_acc + (m * self.nt + n) * 4

    def setup(self, s_wave, v_lane, vmode):
        A = self.A; t = self.v_tmp
        BN = self.BN
        import math
        lwn = int(math.log2(self.WN))
        A(f"s_lshr_b32 s{self.s_wm}, s{s_wave}, {lwn}")
        A(f"s_and_b32 s{self.s_wn}, s{s_wave}, {self.WN-1}")
        A(f"v_and_b32 v{t}, 15, v{v_lane}")
        A(f"v_lshrrev_b32 v{t+1}, 4, v{v_lane}")
        A(f"v_lshrrev_b32 v{t+2}, 1, v{t}")
        A(f"v_xor_b32 v{t+2}, v{t+2}, v{t+1}")
        if vmode:
            A(f"v_lshrrev_b32 v{t+3}, 2, v{t}")
            A(f"v_lshlrev_b32 v{t+3}, 3, v{t+3}")
            A(f"v_and_b32 v{t+4}, 3, v{t}")
            A(f"v_add_u32 v{t+3}, v{t+3}, v{t+4}")
        else:
            A(f"v_mov_b32 v{t+3}, v{t}")
        A(f"s_mul_i32 s{self.s_t}, s{self.s_wm}, {self.TM*128}")
        A(f"s_add_u32 s{self.s_t}, s{self.s_t}, {self.ldsX}")
        A(f"v_lshlrev_b32 v{t+3}, 7, v{t+3}")
        A(f"v_add_u32 v{t+3}, s{self.s_t}, v{t+3}")
        A(f"v_lshlrev_b32 v{t+4}, 4, v{t+2}")
        A(f"v_add_u32 v{self.v_xr}, v{t+3}, v{t+4}")
        A(f"v_xor_b32 v{t+4}, 64, v{t+4}")
        A(f"v_add_u32 v{self.v_xr+1}, v{t+3}, v{t+4}")
        A(f"v_lshrrev_b32 v{t+2}, 2, v{t}")
        A(f"v_and_b32 v{t+3}, 3, v{v_lane}")
        A(f"v_and_b32 v{t+4}, 1, v{t+1}")
        if BN >= 128:
            A(f"v_lshlrev_b32 v{t+4}, 2, v{t+4}")
            A(f"v_or_b32 v{t+4}, v{t+4}, v{t+2}")
        else:
            A(f"v_lshlrev_b32 v{t+4}, 1, v{t+4}")
            A(f"v_lshrrev_b32 v{t+5}, 1, v{t+2}")
            A(f"v_or_b32 v{t+4}, v{t+4}, v{t+5}")
        A(f"v_lshlrev_b32 v{t+1}, 3, v{t+1}")
        A(f"v_add_u32 v{t+1}, v{t+1}, v{t+2}")
        A(f"v_mul_u32_u24 v{t+1}, {BN*2}, v{t+1}")
        A(f"v_lshlrev_b32 v{t+3}, 3, v{t+3}")
        A(f"v_add_u32 v{t+1}, v{t+1}, v{t+3}")
        A(f"v_add_u32 v{t+1}, {self.ldsW}, v{t+1}")
        A(f"s_mul_i32 s{self.s_t}, s{self.s_wn}, {self.mt}")
        for m in range(self.mt):
            A(f"s_add_u32 s{self.s_t+1}, s{self.s_t}, {m}")
            A(f"v_xor_b32 v{t+2}, s{self.s_t+1}, v{t+4}")
            A(f"v_lshlrev_b32 v{t+2}, 5, v{t+2}")
            A(f"v_add_u32 v{self.v_wr+m}, v{t+1}, v{t+2}")
        A(f"v_lshrrev_b32 v{t}, 3, v{v_lane}")
        A(f"v_and_b32 v{t+1}, 7, v{v_lane}")
        A(f"s_mul_i32 s{self.s_t}, s{s_wave}, {self.nX}")
        for j in range(self.nX):
            A(f"s_add_u32 s{self.s_t+1}, s{self.s_t}, {j}")
            A(f"s_lshl_b32 s{self.s_t+2}, s{self.s_t+1}, 3")
            A(f"v_add_u32 v{t+2}, s{self.s_t+2}, v{t}")
            if vmode:
                A(f"v_bfe_u32 v{t+3}, v{t+2}, 1, 1")
                A(f"v_bfe_u32 v{t+4}, v{t+2}, 3, 2")
                A(f"v_lshlrev_b32 v{t+4}, 1, v{t+4}")
                A(f"v_or_b32 v{t+3}, v{t+3}, v{t+4}")
            else:
                A(f"v_bfe_u32 v{t+3}, v{t+2}, 1, 3")
            A(f"v_xor_b32 v{t+3}, v{t+3}, v{t+1}")
            A(f"v_lshlrev_b32 v{t+3}, 4, v{t+3}")
            A(f"v_mul_u32_u24 v{t+2}, {self.ldx}, v{t+2}")
            A(f"v_add_u32 v{self.v_dx+j}, v{t+2}, v{t+3}")
        A(f"s_mul_i32 s{self.s_mx}, s{s_wave}, {self.nX*1024}")
        A(f"s_add_u32 s{self.s_mx}, s{self.s_mx}, {self.ldsX}")
        lb = int(math.log2(BN * 2))
        A(f"v_lshlrev_b32 v{t}, 4, v{v_lane}")
        A(f"s_mul_i32 s{self.s_t}, s{s_wave}, {self.nW*1024}")
        for j in range(self.nW):
            A(f"s_add_u32 s{self.s_t+1}, s{self.s_t}, {j*1024}")
            A(f"v_add_u32 v{t+1}, s{self.s_t+1}, v{t}")
            A(f"v_lshrrev_b32 v{t+2}, {lb}, v{t+1}")
            A(f"v_and_b32 v{t+1}, {BN*2-1}, v{t+1}")
            A(f"v_bfe_u32 v{t+4}, v{t+2}, 3, 1")
            if BN >= 128:
                A(f"v_and_b32 v{t+3}, 3, v{t+2}")
                A(f"v_lshlrev_b32 v{t+4}, 2, v{t+4}")
            else:
                A(f"v_bfe_u32 v{t+3}, v{t+2}, 1, 1")
                A(f"v_lshlrev_b32 v{t+4}, 1, v{t+4}")
            A(f"v_or_b32 v{t+3}, v{t+3}, v{t+4}")
            A(f"v_lshlrev_b32 v{t+3}, 5, v{t+3}")
            A(f"v_xor_b32 v{t+1}, v{t+1}, v{t+3}")
            if self.kperm:
                A(f"v_bfe_u32 v{t+3}, v{t+2}, 3, 2")
                A(f"v_bfe_u32 v{t+4}, v{t+2}, 2, 1")
                A(f"v_and_b32 v{t+2}, 0x23, v{t+2}")
                A(f"v_lshlrev_b32 v{t+3}, 2, v{t+3}")
                A(f"v_lshlrev_b32 v{t+4}, 4, v{t+4}")
                A(f"v_or_b32 v{t+2}, v{t+2}, v{t+3}")
                A(f"v_or_b32 v{t+2}, v{t+2}, v{t+4}")
            A(f"v_mul_u32_u24 v{t+2}, {self.ldw}, v{t+2}")
            A(f"v_add_u32 v{self.v_dw+j}, v{t+2}, v{t+1}")
        A(f"s_mul_i32 s{self.s_mw}, s{s_wave}, {self.nW*1024}")
        A(f"s_add_u32 s{self.s_mw}, s{self.s_mw}, {self.ldsW}")
        for r in range(self.mt * self.nt * 4):
            A(f"v_mov_b32 v{self.v_acc+r}, 0")

    def dma_ops(self, b, srdX, srdW, s_xoff, s_woff):
        ops = []
        for j in range(self.nX):
            ops.append([f"s_add_u32 m0, s{self.s_mx}, {b*self.XS + j*1024}", "s_nop 0",
                        f"buffer_load_dwordx4 v{self.v_dx+j}, s[{srdX}:{srdX+3}], s{s_xoff} offen lds"])
        for j in range(self.nW):
            ops.append([f"s_add_u32 m0, s{self.s_mw}, {b*self.WS + j*1024}", "s_nop 0",
                        f"buffer_load_dwordx4 v{self.v_dw+j}, s[{srdW}:{srdW+3}], s{s_woff} offen lds"])
        ops[-1] = ops[-1] + [f"s_add_u32 s{s_xoff}, s{s_xoff}, 128", f"s_add_u32 s{s_woff}, s{s_woff}, {64*self.ldw}"]
        return ops

    def read_ops(self, b, u, vmode):
        i = u // self.UPK; mhx = u % self.UPK
        ops = []
        wa = self.v_wa[u & 1]
        if mhx == 0:
            xb = self.v_xb[i & 1]
            for n in range(self.nt):
                if vmode:
                    off = b * self.XS + (n >> 1) * 4096 + (n & 1) * 512
                else:
                    off = b * self.XS + n * 2048
                ops.append([f"ds_read_b128 v[{xb+4*n}:{xb+4*n+3}], v{self.v_xr+i} offset:{off}"])
        for m in range(self.mh):
            for uu in range(2):
                off = b * self.WS + (32 * i + 4 * uu) * self.BN * 2
                r = wa + 4 * m + 2 * uu
                ops.append([f"ds_read_b64_tr_b16 v[{r}:{r+1}], v{self.v_wr+mhx*self.mh+m} offset:{off}"])
        return ops

    def mfma_ops(self, u, vmode):
        vmode = vmode == 2
        i = u // self.UPK; mhx = u % self.UPK
        wa = self.v_wa[u & 1]; xb = self.v_xb[i & 1]
        ops = []
        for m in range(self.mh):
            for n in range(self.nt):
                a = self.acc(mhx * self.mh + m, n)
                wf = f"v[{wa+4*m}:{wa+4*m+3}]"; xf = f"v[{xb+4*n}:{xb+4*n+3}]"
                if vmode: ops.append(f"v_mfma_f32_16x16x32_bf16 v[{a}:{a+3}], {xf}, {wf}, v[{a}:{a+3}]")
                else:     ops.append(f"v_mfma_f32_16x16x32_bf16 v[{a}:{a+3}], {wf}, {xf}, v[{a}:{a+3}]")
        return ops

    def interleave(self, mf, side):
        A = self.A
        n = len(mf); k = len(side); j = 0
        for idx, m in enumerate(mf):
            A(m)
            want = (idx + 1) * k // n if n else k
            want = min(k, max(want, min(k, idx + 1))) if k <= n else want
            while j < want:
                for s in side[j]: A(s)
                j += 1
        while j < k:
            for s in side[j]: A(s)
            j += 1

    def stage(self, b, vmode, srdX, srdW, s_xoff, s_woff, dma, keep, last):
        A = self.A; NS = self.NS
        for u in range(self.U):
            mf = self.mfma_ops(u, vmode)
            if u < self.U - 1:
                side = self.read_ops(b, u + 1, vmode)
                self.interleave(mf, side)
                A("s_waitcnt lgkmcnt(0)")
            else:
                if last:
                    for m in mf: A(m)
                else:
                    A(f"s_waitcnt vmcnt({keep*self.nD})")
                    A("s_barrier")
                    side = self.read_ops((b + 1) % NS, 0, vmode)
                    if dma: side = side + self.dma_ops(b, srdX, srdW, s_xoff, s_woff)
                    self.interleave(mf, side)
                    A("s_waitcnt lgkmcnt(0)")

    def mainloop(self, vmode, srdX, srdW, s_xoff, s_woff):
        A = self.A; NS = self.NS; KS = self.KS
        for b in range(NS):
            for op in self.dma_ops(b, srdX, srdW, s_xoff, s_woff):
                for s in op: A(s)
        A(f"s_waitcnt vmcnt({(NS-1)*self.nD})")
        A("s_barrier")
        for op in self.read_ops(0, 0, vmode):
            for s in op: A(s)
        A("s_waitcnt lgkmcnt(0)")
        niter = KS // NS - 1
        lab = A.newlabel(self.pfx + "_loop")
        if niter > 0:
            A(f"s_mov_b32 s{self.s_cnt}, {niter}")
            A.label(lab)
            for b in range(NS):
                self.stage(b, vmode, srdX, srdW, s_xoff, s_woff, True, NS - 2, False)
            A(f"s_sub_u32 s{self.s_cnt}, s{self.s_cnt}, 1")
            A(f"s_cmp_lg_u32 s{self.s_cnt}, 0")
            A(f"s_cbranch_scc1 {lab}")
        for b in range(NS):
            self.stage(b, vmode, srdX, srdW, s_xoff, s_woff, False, max(0, NS - 2 - b), b == NS - 1)
```

```python
from asmlib import *
from layout import *
import math, struct

SCALE_LOG2E = (128 ** -0.5) * 1.4426950408889634
def f2u(x): return struct.unpack("<I", struct.pack("<f", x))[0]

def interleave(A, mf, side, per=3, start=0):
    k = 0
    for i, m in enumerate(mf):
        A(m)
        if i >= start:
            for _ in range(per):
                if k < len(side): A(side[k]); k += 1
    while k < len(side): A(side[k]); k += 1

def gen_chain(A, name="chain_kernel", dlyB=0, stamp=False, nsteps=64, POLLMAX=1 << 20, nokv=False, notouch=False, rounds=False, trace=False):
    kernel_begin(A, name)
    L = lambda s: f"{name}_{s}"
    SRD_WS, SRD_DBG, SRD_W = 16, 20, 24
    WS = f"s[{SRD_WS}:{SRD_WS+3}]"
    s_wave, s_xcc, s_tick, s_role, s_Q, s_j = 13, 12, 15, 34, 35, 36
    s_memsrc, s_qkvdst, s_qkvsrc, s_partdst, s_partsrc, s_memdst, s_k, s_step, s_pc, s_v = 40, 41, 42, 43, 44, 45, 46, 47, 48, 49
    s_hi, s_lo, s_c = 50, 52, 54
    t0, t1, t2 = 56, 57, 58
    s_lastq, s_lastm, s_touch, s_partsrc2, s_touch2 = 90, 91, 92, 93, 94
    v_lane, v_idx = 2, 3
    v_offC, v_offA, v_l16, v_w1q, v_w1v, v_r1, v_d1, v_w2, v_r2, v_l4, v_dM, v_l16b = range(4, 16)
    v_t = 16
    vA = 24
    vVM = 40
    vK = 48
    vV = 80
    acc1 = 112
    vS = 136
    vP = 148
    vU = 160
    vUb = 192
    acc2 = 224
    vUm = 112
    vOne = 244
    vB = 136
    vPub = 252
    vTch = 128
    vTch = 156
    A(f"""
    s_cmp_ge_u32 s2, 256
    s_cbranch_scc1 {L('end')}
    s_load_dwordx2 s[4:5], s[0:1], {KA_DBG}
    s_load_dwordx2 s[6:7], s[0:1], {KA_WS}
    s_load_dwordx4 s[60:63], s[0:1], {KA_WQ}
    s_load_dwordx4 s[64:67], s[0:1], {KA_WV}
    s_getreg_b32 s{s_xcc}, hwreg(HW_REG_XCC_ID)
    s_and_b32 s{s_xcc}, s{s_xcc}, 7
    v_lshrrev_b32 v1, 6, v0
    v_and_b32 v{v_lane}, 63, v0
    s_nop 1
    v_readfirstlane_b32 s{s_wave}, v1
    s_waitcnt lgkmcnt(0)
    """)
    make_srd(A, SRD_DBG, 4, 256)
    make_srd(A, SRD_WS, 6, WS_SIZE)
    DBG = f"s[{SRD_DBG}:{SRD_DBG+3}]"
    A(f"""
    s_lshl_b32 s{t0}, s{s_xcc}, 2
    v_mov_b32 v{v_t}, s{t0}
    v_mov_b32 v{v_t+1}, 1
    v_mov_b32 v{v_t+2}, 32
    v_mov_b32 v{v_t+3}, 1
    v_cmp_eq_u32 vcc, 0, v0
    s_and_saveexec_b64 s[32:33], vcc
    s_cbranch_execz {L('t1')}
    buffer_atomic_add v{v_t+1}, v{v_t}, {DBG}, 0 offen sc0
    s_waitcnt vmcnt(0)
    buffer_atomic_add v{v_t+3}, v{v_t+2}, {DBG}, 0 offen
    v_mov_b32 v{v_t+4}, 0
    ds_write_b32 v{v_t+4}, v{v_t+1}
    s_waitcnt vmcnt(0) lgkmcnt(0)
    {L('t1')}:
    s_mov_b64 exec, s[32:33]
    s_barrier
    v_mov_b32 v{v_t+4}, 0
    ds_read_b32 v{v_t+1}, v{v_t+4}
    s_waitcnt lgkmcnt(0)
    v_readfirstlane_b32 s{s_tick}, v{v_t+1}
    s_barrier
    s_lshl_b32 s{s_role}, s{s_xcc}, 4
    s_add_u32 s{s_role}, s{s_role}, s{s_tick}
    s_cmp_lt_u32 s{s_tick}, 16
    s_cbranch_scc1 {L('haverole')}
    v_lshlrev_b32 v{v_t}, 2, v{v_lane}
    s_mov_b32 s{s_pc}, {POLLMAX}
    {L('sp0')}:
    buffer_load_dword v{v_t+1}, v{v_t}, {DBG}, 0 offen sc1
    s_sub_u32 s{s_pc}, s{s_pc}, 1
    s_cbranch_scc1 {L('end')}
    s_waitcnt vmcnt(0)
    v_readlane_b32 s{t0}, v{v_t+1}, 8
    s_cmp_lt_u32 s{t0}, 256
    s_cbranch_scc0 {L('sp1')}
    s_sleep 8
    s_branch {L('sp0')}
    {L('sp1')}:
    s_mov_b32 s{t1}, 0
    """)
    for x in range(8):
        A(f"v_readlane_b32 s{t0}, v{v_t+1}, {x}")
        A(f"s_min_u32 s{t0}, s{t0}, 16")
        A(f"s_sub_u32 s{t0}, 16, s{t0}")
        A(f"s_add_u32 s{t1}, s{t1}, s{t0}")
    A(f"""
    s_cmp_eq_u32 s{t1}, 0
    s_cbranch_scc1 {L('end')}
    v_mov_b32 v{v_t+2}, 36
    v_mov_b32 v{v_t+3}, 1
    v_cmp_eq_u32 vcc, 0, v0
    s_and_saveexec_b64 s[32:33], vcc
    s_cbranch_execz {L('sp2')}
    buffer_atomic_add v{v_t+3}, v{v_t+2}, {DBG}, 0 offen sc0
    s_waitcnt vmcnt(0)
    v_mov_b32 v{v_t+4}, 0
    ds_write_b32 v{v_t+4}, v{v_t+3}
    s_waitcnt lgkmcnt(0)
    {L('sp2')}:
    s_mov_b64 exec, s[32:33]
    s_barrier
    v_mov_b32 v{v_t+4}, 0
    ds_read_b32 v{v_t+3}, v{v_t+4}
    s_waitcnt lgkmcnt(0)
    v_readfirstlane_b32 s{t2}, v{v_t+3}
    s_barrier
    s_cmp_ge_u32 s{t2}, s{t1}
    s_cbranch_scc1 {L('end')}
    """)
    for x in range(8):
        A(f"v_readlane_b32 s{t0}, v{v_t+1}, {x}")
        A(f"s_min_u32 s{t0}, s{t0}, 16")
        A(f"s_add_u32 s{s_role}, s{t0}, s{t2}")
        A(f"s_add_u32 s{s_role}, s{s_role}, {16*x}")
        A(f"s_sub_u32 s{t0}, 16, s{t0}")
        A(f"s_cmp_lt_u32 s{t2}, s{t0}")
        A(f"s_cbranch_scc1 {L('haverole')}")
        A(f"s_sub_u32 s{t2}, s{t2}, s{t0}")
    A(f"s_branch {L('end')}")
    A.label(L('haverole'))
    A(f"""
    s_lshr_b32 s{s_Q}, s{s_role}, 4
    s_and_b32 s{s_j}, s{s_role}, 15
    s_mov_b32 s{s_hi}, 0
    s_mov_b32 s{s_hi+1}, -1
    s_mov_b32 s{s_lo}, -1
    s_mov_b32 s{s_lo+1}, 0
    s_mov_b32 s{s_c}, {f2u(SCALE_LOG2E):#x}
    """)
    n_, g_ = v_t, v_t + 1
    a, b, c, d_ = v_t + 2, v_t + 3, v_t + 4, v_t + 5
    A(f"""
    v_and_b32 v{n_}, 15, v{v_lane}
    v_lshrrev_b32 v{g_}, 4, v{v_lane}
    v_lshlrev_b32 v{v_l16}, 4, v{v_lane}
    v_add_u32 v{v_l16b}, 0x1000, v{v_l16}
    v_lshlrev_b32 v{v_l4}, 2, v{v_lane}
    v_lshlrev_b32 v{v_d1}, 3, v{v_lane}
    v_mov_b32 v{v_idx}, 0x44444444
    v_mov_b32 v{a}, 0xeeeeeeee
    v_cmp_lt_u32 vcc, 7, v{n_}
    s_nop 1
    v_cndmask_b32 v{v_idx}, v{v_idx}, v{a}, vcc
    v_lshrrev_b32 v{d_}, 5, v{v_lane}          ; t
    v_and_b32 v{c}, 1, v{g_}                   ; g'
    v_lshrrev_b32 v{a}, 2, v{n_}
    v_lshl_add_u32 v{b}, v{a}, 1, v{c}         ; 2G+g'
    v_mul_u32_u24 v{a}, 144, v{b}              ; (2G+g')*(128+16)
    v_lshl_add_u32 v{a}, v{d_}, 4, v{a}
    v_and_b32 v{b}, 3, v{n_}
    v_lshl_add_u32 v{a}, v{b}, 2, v{a}
    s_mul_i32 s{t0}, s{s_wave}, 3584
    v_add_u32 v{v_w1q}, s{t0}, v{a}
    v_lshrrev_b32 v{a}, 3, v{n_}
    v_lshl_add_u32 v{a}, v{a}, 2, v{c}
    v_bfe_u32 v{b}, v{n_}, 1, 1
    v_lshl_add_u32 v{a}, v{b}, 1, v{a}
    v_mul_u32_u24 v{a}, 144, v{a}
    v_bfe_u32 v{b}, v{n_}, 2, 1
    v_lshl_add_u32 v{a}, v{b}, 4, v{a}
    v_lshl_add_u32 v{a}, v{d_}, 3, v{a}
    v_and_b32 v{b}, 1, v{n_}
    v_lshl_add_u32 v{a}, v{b}, 2, v{a}
    s_add_u32 s{t0}, s{t0}, 2304
    v_add_u32 v{v_w1v}, s{t0}, v{a}
    v_lshrrev_b32 v{a}, 3, v{v_lane}
    v_lshl_add_u32 v{a}, v{a}, 4, v{v_l16}
    s_mul_i32 s{t0}, s{s_wave}, 1152
    v_add_u32 v{v_r1}, s{t0}, v{a}
    v_lshlrev_b32 v{a}, 8, v{g_}
    v_lshl_add_u32 v{a}, v{n_}, 3, v{a}
    s_cmp_eq_u32 s{s_wave}, 2
    s_cbranch_scc1 {L('d1v')}
    v_mov_b32 v{v_d1}, v{a}
    s_cmp_eq_u32 s{s_wave}, 3
    s_cbranch_scc0 {L('d1v')}
    v_lshrrev_b32 v{a}, 3, v{v_lane}
    v_and_b32 v{b}, 7, v{v_lane}
    v_lshlrev_b32 v{v_d1}, 8, v{a}
    v_lshl_add_u32 v{v_d1}, v{b}, 3, v{v_d1}
    v_lshrrev_b32 v{v_r1}, 2, v{b}
    v_lshlrev_b32 v{v_r1}, 2, v{v_r1}
    v_lshrrev_b32 v{v_offC}, 2, v{a}
    v_add_u32 v{v_r1}, v{v_r1}, v{v_offC}
    v_mul_u32_u24 v{v_r1}, 144, v{v_r1}
    v_and_b32 v{a}, 3, v{a}
    v_lshl_add_u32 v{v_r1}, v{a}, 5, v{v_r1}
    v_and_b32 v{b}, 3, v{b}
    v_lshl_add_u32 v{v_r1}, v{b}, 3, v{v_r1}
    v_add_u32 v{v_r1}, 2304, v{v_r1}
    {L('d1v')}:
    v_lshrrev_b32 v{a}, 3, v{n_}
    v_lshl_add_u32 v{a}, v{a}, 1, v{c}
    v_mul_u32_u24 v{a}, 160, v{a}
    v_mul_u32_u24 v{b}, 640, v{d_}
    v_add_u32 v{a}, v{a}, v{b}
    v_and_b32 v{b}, 7, v{n_}
    v_lshl_add_u32 v{a}, v{b}, 2, v{a}
    s_mul_i32 s{t0}, s{s_wave}, 2560
    s_add_u32 s{t0}, s{t0}, 14336
    v_add_u32 v{v_w2}, s{t0}, v{a}
    v_lshlrev_b32 v{a}, 3, v{v_lane}
    v_lshl_add_u32 v{a}, v{g_}, 5, v{a}
    s_mul_i32 s{t0}, s{s_wave}, 640
    s_add_u32 s{t0}, s{t0}, 14336
    v_add_u32 v{v_r2}, s{t0}, v{a}
    """)
    for r in range(8):
        if r in (0, 2, 4, 6): A(f"v_mov_b32 v{vOne+r}, 0x3f803f80")
        else: A(f"v_mov_b32 v{vOne+r}, 0")
    A(f"s_mov_b64 exec, s[{s_lo}:{s_lo+1}]")
    A(f"v_mov_b32 v{vOne+5}, 0x3f803f80"); A(f"v_mov_b32 v{vOne+7}, 0x3f803f80")
    A("s_mov_b64 exec, -1")
    for nt in range(4):
        A(f"v_mov_b32 v{vUb+8*nt+1}, 0"); A(f"v_mov_b32 v{vUb+8*nt+3}, 0")
    A(f"""
    s_lshl_b32 s{s_memsrc}, s{s_Q}, 14
    s_lshl_b32 s{t0}, s{s_wave}, 12
    s_add_u32 s{s_memsrc}, s{s_memsrc}, s{t0}
    s_add_u32 s{s_memsrc}, s{s_memsrc}, {WS_CH + CH_MEM}
    s_mul_i32 s{t1}, s{s_Q}, {4*HB}
    s_add_u32 s{t1}, s{t1}, {WS_CH + CH_QKV}
    s_mul_i32 s{t0}, s{s_wave}, {HB}
    s_add_u32 s{s_qkvsrc}, s{t1}, s{t0}
    s_lshr_b32 s{t0}, s{s_j}, 2
    s_mul_i32 s{t0}, s{t0}, {HB}
    s_add_u32 s{t1}, s{t1}, s{t0}
    s_and_b32 s{t0}, s{s_j}, 3
    s_lshl_b32 s{t2}, s{t0}, 10
    s_add_u32 s{s_qkvdst}, s{t1}, s{t2}
    s_lshl_b32 s{t2}, s{s_wave}, 7
    s_add_u32 s{s_qkvdst}, s{s_qkvdst}, s{t2}
    s_lshl_b32 s{t2}, s{t0}, 9
    s_add_u32 s{t2}, s{t2}, s{t1}
    s_add_u32 s{t2}, s{t2}, 4096
    s_cmp_eq_u32 s{s_wave}, 2
    s_cselect_b32 s{s_qkvdst}, s{t2}, s{s_qkvdst}
    s_lshl_b32 s{t2}, s{t0}, 6
    s_add_u32 s{t2}, s{t2}, s{t1}
    s_add_u32 s{t2}, s{t2}, 6144
    s_cmp_eq_u32 s{s_wave}, 3
    s_cselect_b32 s{s_qkvdst}, s{t2}, s{s_qkvdst}
    s_lshl_b32 s{t0}, s{s_j}, 13
    s_add_u32 s{t0}, s{t0}, {WS_CH + CH_PART}
    s_lshl_b32 s{t1}, s{s_wave}, 8
    s_add_u32 s{s_partsrc}, s{t0}, s{t1}
    s_add_u32 s{s_partsrc2}, s{s_partsrc}, 4096
    s_lshl_b32 s{t2}, s{s_Q}, 10
    s_add_u32 s{s_partdst}, s{s_partsrc}, s{t2}
    s_lshl_b32 s{s_memdst}, s{s_Q}, 14
    s_lshl_b32 s{t0}, s{s_wave}, 8
    s_add_u32 s{s_memdst}, s{s_memdst}, s{t0}
    s_lshl_b32 s{t0}, s{s_j}, 10
    s_add_u32 s{s_memdst}, s{s_memdst}, s{t0}
    s_add_u32 s{s_memdst}, s{s_memdst}, {WS_CH + CH_MEM + CH_STEP}
    s_lshl_b32 s{t0}, s{s_Q}, 2
    s_add_u32 s{t0}, s{t0}, s{s_wave}
    s_lshl_b32 s{t0}, s{t0}, 13
    s_add_u32 s{s_k}, s{t0}, {WS_K}
    s_add_u32 s{s_v}, s{t0}, {WS_VT}
    s_lshl_b32 s{s_touch}, s{s_Q}, 15
    s_lshl_b32 s{t0}, s{s_j}, 11
    s_add_u32 s{s_touch}, s{s_touch}, s{t0}
    s_and_b32 s{t0}, s{s_wave}, 1
    s_lshl_b32 s{t0}, s{t0}, 10
    s_add_u32 s{s_touch}, s{s_touch}, s{t0}
    s_mov_b32 s{t0}, {WS_K + 2*262144}
    s_mov_b32 s{t1}, {WS_VT + 2*262144}
    s_cmp_ge_u32 s{s_wave}, 2
    s_cselect_b32 s{t0}, s{t1}, s{t0}
    s_add_u32 s{s_touch}, s{s_touch}, s{t0}
    s_mul_i32 s{t0}, s{s_role}, 2048
    s_lshl_b32 s{t1}, s{s_wave}, 10
    s_add_u32 s{t0}, s{t0}, s{t1}
    s_add_u32 s{t0}, s{t0}, {WS_CH + CH_QKV + CH_STEP}
    s_lshl_b32 s{t1}, s{s_role}, 10
    s_add_u32 s{t1}, s{t1}, {WS_CH + CH_MEM + 2*CH_STEP}
    s_cmp_ge_u32 s{s_wave}, 2
    s_cselect_b32 s{s_touch2}, s{t1}, s{t0}
    s_mov_b32 s{s_lastq}, {WS_DUMMY}
    s_mov_b32 s{s_lastm}, {WS_DUMMY}
    """)
    for r in range(3): A(f"v_mov_b32 v{vPub+r}, 0")
    LW = 24576
    vq, vo, vtr1, vtr2 = vA, vA + 1, vA + 2, vA + 4
    A(f"""
    v_lshrrev_b32 v{a}, 2, v{v_lane}
    v_lshlrev_b32 v{a}, 13, v{a}
    v_and_b32 v{b}, 3, v{v_lane}
    v_lshl_add_u32 v{vq}, v{b}, 4, v{a}
    v_lshrrev_b32 v{a}, 3, v{v_lane}
    v_lshlrev_b32 v{a}, 11, v{a}
    v_and_b32 v{b}, 7, v{v_lane}
    v_lshl_add_u32 v{vo}, v{b}, 4, v{a}
    s_lshl_b32 s68, s{s_wave}, 15
    s_add_u32 s68, s68, {LW}
    s_lshl_b32 s69, s{s_wave}, 21
    s_lshl_b32 s{t0}, s{s_role}, 6
    s_add_u32 s69, s69, s{t0}
    s_lshl_b32 s70, s{s_Q}, 2
    s_add_u32 s70, s70, s{s_wave}
    s_lshl_b32 s70, s70, 18
    s_lshl_b32 s{t0}, s{s_j}, 7
    s_add_u32 s70, s70, s{t0}
    v_lshrrev_b32 v{d_}, 2, v{n_}            ; r
    v_and_b32 v{b}, 1, v{d_}
    v_lshrrev_b32 v{a}, 1, v{d_}
    v_lshl_add_u32 v{c}, v{a}, 3, v{b}
    v_lshrrev_b32 v{vtr1+1}, 1, v{g_}
    v_lshl_add_u32 v{c}, v{vtr1+1}, 4, v{c}
    v_and_b32 v{vtr2+1}, 1, v{g_}
    v_lshl_add_u32 v{c}, v{vtr2+1}, 2, v{c}
    v_lshlrev_b32 v{c}, 6, v{c}
    v_and_b32 v{vtr1}, 3, v{n_}
    v_lshlrev_b32 v{vtr1}, 3, v{vtr1}
    v_add_u32 v{c}, v{c}, v{vtr1}
    v_mov_b32 v{vtr2}, v{vtr1}
    v_add_u32 v{vtr1}, s68, v{c}
    v_lshl_add_u32 v{c}, v{g_}, 2, v{d_}
    v_lshlrev_b32 v{c}, 7, v{c}
    v_add_u32 v{c}, v{c}, v{vtr2}
    v_add_u32 v{vtr2}, s68, v{c}
    """)
    ptrs = [60, 62, 64, 66]
    def wdma(m):
        make_srd(A, SRD_W, ptrs[m], 8 << 20)
        reg = (m & 1) * 16384
        for i in range(16):
            A(f"s_add_u32 m0, s68, {reg + i*1024}")
            if m < 3:
                A(f"s_add_u32 s{t0}, s69, {i*16*8192}")
                A(f"buffer_load_dwordx4 v{vq}, s[{SRD_W}:{SRD_W+3}], s{t0} offen lds")
            else:
                A(f"s_add_u32 s{t0}, s70, {i*8*2048}")
                A(f"buffer_load_dwordx4 v{vo}, s[{SRD_W}:{SRD_W+3}], s{t0} offen lds")
    def aW1(tile, ks): return (tile * 4 + ks) * 8
    def aW2(nt, ks): return 192 + (nt * 2 + ks) * 8
    def wtr(m):
        reg = (m & 1) * 16384
        cnt = 0
        for t in range(2 if m < 3 else 4):
            for ks in range(4 if m < 3 else 2):
                for h in range(2):
                    for u in range(2):
                        if m < 3:
                            d = aW1(2 * m + t, ks) + 4 * h + 2 * u
                            off = reg + (64 * ks + 32 * h + 2 * u) * 64 + t * 32
                            A(f"ds_read_b64_tr_b16 a[{d}:{d+1}], v{vtr1} offset:{off}")
                        else:
                            d = aW2(t, ks) + 4 * h + 2 * u
                            off = reg + (64 * ks + 32 * h + 16 * u) * 128 + t * 32
                            A(f"ds_read_b64_tr_b16 a[{d}:{d+1}], v{vtr2} offset:{off}")
                        cnt += 1
                        if cnt % 8 == 0: A("s_waitcnt lgkmcnt(0)")
    def kvload(base, sreg):
        ops = []
        for i in range(8):
            vo_ = v_l16 if i < 4 else v_l16b
            ops.append(f"buffer_load_dwordx4 v[{base+4*i}:{base+4*i+3}], v{vo_}, {WS}, s{sreg} offen offset:{(i%4)*1024}")
        return ops
    def maxops(regs, tmp):
        rest = list(regs); ops = []
        ops.append(f"v_max3_u32 v{tmp}, v{rest[0]}, v{rest[1]}, v{rest[2]}"); rest = rest[3:]
        while len(rest) >= 2:
            ops.append(f"v_max3_u32 v{tmp}, v{tmp}, v{rest[0]}, v{rest[1]}"); rest = rest[2:]
        if rest: ops.append(f"v_max_u32 v{tmp}, v{tmp}, v{rest[0]}")
        return ops
    def checkops(regs, lab, tmp):
        return maxops(regs, tmp) + [f"v_cmp_eq_u32 vcc, -1, v{tmp}", f"s_cbranch_vccnz {lab}"]
    def hook(tag):
        A(f"s_cmp_eq_u32 s{s_pc}, {POLLMAX-64}")
        A(f"s_cbranch_scc0 {L(tag+'_h')}")
        A(f"buffer_store_dwordx2 v[{vPub}:{vPub+1}], v{v_d1}, {WS}, s{s_lastq} offen sc1")
        A(f"buffer_store_dword v{vPub+2}, v{v_l4}, {WS}, s{s_lastm} offen sc1")
        A.label(L(tag + '_h'))
    def stamp_t(k):
        if trace:
            A("s_memtime s[72:73]")
            A(f"s_and_b32 s74, s{s_step}, 7"); A("s_lshl_b32 s74, s74, 3"); A(f"s_add_u32 s74, s74, {k}")
            A("s_mov_b32 m0, s74")
            A("s_waitcnt lgkmcnt(0)")
            A("v_writelane_b32 v255, s72, m0")
        elif stamp and rounds and k in (0, 2, 4):
            A(f"s_sub_u32 s74, {POLLMAX}, s{s_pc}"); A(f"s_add_u32 s{80+k}, s{80+k}, s74")
        elif stamp and not rounds:
            A("s_memtime s[72:73]"); A("s_waitcnt lgkmcnt(0)")
            A("s_sub_u32 s74, s72, s76"); A(f"s_add_u32 s{80+k}, s{80+k}, s74"); A("s_mov_b32 s76, s72")
    def utok_ops():
        mf = []
        for kk in range(4):
            for T in range(2):
                for nt in range(4):
                    d = vU + (T * 4 + nt) * 4; w = aW2(nt, kk >> 1) + 4 * (kk & 1); va = vV + (T * 4 + kk) * 4
                    C = "0" if kk == 0 else f"v[{d}:{d+3}]"
                    mf.append(f"v_mfma_f32_16x16x32_bf16 v[{d}:{d+3}], v[{va}:{va+3}], a[{w}:{w+3}], {C}")
        cv = []
        for T in range(2):
            for nt in range(4):
                d = vU + (T * 4 + nt) * 4
                cv.append(f"v_cvt_pk_bf16_f32 v{vUb+8*nt+4*T}, v{d}, v{d+1}")
                cv.append(f"v_cvt_pk_bf16_f32 v{vUb+8*nt+4*T+2}, v{d+2}, v{d+3}")
        return mf, cv
    def halves(d0, d1):
        return [f"v_permlane32_swap_b32 v{d0+r}, v{d1+r}" for r in range(4)] + [f"v_add_f32 v{d0+r}, v{d0+r}, v{d1+r}" for r in range(4)]
    wdma(0); wdma(1)
    for o in kvload(vK, s_k): A(o)
    for o in kvload(vV, s_v): A(o)
    A("s_waitcnt vmcnt(32)"); wtr(0); wdma(2)
    A("s_waitcnt vmcnt(32)"); wtr(1); wdma(3)
    A("s_waitcnt vmcnt(16)"); wtr(2)
    A("s_waitcnt vmcnt(0)"); wtr(3)
    mf, cv = utok_ops()
    for o in mf: A(o)
    A("s_nop 7")
    for o in cv: A(o)
    A(f"s_add_u32 s{s_v}, s{s_v}, 262144")
    for r in range(24): A(f"v_mov_b32 v{acc1+r}, 0")
    A(f"s_mov_b32 s{s_step}, 0")
    if stamp:
        for k in range(8): A(f"s_mov_b32 s{80+k}, 0")
        A("s_memtime s[76:77]"); A("s_memrealtime s[78:79]"); A("s_waitcnt lgkmcnt(0)")
    A("s_barrier")
    A(f"s_branch {L('loop')}")
    A.label(L('redo1'))
    A("s_nop 15")
    for r in range(24): A(f"v_mov_b32 v{acc1+r}, 0")
    A(f"s_branch {L('pc')}")
    A.label(L('loop'))
    A(f"s_mov_b32 s{s_pc}, {POLLMAX}")
    A.label(L('pc'))
    for ks in range(4):
        A(f"buffer_load_dwordx4 v[{vA+4*ks}:{vA+4*ks+3}], v{v_l16}, {WS}, s{s_memsrc} offen offset:{ks*1024} sc1")
    A(f"s_sub_u32 s{s_pc}, s{s_pc}, 1")
    A(f"s_cbranch_scc1 {L('bail')}")
    hook('pc')
    A("s_waitcnt vmcnt(0)")
    for o in checkops([vA + 4 * i + 3 for i in range(4)], L('pc'), v_t): A(o)
    stamp_t(0)
    mf = []
    for tile in range(6):
        for ks in range(4):
            d = acc1 + 4 * tile; w = aW1(tile, ks)
            mf.append(f"v_smfmac_f32_16x16x64_bf16 v[{d}:{d+3}], v[{vA+4*ks}:{vA+4*ks+3}], a[{w}:{w+7}], v{v_idx}")
    chk = checkops([vA + i for i in range(16) if i % 4 != 3], L('redo1'), v_t)
    vl = [] if nokv else kvload(vV, s_v)
    interleave(A, mf[:16], chk + vl, per=1)
    post = []
    for which in range(2):
        d0 = acc1 + 8 * which
        post += halves(d0, d0 + 4) + [f"ds_write_b32 v{v_w1q}, v{d0+r} offset:{which*1152 + r*32}" for r in range(4)]
    interleave(A, mf[16:], post, per=3)
    A("s_nop 4")
    for o in halves(acc1 + 16, acc1 + 20): A(o)
    for r in range(4): A(f"ds_write_b32 v{v_w1v}, v{acc1+16+r} offset:{r*32}")
    A("s_waitcnt lgkmcnt(0)")
    if trace: stamp_t(7)
    A("s_barrier")
    A(f"s_cmp_eq_u32 s{s_wave}, 3")
    A(f"s_cbranch_scc0 {L('s1a')}")
    for p in range(4):
        A(f"v_add_u32 v{v_t}, {p*3584}, v{v_r1}")
        A(f"ds_read2_b64 v[{vU+4*p}:{vU+4*p+3}], v{v_t} offset0:0 offset1:36")
    A(f"s_branch {L('s1b')}")
    A.label(L('s1a'))
    for p in range(4):
        A(f"ds_read_b128 v[{vU+4*p}:{vU+4*p+3}], v{v_r1} offset:{p*3584}")
    A.label(L('s1b'))
    A("s_waitcnt lgkmcnt(2)")
    for r in range(4): A(f"v_add_f32 v{vU+r}, v{vU+r}, v{vU+4+r}")
    A("s_waitcnt lgkmcnt(0)")
    for r in range(4): A(f"v_add_f32 v{vU+8+r}, v{vU+8+r}, v{vU+12+r}")
    for r in range(4): A(f"v_add_f32 v{vU+r}, v{vU+r}, v{vU+8+r}")
    A(f"v_cvt_pk_bf16_f32 v{vPub}, v{vU}, v{vU+1}")
    A(f"v_cvt_pk_bf16_f32 v{vPub+1}, v{vU+2}, v{vU+3}")
    A(f"v_min_u32 v{vPub}, -2, v{vPub}")
    A(f"v_min_u32 v{vPub+1}, -2, v{vPub+1}")
    A(f"buffer_store_dwordx2 v[{vPub}:{vPub+1}], v{v_d1}, {WS}, s{s_qkvdst} offen")
    A(f"s_mov_b32 s{s_lastq}, s{s_qkvdst}")
    A(f"s_cmp_eq_u32 s{s_step}, {nsteps-1}")
    A(f"s_cbranch_scc1 {L('fin')}")
    stamp_t(1)
    for r in range(20): A(f"v_mov_b32 v{acc2+r}, 0")
    for r in range(16): A(f"v_mov_b32 v{vUm+r}, 0")
    A(f"s_mov_b32 s{s_pc}, {POLLMAX}")
    A.label(L('pa'))
    for ks in range(4):
        A(f"buffer_load_dwordx4 v[{vA+4*ks}:{vA+4*ks+3}], v{v_l16}, {WS}, s{s_qkvsrc} offen offset:{ks*1024} sc1")
    for u in range(2):
        A(f"buffer_load_dwordx4 v[{vVM+4*u}:{vVM+4*u+3}], v{v_l16b}, {WS}, s{s_qkvsrc} offen offset:{u*1024} sc1")
    A(f"s_sub_u32 s{s_pc}, s{s_pc}, 1")
    A(f"s_cbranch_scc1 {L('bail')}")
    hook('pa')
    A("s_waitcnt vmcnt(0)")
    for o in checkops([vA + 4 * i + 3 for i in range(6)], L('pa'), v_t): A(o)
    stamp_t(2)
    mf = []
    for ks in range(4):
        R = f"v[{vA+4*ks}:{vA+4*ks+3}]"
        for t in range(3):
            d = vS + 4 * t
            Aop = R if t == 2 else f"v[{vK+(t*4+ks)*4}:{vK+(t*4+ks)*4+3}]"
            C = "0" if ks == 0 else f"v[{d}:{d+3}]"
            mf.append(f"v_mfma_f32_16x16x32_bf16 v[{d}:{d+3}], {Aop}, {R}, {C}")
    chk = checkops([vA + i for i in range(24) if i % 4 != 3], L('pa'), v_t)
    interleave(A, mf, chk, per=1)
    um = []
    for nt in range(4):
        for ks in range(2):
            d = vUm + 4 * nt; w = aW2(nt, ks)
            um.append(f"v_smfmac_f32_16x16x64_bf16 v[{d}:{d+3}], v[{vVM+4*ks}:{vVM+4*ks+3}], a[{w}:{w+7}], v{v_idx}")
    mx, tt = v_t, v_t + 1
    A(um[0]); A(um[1]); A("s_nop 5")
    sm1 = [f"v_max3_f32 v{mx}, v{vS}, v{vS+1}, v{vS+2}", f"v_max3_f32 v{mx}, v{mx}, v{vS+3}, v{vS+4}",
           f"v_max3_f32 v{mx}, v{mx}, v{vS+5}, v{vS+6}", f"v_max_f32 v{mx}, v{mx}, v{vS+7}",
           f"s_mov_b64 exec, s[{s_hi}:{s_hi+1}]", f"v_max3_f32 v{mx}, v{mx}, v{vS+8}, v{vS+9}", f"v_max3_f32 v{mx}, v{mx}, v{vS+10}, v{vS+11}",
           "s_mov_b64 exec, -1", f"v_mov_b32 v{tt}, v{mx}"]
    for o in sm1: A(o)
    A(um[2])
    A("s_nop 0")
    A(f"v_permlane32_swap_b32 v{mx}, v{tt}")
    A(f"v_max_f32 v{mx}, v{mx}, v{tt}")
    A(f"v_mov_b32 v{tt}, v{mx}")
    A(um[3])
    A("s_nop 0")
    A(f"v_permlane16_swap_b32 v{mx}, v{tt}")
    A(f"v_max_f32 v{mx}, v{mx}, v{tt}")
    A(f"v_mul_f32 v{mx}, s{s_c}, v{mx}")
    ex = []
    for i in range(12): ex.append(f"v_fma_f32 v{vS+i}, v{vS+i}, s{s_c}, -v{mx}")
    for i in list(range(8, 12)) + list(range(8)): ex.append(f"v_exp_f32 v{vS+i}, v{vS+i}")
    k = 0
    for i, o in enumerate(ex):
        A(o)
        if i % 5 == 4 and k < 4: A(um[4 + k]); k += 1
    Pb, X, Y = vP + 4, vP + 6, vP + 8
    A(f"v_cvt_pk_bf16_f32 v{Pb}, v{vS+8}, v{vS+9}")
    A(f"v_cvt_pk_bf16_f32 v{Pb+1}, v{vS+10}, v{vS+11}")
    A(f"s_mov_b64 exec, s[{s_lo}:{s_lo+1}]")
    A(f"v_mov_b32 v{Pb}, 0"); A(f"v_mov_b32 v{Pb+1}, 0")
    A("s_mov_b64 exec, -1")
    A(f"v_mov_b32 v{X}, v{Pb}"); A(f"v_mov_b32 v{X+1}, v{Pb+1}")
    for i in range(4): A(f"v_cvt_pk_bf16_f32 v{vP+i}, v{vS+2*i}, v{vS+2*i+1}")
    A(f"v_permlane16_swap_b32 v{Pb}, v{X}")
    A(f"v_permlane16_swap_b32 v{Pb+1}, v{X+1}")
    for nt in range(2):
        d = vUm + 4 * nt
        A(f"v_cvt_pk_bf16_f32 v{vUb+8*nt+5}, v{d}, v{d+1}"); A(f"v_cvt_pk_bf16_f32 v{vUb+8*nt+7}, v{d+2}, v{d+3}")
    for i, src in enumerate((Pb, Pb + 1, X, X + 1)):
        A(f"v_mov_b32_dpp v{vP+i}, v{src} row_shr:8 row_mask:0xf bank_mask:0xc")
    for nt in range(2, 4):
        d = vUm + 4 * nt
        A(f"v_cvt_pk_bf16_f32 v{vUb+8*nt+5}, v{d}, v{d+1}"); A(f"v_cvt_pk_bf16_f32 v{vUb+8*nt+7}, v{d+2}, v{d+3}")
    PA = f"v[{vP}:{vP+3}]"
    lr = acc2 + 16
    A(f"v_smfmac_f32_16x16x64_bf16 v[{lr}:{lr+3}], {PA}, v[{vOne}:{vOne+7}], v{v_idx}")
    for nt in range(4):
        d = acc2 + 4 * nt
        A(f"v_smfmac_f32_16x16x64_bf16 v[{d}:{d+3}], {PA}, v[{vUb+8*nt}:{vUb+8*nt+7}], v{v_idx}")
    A("s_nop 3")
    lt = vS
    for r in range(4): A(f"v_mov_b32 v{lt+r}, v{lr+r}")
    A("s_nop 0")
    for r in range(4): A(f"v_permlane32_swap_b32 v{lr+r}, v{lt+r}")
    for r in range(4): A(f"v_add_f32 v{lr+r}, v{lr+r}, v{lt+r}")
    for r in range(4): A(f"v_rcp_f32 v{lr+r}, v{lr+r}")
    for st in range(2):
        d0 = acc2 + 8 * st
        for o in halves(d0, d0 + 4): A(o)
        for r in range(4): A(f"v_mul_f32 v{d0+r}, v{d0+r}, v{lr+r}")
        for r in range(4): A(f"ds_write_b32 v{v_w2}, v{d0+r} offset:{r*32+st*1280}")
    A("s_waitcnt lgkmcnt(0)")
    A("s_barrier")
    for p in range(4):
        A(f"ds_read_b64 v[{vB+2*p}:{vB+2*p+1}], v{v_r2} offset:{p*2560}")
    A("s_waitcnt lgkmcnt(2)")
    A(f"v_add_f32 v{vB}, v{vB}, v{vB+2}"); A(f"v_add_f32 v{vB+1}, v{vB+1}, v{vB+3}")
    A("s_waitcnt lgkmcnt(0)")
    A(f"v_add_f32 v{vB+4}, v{vB+4}, v{vB+6}"); A(f"v_add_f32 v{vB+5}, v{vB+5}, v{vB+7}")
    A(f"v_add_f32 v{vB}, v{vB}, v{vB+4}"); A(f"v_add_f32 v{vB+1}, v{vB+1}, v{vB+5}")
    A(f"v_cvt_pk_bf16_f32 v{vB+8}, v{vB}, v{vB+1}")
    A(f"v_min_u32 v{vB+8}, -2, v{vB+8}")
    A("s_nop 1")
    A(f"v_mov_b32_dpp v{vB+9}, v{vB+8} quad_perm:[1,1,1,1] row_mask:0xf bank_mask:0xf")
    A(f"v_mov_b32_dpp v{vB+10}, v{vB+8} quad_perm:[2,2,2,2] row_mask:0xf bank_mask:0xf")
    A(f"v_mov_b32_dpp v{vB+11}, v{vB+8} quad_perm:[3,3,3,3] row_mask:0xf bank_mask:0xf")
    A("s_mov_b32 exec_lo, 0x11111111"); A("s_mov_b32 exec_hi, 0x11111111")
    A(f"buffer_store_dwordx4 v[{vB+8}:{vB+11}], v{v_l4}, {WS}, s{s_partdst} offen sc1")
    A("s_mov_b64 exec, -1")
    stamp_t(3)
    A(f"s_add_u32 s{s_k}, s{s_k}, 262144")
    mf, cv = utok_ops()
    side = []
    if not notouch:
        side.append(f"buffer_load_dwordx4 v[{vTch}:{vTch+3}], v{v_l16}, {WS}, s{s_touch} offen")
        side.append(f"buffer_load_dwordx4 v[{vTch}:{vTch+3}], v{v_l16}, {WS}, s{s_touch2} offen sc1")
    if not nokv: side += kvload(vK, s_k)
    side += [f"v_mov_b32 v{acc1+r}, 0" for r in range(24)]
    interleave(A, mf, side, per=1)
    A("s_nop 7")
    for o in cv: A(o)
    if dlyB: A(f"s_sleep {dlyB}")
    stamp_t(6)
    A(f"s_add_u32 s{s_v}, s{s_v}, 262144")
    def pbloads():
        for q in range(8):
            sb = s_partsrc if q < 4 else s_partsrc2
            A(f"buffer_load_dword v{vB+q}, v{v_l4}, {WS}, s{sb} offen offset:{(q%4)*1024} sc1")
    A(f"s_mov_b32 s{s_pc}, {POLLMAX}")
    A.label(L('pb'))
    pbloads()
    A(f"s_sub_u32 s{s_pc}, s{s_pc}, 1")
    A(f"s_cbranch_scc1 {L('bail')}")
    hook('pb')
    A("s_waitcnt vmcnt(0)")
    for o in checkops(range(vB, vB + 8), L('pb'), v_t): A(o)
    stamp_t(4)
    lo, hi, x = vB + 8, vB + 9, vB + 10
    A(f"v_lshlrev_b32 v{lo}, 16, v{vB}")
    A(f"v_and_b32 v{hi}, 0xffff0000, v{vB}")
    for q in range(1, 8):
        A(f"v_lshlrev_b32 v{x}, 16, v{vB+q}")
        A(f"v_and_b32 v{x+1}, 0xffff0000, v{vB+q}")
        A(f"v_add_f32 v{lo}, v{lo}, v{x}")
        A(f"v_add_f32 v{hi}, v{hi}, v{x+1}")
    A(f"v_cvt_pk_bf16_f32 v{vPub+2}, v{lo}, v{hi}")
    A(f"v_min_u32 v{vPub+2}, -2, v{vPub+2}")
    A(f"buffer_store_dword v{vPub+2}, v{v_l4}, {WS}, s{s_memdst} offen")
    A(f"s_mov_b32 s{s_lastm}, s{s_memdst}")
    for r in (s_memsrc, s_qkvdst, s_qkvsrc, s_partdst, s_partsrc, s_partsrc2, s_memdst, s_touch2):
        A(f"s_add_u32 s{r}, s{r}, {CH_STEP}")
    A(f"s_add_u32 s{s_touch}, s{s_touch}, 262144")
    A(f"s_add_u32 s{s_step}, s{s_step}, 1")
    stamp_t(5)
    A(f"s_branch {L('loop')}")
    A.label(L('bail'))
    A(f"""
    v_mov_b32 v{v_t}, 48
    v_mov_b32 v{v_t+1}, 1
    s_mov_b64 exec, 1
    buffer_atomic_add v{v_t+1}, v{v_t}, {DBG}, 0 offen
    s_mov_b64 exec, -1
    """)
    A.label(L('fin'))
    if stamp:
        A("s_load_dwordx2 s[4:5], s[0:1], 80")
        A("s_memrealtime s[72:73]")
        A("s_waitcnt lgkmcnt(0)")
        make_srd(A, 24, 4, 1 << 20)
        A("s_sub_u32 s87, s72, s78")
        A("s_waitcnt vmcnt(0)")
        for k in range(8): A(f"v_mov_b32 v{vA+k}, s{80+k}")
        A(f"""
        s_lshl_b32 s{t0}, s{s_role}, 7
        s_lshl_b32 s{t1}, s{s_wave}, 5
        s_add_u32 s{t0}, s{t0}, s{t1}
        s_lshl_b32 s{t1}, s{t0}, 3
        s_add_u32 s{t1}, s{t1}, 65536
        buffer_store_dword v255, v{v_l4}, s[24:27], s{t1} offen
        v_mov_b32 v{v_t}, 0
        s_mov_b64 exec, 1
        buffer_store_dwordx4 v[{vA}:{vA+3}], v{v_t}, s[24:27], s{t0} offen
        buffer_store_dwordx4 v[{vA+4}:{vA+7}], v{v_t}, s[24:27], s{t0} offen offset:16
        """)
    A.label(L('end'))
    A("s_endpgm")
    return dict(lds=24576 + 4 * 32768)

if __name__ == "__main__":
    A = Asm()
    A.raw('.amdgcn_target "amdgcn-amd-amdhsa--gfx950"')
    hdr = []
    var = [dict(stamp=True, trace=True)]
    for i, d in enumerate(var):
        n = f"chain{i}_kernel"
        r = gen_chain(A, n, **d)
        hdr.append(f"; @launch kernel={n} grid=(256,1,1) block=(256,1,1) lds={r['lds']}")
    for i in range(len(var)):
        kernel_desc(A, f"chain{i}_kernel", 512, 102, accum=256)
    open("chain.s", "w").write("\n".join(hdr) + "\n" + A.text())
```

```python
from asmlib import *
from gemm import Gemm
from layout import *

def gen_kv(A, name="kv_kernel", stamp=False, cfg=None):
    kernel_begin(A, name)
    L = lambda s: f"{name}_{s}"
    A(f"""
    s_cmp_ge_u32 s2, 256
    s_cbranch_scc1 {L('end')}
    s_load_dwordx2 s[4:5], s[0:1], {KA_WK}
    s_load_dwordx2 s[6:7], s[0:1], {KA_WV}
    s_load_dwordx2 s[8:9], s[0:1], {KA_WS}
    s_memtime s[50:51]
    s_memrealtime s[58:59]
    s_load_dwordx2 s[60:61], s[0:1], {KA_OUT}
    v_lshrrev_b32 v1, 6, v0
    v_and_b32 v2, 63, v0
    s_and_b32 s10, s2, 7
    s_lshr_b32 s11, s2, 3
    v_readfirstlane_b32 s13, v1
    s_lshl_b32 s10, s10, 2
    s_and_b32 s12, s11, 3
    s_add_u32 s10, s10, s12          ; cb 0..31
    s_lshr_b32 s11, s11, 2           ; rb 0..7
    s_waitcnt lgkmcnt(0)
    s_cmp_ge_u32 s10, 16
    s_cselect_b32 s4, s6, s4
    s_cselect_b32 s5, s7, s5
    """)
    make_srd(A, 16, 8, WS_SIZE)
    make_srd(A, 20, 4, 1024 * 4096 * 2)
    A(f"""
    s_lshl_b32 s24, s11, 19          ; rb*256*2048
    s_add_u32 s24, s24, {WS_XN}
    s_and_b32 s25, s10, 15
    s_lshl_b32 s25, s25, 9
    s_cmp_ge_u32 s10, 16
    s_cbranch_scc1 {L('v')}
    """)
    g = Gemm(A, name, 256, 256, 4, 2, 2, 1024, 2048, 8192, vbase=4, sbase=30)
    def epi(base):
        t = g.v_wa[0]
        A(f"""
    v_lshlrev_b32 v3, 4, v2
    s_lshl_b32 s26, s11, 3
    s_lshl_b32 s27, s{g.s_wm}, 1
    s_add_u32 s26, s26, s27
    s_lshl_b32 s26, s26, 5
    s_and_b32 s27, s10, 15
    s_lshl_b32 s27, s27, 1
    s_add_u32 s27, s27, s{g.s_wn}    ; head
    s_add_u32 s26, s26, s27
    s_lshl_b32 s26, s26, 13
    s_add_u32 s26, s26, {base}
    s_nop 7
    """)
        cnt = 0
        for n in range(g.nt):
            for p in range(g.mt // 2):
                d = t + 4 * (cnt % 8); cnt += 1
                a0 = g.acc(2 * p, n); a1 = g.acc(2 * p + 1, n)
                A(f"v_cvt_pk_bf16_f32 v{d}, v{a0}, v{a0+1}")
                A(f"v_cvt_pk_bf16_f32 v{d+1}, v{a0+2}, v{a0+3}")
                A(f"v_cvt_pk_bf16_f32 v{d+2}, v{a1}, v{a1+1}")
                A(f"v_cvt_pk_bf16_f32 v{d+3}, v{a1+2}, v{a1+3}")
                A(f"buffer_store_dwordx4 v[{d}:{d+3}], v3, s[16:19], s26 offen offset:{1024*p}")
            A(f"s_add_u32 s26, s26, {4096 if n % 2 == 0 else 32*8192 - 4096}")
    g.setup(13, 2, 1)
    if stamp: A("s_memtime s[52:53]")
    g.mainloop(1, 16, 20, 24, 25)
    if stamp: A("s_memtime s[54:55]")
    epi(WS_K)
    if stamp:
        A("s_waitcnt vmcnt(0)")
        A("s_memtime s[56:57]")
        A("s_memrealtime s[62:63]")
        A("s_waitcnt lgkmcnt(0)")
        make_srd(A, 20, 60, 1 << 20)
        A("""
        s_sub_u32 s52, s52, s50
        s_sub_u32 s54, s54, s50
        s_sub_u32 s56, s56, s50
        s_sub_u32 s62, s62, s58
        v_mov_b32 v4, s52
        v_mov_b32 v5, s54
        v_mov_b32 v6, s56
        v_mov_b32 v7, s62
        s_lshl_b32 s26, s2, 7
        s_lshl_b32 s27, s13, 4
        s_add_u32 s26, s26, s27
        v_mov_b32 v3, 0
        s_mov_b64 exec, 1
        buffer_store_dwordx4 v[4:7], v3, s[20:23], s26 offen
        """)
    A("s_endpgm")
    A.label(L('v'))
    g.setup(13, 2, 0)
    g.mainloop(0, 16, 20, 24, 25)
    epi(WS_VT)
    A.label(L('end'))
    A("s_endpgm")
    return g

if __name__ == "__main__":
    A = Asm()
    A.raw('.amdgcn_target "amdgcn-amd-amdhsa--gfx950"')
    g = gen_kv(A, stamp=True)
    kernel_desc(A, "kv_kernel", g.v_end, 72)
    print("vgprs", g.v_end, "lds", g.lds_bytes)
    open("kv.s", "w").write(f"; @launch kernel=kv_kernel grid=(256,1,1) block=(512,1,1) lds={g.lds_bytes}\n" + A.text())
```

```python
from asmlib import *
from layout import *
from gemm import Gemm
import struct
def f2u(x): return struct.unpack("<I", struct.pack("<f", x))[0]

def wave_sum(A, v, t):
    for ctl in ("quad_perm:[1,0,3,2]", "quad_perm:[2,3,0,1]", "row_half_mirror", "row_mirror"):
        A("s_nop 1")
        A(f"v_add_f32_dpp v{v}, v{v}, v{v} {ctl} row_mask:0xf bank_mask:0xf")
    for sw in ("v_permlane16_swap_b32", "v_permlane32_swap_b32"):
        A(f"v_mov_b32 v{t}, v{v}")
        A("s_nop 1")
        A(f"{sw} v{v}, v{t}")
        A(f"v_add_f32 v{v}, v{v}, v{t}")

def rnd_bf16(A, v):
    A(f"v_cvt_pk_bf16_f32 v{v}, v{v}, v{v}")
    A(f"v_and_b32 v{v}, 0xffff0000, v{v}")

def ln_row(A, srd_in, s_in, srd_out, s_out, v_off):
    x = 8; f = 16; sm = 4; t = 5; mu = 6; r = 7
    A(f"buffer_load_dwordx4 v[{x}:{x+3}], v{v_off}, s[{srd_in}:{srd_in+3}], s{s_in} offen")
    A(f"buffer_load_dwordx4 v[{x+4}:{x+7}], v{v_off}, s[{srd_in}:{srd_in+3}], s{s_in} offen offset:1024")
    A("s_waitcnt vmcnt(0)")
    for i in range(8):
        A(f"v_lshlrev_b32 v{f+2*i}, 16, v{x+i}")
        A(f"v_and_b32 v{f+2*i+1}, 0xffff0000, v{x+i}")
    A(f"v_add_f32 v{sm}, v{f}, v{f+1}")
    for i in range(2, 16): A(f"v_add_f32 v{sm}, v{sm}, v{f+i}")
    wave_sum(A, sm, t)
    A(f"v_mul_f32 v{mu}, {f2u(1/1024):#x}, v{sm}")
    A(f"v_sub_f32 v{t}, v{f}, v{mu}")
    A(f"v_mul_f32 v{sm}, v{t}, v{t}")
    for i in range(1, 16):
        A(f"v_sub_f32 v{t}, v{f+i}, v{mu}")
        A(f"v_fmac_f32 v{sm}, v{t}, v{t}")
    wave_sum(A, sm, t)
    A(f"v_mul_f32 v{sm}, {f2u(1/1024):#x}, v{sm}")
    rnd_bf16(A, sm); rnd_bf16(A, mu)
    A(f"v_add_f32 v{sm}, {f2u(1e-5):#x}, v{sm}")
    rnd_bf16(A, sm)
    A(f"v_sqrt_f32 v{sm}, v{sm}")
    A("s_nop 0")
    rnd_bf16(A, sm)
    A(f"v_rcp_f32 v{r}, v{sm}")
    for i in range(16): A(f"v_sub_f32 v{f+i}, v{f+i}, v{mu}")
    for i in range(8):
        A(f"v_cvt_pk_bf16_f32 v{x+i}, v{f+2*i}, v{f+2*i+1}")
        A(f"v_lshlrev_b32 v{f+2*i}, 16, v{x+i}")
        A(f"v_and_b32 v{f+2*i+1}, 0xffff0000, v{x+i}")
        A(f"v_mul_f32 v{f+2*i}, v{f+2*i}, v{r}")
        A(f"v_mul_f32 v{f+2*i+1}, v{f+2*i+1}, v{r}")
        A(f"v_cvt_pk_bf16_f32 v{x+i}, v{f+2*i}, v{f+2*i+1}")
    A(f"buffer_store_dwordx4 v[{x}:{x+3}], v{v_off}, s[{srd_out}:{srd_out+3}], s{s_out} offen")
    A(f"buffer_store_dwordx4 v[{x+4}:{x+7}], v{v_off}, s[{srd_out}:{srd_out+3}], s{s_out} offen offset:1024")

def gen_prep(A, name="prep_kernel"):
    kernel_begin(A, name)
    L = lambda s: f"{name}_{s}"
    FILL = CH_STEP * 65
    per = FILL // 512
    A(f"""
    s_cmp_ge_u32 s2, 512
    s_cbranch_scc1 {L('end')}
    s_load_dwordx4 s[4:7], s[0:1], {KA_X}
    s_load_dwordx2 s[8:9], s[0:1], {KA_WS}
    v_lshrrev_b32 v1, 6, v0
    v_and_b32 v2, 63, v0
    v_lshlrev_b32 v3, 4, v2
    v_readfirstlane_b32 s13, v1
    s_waitcnt lgkmcnt(0)
    """)
    make_srd(A, 16, 4, 2048 * 2048)
    make_srd(A, 20, 8, WS_SIZE)
    make_srd(A, 24, 6, 16384)
    A(f"""
    v_mov_b32 v40, -1
    v_mov_b32 v41, -1
    v_mov_b32 v42, -1
    v_mov_b32 v43, -1
    v_lshlrev_b32 v44, 4, v0
    s_mul_i32 s32, s2, {512*1024 // 8 * 8 // 512 * 0 + 66560}
    s_add_u32 s32, s32, {WS_CH + 131072}
    """)
    for i in range(17):
        if i == 16:
            A("v_cmp_gt_u32 vcc, 64, v0"); A("s_and_saveexec_b64 s[30:31], vcc")
        A(f"buffer_store_dwordx4 v[40:43], v44, s[20:23], s32 offen")
        A(f"s_add_u32 s32, s32, 4096")
    A("s_mov_b64 exec, s[30:31]")
    A(f"s_cmp_ge_u32 s2, 8")
    A(f"s_cbranch_scc1 {L('ln')}")
    A(f"""
    v_and_b32 v4, 7, v2
    v_lshlrev_b32 v4, 11, v4              ; row*2048
    v_lshrrev_b32 v5, 4, v2
    v_lshl_add_u32 v4, v5, 5, v4          ; kg*32
    v_bfe_u32 v5, v2, 3, 1
    v_lshl_add_u32 v4, v5, 4, v4          ; hi*16
    v_lshl_add_u32 v4, v1, 7, v4
    s_lshl_b32 s32, s2, 14
    s_add_u32 s32, s32, {WS_CH + CH_MEM}
    """)
    for i in range(4):
        A(f"buffer_load_dwordx4 v[{8+4*i}:{11+4*i}], v4, s[24:27], 0 offen offset:{i*512}")
    A("s_waitcnt vmcnt(0)")
    for r in range(8, 24): A(f"v_min_u32 v{r}, -2, v{r}")
    for i in range(4):
        A(f"buffer_store_dwordx4 v[{8+4*i}:{11+4*i}], v44, s[20:23], s32 offen")
        A(f"s_add_u32 s32, s32, 4096")
    A("s_nop 1")
    A.label(L('ln'))
    A(f"""
    s_lshl_b32 s32, s2, 2
    s_add_u32 s32, s32, s13
    s_lshl_b32 s32, s32, 11
    s_add_u32 s33, s32, {WS_XN}
    """)
    ln_row(A, 16, 32, 20, 33, 3)
    A.label(L('end'))
    A("s_endpgm")
    return dict(vgpr=48, grid=512, block=256, lds=0)

def gen_ln2(A, name="ln2_kernel"):
    kernel_begin(A, name)
    L = lambda s: f"{name}_{s}"
    A(f"""
    s_cmp_ge_u32 s2, 512
    s_cbranch_scc1 {L('end')}
    s_load_dwordx2 s[8:9], s[0:1], {KA_WS}
    v_lshrrev_b32 v1, 6, v0
    v_and_b32 v2, 63, v0
    v_lshlrev_b32 v3, 4, v2
    v_readfirstlane_b32 s13, v1
    s_waitcnt lgkmcnt(0)
    """)
    make_srd(A, 20, 8, WS_SIZE)
    A(f"""
    s_lshl_b32 s26, s2, 2
    s_add_u32 s26, s26, s13
    s_lshl_b32 s26, s26, 11
    s_add_u32 s27, s26, {WS_HN}
    s_add_u32 s26, s26, {WS_H}
    """)
    ln_row(A, 20, 26, 20, 27, 3)
    A.label(L('end'))
    A("s_endpgm")
    return dict(vgpr=48, grid=512, block=256, lds=0)

def gemm_prologue(A, L, nwg, ka_w, extra_ka=()):
    A(f"""
    s_cmp_ge_u32 s2, {nwg}
    s_cbranch_scc1 {L('end')}
    s_load_dwordx2 s[4:5], s[0:1], {ka_w}
    s_load_dwordx2 s[8:9], s[0:1], {KA_WS}
    """)
    for (sr_, ka) in extra_ka: A(f"s_load_dwordx2 s[{sr_}:{sr_+1}], s[0:1], {ka}")
    A("""
    v_lshrrev_b32 v1, 6, v0
    v_and_b32 v2, 63, v0
    s_nop 0
    v_readfirstlane_b32 s13, v1
    s_waitcnt lgkmcnt(0)
    """)
    make_srd(A, 16, 8, WS_SIZE)

def gen_resgemm(A, name, ka_w, K, ws_x, res_from_x, to_out):
    kernel_begin(A, name)
    L = lambda s: f"{name}_{s}"
    gemm_prologue(A, L, 256, ka_w, [(6, KA_X if res_from_x else KA_OUT)])
    make_srd(A, 20, 4, K * 1024 * 2)
    make_srd(A, 28, 6, 2048 * 2048)
    A(f"""
    s_and_b32 s10, s2, 7
    s_lshr_b32 s11, s2, 3                 ; 0..31
    s_lshl_b32 s10, s10, 1
    s_lshr_b32 s12, s11, 4
    s_add_u32 s10, s10, s12               ; rb 0..15
    s_and_b32 s11, s11, 15                ; cb 0..15
    s_mul_i32 s24, s10, {128*K*2}
    s_add_u32 s24, s24, {ws_x}
    s_lshl_b32 s25, s11, 7
    """)
    g = Gemm(A, name, 128, 64, 4, 2, 4, K, K * 2, 2048, vbase=4, sbase=40, kperm=True)
    g.setup(13, 2, 0)
    vr_, vs_ = g.v_end, g.v_end + 1
    R = (g.v_end + 3) // 2 * 2
    A(f"""
    v_and_b32 v3, 15, v2
    v_lshlrev_b32 v3, 11, v3
    v_lshrrev_b32 v{vs_}, 4, v2
    v_lshl_add_u32 v{vr_}, v{vs_}, 3, v3
    v_lshl_add_u32 v{vs_}, v{vs_}, 4, v3
    s_lshl_b32 s26, s10, 7
    s_lshl_b32 s27, s{g.s_wm}, 5
    s_add_u32 s26, s26, s27
    s_lshl_b32 s26, s26, 11
    s_add_u32 s26, s26, s25
    s_lshl_b32 s27, s{g.s_wn}, 6
    s_add_u32 s26, s26, s27
    s_add_u32 s27, s26, {WS_H}
    s_add_u32 s32, s26, {16*2048}
    s_add_u32 s33, s27, {16*2048}
    """)
    rs, so = ("s[28:31]", (26, 32)) if res_from_x else ("s[16:19]", (27, 33))
    for n in range(2):
        for t in range(2):
            A(f"buffer_load_dwordx2 v[{R+4*n+2*t}:{R+4*n+2*t+1}], v{vr_}, {rs}, s{so[n]} offen offset:{t*32}")
    g.mainloop(0, 16, 20, 24, 25)
    A("s_nop 7")
    t_ = g.v_wa[0]
    os_, oo = ("s[28:31]", (26, 32)) if to_out else ("s[16:19]", (27, 33))
    for n in range(2):
        d = t_ + 8 * n
        for t in range(2):
            a = g.acc(t, n)
            for h in range(2):
                rr = R + 4 * n + 2 * t + h
                A(f"v_cvt_pk_bf16_f32 v{d+4}, v{a+2*h}, v{a+2*h+1}")
                A(f"v_lshlrev_b32 v{d+5}, 16, v{d+4}")
                A(f"v_and_b32 v{d+4}, 0xffff0000, v{d+4}")
                A(f"v_lshlrev_b32 v{d+6}, 16, v{rr}")
                A(f"v_and_b32 v{d+7}, 0xffff0000, v{rr}")
                A(f"v_add_f32 v{d+5}, v{d+5}, v{d+6}")
                A(f"v_add_f32 v{d+4}, v{d+4}, v{d+7}")
                A(f"v_cvt_pk_bf16_f32 v{d+2*t+h}, v{d+5}, v{d+4}")
        A("s_nop 1")
        A(f"v_permlane32_swap_b32 v{d}, v{d+2}"); A(f"v_permlane32_swap_b32 v{d+1}, v{d+3}")
        A("s_nop 1")
        A(f"v_permlane16_swap_b32 v{d}, v{d+2}"); A(f"v_permlane16_swap_b32 v{d+1}, v{d+3}")
        A(f"buffer_store_dwordx4 v[{d}:{d+3}], v{vs_}, {os_}, s{oo[n]} offen")
    A.label(L('end'))
    A("s_endpgm")
    return dict(vgpr=R + 8, grid=256, block=512, lds=g.lds_bytes)

def gen_ffn1(A, name="ffn1_kernel"):
    kernel_begin(A, name)
    L = lambda s: f"{name}_{s}"
    gemm_prologue(A, L, 224, KA_W1)
    make_srd(A, 20, 4, 1024 * 3584 * 2)
    A(f"""
    s_and_b32 s10, s2, 7
    s_lshr_b32 s11, s2, 3
    s_lshl_b32 s24, s10, 19
    s_add_u32 s24, s24, {WS_HN}
    s_lshl_b32 s25, s11, 8
    """)
    g = Gemm(A, name, 256, 128, 4, 2, 2, 1024, 2048, 7168, vbase=4, sbase=40)
    g.setup(13, 2, 0)
    g.mainloop(0, 16, 20, 24, 25)
    t_ = g.v_wa[0]
    A(f"""
    v_and_b32 v3, 15, v2
    v_mul_u32_u24 v3, 7168, v3
    v_lshrrev_b32 v1, 4, v2
    v_lshl_add_u32 v3, v1, 4, v3
    s_lshl_b32 s26, s10, 8
    s_lshl_b32 s27, s{g.s_wm}, 6
    s_add_u32 s26, s26, s27
    s_mul_i32 s26, s26, 7168
    s_lshl_b32 s27, s11, 8
    s_add_u32 s26, s26, s27
    s_lshl_b32 s27, s{g.s_wn}, 7
    s_add_u32 s26, s26, s27
    s_add_u32 s26, s26, {WS_F1}
    s_mov_b32 s28, {f2u(-1.4426950408889634):#x}
    s_nop 4
    """)
    cnt = 0
    for n in range(g.nt):
        for p in range(g.mt // 2):
            d = t_ + 4 * (cnt % 4); cnt += 1
            e = g.v_xb[0]
            for t in range(2):
                a = g.acc(2 * p + t, n)
                for h in range(2):
                    A(f"v_cvt_pk_bf16_f32 v{e}, v{a+2*h}, v{a+2*h+1}")
                    A(f"v_lshlrev_b32 v{a+2*h}, 16, v{e}")
                    A(f"v_and_b32 v{a+2*h+1}, 0xffff0000, v{e}")
                for r in range(4): A(f"v_mul_f32 v{e+r}, s28, v{a+r}")
                for r in range(4): A(f"v_exp_f32 v{e+r}, v{e+r}")
                A("s_nop 0")
                for r in range(4): A(f"v_add_f32 v{e+r}, 1.0, v{e+r}")
                for r in range(4): A(f"v_rcp_f32 v{e+r}, v{e+r}")
                A("s_nop 0")
                for r in range(4): A(f"v_mul_f32 v{a+r}, v{a+r}, v{e+r}")
                A(f"v_cvt_pk_bf16_f32 v{d+2*t}, v{a}, v{a+1}")
                A(f"v_cvt_pk_bf16_f32 v{d+2*t+1}, v{a+2}, v{a+3}")
            A(f"buffer_store_dwordx4 v[{d}:{d+3}], v3, s[16:19], s26 offen offset:{64*p}")
        A(f"s_add_u32 s26, s26, {16*7168}")
    A.label(L('end'))
    A("s_endpgm")
    return dict(vgpr=g.v_end, grid=224, block=512, lds=g.lds_bytes)

SC = (128 ** -0.5) * 1.4426950408889634
def gen_qattn(A, name="qattn_kernel"):
    kernel_begin(A, name)
    L = lambda s: f"{name}_{s}"
    gemm_prologue(A, L, 256, KA_WQ)
    make_srd(A, 20, 4, 1024 * 4096 * 2)
    A(f"""
    s_and_b32 s10, s2, 7
    s_lshr_b32 s11, s2, 3
    s_lshl_b32 s10, s10, 2
    s_and_b32 s12, s11, 3
    s_add_u32 s10, s10, s12               ; head
    s_lshr_b32 s11, s11, 2                ; rb
    s_lshl_b32 s24, s11, 19
    s_add_u32 s24, s24, {WS_XN}
    s_lshl_b32 s25, s10, 8
    """)
    g = Gemm(A, name, 256, 128, 8, 1, 2, 1024, 2048, 8192, vbase=4, sbase=40)
    g.setup(13, 2, 0)
    vK = g.v_end + (4 - g.v_end % 4) % 4
    vR = vK + 32
    vl16 = vR + 16; vl16b = vl16 + 1; vtrv = vl16 + 2; vtrm = vl16 + 3; vthr = vl16 + 4; vo_ = vl16 + 5; vt = vl16 + 6
    NV = vt + 8
    A(f"""
    v_lshlrev_b32 v{vl16}, 4, v2
    v_add_u32 v{vl16b}, 0x1000, v{vl16}
    s_lshl_b32 s26, s11, 3
    s_add_u32 s26, s26, s13               ; seg
    s_lshl_b32 s27, s26, 5
    s_add_u32 s27, s27, s10
    s_lshl_b32 s27, s27, 13               ; (seg*32+h)*8192
    s_add_u32 s28, s27, {WS_K}
    s_add_u32 s29, s27, {WS_VT}
    s_lshl_b32 s30, s26, 19               ; seg*CH_STEP
    s_lshl_b32 s31, s10, 13
    s_add_u32 s30, s30, s31
    s_add_u32 s30, s30, {WS_CH + CH_QKV}
    s_mov_b32 s34, {f2u(SC):#x}
    s_mov_b32 s36, 0
    s_mov_b32 s37, -1
    s_mov_b32 s38, -1
    s_mov_b32 s39, 0
    """)
    assert CH_STEP == 1 << 19
    for i in range(8):
        A(f"buffer_load_dwordx4 v[{vK+4*i}:{vK+4*i+3}], v{vl16 if i < 4 else vl16b}, s[16:19], s28 offen offset:{(i%4)*1024}")
    for i in range(4):
        A(f"buffer_load_dwordx4 v[{vR+4*i}:{vR+4*i+3}], v{vl16}, s[16:19], s30 offen offset:{i*1024}")
    g.mainloop(0, 16, 20, 24, 25)
    A("s_barrier")
    A("s_mul_i32 s31, s13, 10240")
    for i in range(10):
        A(f"s_add_u32 m0, s31, {i*1024}")
        if i < 8: A(f"s_add_u32 s35, s29, {i*1024}")
        else:     A(f"s_add_u32 s35, s30, {6144 + (i-8)*1024}")
        A(f"buffer_load_dwordx4 v{vl16}, s[16:19], s35 offen lds")
    n_, g_ = vt, vt + 1
    A(f"""
    v_and_b32 v{n_}, 15, v2
    v_lshrrev_b32 v{g_}, 4, v2
    v_lshrrev_b32 v{vt+2}, 1, v{g_}
    v_lshlrev_b32 v{vtrv}, 12, v{vt+2}
    v_and_b32 v{vt+2}, 3, v{n_}
    v_lshl_add_u32 v{vtrv}, v{vt+2}, 8, v{vtrv}
    v_and_b32 v{vt+3}, 1, v{g_}
    v_lshl_add_u32 v{vtrv}, v{vt+3}, 7, v{vtrv}
    v_lshrrev_b32 v{vt+4}, 2, v{n_}
    v_lshl_add_u32 v{vtrv}, v{vt+4}, 4, v{vtrv}
    v_add_u32 v{vtrv}, s31, v{vtrv}
    v_lshl_add_u32 v{vtrm}, v{vt+3}, 2, v{vt+4}
    v_lshlrev_b32 v{vtrm}, 8, v{vtrm}
    v_lshl_add_u32 v{vtrm}, v{vt+2}, 4, v{vtrm}
    v_add_u32 v{vtrm}, s31, v{vtrm}
    v_add_u32 v{vtrm}, 0x2000, v{vtrm}
    v_lshlrev_b32 v{vt+2}, 3, v{g_}
    v_sub_u32 v{vthr}, v{n_}, v{vt+2}
    v_lshlrev_b32 v{vo_}, 13, v{n_}
    v_lshl_add_u32 v{vo_}, v{g_}, 4, v{vo_}
    s_lshl_b32 s32, s26, 18               ; seg*32*8192
    s_lshl_b32 s33, s10, 8
    s_add_u32 s32, s32, s33
    s_add_u32 s32, s32, {WS_O}
    """)
    Qb = g.v_wa[0]
    for n in range(2):
        for ks in range(4):
            d = Qb + (n * 4 + ks) * 4; a0 = g.acc(2 * ks, n); a1 = g.acc(2 * ks + 1, n)
            A(f"v_cvt_pk_bf16_f32 v{d}, v{a0}, v{a0+1}"); A(f"v_cvt_pk_bf16_f32 v{d+1}, v{a0+2}, v{a0+3}")
            A(f"v_cvt_pk_bf16_f32 v{d+2}, v{a1}, v{a1+1}"); A(f"v_cvt_pk_bf16_f32 v{d+3}, v{a1+2}, v{a1+3}")
    S = g.v_acc
    P = g.v_acc + 24
    A("s_nop 1")
    for n in range(2):
        for ks in range(4):
            for t in range(3):
                d = S + 12 * n + 4 * t
                Aop = f"v[{vR+4*ks}:{vR+4*ks+3}]" if t == 2 else f"v[{vK+(t*4+ks)*4}:{vK+(t*4+ks)*4+3}]"
                q = Qb + (n * 4 + ks) * 4
                C = "0" if ks == 0 else f"v[{d}:{d+3}]"
                A(f"v_mfma_f32_16x16x32_bf16 v[{d}:{d+3}], {Aop}, v[{q}:{q+3}], {C}")
    A("s_nop 7")
    mx, tt = vt + 2, vt + 3
    rl = [vt + 4, vt + 5]
    A(f"v_mov_b32 v{vt+6}, 0xff800000")
    for n in range(2):
        s_ = S + 12 * n
        if n == 1: A(f"v_add_u32 v{vthr}, 16, v{vthr}")
        for o in range(8):
            A(f"v_cmp_gt_i32 vcc, {o}, v{vthr}")
            A("s_nop 1")
            A(f"v_cndmask_b32 v{s_+o}, v{s_+o}, v{vt+6}, vcc")
        A(f"""
        v_max3_f32 v{mx}, v{s_}, v{s_+1}, v{s_+2}
        v_max3_f32 v{mx}, v{mx}, v{s_+3}, v{s_+4}
        v_max3_f32 v{mx}, v{mx}, v{s_+5}, v{s_+6}
        v_max_f32 v{mx}, v{mx}, v{s_+7}
        s_mov_b64 exec, s[36:37]
        v_max3_f32 v{mx}, v{mx}, v{s_+8}, v{s_+9}
        v_max3_f32 v{mx}, v{mx}, v{s_+10}, v{s_+11}
        s_mov_b64 exec, -1
        v_mov_b32 v{tt}, v{mx}
        s_nop 1
        v_permlane32_swap_b32 v{mx}, v{tt}
        v_max_f32 v{mx}, v{mx}, v{tt}
        v_mov_b32 v{tt}, v{mx}
        s_nop 1
        v_permlane16_swap_b32 v{mx}, v{tt}
        v_max_f32 v{mx}, v{mx}, v{tt}
        v_mul_f32 v{mx}, s34, v{mx}
        """)
        for i in range(12): A(f"v_fma_f32 v{s_+i}, v{s_+i}, s34, -v{mx}")
        for i in range(12): A(f"v_exp_f32 v{s_+i}, v{s_+i}")
        A("s_mov_b64 exec, s[38:39]")
        for i in range(4): A(f"v_mov_b32 v{s_+8+i}, 0")
        A("s_mov_b64 exec, -1")
        sm = rl[n]
        A(f"v_add_f32 v{sm}, v{s_}, v{s_+1}")
        for i in range(2, 12): A(f"v_add_f32 v{sm}, v{sm}, v{s_+i}")
        for sw in ("v_permlane32_swap_b32", "v_permlane16_swap_b32"):
            A(f"v_mov_b32 v{tt}, v{sm}"); A("s_nop 1"); A(f"{sw} v{sm}, v{tt}"); A(f"v_add_f32 v{sm}, v{sm}, v{tt}")
        A(f"v_rcp_f32 v{sm}, v{sm}")
        A("s_nop 0")
        for i in range(12): A(f"v_mul_f32 v{s_+i}, v{s_+i}, v{sm}")
        for i in range(6): A(f"v_cvt_pk_bf16_f32 v{P+8*n+i}, v{s_+2*i}, v{s_+2*i+1}")
    A("s_waitcnt vmcnt(0)")
    O = g.v_acc + 40
    for p in range(4):
        fb = vK + 16 * (p & 1)
        for t in range(2):
            for u in range(2):
                A(f"ds_read_b64_tr_b16 v[{fb+4*t+2*u}:{fb+4*t+2*u+1}], v{vtrv} offset:{p*1024 + 8*t + 64*u}")
            A(f"ds_read_b64_tr_b16 v[{fb+8+2*t}:{fb+8+2*t+1}], v{vtrm} offset:{p*64 + 8*t}")
        A("s_waitcnt lgkmcnt(0)")
        ob = O + 16 * 0
        for n in range(2):
            for t in range(2):
                d = ob + (n * 2 + t) * 4
                A(f"v_mfma_f32_16x16x32_bf16 v[{d}:{d+3}], v[{fb+4*t}:{fb+4*t+3}], v[{P+8*n}:{P+8*n+3}], 0")
        A("s_nop 3")
        for n in range(2):
            for t in range(2):
                d = ob + (n * 2 + t) * 4
                A(f"v_mfma_f32_16x16x16_bf16 v[{d}:{d+3}], v[{fb+8+2*t}:{fb+8+2*t+1}], v[{P+8*n+4}:{P+8*n+5}], v[{d}:{d+3}]")
        A("s_nop 7")
        for n in range(2):
            d = vR + 8 * (p & 1) + 4 * n
            a0 = ob + n * 8; a1 = a0 + 4
            A(f"v_cvt_pk_bf16_f32 v{d}, v{a0}, v{a0+1}"); A(f"v_cvt_pk_bf16_f32 v{d+1}, v{a0+2}, v{a0+3}")
            A(f"v_cvt_pk_bf16_f32 v{d+2}, v{a1}, v{a1+1}"); A(f"v_cvt_pk_bf16_f32 v{d+3}, v{a1+2}, v{a1+3}")
            if n == 0: A(f"buffer_store_dwordx4 v[{d}:{d+3}], v{vo_}, s[16:19], s32 offen offset:{64*p}")
            else:
                A(f"s_add_u32 s33, s32, {16*8192}")
                A(f"buffer_store_dwordx4 v[{d}:{d+3}], v{vo_}, s[16:19], s33 offen offset:{64*p}")
    A.label(L('end'))
    A("s_endpgm")
    return dict(vgpr=NV, grid=256, block=512, lds=g.lds_bytes)
```

```python
MB = 1 << 20
WS_XN  = 0
WS_K   = 4 * MB
WS_VT  = 20 * MB
WS_O   = 36 * MB
WS_H   = 52 * MB
WS_HN  = 56 * MB
WS_F1  = 60 * MB
WS_DUMMY = 79 * MB
WS_CH  = 80 * MB
WS_SIZE = 256 * MB
KA_X, KA_MEM0, KA_WQ, KA_WK, KA_WV, KA_WO, KA_SEG, KA_BX, KA_W1, KA_W2, KA_OUT, KA_DBG, KA_WS = [8*i for i in range(13)]
HB = 8192
CH_MEM  = 0
CH_QKV  = 131072
CH_PART = 131072 + 262144
CH_STEP = 524288
CH_STEPS = 64
```

```python
import sys
from asmlib import *
from layout import *
from k_misc import *
from k_kv import gen_kv
from k_chain2 import gen_chain
NAME = "sequential_preLN__memory_aug_recurrent_mem_tr__dense_activation_silu__prompt"
ref = open(f"cdna_kernels/{NAME}.s.ref").read().split("\n")
head = [l for l in ref if l.startswith(";") and "@launch" not in l and "Override launch" not in l and "grid=ceil" not in l]
A = Asm()
A.raw('.amdgcn_target "amdgcn-amd-amdhsa--gfx950"')
ks = []
r = gen_prep(A); ks.append(("prep_kernel", r, None))
g = gen_kv(A); ks.append(("kv_kernel", dict(vgpr=g.v_end, grid=256, block=512, lds=g.lds_bytes), None))
r = gen_chain(A, "chain_kernel"); ks.append(("chain_kernel", dict(vgpr=512, grid=256, block=256, lds=r['lds']), 256))
r = gen_qattn(A); ks.append(("qattn_kernel", r, None))
r = gen_resgemm(A, "wo_kernel", KA_WO, 4096, WS_O, True, False); ks.append(("wo_kernel", r, None))
r = gen_ln2(A); ks.append(("ln2_kernel", r, None))
r = gen_ffn1(A); ks.append(("ffn1_kernel", r, None))
r = gen_resgemm(A, "ffn2_kernel", KA_W2, 3584, WS_F1, False, True); ks.append(("ffn2_kernel", r, None))
for n, r, acc in ks:
    print(n, r)
    kernel_desc(A, n, r['vgpr'], 102, accum=acc)
hdr = head + [f"; @launch kernel={n} grid=({r['grid']},1,1) block=({r['block']},1,1) lds={r['lds']}" for n, r, _ in ks]
out = sys.argv[1] if len(sys.argv) > 1 else f"cdna_kernels/{NAME}.s"
open(out, "w").write("\n".join(hdr) + "\n" + A.text())
```

```python
class Asm:
    def __init__(self):
        self.lines = []
        self._lab = 0
    def __call__(self, s):
        for l in s.strip("\n").split("\n"):
            l = l.strip()
            if not l:
                continue
            if l.endswith(":"):
                self.lines.append(l)
            else:
                self.lines.append(" " + l.split(";")[0].rstrip())
    def label(self, name):
        self.lines.append(name + ":")
    def newlabel(self, pfx="L"):
        self._lab += 1
        return f"{pfx}_{self._lab}"
    def raw(self, s):
        self.lines.append(s)
    def text(self):
        return "\n".join(self.lines) + "\n"

def vr(a, n=1):
    return f"v{a}" if n == 1 else f"v[{a}:{a+n-1}]"
def sr(a, n=1):
    return f"s{a}" if n == 1 else f"s[{a}:{a+n-1}]"
def ar(a, n=1):
    return f"a{a}" if n == 1 else f"a[{a}:{a+n-1}]"

def kernel_begin(A, name):
    A.raw(".text")
    A.raw(f".globl {name}")
    A.raw(".p2align 8")
    A.raw(f".type {name},@function")
    A.raw(f"{name}:")

def kernel_desc(A, name, vgpr, sgpr=102, accum=None, kernarg=104, wgy=False):
    if accum is None:
        accum = (vgpr + 3) // 4 * 4
        if accum > 256: accum = 256
    A.raw('.section .rodata,"a"')
    A.raw(".p2align 6")
    A.raw(f".amdhsa_kernel {name}")
    A.raw(f"  .amdhsa_next_free_vgpr {vgpr}")
    A.raw(f"  .amdhsa_next_free_sgpr {sgpr}")
    A.raw(f"  .amdhsa_accum_offset {accum}")
    A.raw("  .amdhsa_group_segment_fixed_size 0")
    A.raw(f"  .amdhsa_kernarg_size {kernarg}")
    A.raw("  .amdhsa_user_sgpr_count 2")
    A.raw("  .amdhsa_user_sgpr_kernarg_segment_ptr 1")
    A.raw("  .amdhsa_system_sgpr_workgroup_id_x 1")
    if wgy:
        A.raw("  .amdhsa_system_sgpr_workgroup_id_y 1")
    A.raw(".end_amdhsa_kernel")

def make_srd(A, d, b, nbytes):
    A(f"s_mov_b32 s{d}, s{b}")
    A(f"s_and_b32 s{d+1}, s{b+1}, 0xffff")
    A(f"s_mov_b32 s{d+2}, {nbytes:#x}")
    A(f"s_mov_b32 s{d+3}, 0x00020000")

import re
MACROS = """.macro MF c,a,b
 v_mfma_f32_16x16x32_bf16 \\c,\\a,\\b,\\c
.endm
.macro TR d,e,a,o
 ds_read_b64_tr_b16 v[\\d:\\e],v\\a offset:\\o
.endm
.macro RB d,e,a,o
 ds_read_b128 v[\\d:\\e],v\\a offset:\\o
.endm
.macro DM m,c,v,r,s,x:vararg
 s_add_u32 m0,s\\m,\\c
 s_nop 0
 buffer_load_dwordx4 v\\v,\\r,s\\s offen \\x
.endm
.macro CV d,a,b
 v_cvt_pk_bf16_f32 v\\d,v\\a,v\\b
.endm
.macro AR d,a
 v_accvgpr_read_b32 v\\d,a\\a
.endm
.macro AW a
 v_accvgpr_write_b32 a\\a,0
.endm
"""
def compress(text):
    t = text
    t = re.sub(r" v_mfma_f32_16x16x32_bf16 ([av]\[\d+:\d+\]), ([av]\[\d+:\d+\]), ([av]\[\d+:\d+\]), \1\n", r" MF \1,\2,\3\n", t)
    t = re.sub(r" ds_read_b64_tr_b16 v\[(\d+):(\d+)\], v(\d+) offset:(\d+)\n", r" TR \1,\2,\3,\4\n", t)
    t = re.sub(r" ds_read_b128 v\[(\d+):(\d+)\], v(\d+) offset:(\d+)\n", r" RB \1,\2,\3,\4\n", t)
    t = re.sub(r" s_add_u32 m0, s(\d+), (\d+)\n s_nop 0\n buffer_load_dwordx4 v(\d+), (s\[\d+:\d+\]), s(\d+) offen ((?:sc1 )?(?:nt )?lds)\n", r" DM \1,\2,\3,\4,\5,\6\n", t)
    t = re.sub(r" v_cvt_pk_bf16_f32 v(\d+), v(\d+), v(\d+)\n", r" CV \1,\2,\3\n", t)
    t = re.sub(r" v_accvgpr_read_b32 v(\d+), a(\d+)\n", r" AR \1,\2\n", t)
    t = re.sub(r" v_accvgpr_write_b32 a(\d+), 0\n", r" AW \1\n", t)
    first, rest = t.split("\n", 1)
    return first + "\n" + MACROS + rest
```

```python
from asmlib import *

class Gemm:
    def __init__(self, A, pfx, BM, BN, WM, WN, NS, K, ldx, ldw, vbase, sbase, lds_base=0, kperm=False, agpr=False, spread=1, xsc1=False):
        self.agpr = agpr; self.spread = spread; self.xsc = ' sc1' if xsc1 else ''
        self.A = A; self.pfx = pfx
        self.BM, self.BN, self.WM, self.WN, self.NS, self.K = BM, BN, WM, WN, NS, K
        self.ldx, self.ldw = ldx, ldw
        self.NW = WM * WN
        self.TM = BM // WM; self.TN = BN // WN
        self.nt = self.TM // 16; self.mt = self.TN // 16
        self.mh = min(4, self.mt)
        self.UPK = self.mt // self.mh
        self.U = 2 * self.UPK
        self.XS = BM * 128; self.WS = 64 * BN * 2
        self.ldsX = lds_base; self.ldsW = lds_base + NS * self.XS
        self.lds_bytes = NS * (self.XS + self.WS)
        assert NS * self.XS <= 131072 and NS * self.WS <= 65536
        self.nX = BM // 8 // self.NW; self.nW = BN // 8 // self.NW
        assert self.nX * 8 * self.NW == BM and self.nW * 8 * self.NW == BN
        self.nD = self.nX + self.nW
        self.KS = K // 64
        self.kperm = kperm
        v = vbase
        if agpr: self.v_acc = 0
        else:
            self.v_acc = v; v += self.mt * self.nt * 4
        self.v_wa = [v, v + self.mh * 4]; v += 2 * self.mh * 4
        self.v_xb = [v, v + self.nt * 4]; v += 2 * self.nt * 4
        self.v_xr = v; v += 2
        self.v_xr2 = v; v += 2
        self.v_wr = v; v += self.mt
        self.v_dx = v; v += self.nX
        self.v_dw = v; v += self.nW
        self.v_tmp = v; v += 6
        self.v_end = v
        s = sbase
        self.s_mx = s; self.s_mw = s + 1; self.s_cnt = s + 2; self.s_wm = s + 3; self.s_wn = s + 4; self.s_t = s + 5
        self.s_end = s + 8

    def acc(self, m, n):
        return self.v_acc + (m * self.nt + n) * 4

    def setup(self, s_wave, v_lane, vmode, nat_as_perm=False):
        if nat_as_perm: vmode = 1
        A = self.A; t = self.v_tmp
        BN = self.BN
        import math
        lwn = int(math.log2(self.WN))
        A(f"s_lshr_b32 s{self.s_wm}, s{s_wave}, {lwn}")
        A(f"s_and_b32 s{self.s_wn}, s{s_wave}, {self.WN-1}")
        A(f"v_and_b32 v{t}, 15, v{v_lane}")
        A(f"v_lshrrev_b32 v{t+1}, 4, v{v_lane}")
        A(f"v_lshrrev_b32 v{t+2}, 1, v{t}")
        A(f"v_xor_b32 v{t+2}, v{t+2}, v{t+1}")
        if vmode:
            A(f"v_lshrrev_b32 v{t+3}, 2, v{t}")
            A(f"v_lshlrev_b32 v{t+3}, 3, v{t+3}")
            A(f"v_and_b32 v{t+4}, 3, v{t}")
            A(f"v_add_u32 v{t+3}, v{t+3}, v{t+4}")
        else:
            A(f"v_mov_b32 v{t+3}, v{t}")
        A(f"s_mul_i32 s{self.s_t}, s{self.s_wm}, {self.TM*128}")
        A(f"s_add_u32 s{self.s_t}, s{self.s_t}, {self.ldsX}")
        A(f"v_lshlrev_b32 v{t+3}, 7, v{t+3}")
        A(f"v_add_u32 v{t+3}, s{self.s_t}, v{t+3}")
        A(f"v_lshlrev_b32 v{t+4}, 4, v{t+2}")
        A(f"v_add_u32 v{self.v_xr}, v{t+3}, v{t+4}")
        A(f"v_xor_b32 v{t+4}, 64, v{t+4}")
        A(f"v_add_u32 v{self.v_xr+1}, v{t+3}, v{t+4}")
        if self.NS * self.XS > 65536:
            A(f"v_add_u32 v{self.v_xr2}, 0x10000, v{self.v_xr}")
            A(f"v_add_u32 v{self.v_xr2+1}, 0x10000, v{self.v_xr+1}")
        A(f"v_lshrrev_b32 v{t+2}, 2, v{t}")
        A(f"v_and_b32 v{t+3}, 3, v{v_lane}")
        A(f"v_and_b32 v{t+4}, 1, v{t+1}")
        if BN >= 128:
            A(f"v_lshlrev_b32 v{t+4}, 2, v{t+4}")
            A(f"v_or_b32 v{t+4}, v{t+4}, v{t+2}")
        else:
            A(f"v_lshlrev_b32 v{t+4}, 1, v{t+4}")
            A(f"v_lshrrev_b32 v{t+5}, 1, v{t+2}")
            A(f"v_or_b32 v{t+4}, v{t+4}, v{t+5}")
        A(f"v_lshlrev_b32 v{t+1}, 3, v{t+1}")
        A(f"v_add_u32 v{t+1}, v{t+1}, v{t+2}")
        A(f"v_mul_u32_u24 v{t+1}, {BN*2}, v{t+1}")
        A(f"v_lshlrev_b32 v{t+3}, 3, v{t+3}")
        A(f"v_add_u32 v{t+1}, v{t+1}, v{t+3}")
        A(f"v_add_u32 v{t+1}, {self.ldsW}, v{t+1}")
        A(f"s_mul_i32 s{self.s_t}, s{self.s_wn}, {self.mt}")
        for m in range(self.mt):
            A(f"s_add_u32 s{self.s_t+1}, s{self.s_t}, {m}")
            A(f"v_xor_b32 v{t+2}, s{self.s_t+1}, v{t+4}")
            A(f"v_lshlrev_b32 v{t+2}, 5, v{t+2}")
            A(f"v_add_u32 v{self.v_wr+m}, v{t+1}, v{t+2}")
        A(f"v_lshrrev_b32 v{t}, 3, v{v_lane}")
        A(f"v_and_b32 v{t+1}, 7, v{v_lane}")
        A(f"s_mul_i32 s{self.s_t}, s{s_wave}, {self.nX}")
        for j in range(self.nX):
            A(f"s_add_u32 s{self.s_t+1}, s{self.s_t}, {j}")
            A(f"s_lshl_b32 s{self.s_t+2}, s{self.s_t+1}, 3")
            A(f"v_add_u32 v{t+2}, s{self.s_t+2}, v{t}")
            if vmode:
                A(f"v_bfe_u32 v{t+3}, v{t+2}, 1, 1")
                A(f"v_bfe_u32 v{t+4}, v{t+2}, 3, 2")
                A(f"v_lshlrev_b32 v{t+4}, 1, v{t+4}")
                A(f"v_or_b32 v{t+3}, v{t+3}, v{t+4}")
            else:
                A(f"v_bfe_u32 v{t+3}, v{t+2}, 1, 3")
            A(f"v_xor_b32 v{t+3}, v{t+3}, v{t+1}")
            A(f"v_lshlrev_b32 v{t+3}, 4, v{t+3}")
            if nat_as_perm:
                A(f"v_bfe_u32 v{t+4}, v{t+2}, 2, 1")
                A(f"v_bfe_u32 v{t+5}, v{t+2}, 3, 2")
                A(f"v_and_b32 v{t+2}, 0xffe3, v{t+2}")
                A(f"v_lshl_or_b32 v{t+2}, v{t+4}, 4, v{t+2}")
                A(f"v_lshl_or_b32 v{t+2}, v{t+5}, 2, v{t+2}")
            A(f"v_mul_u32_u24 v{t+2}, {self.ldx}, v{t+2}")
            A(f"v_add_u32 v{self.v_dx+j}, v{t+2}, v{t+3}")
        A(f"s_mul_i32 s{self.s_mx}, s{s_wave}, {self.nX*1024}")
        A(f"s_add_u32 s{self.s_mx}, s{self.s_mx}, {self.ldsX}")
        lb = int(math.log2(BN * 2))
        A(f"v_lshlrev_b32 v{t}, 4, v{v_lane}")
        A(f"s_mul_i32 s{self.s_t}, s{s_wave}, {self.nW*1024}")
        for j in range(self.nW):
            A(f"s_add_u32 s{self.s_t+1}, s{self.s_t}, {j*1024}")
            A(f"v_add_u32 v{t+1}, s{self.s_t+1}, v{t}")
            A(f"v_lshrrev_b32 v{t+2}, {lb}, v{t+1}")
            A(f"v_and_b32 v{t+1}, {BN*2-1}, v{t+1}")
            A(f"v_bfe_u32 v{t+4}, v{t+2}, 3, 1")
            if BN >= 128:
                A(f"v_and_b32 v{t+3}, 3, v{t+2}")
                A(f"v_lshlrev_b32 v{t+4}, 2, v{t+4}")
            else:
                A(f"v_bfe_u32 v{t+3}, v{t+2}, 1, 1")
                A(f"v_lshlrev_b32 v{t+4}, 1, v{t+4}")
            A(f"v_or_b32 v{t+3}, v{t+3}, v{t+4}")
            A(f"v_lshlrev_b32 v{t+3}, 5, v{t+3}")
            A(f"v_xor_b32 v{t+1}, v{t+1}, v{t+3}")
            if self.kperm:
                A(f"v_bfe_u32 v{t+3}, v{t+2}, 3, 2")
                A(f"v_bfe_u32 v{t+4}, v{t+2}, 2, 1")
                A(f"v_and_b32 v{t+2}, 0x23, v{t+2}")
                A(f"v_lshlrev_b32 v{t+3}, 2, v{t+3}")
                A(f"v_lshlrev_b32 v{t+4}, 4, v{t+4}")
                A(f"v_or_b32 v{t+2}, v{t+2}, v{t+3}")
                A(f"v_or_b32 v{t+2}, v{t+2}, v{t+4}")
            A(f"v_mul_u32_u24 v{t+2}, {self.ldw}, v{t+2}")
            A(f"v_add_u32 v{self.v_dw+j}, v{t+2}, v{t+1}")
        A(f"s_mul_i32 s{self.s_mw}, s{s_wave}, {self.nW*1024}")
        A(f"s_add_u32 s{self.s_mw}, s{self.s_mw}, {self.ldsW}")
        for r in range(self.mt * self.nt * 4):
            A(f"v_accvgpr_write_b32 a{r}, 0" if self.agpr else f"v_mov_b32 v{self.v_acc+r}, 0")

    def dma_ops(self, b, srdX, srdW, s_xoff, s_woff):
        ops = []
        for j in range(self.nX):
            ops.append([f"s_add_u32 m0, s{self.s_mx}, {b*self.XS + j*1024}", "s_nop 0",
                        f"buffer_load_dwordx4 v{self.v_dx+j}, s[{srdX}:{srdX+3}], s{s_xoff} offen{self.xsc} lds"])
        for j in range(self.nW):
            ops.append([f"s_add_u32 m0, s{self.s_mw}, {b*self.WS + j*1024}", "s_nop 0",
                        f"buffer_load_dwordx4 v{self.v_dw+j}, s[{srdW}:{srdW+3}], s{s_woff} offen lds"])
        ops[-1] = ops[-1] + [f"s_add_u32 s{s_xoff}, s{s_xoff}, 128", f"s_add_u32 s{s_woff}, s{s_woff}, {64*self.ldw}"]
        return ops

    def read_ops(self, b, u, vmode):
        i = u // self.UPK; mhx = u % self.UPK
        ops = []
        wa = self.v_wa[u & 1]
        if mhx == 0:
            xb = self.v_xb[i & 1]
            for n in range(self.nt):
                if vmode:
                    off = b * self.XS + (n >> 1) * 4096 + (n & 1) * 512
                else:
                    off = b * self.XS + n * 2048
                xr = self.v_xr
                if off >= 65536: off -= 65536; xr = self.v_xr2
                ops.append([f"ds_read_b128 v[{xb+4*n}:{xb+4*n+3}], v{xr+i} offset:{off}"])
        for m in range(self.mh):
            for uu in range(2):
                off = b * self.WS + (32 * i + 4 * uu) * self.BN * 2
                r = wa + 4 * m + 2 * uu
                ops.append([f"ds_read_b64_tr_b16 v[{r}:{r+1}], v{self.v_wr+mhx*self.mh+m} offset:{off}"])
        return ops

    def mfma_ops(self, u, vmode):
        vmode = vmode == 2
        i = u // self.UPK; mhx = u % self.UPK
        wa = self.v_wa[u & 1]; xb = self.v_xb[i & 1]
        ops = []
        for m in range(self.mh):
            for n in range(self.nt):
                a = self.acc(mhx * self.mh + m, n)
                wf = f"v[{wa+4*m}:{wa+4*m+3}]"; xf = f"v[{xb+4*n}:{xb+4*n+3}]"
                c = f"a[{a}:{a+3}]" if self.agpr else f"v[{a}:{a+3}]"
                if vmode: ops.append(f"v_mfma_f32_16x16x32_bf16 {c}, {xf}, {wf}, {c}")
                else:     ops.append(f"v_mfma_f32_16x16x32_bf16 {c}, {wf}, {xf}, {c}")
        return ops

    def interleave(self, mf, side):
        A = self.A
        n = len(mf); k = len(side); j = 0
        for idx, m in enumerate(mf):
            A(m)
            want = (idx + 1) * k // n if n else k
            want = min(k, max(want, min(k, idx + 1))) if k <= n else want
            while j < want:
                for s in side[j]: A(s)
                j += 1
        while j < k:
            for s in side[j]: A(s)
            j += 1

    def stage(self, b, vmode, srdX, srdW, s_xoff, s_woff, dma, keep, last, carry):
        A = self.A; NS = self.NS
        for u in range(self.U):
            mf = self.mfma_ops(u, vmode)
            if u < self.U - 1:
                side = self.read_ops(b, u + 1, vmode)
                take = carry[:self.dpu]; carry = carry[self.dpu:]
                if u == self.U - 2: take += carry; carry = []
                self.interleave2(mf, side, take)
                A("s_waitcnt lgkmcnt(0)")
            else:
                if last:
                    for m in mf: A(m)
                else:
                    A(f"s_waitcnt vmcnt({keep})")
                    A("s_barrier")
                    side = self.read_ops((b + 1) % NS, 0, vmode)
                    take = []
                    if dma:
                        ops = self.dma_ops(b, srdX, srdW, s_xoff, s_woff)
                        take = ops[:self.dpu]; carry = ops[self.dpu:]
                    self.interleave2(mf, side, take)
                    A("s_waitcnt lgkmcnt(0)")
        return carry

    def interleave2(self, mf, reads, dmas):
        A = self.A; n = len(mf)
        slots = [[] for _ in range(n)]
        for i, r in enumerate(reads): slots[min(n - 1, i * n // max(len(reads), n) if len(reads) > n else i)].append(r)
        for i, d in enumerate(dmas): slots[min(n - 1, (i * n + n // 2) // len(dmas))].append(d)
        for m, sl in zip(mf, slots):
            A(m)
            for op in sl:
                for s in op: A(s)

    def mainloop(self, vmode, srdX, srdW, s_xoff, s_woff, s_groups=None):
        self.s_groups = s_groups
        A = self.A; NS = self.NS; KS = self.KS; nD = self.nD
        self.dpu = -(-nD // self.spread)
        for b in range(NS):
            for op in self.dma_ops(b, srdX, srdW, s_xoff, s_woff):
                for s in op: A(s)
        A(f"s_waitcnt vmcnt({(NS-1)*nD})")
        A("s_barrier")
        for op in self.read_ops(0, 0, vmode):
            for s in op: A(s)
        A("s_waitcnt lgkmcnt(0)")
        steady = KS - NS
        niter = steady // NS; rem = steady % NS
        lab = A.newlabel(self.pfx + "_loop")
        carry = []
        st = 0
        def one(b, dma, keepg, last):
            nonlocal carry
            carry = self.stage(b, vmode, srdX, srdW, s_xoff, s_woff, dma, keepg * nD, last, carry)
        if s_groups is not None:
            assert rem == 0
            for b in range(NS): one(b, True, NS - 2, False)
            c0 = list(carry)
            skip = A.newlabel(self.pfx + "_skip")
            A(f"s_sub_u32 s{self.s_cnt}, s{s_groups}, 1")
            A(f"s_cmp_eq_u32 s{self.s_cnt}, 0")
            A(f"s_cbranch_scc1 {skip}")
            A.label(lab)
            for b in range(NS): one(b, True, NS - 2, False)
            assert carry == c0
            A(f"s_sub_u32 s{self.s_cnt}, s{self.s_cnt}, 1")
            A(f"s_cmp_lg_u32 s{self.s_cnt}, 0")
            A(f"s_cbranch_scc1 {lab}")
            A.label(skip)
        elif niter > 1:
            for b in range(NS): one(b, True, NS - 2, False)
            c0 = list(carry)
            A(f"s_mov_b32 s{self.s_cnt}, {niter-1}")
            A.label(lab)
            for b in range(NS): one(b, True, NS - 2, False)
            assert carry == c0
            A(f"s_sub_u32 s{self.s_cnt}, s{self.s_cnt}, 1")
            A(f"s_cmp_lg_u32 s{self.s_cnt}, 0")
            A(f"s_cbranch_scc1 {lab}")
        elif niter == 1:
            for b in range(NS): one(b, True, NS - 2, False)
        for i in range(rem): one(i % NS, True, NS - 2, False)
        for i in range(NS): one((rem + i) % NS, False, max(0, NS - 2 - i), i == NS - 1)

    def fetch(self, m, n, dst):
        a = self.acc(m, n)
        if not self.agpr: return a
        for r in range(4): self.A(f"v_accvgpr_read_b32 v{dst+r}, a{a+r}")
        return dst
```

```python
from asmlib import *
from layout import *
import math, struct

SCALE_LOG2E = (128 ** -0.5) * 1.4426950408889634
def f2u(x): return struct.unpack("<I", struct.pack("<f", x))[0]

def interleave(A, mf, side, per=3, start=0):
    k = 0
    for i, m in enumerate(mf):
        A(m)
        if i >= start:
            for _ in range(per):
                if k < len(side): A(side[k]); k += 1
    while k < len(side): A(side[k]); k += 1

def gen_chain(A, name="chain_kernel", dlyB=0, stamp=False, nsteps=64, POLLMAX=1 << 20, nokv=False, notouch=False, rounds=False, trace=False, worker=None, nW=16, dlyA=0, dlyC=0, engine=False, kv0n=128, after=None, NX=8, fakex=False):
    QU = [128 // NX if x < NX else 0 for x in range(8)]; QB = [sum(QU[:x]) for x in range(8)]; q0 = 128 // NX
    kernel_begin(A, name)
    L = lambda s: f"{name}_{s}"
    SRD_WS, SRD_DBG, SRD_W = 16, 20, 24
    WS = f"s[{SRD_WS}:{SRD_WS+3}]"
    s_wave, s_xcc, s_tick, s_role, s_Q, s_j = 13, 12, 15, 34, 35, 36
    s_memsrc, s_qkvdst, s_qkvsrc, s_partdst, s_partsrc, s_memdst, s_k, s_step, s_pc, s_v = 40, 41, 42, 43, 44, 45, 46, 47, 48, 49
    s_hi, s_lo, s_c = 50, 52, 54
    t0, t1, t2 = 56, 57, 58
    s_nc, s_msk = 59, 95
    v_r3 = 20
    v_zero, vCnt, s_cnt = 4, 5, 88
    s_lastq, s_lastm, s_touch, s_partsrc2, s_touch2 = 90, 91, 92, 93, 94
    v_lane, v_idx = 2, 3
    v_offC, v_offA, v_l16, v_w1q, v_w1v, v_r1, v_d1, v_w2, v_r2, v_l4, v_dM, v_l16b = range(4, 16)
    v_t = 16
    vA = 24
    vVM = 40
    vK = 48
    vV = 80
    acc1 = 112
    vS = 136
    vP = 148
    vU = 160
    vUb = 192
    acc2 = 224
    vUm = 112
    vOne = 244
    vB = 136
    vPub = 252
    vTch = 128
    vTch = 156
    A(f"""
    s_cmp_ge_u32 s2, 256
    s_cbranch_scc1 {L('end')}
    s_load_dwordx2 s[4:5], s[0:1], {KA_DBG}
    s_load_dwordx2 s[6:7], s[0:1], {KA_WS}
    s_load_dwordx4 s[60:63], s[0:1], {KA_WQ}
    s_load_dwordx4 s[64:67], s[0:1], {KA_WV}
    s_getreg_b32 s{s_xcc}, hwreg(HW_REG_XCC_ID)
    s_and_b32 s{s_xcc}, s{s_xcc}, 7
    {"s_min_u32 s12, s12, 5" if fakex else ""}
    v_lshrrev_b32 v1, 6, v0
    v_and_b32 v{v_lane}, 63, v0
    s_nop 1
    v_readfirstlane_b32 s{s_wave}, v1
    s_waitcnt lgkmcnt(0)
    """)
    make_srd(A, SRD_DBG, 4, 256)
    make_srd(A, SRD_WS, 6, WS_SIZE)
    DBG = f"s[{SRD_DBG}:{SRD_DBG+3}]"
    A(f"""
    s_lshl_b32 s{t0}, s{s_xcc}, 2
    v_mov_b32 v{v_t}, s{t0}
    v_mov_b32 v{v_t+1}, 1
    v_mov_b32 v{v_t+2}, 32
    v_mov_b32 v{v_t+3}, 1
    v_cmp_eq_u32 vcc, 0, v0
    s_and_saveexec_b64 s[32:33], vcc
    s_cbranch_execz {L('t1')}
    buffer_atomic_add v{v_t+1}, v{v_t}, {DBG}, 0 offen sc0
    s_waitcnt vmcnt(0)
    buffer_atomic_add v{v_t+3}, v{v_t+2}, {DBG}, 0 offen
    v_mov_b32 v{v_t+4}, 0
    ds_write_b32 v{v_t+4}, v{v_t+1}
    s_waitcnt vmcnt(0) lgkmcnt(0)
    {L('t1')}:
    s_mov_b64 exec, s[32:33]
    s_barrier
    v_mov_b32 v{v_t+4}, 0
    ds_read_b32 v{v_t+1}, v{v_t+4}
    s_waitcnt lgkmcnt(0)
    v_readfirstlane_b32 s{s_tick}, v{v_t+1}
    s_barrier
    s_mul_i32 s{s_role}, s{s_xcc}, {q0}
    s_add_u32 s{s_role}, s{s_role}, s{s_tick}
    s_cmp_lt_u32 s{s_xcc}, {NX}
    s_cselect_b32 s71, {q0}, 0
    s_cmp_lt_u32 s{s_tick}, s71
    s_cbranch_scc1 {L('haverole')}
    s_sub_u32 s80, s{s_tick}, s71
    s_and_b32 s14, s80, 15
    s_lshl_b32 s{t0}, s{s_xcc}, 4
    s_add_u32 s14, s14, s{t0}
    s_mov_b32 s81, 1
    s_mov_b32 s71, s{s_xcc}
    """)
    def repair(A, L2):
        D2 = "s[76:79]"
        A(f"s_cmp_eq_u32 s81, 0")
        A(f"s_cbranch_scc1 {L('rp_end')}")
        A(f"v_lshlrev_b32 v24, 2, v{v_lane}")
        A(f"buffer_load_dword v25, v24, {D2}, 0 offen sc1")
        A("s_waitcnt vmcnt(0)")
        A("v_readlane_b32 s24, v25, 8")
        A("s_cmp_lt_u32 s24, 256")
        A(f"s_cbranch_scc1 {L('rp_end')}")
        A("s_mov_b32 s81, 0")
        A("s_mov_b32 s25, 0")
        A("s_mov_b32 s26, s80")
        for x in range(8):
            A(f"v_readlane_b32 s24, v25, {x}")
            A(f"s_max_u32 s27, s24, {QU[x]}")
            A(f"s_sub_u32 s27, s27, {QU[x]}")
            A(f"s_cmp_gt_u32 s71, {x}")
            A(f"s_cselect_b32 s27, s27, 0")
            A(f"s_add_u32 s26, s26, s27")
            A(f"s_min_u32 s24, s24, {QU[x]}")
            A(f"s_sub_u32 s24, {QU[x]}, s24")
            A(f"s_add_u32 s25, s25, s24")
        A("s_cmp_ge_u32 s26, s25")
        A(f"s_cbranch_scc1 {L('rp_end')}")
        for x in range(8):
            A(f"v_readlane_b32 s24, v25, {x}")
            A(f"s_min_u32 s24, s24, {QU[x]}")
            A(f"s_add_u32 s8, s24, s26")
            A(f"s_add_u32 s8, s8, {QB[x]}")
            A(f"s_sub_u32 s24, {QU[x]}, s24")
            A(f"s_cmp_lt_u32 s26, s24")
            A(f"s_cbranch_scc1 {L('rp_take')}")
            A(f"s_sub_u32 s26, s26, s24")
        A(f"s_branch {L('rp_end')}")
        A.label(L('rp_take'))
        A("s_lshl_b32 s8, s8, 16")
        A("s_or_b32 s8, s8, 15")
        A(f"s_branch {L('bc')}")
        A.label(L('rp_end'))
    def repair_stub(A, L2):
        A.label(L('j_rep'))
        A(f"s_mov_b32 s{s_role}, s11")
        A(f"s_mov_b32 s{SRD_DBG}, s76"); A(f"s_mov_b32 s{SRD_DBG+1}, s77"); A(f"s_mov_b32 s{SRD_DBG+2}, 256"); A(f"s_mov_b32 s{SRD_DBG+3}, 0x00020000")
        A("s_barrier")
        A(f"s_branch {L('haverole')}")
    A.label(L('wentry'))
    A(f"s_mov_b32 s76, s{SRD_DBG}"); A(f"s_mov_b32 s77, s{SRD_DBG+1}"); A("s_mov_b32 s78, 256"); A("s_mov_b32 s79, 0x00020000")
    if worker: worker(A, L, repair, repair_stub)
    A(f"s_branch {L('end')}")
    A.label(L('haverole'))
    A(f"""
    s_lshr_b32 s{s_Q}, s{s_role}, 4
    s_and_b32 s{s_j}, s{s_role}, 15
    s_mov_b32 s{s_hi}, 0
    s_mov_b32 s{s_hi+1}, -1
    s_mov_b32 s{s_lo}, -1
    s_mov_b32 s{s_lo+1}, 0
    s_mov_b32 s{s_c}, {f2u(SCALE_LOG2E):#x}
    s_mov_b32 s{s_c+1}, {f2u(SCALE_LOG2E):#x}
    s_mov_b32 s{s_nc}, {f2u(-SCALE_LOG2E):#x}
    s_mov_b32 s{s_msk}, 0xffff0000
    """)
    n_, g_ = v_t, v_t + 1
    a, b, c, d_ = v_t + 2, v_t + 3, v_t + 4, v_t + 5
    A(f"""
    v_and_b32 v{n_}, 15, v{v_lane}
    v_lshrrev_b32 v{g_}, 4, v{v_lane}
    v_lshlrev_b32 v{v_l16}, 4, v{v_lane}
    v_add_u32 v{v_l16b}, 0x1000, v{v_l16}
    v_lshlrev_b32 v{v_l4}, 2, v{v_lane}
    v_lshlrev_b32 v{v_d1}, 3, v{v_lane}
    v_mov_b32 v{v_idx}, 0x44444444
    v_mov_b32 v{a}, 0xeeeeeeee
    v_cmp_lt_u32 vcc, 7, v{n_}
    s_nop 1
    v_cndmask_b32 v{v_idx}, v{v_idx}, v{a}, vcc
    v_lshrrev_b32 v{d_}, 5, v{v_lane}          ; t
    v_and_b32 v{c}, 1, v{g_}                   ; g'
    v_lshrrev_b32 v{a}, 2, v{n_}
    v_lshl_add_u32 v{b}, v{a}, 1, v{c}         ; 2G+g'
    v_mul_u32_u24 v{a}, 144, v{b}              ; (2G+g')*(128+16)
    v_lshl_add_u32 v{a}, v{d_}, 4, v{a}
    v_and_b32 v{b}, 3, v{n_}
    v_lshl_add_u32 v{a}, v{b}, 2, v{a}
    s_mul_i32 s{t0}, s{s_wave}, 3584
    v_add_u32 v{v_w1q}, s{t0}, v{a}
    v_lshrrev_b32 v{a}, 3, v{n_}
    v_lshl_add_u32 v{a}, v{a}, 2, v{c}
    v_bfe_u32 v{b}, v{n_}, 1, 1
    v_lshl_add_u32 v{a}, v{b}, 1, v{a}
    v_mul_u32_u24 v{a}, 144, v{a}
    v_bfe_u32 v{b}, v{n_}, 2, 1
    v_lshl_add_u32 v{a}, v{b}, 4, v{a}
    v_lshl_add_u32 v{a}, v{d_}, 3, v{a}
    v_and_b32 v{b}, 1, v{n_}
    v_lshl_add_u32 v{a}, v{b}, 2, v{a}
    s_add_u32 s{t0}, s{t0}, 2304
    v_add_u32 v{v_w1v}, s{t0}, v{a}
    v_lshrrev_b32 v{a}, 3, v{v_lane}
    v_lshl_add_u32 v{a}, v{a}, 4, v{v_l16}
    s_mul_i32 s{t0}, s{s_wave}, 1152
    v_add_u32 v{v_r1}, s{t0}, v{a}
    v_lshlrev_b32 v{a}, 8, v{g_}
    v_lshl_add_u32 v{a}, v{n_}, 3, v{a}
    s_cmp_eq_u32 s{s_wave}, 2
    s_cbranch_scc1 {L('d1v')}
    v_mov_b32 v{v_d1}, v{a}
    s_cmp_eq_u32 s{s_wave}, 3
    s_cbranch_scc0 {L('d1v')}
    v_lshrrev_b32 v{a}, 3, v{v_lane}
    v_and_b32 v{b}, 7, v{v_lane}
    v_lshlrev_b32 v{v_d1}, 8, v{a}
    v_lshl_add_u32 v{v_d1}, v{b}, 3, v{v_d1}
    v_lshrrev_b32 v{v_r1}, 2, v{b}
    v_lshlrev_b32 v{v_r1}, 2, v{v_r1}
    v_lshrrev_b32 v{v_offC}, 2, v{a}
    v_add_u32 v{v_r1}, v{v_r1}, v{v_offC}
    v_mul_u32_u24 v{v_r1}, 144, v{v_r1}
    v_and_b32 v{a}, 3, v{a}
    v_lshl_add_u32 v{v_r1}, v{a}, 5, v{v_r1}
    v_and_b32 v{b}, 3, v{b}
    v_lshl_add_u32 v{v_r1}, v{b}, 3, v{v_r1}
    v_add_u32 v{v_r1}, 2304, v{v_r1}
    {L('d1v')}:
    v_lshrrev_b32 v{a}, 3, v{n_}
    v_lshl_add_u32 v{a}, v{a}, 1, v{c}
    v_mul_u32_u24 v{a}, 160, v{a}
    v_mul_u32_u24 v{b}, 640, v{d_}
    v_add_u32 v{a}, v{a}, v{b}
    v_and_b32 v{b}, 7, v{n_}
    v_lshl_add_u32 v{a}, v{b}, 2, v{a}
    s_mul_i32 s{t0}, s{s_wave}, 2560
    s_add_u32 s{t0}, s{t0}, 14336
    v_add_u32 v{v_w2}, s{t0}, v{a}
    v_lshlrev_b32 v{a}, 3, v{v_lane}
    v_lshl_add_u32 v{a}, v{g_}, 5, v{a}
    s_mul_i32 s{t0}, s{s_wave}, 640
    s_add_u32 s{t0}, s{t0}, 14336
    v_add_u32 v{v_r2}, s{t0}, v{a}
    """)
    for r in range(8):
        if r in (0, 2, 4, 6): A(f"v_mov_b32 v{vOne+r}, 0x3f803f80")
        else: A(f"v_mov_b32 v{vOne+r}, 0")
    A(f"s_mov_b64 exec, s[{s_lo}:{s_lo+1}]")
    A(f"v_mov_b32 v{vOne+5}, 0x3f803f80"); A(f"v_mov_b32 v{vOne+7}, 0x3f803f80")
    A("s_mov_b64 exec, -1")
    for nt in range(4):
        A(f"v_mov_b32 v{vUb+8*nt+1}, 0"); A(f"v_mov_b32 v{vUb+8*nt+3}, 0")
    A(f"""
    s_lshl_b32 s{s_memsrc}, s{s_Q}, 14
    s_lshl_b32 s{t0}, s{s_wave}, 12
    s_add_u32 s{s_memsrc}, s{s_memsrc}, s{t0}
    s_add_u32 s{s_memsrc}, s{s_memsrc}, {WS_CH + CH_MEM}
    s_mul_i32 s{t1}, s{s_Q}, {4*HB}
    s_add_u32 s{t1}, s{t1}, {WS_CH + CH_QKV}
    s_mul_i32 s{t0}, s{s_wave}, {HB}
    s_add_u32 s{s_qkvsrc}, s{t1}, s{t0}
    s_lshr_b32 s{t0}, s{s_j}, 2
    s_mul_i32 s{t0}, s{t0}, {HB}
    s_add_u32 s{t1}, s{t1}, s{t0}
    s_and_b32 s{t0}, s{s_j}, 3
    s_lshl_b32 s{t2}, s{t0}, 10
    s_add_u32 s{s_qkvdst}, s{t1}, s{t2}
    s_lshl_b32 s{t2}, s{s_wave}, 7
    s_add_u32 s{s_qkvdst}, s{s_qkvdst}, s{t2}
    s_lshl_b32 s{t2}, s{t0}, 9
    s_add_u32 s{t2}, s{t2}, s{t1}
    s_add_u32 s{t2}, s{t2}, 4096
    s_cmp_eq_u32 s{s_wave}, 2
    s_cselect_b32 s{s_qkvdst}, s{t2}, s{s_qkvdst}
    s_lshl_b32 s{t2}, s{t0}, 6
    s_add_u32 s{t2}, s{t2}, s{t1}
    s_add_u32 s{t2}, s{t2}, 6144
    s_cmp_eq_u32 s{s_wave}, 3
    s_cselect_b32 s{s_qkvdst}, s{t2}, s{s_qkvdst}
    s_lshl_b32 s{t0}, s{s_j}, 13
    s_add_u32 s{t0}, s{t0}, {WS_CH + CH_PART}
    s_lshl_b32 s{t1}, s{s_wave}, 8
    s_add_u32 s{s_partsrc}, s{t0}, s{t1}
    s_add_u32 s{s_partsrc2}, s{s_partsrc}, 4096
    s_lshl_b32 s{t2}, s{s_Q}, 10
    s_add_u32 s{s_partdst}, s{s_partsrc}, s{t2}
    s_lshl_b32 s{s_memdst}, s{s_Q}, 14
    s_lshl_b32 s{t0}, s{s_wave}, 8
    s_add_u32 s{s_memdst}, s{s_memdst}, s{t0}
    s_lshl_b32 s{t0}, s{s_j}, 10
    s_add_u32 s{s_memdst}, s{s_memdst}, s{t0}
    s_add_u32 s{s_memdst}, s{s_memdst}, {WS_CH + CH_MEM + CH_STEP}
    s_lshl_b32 s{t0}, s{s_Q}, 2
    s_add_u32 s{t0}, s{t0}, s{s_wave}
    s_lshl_b32 s{t0}, s{t0}, 13
    s_add_u32 s{s_k}, s{t0}, {WS_K}
    s_add_u32 s{s_v}, s{t0}, {WS_VT}
    s_lshl_b32 s{s_touch}, s{s_Q}, 15
    s_lshl_b32 s{t0}, s{s_j}, 11
    s_add_u32 s{s_touch}, s{s_touch}, s{t0}
    s_and_b32 s{t0}, s{s_wave}, 1
    s_lshl_b32 s{t0}, s{t0}, 10
    s_add_u32 s{s_touch}, s{s_touch}, s{t0}
    s_mov_b32 s{t0}, {WS_K + 2*262144}
    s_mov_b32 s{t1}, {WS_VT + 2*262144}
    s_cmp_ge_u32 s{s_wave}, 2
    s_cselect_b32 s{t0}, s{t1}, s{t0}
    s_add_u32 s{s_touch}, s{s_touch}, s{t0}
    s_mul_i32 s{t0}, s{s_role}, 2048
    s_lshl_b32 s{t1}, s{s_wave}, 10
    s_add_u32 s{t0}, s{t0}, s{t1}
    s_add_u32 s{t0}, s{t0}, {WS_CH + CH_QKV + CH_STEP}
    s_lshl_b32 s{t1}, s{s_role}, 10
    s_add_u32 s{t1}, s{t1}, {WS_CH + CH_MEM + 2*CH_STEP}
    s_cmp_ge_u32 s{s_wave}, 2
    s_cselect_b32 s{s_touch2}, s{t1}, s{t0}
    s_mov_b32 s{s_lastq}, {WS_DUMMY}
    s_mov_b32 s{s_lastm}, {WS_DUMMY}
    """)
    for r in range(3): A(f"v_mov_b32 v{vPub+r}, 0")
    LW = 24576
    vq, vo, vtr1, vtr2 = vA, vA + 1, vA + 2, vA + 4
    A(f"""
    v_lshrrev_b32 v{a}, 2, v{v_lane}
    v_lshlrev_b32 v{a}, 13, v{a}
    v_and_b32 v{b}, 3, v{v_lane}
    v_lshl_add_u32 v{vq}, v{b}, 4, v{a}
    v_lshrrev_b32 v{a}, 3, v{v_lane}
    v_lshlrev_b32 v{a}, 11, v{a}
    v_and_b32 v{b}, 7, v{v_lane}
    v_lshl_add_u32 v{vo}, v{b}, 4, v{a}
    s_lshl_b32 s68, s{s_wave}, 15
    s_add_u32 s68, s68, {LW}
    s_lshl_b32 s69, s{s_wave}, 21
    s_lshl_b32 s{t0}, s{s_role}, 6
    s_add_u32 s69, s69, s{t0}
    s_lshl_b32 s70, s{s_Q}, 2
    s_add_u32 s70, s70, s{s_wave}
    s_lshl_b32 s70, s70, 18
    s_lshl_b32 s{t0}, s{s_j}, 7
    s_add_u32 s70, s70, s{t0}
    v_lshrrev_b32 v{d_}, 2, v{n_}            ; r
    v_and_b32 v{b}, 1, v{d_}
    v_lshrrev_b32 v{a}, 1, v{d_}
    v_lshl_add_u32 v{c}, v{a}, 3, v{b}
    v_lshrrev_b32 v{vtr1+1}, 1, v{g_}
    v_lshl_add_u32 v{c}, v{vtr1+1}, 4, v{c}
    v_and_b32 v{vtr2+1}, 1, v{g_}
    v_lshl_add_u32 v{c}, v{vtr2+1}, 2, v{c}
    v_lshlrev_b32 v{c}, 6, v{c}
    v_and_b32 v{vtr1}, 3, v{n_}
    v_lshlrev_b32 v{vtr1}, 3, v{vtr1}
    v_add_u32 v{c}, v{c}, v{vtr1}
    v_mov_b32 v{vtr2}, v{vtr1}
    v_add_u32 v{vtr1}, s68, v{c}
    v_lshl_add_u32 v{c}, v{g_}, 2, v{d_}
    v_lshlrev_b32 v{c}, 7, v{c}
    v_add_u32 v{c}, v{c}, v{vtr2}
    v_add_u32 v{vtr2}, s68, v{c}
    """)
    ptrs = [60, 62, 64, 66]
    def wdma(m):
        make_srd(A, SRD_W, ptrs[m], 8 << 20)
        reg = (m & 1) * 16384
        for i in range(16):
            A(f"s_add_u32 m0, s68, {reg + i*1024}")
            if m < 3:
                A(f"s_add_u32 s{t0}, s69, {i*16*8192}")
                A(f"buffer_load_dwordx4 v{vq}, s[{SRD_W}:{SRD_W+3}], s{t0} offen lds")
            else:
                A(f"s_add_u32 s{t0}, s70, {i*8*2048}")
                A(f"buffer_load_dwordx4 v{vo}, s[{SRD_W}:{SRD_W+3}], s{t0} offen lds")
    def aW1(tile, ks): return (tile * 4 + ks) * 8
    def aW2(nt, ks): return 192 + (nt * 2 + ks) * 8
    def wtr(m):
        reg = (m & 1) * 16384
        cnt = 0
        for t in range(2 if m < 3 else 4):
            for ks in range(4 if m < 3 else 2):
                for h in range(2):
                    for u in range(2):
                        if m < 3:
                            d = aW1(2 * m + t, ks) + 4 * h + 2 * u
                            off = reg + (64 * ks + 32 * h + 2 * u) * 64 + t * 32
                            A(f"ds_read_b64_tr_b16 a[{d}:{d+1}], v{vtr1} offset:{off}")
                        else:
                            d = aW2(t, ks) + 4 * h + 2 * u
                            off = reg + (64 * ks + 32 * h + 16 * u) * 128 + t * 32
                            A(f"ds_read_b64_tr_b16 a[{d}:{d+1}], v{vtr2} offset:{off}")
                        cnt += 1
                        if cnt % 8 == 0: A("s_waitcnt lgkmcnt(0)")
    def kvload(base, sreg):
        ops = []
        for i in range(8):
            vo_ = v_l16 if i < 4 else v_l16b
            ops.append(f"buffer_load_dwordx4 v[{base+4*i}:{base+4*i+3}], v{vo_}, {WS}, s{sreg} offen offset:{(i%4)*1024} sc1")
        return ops
    def maxops(regs, tmp):
        rest = list(regs); ops = []
        ops.append(f"v_max3_u32 v{tmp}, v{rest[0]}, v{rest[1]}, v{rest[2]}"); rest = rest[3:]
        while len(rest) >= 2:
            ops.append(f"v_max3_u32 v{tmp}, v{tmp}, v{rest[0]}, v{rest[1]}"); rest = rest[2:]
        if rest: ops.append(f"v_max_u32 v{tmp}, v{tmp}, v{rest[0]}")
        return ops
    def checkops(regs, lab, tmp):
        return maxops(regs, tmp) + [f"v_cmp_eq_u32 vcc, -1, v{tmp}", f"s_cbranch_vccnz {lab}"]
    def hook(tag):
        A(f"s_cmp_eq_u32 s{s_pc}, {POLLMAX-64}")
        A(f"s_cbranch_scc0 {L(tag+'_h')}")
        A(f"buffer_store_dwordx2 v[{vPub}:{vPub+1}], v{v_d1}, {WS}, s{s_lastq} offen sc1")
        A(f"buffer_store_dword v{vPub+2}, v{v_l4}, {WS}, s{s_lastm} offen sc1")
        A.label(L(tag + '_h'))
    def stamp_t(k):
        if trace:
            A("s_memtime s[72:73]")
            A(f"s_and_b32 s74, s{s_step}, 7"); A("s_lshl_b32 s74, s74, 3"); A(f"s_add_u32 s74, s74, {k}")
            A("s_mov_b32 m0, s74")
            A("s_waitcnt lgkmcnt(0)")
            A("v_writelane_b32 v255, s72, m0")
        elif stamp and rounds and k in (0, 2, 4):
            A(f"s_sub_u32 s74, {POLLMAX}, s{s_pc}"); A(f"s_add_u32 s{80+k}, s{80+k}, s74")
        elif stamp and not rounds:
            A("s_memtime s[72:73]"); A("s_waitcnt lgkmcnt(0)")
            A("s_sub_u32 s74, s72, s76"); A(f"s_add_u32 s{80+k}, s{80+k}, s74"); A("s_mov_b32 s76, s72")
    def utok_ops():
        mf = []
        for kk in range(4):
            for T in range(2):
                for nt in range(4):
                    d = vU + (T * 4 + nt) * 4; w = aW2(nt, kk >> 1) + 4 * (kk & 1); va = vV + (T * 4 + kk) * 4
                    C = "0" if kk == 0 else f"v[{d}:{d+3}]"
                    mf.append(f"v_mfma_f32_16x16x32_bf16 v[{d}:{d+3}], v[{va}:{va+3}], a[{w}:{w+3}], {C}")
        cv = []
        for T in range(2):
            for nt in range(4):
                d = vU + (T * 4 + nt) * 4
                cv.append(f"v_cvt_pk_bf16_f32 v{vUb+8*nt+4*T}, v{d}, v{d+1}")
                cv.append(f"v_cvt_pk_bf16_f32 v{vUb+8*nt+4*T+2}, v{d+2}, v{d+3}")
        return mf, cv
    def halves(d0, d1):
        return [f"v_permlane32_swap_b32 v{d0+r}, v{d1+r}" for r in range(4)] + [f"v_add_f32 v{d0+r}, v{d0+r}, v{d1+r}" for r in range(4)]
    wdma(0); wdma(1)
    A("s_waitcnt vmcnt(16)"); wtr(0); wdma(2)
    A("s_waitcnt vmcnt(16)"); wtr(1); wdma(3)
    A("s_waitcnt vmcnt(16)"); wtr(2)
    A("s_waitcnt vmcnt(0)"); wtr(3)
    def cntwait(tag, sidx, val):
        A(f"s_mov_b32 s{s_pc}, {POLLMAX}")
        A.label(L(tag))
        A(f"buffer_load_dword v{vCnt}, v{v_zero}, {WS}, s{sidx} offen sc1")
        A(f"s_sub_u32 s{s_pc}, s{s_pc}, 1")
        A(f"s_cbranch_scc1 {L('bail')}")
        A("s_waitcnt vmcnt(0)")
        A(f"v_readfirstlane_b32 s{t0}, v{vCnt}")
        A(f"s_cmp_ge_u32 s{t0}, {val}")
        A(f"s_cbranch_scc1 {L(tag+'_ok')}")
        A("s_sleep 2")
        A(f"s_branch {L(tag)}")
        A.label(L(tag + '_ok'))
    A(f"v_mov_b32 v{v_zero}, 0")
    if stamp:
        A("s_memrealtime s[72:73]"); A("s_waitcnt lgkmcnt(0)"); A("s_mov_b32 s75, s72")
    A("s_mov_b32 s89, 64")
    A(f"s_mov_b32 s{s_cnt}, {WS_CNT + C_KVG*128}")
    if engine: cntwait('kv0', s_cnt, 64)
    for o in kvload(vK, s_k): A(o)
    for o in kvload(vV, s_v): A(o)
    A("s_waitcnt vmcnt(0)")
    mf, cv = utok_ops()
    for o in mf: A(o)
    A("s_nop 7")
    for o in cv: A(o)
    A(f"s_add_u32 s{s_v}, s{s_v}, 262144")
    for r in range(24): A(f"v_mov_b32 v{acc1+r}, 0")
    A(f"s_mov_b32 s{s_step}, 0")
    for p in range(4): A(f"v_add_u32 v{v_r3+p}, {p*3584}, v{v_r1}")
    if stamp:
        for k in range(8): A(f"s_mov_b32 s{80+k}, 0")
        A("s_memtime s[76:77]"); A("s_memrealtime s[78:79]"); A("s_waitcnt lgkmcnt(0)")
    A("s_barrier")
    for ks in range(4): A(f"buffer_load_dwordx4 v[{vA+4*ks}:{vA+4*ks+3}], v{v_l16}, {WS}, s{s_memsrc} offen offset:{ks*1024} sc1")
    A(f"s_mov_b32 s{s_pc}, {POLLMAX}")
    A(f"s_branch {L('loop')}")
    def pkadd(d, a, b): return f"v_pk_add_f32 v[{d}:{d+1}], v[{a}:{a+1}], v[{b}:{b+1}]"
    def pkmul(d, a, b): return f"v_pk_mul_f32 v[{d}:{d+1}], v[{a}:{a+1}], v[{b}:{b+1}]"
    def halves(d0, d1):
        return [f"v_permlane32_swap_b32 v{d0+r}, v{d1+r}" for r in range(4)] + [pkadd(d0, d0, d1), pkadd(d0 + 2, d0 + 2, d1 + 2)]
    def cload(ks): return f"buffer_load_dwordx4 v[{vA+4*ks}:{vA+4*ks+3}], v{v_l16}, {WS}, s{s_memsrc} offen offset:{ks*1024} sc1"
    def aload(ks): return f"buffer_load_dwordx4 v[{vA+4*ks}:{vA+4*ks+3}], v{v_l16}, {WS}, s{s_qkvsrc} offen offset:{ks*1024} sc1"
    def vmload(u): return f"buffer_load_dwordx4 v[{vVM+4*u}:{vVM+4*u+3}], v{v_l16b}, {WS}, s{s_qkvsrc} offen offset:{u*1024} sc1"
    def tmo(tag):
        A(f"s_sub_u32 s{s_pc}, s{s_pc}, 1")
        A(f"s_cbranch_scc1 {L('bail')}")
        hook(tag)
    def chk4(base, lab):
        return checkops(range(base, base + 4), lab, v_t)
    A.label(L('redo1'))
    A("s_nop 15")
    for r in range(24): A(f"v_mov_b32 v{acc1+r}, 0")
    A.label(L('pc'))
    for ks in range(4): A(cload(ks))
    tmo('pc')
    A.label(L('loop'))
    A("s_waitcnt vmcnt(0)")
    for o in checkops([vA + 4 * i + 3 for i in range(4)], L('pc'), v_t): A(o)
    stamp_t(0)
    mf = []
    for tile in range(6):
        for ks in range(4):
            d = acc1 + 4 * tile; w = aW1(tile, ks)
            mf.append(f"v_smfmac_f32_16x16x64_bf16 v[{d}:{d+3}], v[{vA+4*ks}:{vA+4*ks+3}], a[{w}:{w+7}], v{v_idx}")
    chk = checkops([vA + i for i in range(16) if i % 4 != 3], L('redo1'), v_t)
    vl = [] if nokv else kvload(vV, s_v)
    interleave(A, mf[:16], chk + vl, per=1)
    post = []
    for which in range(2):
        d0 = acc1 + 8 * which
        post += halves(d0, d0 + 4) + [f"ds_write_b32 v{v_w1q}, v{d0+r} offset:{which*1152 + r*32}" for r in range(4)]
    interleave(A, mf[16:], post[:10], per=3)
    for o in post[10:]: A(o)
    for o in halves(acc1 + 16, acc1 + 20): A(o)
    for r in range(4): A(f"ds_write_b32 v{v_w1v}, v{acc1+16+r} offset:{r*32}")
    for r in range(8): A(f"v_mov_b32 v{acc2+r}, 0")
    A("s_waitcnt lgkmcnt(0)")
    if trace: stamp_t(7)
    A("s_barrier")
    A(f"s_cmp_eq_u32 s{s_wave}, 3")
    A(f"s_cbranch_scc0 {L('s1a')}")
    for p in range(4):
        A(f"ds_read2_b64 v[{vU+4*p}:{vU+4*p+3}], v{v_r3+p} offset0:0 offset1:36")
    A(f"s_branch {L('s1b')}")
    A.label(L('s1a'))
    for p in range(4):
        A(f"ds_read_b128 v[{vU+4*p}:{vU+4*p+3}], v{v_r1} offset:{p*3584}")
    A.label(L('s1b'))
    for r in range(8, 20): A(f"v_mov_b32 v{acc2+r}, 0")
    A("s_waitcnt lgkmcnt(2)")
    A(pkadd(vU, vU, vU + 4)); A(pkadd(vU + 2, vU + 2, vU + 6))
    A("s_waitcnt lgkmcnt(0)")
    A(pkadd(vU + 8, vU + 8, vU + 12)); A(pkadd(vU + 10, vU + 10, vU + 14))
    A(pkadd(vU, vU, vU + 8)); A(pkadd(vU + 2, vU + 2, vU + 10))
    A(f"v_cvt_pk_bf16_f32 v{vPub}, v{vU}, v{vU+1}")
    A(f"v_cvt_pk_bf16_f32 v{vPub+1}, v{vU+2}, v{vU+3}")
    A(f"v_min_u32 v{vPub}, -2, v{vPub}")
    A(f"v_min_u32 v{vPub+1}, -2, v{vPub+1}")
    A(f"buffer_store_dwordx2 v[{vPub}:{vPub+1}], v{v_d1}, {WS}, s{s_qkvdst} offen")
    A(f"s_mov_b32 s{s_lastq}, s{s_qkvdst}")
    A(f"s_cmp_eq_u32 s{s_step}, {nsteps-1}")
    A(f"s_cbranch_scc1 {L('fin')}")
    stamp_t(1)
    if dlyA: A(f"s_sleep {dlyA}")
    for ks in range(4): A(aload(ks))
    A(vmload(0)); A(vmload(1))
    A(f"s_mov_b32 s{s_pc}, {POLLMAX}")
    for r in range(16): A(f"v_mov_b32 v{vUm+r}, 0")
    A(f"s_branch {L('pa1')}")
    A.label(L('pa'))
    for ks in range(4): A(aload(ks))
    A(vmload(0)); A(vmload(1))
    tmo('pa')
    A.label(L('pa1'))
    A("s_waitcnt vmcnt(0)")
    for o in checkops([vA + 4 * i + 3 for i in range(6)], L('pa'), v_t): A(o)
    stamp_t(2)
    mf = []
    for ks in range(4):
        R = f"v[{vA+4*ks}:{vA+4*ks+3}]"
        for t in range(3):
            d = vS + 4 * t
            Aop = R if t == 2 else f"v[{vK+(t*4+ks)*4}:{vK+(t*4+ks)*4+3}]"
            C = "0" if ks == 0 else f"v[{d}:{d+3}]"
            mf.append(f"v_mfma_f32_16x16x32_bf16 v[{d}:{d+3}], {Aop}, {R}, {C}")
    chk = checkops([vA + i for i in range(24) if i % 4 != 3], L('pa'), v_t)
    interleave(A, mf, chk, per=1)
    um = []
    for nt in range(4):
        for ks in range(2):
            d = vUm + 4 * nt; w = aW2(nt, ks)
            um.append(f"v_smfmac_f32_16x16x64_bf16 v[{d}:{d+3}], v[{vVM+4*ks}:{vVM+4*ks+3}], a[{w}:{w+7}], v{v_idx}")
    mx, tt = v_t, v_t + 2
    A(um[0]); A("s_nop 6")
    sm1 = [f"v_max3_f32 v{mx}, v{vS}, v{vS+1}, v{vS+2}", f"v_max3_f32 v{mx}, v{mx}, v{vS+3}, v{vS+4}",
           f"v_max3_f32 v{mx}, v{mx}, v{vS+5}, v{vS+6}", f"v_max_f32 v{mx}, v{mx}, v{vS+7}", um[1],
           f"s_mov_b64 exec, s[{s_hi}:{s_hi+1}]", f"v_max3_f32 v{mx}, v{mx}, v{vS+8}, v{vS+9}", f"v_max3_f32 v{mx}, v{mx}, v{vS+10}, v{vS+11}",
           "s_mov_b64 exec, -1", f"v_mov_b32 v{tt}, v{mx}"]
    for o in sm1: A(o)
    A(um[2])
    A("s_nop 0")
    A(f"v_permlane32_swap_b32 v{mx}, v{tt}")
    A(f"v_max_f32 v{mx}, v{mx}, v{tt}")
    A(f"v_mov_b32 v{tt}, v{mx}")
    A(um[3])
    A("s_nop 0")
    A(f"v_permlane16_swap_b32 v{mx}, v{tt}")
    A(f"v_max_f32 v{mx}, v{mx}, v{tt}")
    A(f"v_mul_f32 v{mx}, s{s_nc}, v{mx}")
    ex = []
    for i in (8, 10, 0, 2, 4, 6):
        ex.append(f"v_pk_fma_f32 v[{vS+i}:{vS+i+1}], v[{vS+i}:{vS+i+1}], s[{s_c}:{s_c+1}], v[{mx}:{mx+1}] op_sel_hi:[1,1,0]")
    for i in list(range(8, 12)) + list(range(8)): ex.append(f"v_exp_f32 v{vS+i}, v{vS+i}")
    k = 0
    for i, o in enumerate(ex):
        A(o)
        if i % 4 == 3 and k < 4: A(um[4 + k]); k += 1
    Pb, X = vP + 4, vP + 6
    A(f"v_cvt_pk_bf16_f32 v{Pb}, v{vS+8}, v{vS+9}")
    A(f"v_cvt_pk_bf16_f32 v{Pb+1}, v{vS+10}, v{vS+11}")
    A(f"s_mov_b64 exec, s[{s_lo}:{s_lo+1}]")
    A(f"v_mov_b32 v{Pb}, 0"); A(f"v_mov_b32 v{Pb+1}, 0")
    A("s_mov_b64 exec, -1")
    A(f"v_mov_b32 v{X}, v{Pb}"); A(f"v_mov_b32 v{X+1}, v{Pb+1}")
    for i in range(4): A(f"v_cvt_pk_bf16_f32 v{vP+i}, v{vS+2*i}, v{vS+2*i+1}")
    A(f"v_permlane16_swap_b32 v{Pb}, v{X}")
    A(f"v_permlane16_swap_b32 v{Pb+1}, v{X+1}")
    for nt in range(2):
        d = vUm + 4 * nt
        A(f"v_cvt_pk_bf16_f32 v{vUb+8*nt+5}, v{d}, v{d+1}"); A(f"v_cvt_pk_bf16_f32 v{vUb+8*nt+7}, v{d+2}, v{d+3}")
    for i, src in enumerate((Pb, Pb + 1, X, X + 1)):
        A(f"v_mov_b32_dpp v{vP+i}, v{src} row_shr:8 row_mask:0xf bank_mask:0xc")
    d = vUm + 8
    A(f"v_cvt_pk_bf16_f32 v{vUb+21}, v{d}, v{d+1}"); A(f"v_cvt_pk_bf16_f32 v{vUb+23}, v{d+2}, v{d+3}")
    PA = f"v[{vP}:{vP+3}]"
    lr = acc2 + 16
    def fin_mf(nt):
        d = acc2 + 4 * nt
        return f"v_smfmac_f32_16x16x64_bf16 v[{d}:{d+3}], {PA}, v[{vUb+8*nt}:{vUb+8*nt+7}], v{v_idx}"
    A(f"v_smfmac_f32_16x16x64_bf16 v[{lr}:{lr+3}], {PA}, v[{vOne}:{vOne+7}], v{v_idx}")
    d = vUm + 12
    A(f"v_cvt_pk_bf16_f32 v{vUb+29}, v{d}, v{d+1}"); A(f"v_cvt_pk_bf16_f32 v{vUb+31}, v{d+2}, v{d+3}")
    for nt in range(4): A(fin_mf(nt))
    A("s_nop 1")
    lt = vS
    for r in range(4): A(f"v_mov_b32 v{lt+r}, v{lr+r}")
    h0 = halves(acc2, acc2 + 4)
    A(h0[0])
    for r in range(4): A(f"v_permlane32_swap_b32 v{lr+r}, v{lt+r}")
    A(pkadd(lr, lr, lt)); A(pkadd(lr + 2, lr + 2, lt + 2))
    for r in range(4): A(f"v_rcp_f32 v{lr+r}, v{lr+r}")
    for o in h0[1:]: A(o)
    for st in range(2):
        d0 = acc2 + 8 * st
        if st == 1:
            for o in halves(d0, d0 + 4): A(o)
        A(pkmul(d0, d0, lr)); A(pkmul(d0 + 2, d0 + 2, lr + 2))
        for r in range(4): A(f"ds_write_b32 v{v_w2}, v{d0+r} offset:{r*32+st*1280}")
    A(f"s_add_u32 s{s_k}, s{s_k}, 262144")
    A(f"s_add_u32 s{s_v}, s{s_v}, 262144")
    A("s_waitcnt lgkmcnt(0)")
    A("s_barrier")
    for p in range(4):
        A(f"ds_read_b64 v[{vB+2*p}:{vB+2*p+1}], v{v_r2} offset:{p*2560}")
    A("s_mov_b32 s96, 0x11111111"); A("s_mov_b32 s97, 0x11111111")
    A("s_waitcnt lgkmcnt(2)")
    A(pkadd(vB, vB, vB + 2))
    A("s_waitcnt lgkmcnt(0)")
    A(pkadd(vB + 4, vB + 4, vB + 6))
    A(pkadd(vB, vB, vB + 4))
    A(f"v_cvt_pk_bf16_f32 v{vB+8}, v{vB}, v{vB+1}")
    A(f"v_min_u32 v{vB+8}, -2, v{vB+8}")
    A("s_nop 1")
    A(f"v_mov_b32_dpp v{vB+9}, v{vB+8} quad_perm:[1,1,1,1] row_mask:0xf bank_mask:0xf")
    A(f"v_mov_b32_dpp v{vB+10}, v{vB+8} quad_perm:[2,2,2,2] row_mask:0xf bank_mask:0xf")
    A(f"v_mov_b32_dpp v{vB+11}, v{vB+8} quad_perm:[3,3,3,3] row_mask:0xf bank_mask:0xf")
    A("s_mov_b64 exec, s[96:97]")
    A(f"buffer_store_dwordx4 v[{vB+8}:{vB+11}], v{v_l4}, {WS}, s{s_partdst} offen sc1")
    A("s_mov_b64 exec, -1")
    stamp_t(3)
    mf, cv = utok_ops()
    side = []
    if engine:
        A(f"v_readfirstlane_b32 s{t0}, v{vCnt}")
        A(f"s_cmp_ge_u32 s{t0}, s89")
        A(f"s_cbranch_scc1 {L('kvn_ok')}")
        cntwait('kvn', s_cnt, "s89")
        A(f"s_add_u32 s{t0}, s{s_step}, 3")
        A(f"s_min_u32 s{t0}, s{t0}, 63")
        A(f"s_lshr_b32 s{t1}, s{t0}, 3")
        A(f"s_add_u32 s{t1}, s{t1}, {C_KV}")
        A(f"s_lshr_b32 s{t0}, s{t0}, 2")
        A(f"s_add_u32 s{t2}, s{t0}, {C_KVG}")
        A(f"s_cmp_lt_u32 s{t0}, 4")
        A(f"s_cselect_b32 s89, 64, 32")
        A(f"s_cselect_b32 s{t0}, s{t2}, s{t1}")
        A(f"s_lshl_b32 s{t0}, s{t0}, 7")
        A(f"s_add_u32 s{s_cnt}, s{t0}, {WS_CNT}")
        A(f"s_bitcmp1_b32 s{s_wave}, 0")
        A(f"s_cbranch_scc0 {L('nowt')}")
        A(f"v_mov_b32 v{vTch}, v{vPub}"); A(f"v_mov_b32 v{vTch+1}, v{vPub+1}")
        A(f"v_mov_b32_dpp v{vTch+2}, v{vPub} quad_perm:[1,1,3,3] row_mask:0xf bank_mask:0xf")
        A(f"v_mov_b32_dpp v{vTch+3}, v{vPub+1} quad_perm:[1,1,3,3] row_mask:0xf bank_mask:0xf")
        A("s_mov_b32 exec_lo, 0x55555555"); A("s_mov_b32 exec_hi, 0x55555555")
        A(f"buffer_store_dwordx4 v[{vTch}:{vTch+3}], v{v_d1}, {WS}, s{s_lastq} offen sc1")
        A("s_mov_b64 exec, -1")
        A.label(L('nowt'))
    if not nokv: side += kvload(vK, s_k)
    if not notouch:
        side.append(f"buffer_load_dwordx4 v[{vTch}:{vTch+3}], v{v_l16}, {WS}, s{s_touch} offen sc1")
        side.append(f"buffer_load_dwordx4 v[{vTch}:{vTch+3}], v{v_l16}, {WS}, s{s_touch2} offen sc1")
    if engine: side.append(f"buffer_load_dword v{vCnt}, v{v_zero}, {WS}, s{s_cnt} offen sc1")
    interleave(A, mf[:nW], side, per=1)
    if dlyB: A(f"s_sleep {dlyB}")
    stamp_t(6)
    def pbloads():
        for q in range(8):
            sb = s_partsrc if q < 4 else s_partsrc2
            A(f"buffer_load_dword v{vB+q}, v{v_l4}, {WS}, s{sb} offen offset:{(q%4)*1024} sc1")
    pbloads()
    A(f"s_mov_b32 s{s_pc}, {POLLMAX}")
    side = [f"v_mov_b32 v{acc1+r}, 0" for r in range(24)]
    side += [f"s_add_u32 s{r}, s{r}, {CH_STEP}" for r in (s_memsrc, s_qkvdst, s_qkvsrc, s_partdst, s_touch2)]
    side += [f"s_add_u32 s{s_touch}, s{s_touch}, 262144", f"s_add_u32 s{s_step}, s{s_step}, 1"]
    interleave(A, mf[nW:], side, per=2)
    A("s_nop 3")
    for o in cv: A(o)
    A(f"s_branch {L('pb1')}")
    A.label(L('pb'))
    pbloads()
    tmo('pb')
    A.label(L('pb1'))
    A("s_waitcnt vmcnt(0)")
    for o in checkops(range(vB, vB + 8), L('pb'), v_t): A(o)
    stamp_t(4)
    e = vS + 8
    x0 = vP
    for q in range(0, 8, 2):
        tgt = x0 + q
        A(f"v_lshlrev_b32 v{tgt}, 16, v{vB+q}"); A(f"v_and_b32 v{tgt+1}, s{s_msk}, v{vB+q}")
        A(f"v_lshlrev_b32 v{e}, 16, v{vB+q+1}"); A(f"v_and_b32 v{e+1}, s{s_msk}, v{vB+q+1}")
        A(pkadd(tgt, tgt, e))
    A(pkadd(x0, x0, x0 + 2)); A(pkadd(x0 + 4, x0 + 4, x0 + 6)); A(pkadd(x0, x0, x0 + 4))
    A(f"v_cvt_pk_bf16_f32 v{vPub+2}, v{x0}, v{x0+1}")
    A(f"v_min_u32 v{vPub+2}, -2, v{vPub+2}")
    A(f"buffer_store_dword v{vPub+2}, v{v_l4}, {WS}, s{s_memdst} offen")
    if dlyC: A(f"s_sleep {dlyC}")
    for ks in range(4): A(cload(ks))
    A(f"s_mov_b32 s{s_lastm}, s{s_memdst}")
    for r in (s_partsrc, s_partsrc2, s_memdst): A(f"s_add_u32 s{r}, s{r}, {CH_STEP}")
    A(f"s_mov_b32 s{s_pc}, {POLLMAX}")
    stamp_t(5)
    A(f"s_branch {L('loop')}")
    A.label(L('bail'))
    A(f"""
    v_mov_b32 v{v_t}, 48
    v_mov_b32 v{v_t+1}, 1
    s_mov_b64 exec, 1
    buffer_atomic_add v{v_t+1}, v{v_t}, {DBG}, 0 offen
    s_mov_b64 exec, -1
    """)
    A(f"s_branch {L('end')}")
    A.label(L('fin'))
    if engine:
        A(f"buffer_store_dwordx2 v[{vPub}:{vPub+1}], v{v_d1}, {WS}, s{s_lastq} offen sc1")
        A("s_barrier")
        A.label(L('fin2'))
    if stamp:
        A(f"s_load_dwordx2 s[4:5], s[0:1], {KA_WS if engine else 80}")
        A("s_memrealtime s[72:73]")
        A("s_waitcnt lgkmcnt(0)")
        make_srd(A, 24, 4, WS_SIZE if engine else 1 << 20)
        A("s_sub_u32 s87, s72, s78")
        if engine: A("s_mov_b32 s86, s78"); A("s_mov_b32 s85, s75")
        A("s_waitcnt vmcnt(0)")
        for k in range(8): A(f"v_mov_b32 v{vA+k}, s{80+k}")
        A(f"""
        s_lshl_b32 s{t0}, s{s_role}, 7
        s_lshl_b32 s{t1}, s{s_wave}, 5
        s_add_u32 s{t0}, s{t0}, s{t1}
        s_lshl_b32 s{t1}, s{t0}, 3
        s_add_u32 s{t1}, s{t1}, {65536 + (WS_DUMMY + 0x80000 if engine else 0)}
        s_add_u32 s{t0}, s{t0}, {WS_DUMMY + 0x80000 if engine else 0}
        buffer_store_dword v255, v{v_l4}, s[24:27], s{t1} offen
        v_mov_b32 v{v_t}, 0
        s_mov_b64 exec, 1
        buffer_store_dwordx4 v[{vA}:{vA+3}], v{v_t}, s[24:27], s{t0} offen
        buffer_store_dwordx4 v[{vA+4}:{vA+7}], v{v_t}, s[24:27], s{t0} offen offset:16
        """)
    if engine:
        A("s_mov_b64 exec, -1")
        A(f"s_add_u32 s14, s{s_role}, 128")
        A("s_mov_b32 s81, 0")
        A(f"s_branch {L('wentry')}")
    A.label(L('end'))
    A("s_endpgm")
    if after: after(A, L)
    return dict(lds=24576 + 4 * 32768)

if __name__ == "__main__":
    A = Asm()
    A.raw('.amdgcn_target "amdgcn-amd-amdhsa--gfx950"')
    hdr = []
    var = [dict(stamp=True, nW=32), dict(stamp=True, nW=24), dict(stamp=True, nW=32, dlyC=3), dict(stamp=True, nW=32, dlyC=5), dict(stamp=True, nW=32, dlyA=2, dlyC=3), dict(stamp=True, nW=32, dlyA=3, dlyC=4),
           dict(stamp=True, nW=32, dlyB=2, dlyC=3), dict(stamp=True, nW=28, dlyA=2, dlyC=4), dict(stamp=True, rounds=True, nW=32, dlyA=2, dlyC=3)]
    for i, d in enumerate(var):
        n = f"chain{i}_kernel"
        r = gen_chain(A, n, **d)
        hdr.append(f"; @launch kernel={n} grid=(256,1,1) block=(256,1,1) lds={r['lds']}")
    for i in range(len(var)):
        kernel_desc(A, f"chain{i}_kernel", 512, 102, accum=256)
    open("chain.s", "w").write("\n".join(hdr) + "\n" + A.text())
```

```python
from asmlib import *
from layout import *
from gemm import Gemm
from k_misc import ln_row, ln_core, f2u, SC

T_END, T_KVS, T_KVL, T_QA, T_WO, T_LN, T_F1, T_F2, T_QO, T_AT, T_WOS, T_LNR, T_F1S, T_F2S, T_FIN = range(15)
S_A, S_B, S_DONE = 10, 11, 98
WS = "s[16:19]"

def store_frag(A, g, base, s_seg0head, sc1=True):
    t = g.v_wa[0]; cnt = 0
    sc = " sc1" if sc1 else ""
    for n in range(g.nt):
        for p in range(g.mt // 2):
            d = t + 4 * (cnt % (g.mh * 2))
            a0 = g.fetch(2 * p, n, g.v_xb[0] + 8 * (cnt % 2)); a1 = g.fetch(2 * p + 1, n, g.v_xb[0] + 8 * (cnt % 2) + 4); cnt += 1
            A(f"v_cvt_pk_bf16_f32 v{d}, v{a0}, v{a0+1}"); A(f"v_cvt_pk_bf16_f32 v{d+1}, v{a0+2}, v{a0+3}")
            A(f"v_cvt_pk_bf16_f32 v{d+2}, v{a1}, v{a1+1}"); A(f"v_cvt_pk_bf16_f32 v{d+3}, v{a1+2}, v{a1+3}")
            A(f"buffer_store_dwordx4 v[{d}:{d+3}], v3, {WS}, s26 offen offset:{1024*p}{sc}")
        A(f"s_add_u32 s26, s26, {4096 if n % 2 == 0 else 32*8192 - 4096}")

def body_kv(A, L, tag, BM, BN, NS):
    ncb = 4096 // BN
    A(f"""
    s_cmp_ge_u32 s{S_B}, {ncb}
    s_cselect_b32 s4, s64, s62
    s_cselect_b32 s5, s65, s63
    s_cmp_ge_u32 s{S_B}, {2*ncb}
    s_cselect_b32 s4, s60, s4
    s_cselect_b32 s5, s61, s5
    s_mov_b32 s29, {WS_VT}
    s_cselect_b32 s29, {WS_Q}, s29
    """)
    make_srd(A, 20, 4, 1024 * 4096 * 2)
    per = (BM // 32) * CH_STEP // (2 * ncb)
    A(f"s_cmp_ge_u32 s{S_B}, {2*ncb}")
    A(f"s_cbranch_scc1 {L(tag+'_na')}")
    if BM == 128: A(f"s_branch {L(tag+'_na')}")
    A(f"s_mul_i32 s24, s{S_A}, {(BM//32)*CH_STEP}")
    A(f"s_mul_i32 s25, s{S_B}, {per}")
    A(f"s_add_u32 s24, s24, s25")
    A(f"s_add_u32 s24, s24, {WS_CH}")
    A("v_lshlrev_b32 v3, 4, v0")
    for r in range(4, 8): A(f"v_mov_b32 v{r}, -1")
    A(f"s_mov_b32 s25, {per // 4096}")
    A.label(L(tag + '_al'))
    A(f"buffer_store_dwordx4 v[4:7], v3, {WS}, s24 offen sc1")
    A("s_add_u32 s24, s24, 4096"); A("s_sub_u32 s25, s25, 1"); A("s_cmp_lg_u32 s25, 0")
    A(f"s_cbranch_scc1 {L(tag+'_al')}")
    A.label(L(tag + '_na'))
    A(f"""
    s_mul_i32 s24, s{S_A}, {BM*2048}
    s_add_u32 s24, s24, {WS_XN}
    s_and_b32 s12, s{S_B}, {ncb-1}
    s_mul_i32 s25, s12, {BN*2}
    s_cmp_ge_u32 s{S_B}, {ncb}
    s_cbranch_scc1 {L(tag+'_v')}
    s_mov_b32 s29, {WS_K}
    """)
    g = Gemm(A, tag, BM, BN, 2, 2, NS, 1024, 2048, 8192, vbase=4, sbase=30, agpr=True, spread=2)
    g.setup(13, 2, 1)
    A(f"s_branch {L(tag+'_m')}")
    A.label(L(tag + '_v'))
    g.setup(13, 2, 0, nat_as_perm=True)
    A.label(L(tag + '_m'))
    g.mainloop(1, 16, 20, 24, 25)
    A(f"""
    v_lshlrev_b32 v3, 4, v2
    s_mul_i32 s26, s{S_A}, {BM//32}
    s_mul_i32 s27, s{g.s_wm}, {g.TM//32}
    s_add_u32 s26, s26, s27
    s_lshl_b32 s26, s26, 18
    s_mul_i32 s27, s12, {BN}
    s_mul_i32 s28, s{g.s_wn}, {g.TN}
    s_add_u32 s27, s27, s28
    s_lshr_b32 s28, s27, 7
    s_lshl_b32 s28, s28, 13
    s_add_u32 s26, s26, s28
    s_and_b32 s27, s27, 127
    s_lshl_b32 s27, s27, 5
    s_add_u32 s26, s26, s27
    s_add_u32 s26, s26, s29
    s_nop 3
    """)
    store_frag(A, g, 0, 26)
    A(f"s_branch {L('done')}")
    return g.lds_bytes

def attention(A, g, Qb, vK, vR, free, lds_v, s_out, vl, sc1=True):
    S = free; P = free + 24; O = free + 40; F = free + 56
    vtrv, vtrm, off = lds_v
    for n in range(2):
        for ks in range(4):
            for t in range(3):
                d = S + 12 * n + 4 * t
                Aop = f"v[{vR+4*ks}:{vR+4*ks+3}]" if t == 2 else f"v[{vK+(t*4+ks)*4}:{vK+(t*4+ks)*4+3}]"
                q = Qb + (n * 4 + ks) * 4
                C = "0" if ks == 0 else f"v[{d}:{d+3}]"
                A(f"v_mfma_f32_16x16x32_bf16 v[{d}:{d+3}], {Aop}, v[{q}:{q+3}], {C}")
    A("s_nop 7")
    mx, tt, sm = vl['t'], vl['t'] + 1, vl['t'] + 2
    for n in range(2):
        s_ = S + 12 * n
        for o in range(8):
            A(f"v_cmp_gt_i32 vcc, {o - 16*n}, v{vl['thr']}")
            A("s_nop 1")
            A(f"v_cndmask_b32 v{s_+o}, v{s_+o}, v{vl['ninf']}, vcc")
        A(f"""
        v_max3_f32 v{mx}, v{s_}, v{s_+1}, v{s_+2}
        v_max3_f32 v{mx}, v{mx}, v{s_+3}, v{s_+4}
        v_max3_f32 v{mx}, v{mx}, v{s_+5}, v{s_+6}
        v_max_f32 v{mx}, v{mx}, v{s_+7}
        s_mov_b64 exec, s[36:37]
        v_max3_f32 v{mx}, v{mx}, v{s_+8}, v{s_+9}
        v_max3_f32 v{mx}, v{mx}, v{s_+10}, v{s_+11}
        s_mov_b64 exec, -1
        v_mov_b32 v{tt}, v{mx}
        s_nop 1
        v_permlane32_swap_b32 v{mx}, v{tt}
        v_max_f32 v{mx}, v{mx}, v{tt}
        v_mov_b32 v{tt}, v{mx}
        s_nop 1
        v_permlane16_swap_b32 v{mx}, v{tt}
        v_max_f32 v{mx}, v{mx}, v{tt}
        v_mul_f32 v{mx}, s34, v{mx}
        """)
        for i in range(12): A(f"v_fma_f32 v{s_+i}, v{s_+i}, s34, -v{mx}")
        for i in range(12): A(f"v_exp_f32 v{s_+i}, v{s_+i}")
        A("s_mov_b64 exec, s[38:39]")
        for i in range(4): A(f"v_mov_b32 v{s_+8+i}, 0")
        A("s_mov_b64 exec, -1")
        A(f"v_add_f32 v{sm}, v{s_}, v{s_+1}")
        for i in range(2, 12): A(f"v_add_f32 v{sm}, v{sm}, v{s_+i}")
        for sw in ("v_permlane32_swap_b32", "v_permlane16_swap_b32"):
            A(f"v_mov_b32 v{tt}, v{sm}"); A("s_nop 1"); A(f"{sw} v{sm}, v{tt}"); A(f"v_add_f32 v{sm}, v{sm}, v{tt}")
        A(f"v_rcp_f32 v{sm}, v{sm}")
        A("s_nop 0")
        for i in range(12): A(f"v_mul_f32 v{s_+i}, v{s_+i}, v{sm}")
        for i in range(6): A(f"v_cvt_pk_bf16_f32 v{P+8*n+i}, v{s_+2*i}, v{s_+2*i+1}")
    A(f"s_waitcnt vmcnt({vl['vwait']})")
    sc = " sc1" if sc1 else ""
    for p in range(4):
        for t in range(2):
            for u in range(2):
                A(f"ds_read_b64_tr_b16 v[{F+4*t+2*u}:{F+4*t+2*u+1}], v{vtrv} offset:{off + p*1024 + 8*t + 64*u}")
            A(f"ds_read_b64_tr_b16 v[{F+8+2*t}:{F+8+2*t+1}], v{vtrm} offset:{off + p*64 + 8*t}")
        A("s_waitcnt lgkmcnt(0)")
        for n in range(2):
            for t in range(2):
                d = O + (n * 2 + t) * 4
                A(f"v_mfma_f32_16x16x32_bf16 v[{d}:{d+3}], v[{F+4*t}:{F+4*t+3}], v[{P+8*n}:{P+8*n+3}], 0")
        A("s_nop 3")
        for n in range(2):
            for t in range(2):
                d = O + (n * 2 + t) * 4
                A(f"v_mfma_f32_16x16x16_bf16 v[{d}:{d+3}], v[{F+8+2*t}:{F+8+2*t+1}], v[{P+8*n+4}:{P+8*n+5}], v[{d}:{d+3}]")
        A("s_nop 7")
        for n in range(2):
            d = S + 8 * (p & 1) + 4 * n
            a0 = O + n * 8; a1 = a0 + 4
            A(f"v_cvt_pk_bf16_f32 v{d}, v{a0}, v{a0+1}"); A(f"v_cvt_pk_bf16_f32 v{d+1}, v{a0+2}, v{a0+3}")
            A(f"v_cvt_pk_bf16_f32 v{d+2}, v{a1}, v{a1+1}"); A(f"v_cvt_pk_bf16_f32 v{d+3}, v{a1+2}, v{a1+3}")
            A(f"buffer_store_dwordx4 v[{d}:{d+3}], v{vl['o']}, {WS}, s{s_out + n} offen offset:{64*p}{sc}")

def chain_wait(A, L, tag, nseg, vR, vK, tmp, vl16, vl16b, vt, psleep=12):
    A(f"s_add_u32 s33, s30, {(nseg-1)*CH_STEP + 7168}")
    A(f"s_mov_b32 s35, {1 << 19}")
    A.label(L(tag + '_w1'))
    A(f"buffer_load_dwordx4 v[{tmp}:{tmp+3}], v{vl16}, {WS}, s33 offen sc1")
    A("s_sub_u32 s35, s35, 1")
    A(f"s_cbranch_scc1 {L('end')}")
    A("s_waitcnt vmcnt(0)")
    A(f"v_cmp_eq_u32 vcc, -1, v{tmp+3}")
    A(f"s_cbranch_vccz {L(tag+'_w2')}")
    A(f"s_sleep {psleep}")
    A(f"s_branch {L(tag+'_w1')}")
    A.label(L(tag + '_w2'))
    for sg in range(nseg):
        A(f"s_add_u32 s33, s30, {sg*CH_STEP}")
        for i in range(4):
            A(f"buffer_load_dwordx4 v[{vR[sg]+4*i}:{vR[sg]+4*i+3}], v{vl16}, {WS}, s33 offen offset:{i*1024} sc1")
        for i in range(2):
            A(f"buffer_load_dwordx4 v[{tmp+8*sg+4*i}:{tmp+8*sg+4*i+3}], v{vl16b}, {WS}, s33 offen offset:{2048+i*1024} sc1")
    A("s_sub_u32 s35, s35, 1")
    A(f"s_cbranch_scc1 {L('end')}")
    A("s_waitcnt vmcnt(0)")
    rr = [vR[sg] + i for sg in range(nseg) for i in range(16)]
    A(f"v_max3_u32 v{vt}, v{rr[0]}, v{rr[1]}, v{rr[2]}")
    for i in range(3, len(rr) - 1, 2): A(f"v_max3_u32 v{vt}, v{vt}, v{rr[i]}, v{rr[i+1]}")
    A(f"v_max_u32 v{vt}, v{vt}, v{rr[-1]}")
    A("s_mov_b32 exec_lo, 0x00ff00ff"); A("s_mov_b32 exec_hi, 0x00ff00ff")
    A(f"v_mov_b32 v{vt}, 0")
    A("s_mov_b64 exec, -1")
    for i in range(0, 8 * nseg, 2): A(f"v_max3_u32 v{vt}, v{vt}, v{tmp+i}, v{tmp+i+1}")
    A(f"v_cmp_eq_u32 vcc, -1, v{vt}")
    A(f"s_cbranch_vccnz {L(tag+'_w2')}")
    for sg in range(nseg):
        A(f"s_add_u32 s32, s28, {sg*262144}")
        for i in range(8):
            A(f"buffer_load_dwordx4 v[{vK[sg]+4*i}:{vK[sg]+4*i+3}], v{vl16 if i < 4 else vl16b}, {WS}, s32 offen offset:{(i%4)*1024} sc1")

def att_setup(A, vt, vtrv, vtrm, vthr, vo_, vninf):
    n_, g_ = vt, vt + 1
    A(f"""
    v_and_b32 v{n_}, 15, v2
    v_lshrrev_b32 v{g_}, 4, v2
    v_lshrrev_b32 v{vt+2}, 1, v{g_}
    v_lshlrev_b32 v{vtrv}, 12, v{vt+2}
    v_and_b32 v{vt+2}, 3, v{n_}
    v_lshl_add_u32 v{vtrv}, v{vt+2}, 8, v{vtrv}
    v_and_b32 v{vt+3}, 1, v{g_}
    v_lshl_add_u32 v{vtrv}, v{vt+3}, 7, v{vtrv}
    v_lshrrev_b32 v{vt+4}, 2, v{n_}
    v_lshl_add_u32 v{vtrv}, v{vt+4}, 4, v{vtrv}
    v_add_u32 v{vtrv}, s31, v{vtrv}
    v_lshl_add_u32 v{vtrm}, v{vt+3}, 2, v{vt+4}
    v_lshlrev_b32 v{vtrm}, 8, v{vtrm}
    v_lshl_add_u32 v{vtrm}, v{vt+2}, 4, v{vtrm}
    v_add_u32 v{vtrm}, s31, v{vtrm}
    v_add_u32 v{vtrm}, 0x2000, v{vtrm}
    v_lshlrev_b32 v{vt+2}, 3, v{g_}
    v_sub_u32 v{vthr}, v{n_}, v{vt+2}
    v_lshlrev_b32 v{vo_}, 13, v{n_}
    v_lshl_add_u32 v{vo_}, v{g_}, 4, v{vo_}
    v_mov_b32 v{vninf}, 0xff800000
    s_lshl_b32 s32, s26, 18
    s_lshl_b32 s33, s{S_B}, 8
    s_add_u32 s32, s32, s33
    s_add_u32 s32, s32, {WS_O}
    s_add_u32 s33, s32, {16*8192}
    """)

def body_qa(A, L, tag, BM=256, NS=3):
    nseg = BM // 128
    make_srd(A, 20, 60, 1024 * 4096 * 2)
    A(f"""
    s_mul_i32 s24, s{S_A}, {BM*2048}
    s_add_u32 s24, s24, {WS_XN}
    s_lshl_b32 s25, s{S_B}, 8
    """)
    g = Gemm(A, tag, BM, 128, 4, 1, NS, 1024, 2048, 8192, vbase=4, sbase=40, agpr=True, spread=2)
    g.setup(13, 2, 0)
    b0 = (g.v_end + 3) // 4 * 4
    vK = [b0 + 48 * i for i in range(nseg)]; vR = [v + 32 for v in vK]
    m0 = b0 + 48 * nseg
    vl16, vl16b, vtrv, vtrm, vthr, vo_, vninf, vt = m0, m0 + 1, m0 + 2, m0 + 3, m0 + 4, m0 + 5, m0 + 6, m0 + 7
    Qb = (m0 + 12 + 3) // 4 * 4
    assert Qb + 32 <= 256
    free = g.v_wa[0]; assert g.v_xr - free >= 64 or True
    A(f"""
    v_lshlrev_b32 v{vl16}, 4, v2
    v_add_u32 v{vl16b}, 0x1000, v{vl16}
    s_mul_i32 s26, s{S_A}, {BM//32}
    s_mul_i32 s27, s13, {nseg}
    s_add_u32 s26, s26, s27
    s_lshl_b32 s27, s26, 5
    s_add_u32 s27, s27, s{S_B}
    s_lshl_b32 s27, s27, 13
    s_add_u32 s28, s27, {WS_K}
    s_add_u32 s29, s27, {WS_VT}
    s_lshl_b32 s30, s26, 19
    s_lshl_b32 s31, s{S_B}, 13
    s_add_u32 s30, s30, s31
    s_add_u32 s30, s30, {WS_CH + CH_QKV}
    s_mov_b32 s34, {f2u(SC):#x}
    s_mov_b32 s36, 0
    s_mov_b32 s37, -1
    s_mov_b32 s38, -1
    s_mov_b32 s39, 0
    """)
    chain_wait(A, L, tag, nseg, vR, vK, Qb, vl16, vl16b, vt)
    g.mainloop(0, 16, 20, 24, 25)
    A("s_barrier")
    A(f"s_mul_i32 s31, s13, {10240*nseg}")
    for sg in range(nseg):
        for i in range(10):
            A(f"s_add_u32 m0, s31, {sg*10240 + i*1024}")
            if i < 8: A(f"s_add_u32 s35, s29, {sg*262144 + i*1024}")
            else:     A(f"s_add_u32 s35, s30, {sg*CH_STEP + 6144 + (i-8)*1024}")
            A(f"buffer_load_dwordx4 v{vl16}, {WS}, s35 offen sc1 lds")
    att_setup(A, vt, vtrv, vtrm, vthr, vo_, vninf)
    fr = 4
    assert b0 - fr >= 72, (b0,)
    for sg in range(nseg):
        for n in range(2):
            for ks in range(4):
                d = Qb + (n * 4 + ks) * 4
                a0 = g.fetch(2 * ks, 2 * sg + n, fr); a1 = g.fetch(2 * ks + 1, 2 * sg + n, fr + 4)
                A(f"v_cvt_pk_bf16_f32 v{d}, v{a0}, v{a0+1}"); A(f"v_cvt_pk_bf16_f32 v{d+1}, v{a0+2}, v{a0+3}")
                A(f"v_cvt_pk_bf16_f32 v{d+2}, v{a1}, v{a1+1}"); A(f"v_cvt_pk_bf16_f32 v{d+3}, v{a1+2}, v{a1+3}")
        A("s_nop 1")
        vw = 10 * (nseg - 1) if sg == 0 else 8
        attention(A, g, Qb, vK[sg], vR[sg], fr, (vtrv, vtrm, sg * 10240), 32, dict(thr=vthr, o=vo_, ninf=vninf, t=vt, vwait=vw))
        if sg + 1 < nseg:
            A(f"s_add_u32 s32, s32, {32*8192}"); A(f"s_add_u32 s33, s33, {32*8192}")
    A(f"s_branch {L('done')}")
    return g.lds_bytes

def body_res(A, L, tag, ka_w, K, ws_x, res_from_x, to_out, BM=128, BN=128, NS=4):
    A(f"s_load_dwordx2 s[4:5], s[0:1], {ka_w}")
    A(f"s_load_dwordx2 s[6:7], s[0:1], {KA_X if res_from_x else KA_OUT}")
    A("s_waitcnt lgkmcnt(0)")
    make_srd(A, 20, 4, K * 1024 * 2)
    make_srd(A, 24 + 4, 6, 2048 * 2048)
    A(f"""
    s_mul_i32 s24, s{S_A}, {BM*K*2}
    s_add_u32 s24, s24, {ws_x}
    s_mul_i32 s25, s{S_B}, {BN*2}
    """)
    g = Gemm(A, tag, BM, BN, 2, 2, NS, K, K * 2, 2048, vbase=4, sbase=40, kperm=True, spread=min(2, 2), xsc1=True)
    g.setup(13, 2, 0)
    vr_, vs_ = g.v_end, g.v_end + 1
    R = (g.v_end + 3) // 2 * 2
    npair = g.mt // 2
    A(f"""
    v_and_b32 v3, 15, v2
    v_lshlrev_b32 v3, 11, v3
    v_lshrrev_b32 v{vs_}, 4, v2
    v_lshl_add_u32 v{vr_}, v{vs_}, 3, v3
    v_lshl_add_u32 v{vs_}, v{vs_}, 4, v3
    s_mul_i32 s26, s{S_A}, {BM}
    s_mul_i32 s27, s{g.s_wm}, {g.TM}
    s_add_u32 s26, s26, s27
    s_lshl_b32 s26, s26, 11
    s_add_u32 s26, s26, s25
    s_mul_i32 s27, s{g.s_wn}, {g.TN*2}
    s_add_u32 s26, s26, s27
    s_add_u32 s27, s26, {WS_H}
    """)
    rs, rb_ = ("s[28:31]", 26) if res_from_x else (WS, 27)
    rsc = "" if res_from_x else " sc1"
    for n in range(g.nt):
        A(f"s_add_u32 s32, s{rb_}, {n*16*2048}")
        for m in range(g.mt):
            r = R + (n * g.mt + m) * 2
            A(f"buffer_load_dwordx2 v[{r}:{r+1}], v{vr_}, {rs}, s32 offen offset:{m*32}{rsc}")
    g.mainloop(0, 16, 20, 24, 25)
    A("s_nop 7")
    t_ = g.v_wa[0]
    os_, ob_ = ("s[28:31]", 26) if to_out else (WS, 27)
    osc = "" if to_out else " sc1"
    cnt = 0
    for n in range(g.nt):
        A(f"s_add_u32 s32, s{ob_}, {n*16*2048}")
        for p in range(npair):
            d = t_ + 8 * (cnt % 2); cnt += 1
            for t in range(2):
                a = g.acc(2 * p + t, n)
                for h in range(2):
                    rr = R + (n * g.mt + 2 * p + t) * 2 + h
                    A(f"v_cvt_pk_bf16_f32 v{d+4}, v{a+2*h}, v{a+2*h+1}")
                    A(f"v_lshlrev_b32 v{d+5}, 16, v{d+4}")
                    A(f"v_and_b32 v{d+4}, 0xffff0000, v{d+4}")
                    A(f"v_lshlrev_b32 v{d+6}, 16, v{rr}")
                    A(f"v_and_b32 v{d+7}, 0xffff0000, v{rr}")
                    A(f"v_add_f32 v{d+5}, v{d+5}, v{d+6}")
                    A(f"v_add_f32 v{d+4}, v{d+4}, v{d+7}")
                    A(f"v_cvt_pk_bf16_f32 v{d+2*t+h}, v{d+5}, v{d+4}")
            A("s_nop 1")
            A(f"v_permlane32_swap_b32 v{d}, v{d+2}"); A(f"v_permlane32_swap_b32 v{d+1}, v{d+3}")
            A("s_nop 1")
            A(f"v_permlane16_swap_b32 v{d}, v{d+2}"); A(f"v_permlane16_swap_b32 v{d+1}, v{d+3}")
            A(f"buffer_store_dwordx4 v[{d}:{d+3}], v{vs_}, {os_}, s32 offen offset:{64*p}{osc}")
    A(f"s_branch {L('done')}")
    assert R + g.nt * g.mt * 2 <= 256
    return g.lds_bytes

def silu_store(A, g, t_):
    cnt = 0
    for n in range(g.nt):
        for p in range(g.mt // 2):
            d = t_ + 4 * (cnt % 4); cnt += 1
            e = g.v_xb[0]
            for t in range(2):
                a = g.acc(2 * p + t, n)
                for h in range(2):
                    A(f"v_cvt_pk_bf16_f32 v{e}, v{a+2*h}, v{a+2*h+1}")
                    A(f"v_lshlrev_b32 v{a+2*h}, 16, v{e}")
                    A(f"v_and_b32 v{a+2*h+1}, 0xffff0000, v{e}")
                for r in range(4): A(f"v_mul_f32 v{e+r}, s28, v{a+r}")
                for r in range(4): A(f"v_exp_f32 v{e+r}, v{e+r}")
                A("s_nop 0")
                for r in range(4): A(f"v_add_f32 v{e+r}, 1.0, v{e+r}")
                for r in range(4): A(f"v_rcp_f32 v{e+r}, v{e+r}")
                A("s_nop 0")
                for r in range(4): A(f"v_mul_f32 v{a+r}, v{a+r}, v{e+r}")
                A(f"v_cvt_pk_bf16_f32 v{d+2*t}, v{a}, v{a+1}")
                A(f"v_cvt_pk_bf16_f32 v{d+2*t+1}, v{a+2}, v{a+3}")
            A(f"buffer_store_dwordx4 v[{d}:{d+3}], v3, {WS}, s26 offen offset:{64*p} sc1")
        A(f"s_add_u32 s26, s26, {16*7168}")

def body_f1(A, L, tag, BM=256, BN=128, NS=3):
    A(f"s_cmp_ge_u32 s{S_B}, {3584//BN}")
    A(f"s_cbranch_scc1 {L('skip')}")
    A(f"s_load_dwordx2 s[4:5], s[0:1], {KA_W1}")
    A("s_waitcnt lgkmcnt(0)")
    make_srd(A, 20, 4, 1024 * 3584 * 2)
    A(f"""
    s_mul_i32 s24, s{S_A}, {BM*2048}
    s_add_u32 s24, s24, {WS_HN}
    s_mul_i32 s25, s{S_B}, {BN*2}
    """)
    g = Gemm(A, tag, BM, BN, 2, 2, NS, 1024, 2048, 7168, vbase=4, sbase=40, spread=2, xsc1=True)
    g.setup(13, 2, 0)
    g.mainloop(0, 16, 20, 24, 25)
    t_ = g.v_wa[0]
    A(f"""
    v_and_b32 v3, 15, v2
    v_mul_u32_u24 v3, 7168, v3
    v_lshrrev_b32 v1, 4, v2
    v_lshl_add_u32 v3, v1, 4, v3
    s_mul_i32 s26, s{S_A}, {BM}
    s_mul_i32 s27, s{g.s_wm}, {g.TM}
    s_add_u32 s26, s26, s27
    s_mul_i32 s26, s26, 7168
    s_mul_i32 s27, s{S_B}, {BN*2}
    s_add_u32 s26, s26, s27
    s_mul_i32 s27, s{g.s_wn}, {g.TN*2}
    s_add_u32 s26, s26, s27
    s_add_u32 s26, s26, {WS_F1}
    s_mov_b32 s28, {f2u(-1.4426950408889634):#x}
    s_nop 4
    """)
    silu_store(A, g, t_)
    A(f"s_branch {L('done')}")
    return g.lds_bytes

def body_ln(A, L, tag, rows_per_wave=4):
    A(f"""
    v_lshlrev_b32 v3, 4, v2
    s_mul_i32 s26, s{S_A}, {4*rows_per_wave}
    s_mul_i32 s27, s13, {rows_per_wave}
    s_add_u32 s26, s26, s27
    s_lshl_b32 s26, s26, 11
    s_add_u32 s27, s26, {WS_HN}
    s_add_u32 s26, s26, {WS_H}
    s_mov_b32 s28, {rows_per_wave}
    """)
    A.label(L(tag + '_l'))
    ln_row(A, 16, 26, 16, 27, 3, sc1=True)
    A(f"""
    s_add_u32 s26, s26, 2048
    s_add_u32 s27, s27, 2048
    s_sub_u32 s28, s28, 1
    s_cmp_lg_u32 s28, 0
    s_cbranch_scc1 {L(tag+'_l')}
    s_branch {L('done')}
    """)
    return 0

def body_at(A, L, tag):
    vK, vR, Qb, tmp = 76, 108, 124, 156
    m0 = 172
    vl16, vl16b, vtrv, vtrm, vthr, vo_, vninf, vt = m0, m0 + 1, m0 + 2, m0 + 3, m0 + 4, m0 + 5, m0 + 6, m0 + 7
    A(f"""
    v_lshlrev_b32 v{vl16}, 4, v2
    v_add_u32 v{vl16b}, 0x1000, v{vl16}
    s_lshl_b32 s26, s{S_A}, 2
    s_add_u32 s26, s26, s13
    s_lshl_b32 s27, s26, 5
    s_add_u32 s27, s27, s{S_B}
    s_lshl_b32 s27, s27, 13
    s_add_u32 s28, s27, {WS_K}
    s_add_u32 s29, s27, {WS_VT}
    s_add_u32 s27, s27, {WS_Q}
    s_lshl_b32 s30, s26, 19
    s_lshl_b32 s31, s{S_B}, 13
    s_add_u32 s30, s30, s31
    s_add_u32 s30, s30, {WS_CH + CH_QKV}
    s_mov_b32 s34, {f2u(SC):#x}
    s_mov_b32 s36, 0
    s_mov_b32 s37, -1
    s_mov_b32 s38, -1
    s_mov_b32 s39, 0
    s_mul_i32 s31, s13, 10240
    """)
    for i in range(8):
        A(f"buffer_load_dwordx4 v[{Qb+4*i}:{Qb+4*i+3}], v{vl16 if i < 4 else vl16b}, {WS}, s27 offen offset:{(i%4)*1024} sc1")
    att_setup(A, vt, vtrv, vtrm, vthr, vo_, vninf)
    chain_wait(A, L, tag, 1, [vR], [vK], tmp, vl16, vl16b, vt, psleep=2)
    for i in range(10):
        A(f"s_add_u32 m0, s31, {i*1024}")
        if i < 8: A(f"s_add_u32 s35, s29, {i*1024}")
        else:     A(f"s_add_u32 s35, s30, {6144 + (i-8)*1024}")
        A(f"buffer_load_dwordx4 v{vl16}, {WS}, s35 offen sc1 lds")
    A(f"""
    s_lshl_b32 s32, s26, 18
    s_lshl_b32 s33, s{S_B}, 8
    s_add_u32 s32, s32, s33
    s_add_u32 s32, s32, {WS_O}
    s_add_u32 s33, s32, {16*8192}
    s_waitcnt vmcnt(10)
    """)
    attention(A, None, Qb, vK, vR, 4, (vtrv, vtrm, 0), 32, dict(thr=vthr, o=vo_, ninf=vninf, t=vt, vwait=0))
    A(f"s_branch {L('done')}")
    return 40960

def body_small(A, L, tag, kind):
    ka, K, ldx, ldw, wsx, wbytes = {'wos': (KA_WO, 1024, 8192, 2048, WS_O, 4096*2048), 'f2s': (KA_W2, 896, 7168, 2048, WS_F1, 3584*2048),
                                    'f1s': (KA_W1, 1024, 2048, 7168, WS_HN, 1024*7168)}[kind]
    A(f"s_load_dwordx2 s[4:5], s[0:1], {ka}")
    A(f"s_mul_i32 s24, s{S_A}, {128*ldx}")
    A(f"s_add_u32 s24, s24, {wsx}")
    if kind == 'f1s':
        A(f"s_lshl_b32 s25, s{S_B}, 7")
    else:
        A(f"""
        s_and_b32 s12, s{S_B}, 15
        s_lshr_b32 s29, s{S_B}, 4
        s_mul_i32 s26, s29, {K*2}
        s_add_u32 s24, s24, s26
        s_mul_i32 s25, s29, {K*ldw}
        s_lshl_b32 s26, s12, 7
        s_add_u32 s25, s25, s26
        """)
    A("s_waitcnt lgkmcnt(0)")
    make_srd(A, 20, 4, wbytes)
    g = Gemm(A, tag, 128, 64, 2, 2, 4, K, ldx, ldw, vbase=4, sbase=40, kperm=(kind != 'f1s'), spread=2, xsc1=True)
    g.setup(13, 2, 0)
    g.mainloop(0, 16, 20, 24, 25)
    if kind == 'f1s':
        t_ = g.v_wa[0]
        A(f"""
        v_and_b32 v3, 15, v2
        v_mul_u32_u24 v3, 7168, v3
        v_lshrrev_b32 v1, 4, v2
        v_lshl_add_u32 v3, v1, 4, v3
        s_lshl_b32 s26, s{S_A}, 7
        s_lshl_b32 s27, s{g.s_wm}, 6
        s_add_u32 s26, s26, s27
        s_mul_i32 s26, s26, 7168
        s_lshl_b32 s27, s{S_B}, 7
        s_add_u32 s26, s26, s27
        s_lshl_b32 s27, s{g.s_wn}, 6
        s_add_u32 s26, s26, s27
        s_add_u32 s26, s26, {WS_F1}
        s_mov_b32 s28, {f2u(-1.4426950408889634):#x}
        s_nop 4
        """)
        silu_store(A, g, t_)
    else:
        base = WS_P1 if kind == 'wos' else WS_P2
        A(f"""
        v_and_b32 v3, 15, v2
        v_lshlrev_b32 v3, 12, v3
        v_lshrrev_b32 v1, 4, v2
        v_lshl_add_u32 v3, v1, 4, v3
        s_lshl_b32 s26, s{S_A}, 2
        s_add_u32 s26, s26, s29
        s_lshl_b32 s26, s26, 7
        s_lshl_b32 s27, s{g.s_wm}, 6
        s_add_u32 s26, s26, s27
        s_lshl_b32 s26, s26, 12
        s_lshl_b32 s27, s12, 8
        s_add_u32 s26, s26, s27
        s_lshl_b32 s27, s{g.s_wn}, 7
        s_add_u32 s26, s26, s27
        s_add_u32 s26, s26, {base}
        s_nop 4
        """)
        for n in range(g.nt):
            for m in range(g.mt):
                a = g.acc(m, n)
                A(f"buffer_store_dwordx4 v[{a}:{a+3}], v3, {WS}, s26 offen offset:{64*m} sc1")
            A(f"s_add_u32 s26, s26, {16*4096}")
    A(f"s_branch {L('done')}")
    return g.lds_bytes

def body_red(A, L, tag, fin):
    A(f"s_load_dwordx2 s[6:7], s[0:1], {KA_OUT if fin else KA_X}")
    A(f"""
    v_lshlrev_b32 v3, 4, v2
    v_lshlrev_b32 v1, 5, v2
    s_and_b32 s26, s{S_B}, 31
    s_lshr_b32 s35, s{S_B}, 5
    s_lshl_b32 s26, s26, 2
    s_add_u32 s26, s26, s13
    s_lshl_b32 s27, s{S_A}, 9
    s_add_u32 s27, s27, s26
    s_lshl_b32 s27, s27, 12
    s_add_u32 s27, s27, {WS_P2 if fin else WS_P1}
    s_lshl_b32 s32, s{S_A}, 7
    s_add_u32 s32, s32, s26
    s_lshl_b32 s32, s32, 11               ; row*2048
    s_add_u32 s33, s32, {WS_H}
    s_add_u32 s34, s32, {WS_HN}
    s_waitcnt lgkmcnt(0)
    """)
    make_srd(A, 28, 6, 2048 * 2048)
    P = 32
    for r in range(P + 16, P + 64): A(f"v_mov_b32 v{r}, 0")
    for k in range(4):
        if k:
            A(f"s_cmp_lt_u32 s35, {k}")
            A(f"s_cbranch_scc1 {L(tag+'_np')}")
        for i in range(4):
            r = P + 16 * k + 4 * i
            A(f"buffer_load_dwordx4 v[{r}:{r+3}], v1, {WS}, s27 offen offset:{(i>>1)*2048 + (i&1)*16} sc1")
        A(f"s_add_u32 s27, s27, {128*4096}")
    A.label(L(tag + '_np'))
    if fin:
        A(f"buffer_load_dwordx4 v[8:11], v3, {WS}, s33 offen sc1"); A(f"buffer_load_dwordx4 v[12:15], v3, {WS}, s33 offen offset:1024 sc1")
    else:
        A(f"buffer_load_dwordx4 v[8:11], v3, s[28:31], s32 offen"); A(f"buffer_load_dwordx4 v[12:15], v3, s[28:31], s32 offen offset:1024")
    A("s_waitcnt vmcnt(0)")
    for i in range(16):
        A(f"v_add_f32 v{P+i}, v{P+i}, v{P+16+i}"); A(f"v_add_f32 v{P+32+i}, v{P+32+i}, v{P+48+i}"); A(f"v_add_f32 v{P+i}, v{P+i}, v{P+32+i}")
    for i in range(8):
        A(f"v_cvt_pk_bf16_f32 v4, v{P+2*i}, v{P+2*i+1}")
        A(f"v_lshlrev_b32 v5, 16, v4"); A(f"v_and_b32 v4, 0xffff0000, v4")
        A(f"v_lshlrev_b32 v6, 16, v{8+i}"); A(f"v_and_b32 v7, 0xffff0000, v{8+i}")
        A(f"v_add_f32 v5, v5, v6"); A(f"v_add_f32 v4, v4, v7")
        A(f"v_cvt_pk_bf16_f32 v{P+64+i}, v5, v4")
        if not fin:
            A(f"v_lshlrev_b32 v{16+2*i}, 16, v{P+64+i}"); A(f"v_and_b32 v{17+2*i}, 0xffff0000, v{P+64+i}")
    o = P + 64
    if fin:
        A(f"buffer_store_dwordx4 v[{o}:{o+3}], v3, s[28:31], s32 offen"); A(f"buffer_store_dwordx4 v[{o+4}:{o+7}], v3, s[28:31], s32 offen offset:1024")
    else:
        A(f"buffer_store_dwordx4 v[{o}:{o+3}], v3, {WS}, s33 offen sc1"); A(f"buffer_store_dwordx4 v[{o+4}:{o+7}], v3, {WS}, s33 offen offset:1024 sc1")
        ln_core(A, 16, 34, 3, " sc1")
    A(f"s_branch {L('done')}")
    return 0

def pre_part(A, L, tag, which, BN):
    ka, Ktot, ldx, wsx, base = {'wo': (KA_WO, 4096, 8192, WS_O, WS_P1), 'f2': (KA_W2, 3584, 7168, WS_F1, WS_P2)}[which]
    A(f"s_load_dwordx2 s[4:5], s[0:1], {ka}")
    A(f"s_mov_b32 s48, {ldx}")
    A(f"s_mov_b32 s50, {base}")
    A(f"s_mov_b32 s51, {Ktot*2048}")
    A(f"s_mul_i32 s24, s{S_A}, {128*ldx}")
    A(f"s_add_u32 s24, s24, {wsx}")
    if BN == 128:
        A(f"s_and_b32 s12, s{S_B}, 7")
        A(f"s_bfe_u32 s29, s{S_B}, 0x20003")
        A(f"s_lshr_b32 s26, s{S_B}, 5")
        A(f"s_lshr_b32 s27, {Ktot}, s26")
        A(f"s_lshr_b32 s49, s27, 8")
        A(f"s_sub_u32 s49, s49, 1")
        A(f"s_mul_i32 s27, s27, s29")
    else:
        A(f"s_lshr_b32 s12, s{S_B}, 3"); A("s_lshl_b32 s12, s12, 1"); A(f"s_and_b32 s26, s{S_B}, 1"); A("s_add_u32 s12, s12, s26")
        A(f"s_bfe_u32 s29, s{S_B}, 0x20001")
        A(f"s_lshl_b32 s27, s29, 10")
        A(f"s_mov_b32 s49, 3")
        if which == 'f2':
            A("s_cmp_eq_u32 s29, 3"); A("s_cselect_b32 s49, 1, s49")
    A(f"s_lshl_b32 s26, s27, 1")
    A(f"s_add_u32 s24, s24, s26")
    A(f"s_lshl_b32 s25, s27, 11")
    A(f"s_mul_i32 s26, s12, {BN*2}")
    A(f"s_add_u32 s25, s25, s26")
    A(f"s_branch {L('b_g%d' % BN)}")

def body_part(A, L, BN):
    tag = f"g{BN}"
    A("s_waitcnt lgkmcnt(0)")
    A("s_mov_b32 s20, s4"); A("s_and_b32 s21, s5, 0xffff"); A("s_mov_b32 s22, s51"); A("s_mov_b32 s23, 0x00020000")
    g = Gemm(A, tag, 128, BN, 2, 2, 4, 1024, "s48", 2048, vbase=4, sbase=40, kperm=True, spread=2, xsc1=True)
    g.setup(13, 2, 0)
    g.mainloop(0, 16, 20, 24, 25, s_groups=49)
    A(f"""
    v_and_b32 v3, 15, v2
    v_lshlrev_b32 v3, 12, v3
    v_lshrrev_b32 v1, 4, v2
    v_lshl_add_u32 v3, v1, 4, v3
    s_lshl_b32 s26, s{S_A}, 2
    s_add_u32 s26, s26, s29
    s_lshl_b32 s26, s26, 7
    s_lshl_b32 s27, s{g.s_wm}, 6
    s_add_u32 s26, s26, s27
    s_lshl_b32 s26, s26, 12
    s_mul_i32 s27, s12, {BN*4}
    s_add_u32 s26, s26, s27
    s_mul_i32 s27, s{g.s_wn}, {BN*2}
    s_add_u32 s26, s26, s27
    s_add_u32 s26, s26, s50
    s_nop 4
    """)
    for n in range(g.nt):
        for m in range(g.mt):
            a = g.acc(m, n)
            A(f"buffer_store_dwordx4 v[{a}:{a+3}], v3, {WS}, s26 offen offset:{64*m} sc1")
        A(f"s_add_u32 s26, s26, {16*4096}")
    A(f"s_branch {L('done')}")
    return g.lds_bytes

PROBE0 = WS_CH + 3 * CH_STEP + CH_QKV + 31 * HB + 8188
def gen_worker(A, L, table_label, MAXT, POLLMAX=1 << 20, wstamp=False, psleep=3, exh0=0, repair=None, repair_stub=None):
    A(f"""
    s_getpc_b64 s[100:101]
    {L('pc0')}:
    s_add_u32 s100, s100, {table_label}-{L('pc0')}
    s_addc_u32 s101, s101, 0
    s_bfe_u32 s88, s14, 0x30004
    s_mul_i32 s99, s14, {MAXT*8}
    {L('next')}:
    {"s_memrealtime s[90:91]" if wstamp else ""}
    s_add_u32 s99, s99, 8
    s_cmp_lg_u32 s13, 0
    s_cbranch_scc1 {L('go2')}
    s_mov_b32 s29, {POLLMAX}
    s_mov_b32 s97, s88
    s_mov_b32 s83, 0
    {L('grp')}:
    s_lshl_b32 s96, s97, 9
    s_add_u32 s96, s96, {WS_TK}
    v_lshlrev_b32 v5, 2, v2
    v_add_u32 v5, {WS_RDY}, v5
    s_lshl_b32 s24, s97, 7
    s_add_u32 s24, s24, {128 - 32}
    s_mov_b64 exec, 0xf00
    v_add_u32 v5, s24, v5
    s_mov_b32 exec_lo, 0xffff0000
    s_mov_b32 exec_hi, 0
    v_lshlrev_b32 v5, 21, v2
    v_add_u32 v5, {(PROBE0 - (16 << 21)) & 0xffffffff:#x}, v5
    {L('scan')}:
    s_mov_b64 exec, -1
    """)
    repair(A, L)
    A(f"""
    s_mov_b32 exec_lo, 0xffff0f0f
    s_mov_b32 exec_hi, 0
    buffer_load_dword v24, v5, {WS}, 0 offen sc1
    s_waitcnt vmcnt(0)
    v_cmp_eq_u32 vcc, -1, v24
    s_mov_b64 exec, -1
    v_readlane_b32 s24, v24, 0
    v_readlane_b32 s25, v24, 1
    v_readlane_b32 s26, v24, 2
    v_readlane_b32 s27, v24, 3
    v_readlane_b32 s84, v24, 8
    v_readlane_b32 s85, v24, 9
    v_readlane_b32 s86, v24, 10
    v_readlane_b32 s87, v24, 11
    s_or_b32 s86, s86, {(exh0 >> 64) & 0xffffffff:#x}
    s_or_b32 s87, s87, {(exh0 >> 96) & 0xffffffff:#x}
    s_lshr_b32 s30, vcc_lo, 16
    s_andn2_b32 s24, s24, s30
    s_andn2_b64 s[24:25], s[24:25], s[84:85]
    s_andn2_b64 s[26:27], s[26:27], s[86:87]
    {L('pick')}:
    s_ff1_i32_b64 s30, s[24:25]
    s_cmp_lg_u32 s30, -1
    s_cbranch_scc0 {L('pick2')}
    s_bitset0_b64 s[24:25], s30
    s_branch {L('claim')}
    {L('pick2')}:
    s_ff1_i32_b64 s30, s[26:27]
    s_cmp_lg_u32 s30, -1
    s_cbranch_scc0 {L('idle')}
    s_bitset0_b64 s[26:27], s30
    s_add_u32 s30, s30, 64
    {L('claim')}:
    s_lshl_b32 s31, s30, 3
    s_load_dwordx2 s[8:9], s[100:101], s31
    s_lshl_b32 s31, s30, 2
    v_mov_b32 v30, s31
    v_mov_b32 v31, 1
    s_mov_b64 exec, 1
    buffer_atomic_add v31, v30, {WS}, s96 offen sc0
    s_waitcnt vmcnt(0) lgkmcnt(0)
    s_mov_b64 exec, -1
    v_readfirstlane_b32 s31, v31
    s_lshr_b32 s32, s8, 27
    s_add_u32 s33, s31, 1
    s_cmp_lt_u32 s33, s32
    s_cbranch_scc1 {L('got')}
    {L('ex3')}:
    s_cmp_lt_u32 s31, s32
    s_cbranch_scc0 {L('pick')}
    s_lshr_b32 s33, s30, 5
    s_lshl_b32 s33, s33, 2
    s_lshl_b32 s34, s97, 7
    s_add_u32 s33, s33, s34
    s_add_u32 s33, s33, {WS_RDY + 128}
    s_lshl_b32 s34, 1, s30
    v_mov_b32 v30, s33
    v_mov_b32 v31, s34
    s_mov_b64 exec, 1
    buffer_atomic_or v31, v30, {WS}, 0 offen
    s_mov_b64 exec, -1
    {L('got')}:
    s_bfe_u32 s32, s8, 0x70010
    s_bfe_u32 s33, s8, 0x20017
    s_lshl_b32 s33, s97, s33
    s_add_u32 s32, s32, s33
    s_bfe_u32 s33, s8, 0x20019
    s_lshl_b32 s33, s31, s33
    s_add_u32 s32, s32, s33
    s_and_b32 s8, s8, 0xffff
    s_lshl_b32 s32, s32, 16
    s_or_b32 s8, s8, s32
    s_branch {L('bc')}
    {L('idle')}:
    s_and_b64 s[24:25], s[84:85], s[86:87]
    s_cmp_eq_u64 s[24:25], -1
    s_cbranch_scc0 {L('idle2')}
    s_add_u32 s83, s83, 1
    s_cmp_ge_u32 s83, 8
    s_cbranch_scc1 {L('quit')}
    {L('rot')}:
    s_add_u32 s97, s97, 1
    s_and_b32 s97, s97, 7
    s_branch {L('grp')}
    {L('idle2')}:
    s_mov_b32 s83, 0
    s_sleep {psleep}
    s_sub_u32 s29, s29, 1
    s_cbranch_scc1 {L('quit')}
    s_and_b32 s24, s29, 63
    s_cmp_eq_u32 s24, 0
    s_cbranch_scc1 {L('rot')}
    s_branch {L('scan')}
    {L('quit')}:
    s_mov_b32 s8, 0
    {L('bc')}:
    v_mov_b32 v30, {LDS_TAB}
    v_mov_b32 v28, s8
    v_mov_b32 v29, s9
    ds_write_b64 v30, v[28:29]
    s_waitcnt lgkmcnt(0)
    {L('go2')}:
    s_barrier
    v_mov_b32 v30, {LDS_TAB}
    ds_read_b64 v[28:29], v30
    s_waitcnt lgkmcnt(0)
    v_readfirstlane_b32 s8, v28
    v_readfirstlane_b32 s82, v29
    {"s_memrealtime s[92:93]" if wstamp else ""}
    s_and_b32 s12, s8, 15
    s_cmp_eq_u32 s12, 0
    s_cbranch_scc1 {L('end')}
    s_bfe_u32 s{S_A}, s8, 0x40004
    s_bfe_u32 s{S_DONE}, s8, 0x80008
    s_bfe_u32 s{S_B}, s8, 0x80010
    """)
    labels = {T_KVS: 'kvs', T_KVL: 'kvl', T_WO: 'wo', T_F1: 'f1', T_F2: 'f2', T_QO: 'kvl', T_AT: 'at', T_WOS: 'wos', T_LNR: 'lnr', T_F1S: 'f1s', T_F2S: 'f2s', T_FIN: 'fin'}
    for t, n in labels.items():
        A(f"s_cmp_eq_u32 s12, {t}")
        A(f"s_cbranch_scc1 {L('j_'+n)}")
    A(f"s_cmp_eq_u32 s12, 15")
    A(f"s_cbranch_scc1 {L('j_rep')}")
    A(f"s_branch {L('end')}")
    repair_stub(A, L)
    for n in dict.fromkeys(labels.values()):
        A.label(L('j_' + n))
        A(f"s_branch {L('b_'+n)}")
    A.label(L('skip'))
    A("s_barrier")
    A(f"s_branch {L('next')}")
    A.label(L('done'))
    A(f"""
    s_waitcnt vmcnt(0)
    s_barrier
    s_cmp_lg_u32 s13, 0
    s_cbranch_scc1 {L('next')}
    """)
    if wstamp:
        A(f"""
        s_memrealtime s[94:95]
        s_lshl_b32 s24, s99, 1
        s_add_u32 s24, s24, {WS_DUMMY + 65536}
        s_waitcnt lgkmcnt(0)
        v_mov_b32 v4, s90
        v_mov_b32 v5, s92
        v_mov_b32 v6, s94
        s_lshl_b32 s25, s{S_A}, 8
        s_and_b32 s26, s8, 0xffff000f
        s_or_b32 s25, s25, s26
        v_mov_b32 v7, s25
        v_mov_b32 v8, 0
        s_mov_b64 exec, 1
        buffer_store_dwordx4 v[4:7], v8, {WS}, s24 offen
        s_mov_b64 exec, -1
        s_nop 1
        """)
    A(f"""
    s_lshl_b32 s24, s{S_DONE}, 7
    s_add_u32 s24, s24, {WS_CNT}
    v_mov_b32 v4, 0
    v_mov_b32 v5, 1
    s_mov_b64 exec, 1
    buffer_atomic_add v5, v4, {WS}, s24 offen sc0
    s_and_b32 s25, s82, 255
    s_bfe_u32 s26, s82, 0x70008
    s_bfe_u32 s27, s82, 0x20010
    s_lshr_b32 s28, s26, 5
    s_lshl_b32 s28, s28, 2
    s_and_b32 s26, s26, 31
    s_lshl_b32 s27, s27, s26
    v_mov_b32 v6, s28
    v_mov_b32 v7, s27
    s_mov_b32 s28, {WS_RDY}
    s_waitcnt vmcnt(0)
    v_readfirstlane_b32 s26, v5
    s_add_u32 s26, s26, 1
    s_cmp_eq_u32 s26, s25
    s_cbranch_scc0 {L('nosucc')}
    buffer_atomic_or v7, v6, {WS}, s28 offen
    {L('nosucc')}:
    s_mov_b64 exec, -1
    s_branch {L('next')}
    """)
    lds = []
    A.label(L('b_wo'));  pre_part(A, L, 'wo', 'wo', 128)
    A.label(L('b_f2'));  pre_part(A, L, 'f2', 'f2', 128)
    A.label(L('b_wos')); pre_part(A, L, 'wos', 'wo', 64)
    A.label(L('b_f2s')); pre_part(A, L, 'f2s', 'f2', 64)
    A.label(L('b_lnr')); lds.append(body_red(A, L, 'lnr', False))
    A.label(L('b_fin')); lds.append(body_red(A, L, 'fin', True))
    A.label(L('b_at'));  lds.append(body_at(A, L, 'at'))
    A.label(L('b_g64')); lds.append(body_part(A, L, 64))
    A.label(L('b_g128')); lds.append(body_part(A, L, 128))
    A.label(L('b_f1s')); lds.append(body_f1(A, L, 'f1s', 128, 64, 4))
    A.label(L('b_f1'));  lds.append(body_f1(A, L, 'f1', 128, 128, 4))
    A.label(L('b_kvs')); lds.append(body_kv(A, L, 'kvs', 128, 128, 4))
    A.label(L('b_kvl')); lds.append(body_kv(A, L, 'kvl', 256, 256, 2))
    return max(lds)

def task(t, a=0, b=0, done=C_SINK, d1=(0, 0), d2=(0, 0)):
    return (t | a << 8 | b << 16 | done << 24, d1[0] | d1[1] << 8 | d2[0] << 16 | d2[1] << 24)
```

```python
from asmlib import *
from layout import *
from gemm import Gemm
import struct
def f2u(x): return struct.unpack("<I", struct.pack("<f", x))[0]

def wave_sum(A, v, t):
    for ctl in ("quad_perm:[1,0,3,2]", "quad_perm:[2,3,0,1]", "row_half_mirror", "row_mirror"):
        A("s_nop 1")
        A(f"v_add_f32_dpp v{v}, v{v}, v{v} {ctl} row_mask:0xf bank_mask:0xf")
    for sw in ("v_permlane16_swap_b32", "v_permlane32_swap_b32"):
        A(f"v_mov_b32 v{t}, v{v}")
        A("s_nop 1")
        A(f"{sw} v{v}, v{t}")
        A(f"v_add_f32 v{v}, v{v}, v{t}")

def rnd_bf16(A, v):
    A(f"v_cvt_pk_bf16_f32 v{v}, v{v}, v{v}")
    A(f"v_and_b32 v{v}, 0xffff0000, v{v}")

def ln_core(A, srd_out, s_out, v_off, sc):
    x = 8; f = 16; sm = 4; t = 5; mu = 6; r = 7
    A(f"v_add_f32 v{sm}, v{f}, v{f+1}")
    for i in range(2, 16): A(f"v_add_f32 v{sm}, v{sm}, v{f+i}")
    wave_sum(A, sm, t)
    A(f"v_mul_f32 v{mu}, {f2u(1/1024):#x}, v{sm}")
    A(f"v_sub_f32 v{t}, v{f}, v{mu}")
    A(f"v_mul_f32 v{sm}, v{t}, v{t}")
    for i in range(1, 16):
        A(f"v_sub_f32 v{t}, v{f+i}, v{mu}")
        A(f"v_fmac_f32 v{sm}, v{t}, v{t}")
    wave_sum(A, sm, t)
    A(f"v_mul_f32 v{sm}, {f2u(1/1024):#x}, v{sm}")
    rnd_bf16(A, sm); rnd_bf16(A, mu)
    A(f"v_add_f32 v{sm}, {f2u(1e-5):#x}, v{sm}")
    rnd_bf16(A, sm)
    A(f"v_sqrt_f32 v{sm}, v{sm}")
    A("s_nop 0")
    rnd_bf16(A, sm)
    A(f"v_rcp_f32 v{r}, v{sm}")
    for i in range(16): A(f"v_sub_f32 v{f+i}, v{f+i}, v{mu}")
    for i in range(8):
        A(f"v_cvt_pk_bf16_f32 v{x+i}, v{f+2*i}, v{f+2*i+1}")
        A(f"v_lshlrev_b32 v{f+2*i}, 16, v{x+i}")
        A(f"v_and_b32 v{f+2*i+1}, 0xffff0000, v{x+i}")
        A(f"v_mul_f32 v{f+2*i}, v{f+2*i}, v{r}")
        A(f"v_mul_f32 v{f+2*i+1}, v{f+2*i+1}, v{r}")
        A(f"v_cvt_pk_bf16_f32 v{x+i}, v{f+2*i}, v{f+2*i+1}")
    A(f"buffer_store_dwordx4 v[{x}:{x+3}], v{v_off}, s[{srd_out}:{srd_out+3}], s{s_out} offen{sc}")
    A(f"buffer_store_dwordx4 v[{x+4}:{x+7}], v{v_off}, s[{srd_out}:{srd_out+3}], s{s_out} offen offset:1024{sc}")

def ln_row(A, srd_in, s_in, srd_out, s_out, v_off, sc1=False):
    sc = ' sc1' if sc1 else ''
    x = 8; f = 16
    A(f"buffer_load_dwordx4 v[{x}:{x+3}], v{v_off}, s[{srd_in}:{srd_in+3}], s{s_in} offen{sc}")
    A(f"buffer_load_dwordx4 v[{x+4}:{x+7}], v{v_off}, s[{srd_in}:{srd_in+3}], s{s_in} offen offset:1024{sc}")
    A("s_waitcnt vmcnt(0)")
    for i in range(8):
        A(f"v_lshlrev_b32 v{f+2*i}, 16, v{x+i}")
        A(f"v_and_b32 v{f+2*i+1}, 0xffff0000, v{x+i}")
    ln_core(A, srd_out, s_out, v_off, sc)

def gen_prep(A, name="prep_kernel", ready=None):
    kernel_begin(A, name)
    L = lambda s: f"{name}_{s}"
    FILL = CH_STEP * 65
    per = FILL // 512
    A(f"""
    s_cmp_ge_u32 s2, 512
    s_cbranch_scc1 {L('end')}
    s_load_dwordx4 s[4:7], s[0:1], {KA_X}
    s_load_dwordx2 s[8:9], s[0:1], {KA_WS}
    v_lshrrev_b32 v1, 6, v0
    v_and_b32 v2, 63, v0
    v_lshlrev_b32 v3, 4, v2
    v_readfirstlane_b32 s13, v1
    s_waitcnt lgkmcnt(0)
    """)
    make_srd(A, 16, 4, 2048 * 2048)
    make_srd(A, 20, 8, WS_SIZE)
    make_srd(A, 24, 6, 16384)
    A(f"""
    v_mov_b32 v40, -1
    v_mov_b32 v41, -1
    v_mov_b32 v42, -1
    v_mov_b32 v43, -1
    v_lshlrev_b32 v44, 4, v0
    s_mul_i32 s32, s2, {16384 if ready else 66560}
    s_add_u32 s32, s32, {WS_CH + 131072}
    """)
    for i in range(4 if ready else 17):
        if i == 16:
            A("v_cmp_gt_u32 vcc, 64, v0"); A("s_and_saveexec_b64 s[30:31], vcc")
        A(f"buffer_store_dwordx4 v[40:43], v44, s[20:23], s32 offen")
        A(f"s_add_u32 s32, s32, 4096")
    A("s_mov_b64 exec, -1")
    A(f"s_cmp_eq_u32 s2, 8")
    A(f"s_cbranch_scc0 {L('nz')}")
    for r in range(8, 12): A(f"v_mov_b32 v{r}, 0")
    A(f"s_mov_b32 s32, {WS_CNT}")
    for i in range(11):
        A(f"buffer_store_dwordx4 v[8:11], v44, s[20:23], s32 offen")
        A(f"s_add_u32 s32, s32, 4096")
    if ready:
        A("s_waitcnt vmcnt(0)")
        for r in range(4): A(f"v_mov_b32 v{8+r}, {ready[r]:#x}")
        A(f"s_mov_b32 s32, {WS_RDY}")
        A("s_mov_b64 s[34:35], exec"); A("v_cmp_eq_u32 vcc, 0, v0"); A("s_and_b64 exec, exec, vcc")
        A(f"buffer_store_dwordx4 v[8:11], v44, s[20:23], s32 offen")
        A("s_mov_b64 exec, s[34:35]")
    A("s_nop 1")
    A.label(L('nz'))
    A(f"s_cmp_ge_u32 s2, 8")
    A(f"s_cbranch_scc1 {L('ln')}")
    A(f"""
    v_and_b32 v4, 7, v2
    v_lshlrev_b32 v4, 11, v4              ; row*2048
    v_lshrrev_b32 v5, 4, v2
    v_lshl_add_u32 v4, v5, 5, v4          ; kg*32
    v_bfe_u32 v5, v2, 3, 1
    v_lshl_add_u32 v4, v5, 4, v4          ; hi*16
    v_lshl_add_u32 v4, v1, 7, v4
    s_lshl_b32 s32, s2, 14
    s_add_u32 s32, s32, {WS_CH + CH_MEM}
    """)
    for i in range(4):
        A(f"buffer_load_dwordx4 v[{8+4*i}:{11+4*i}], v4, s[24:27], 0 offen offset:{i*512}")
    A("s_waitcnt vmcnt(0)")
    for r in range(8, 24): A(f"v_min_u32 v{r}, -2, v{r}")
    for i in range(4):
        A(f"buffer_store_dwordx4 v[{8+4*i}:{11+4*i}], v44, s[20:23], s32 offen")
        A(f"s_add_u32 s32, s32, 4096")
    A("s_nop 1")
    A.label(L('ln'))
    A(f"""
    s_lshl_b32 s32, s2, 2
    s_add_u32 s32, s32, s13
    s_lshl_b32 s32, s32, 11
    s_add_u32 s33, s32, {WS_XN}
    """)
    ln_row(A, 16, 32, 20, 33, 3)
    A.label(L('end'))
    A("s_endpgm")
    return dict(vgpr=48, grid=512, block=256, lds=0)

def gen_ln2(A, name="ln2_kernel"):
    kernel_begin(A, name)
    L = lambda s: f"{name}_{s}"
    A(f"""
    s_cmp_ge_u32 s2, 512
    s_cbranch_scc1 {L('end')}
    s_load_dwordx2 s[8:9], s[0:1], {KA_WS}
    v_lshrrev_b32 v1, 6, v0
    v_and_b32 v2, 63, v0
    v_lshlrev_b32 v3, 4, v2
    v_readfirstlane_b32 s13, v1
    s_waitcnt lgkmcnt(0)
    """)
    make_srd(A, 20, 8, WS_SIZE)
    A(f"""
    s_lshl_b32 s26, s2, 2
    s_add_u32 s26, s26, s13
    s_lshl_b32 s26, s26, 11
    s_add_u32 s27, s26, {WS_HN}
    s_add_u32 s26, s26, {WS_H}
    """)
    ln_row(A, 20, 26, 20, 27, 3)
    A.label(L('end'))
    A("s_endpgm")
    return dict(vgpr=48, grid=512, block=256, lds=0)

def gemm_prologue(A, L, nwg, ka_w, extra_ka=()):
    A(f"""
    s_cmp_ge_u32 s2, {nwg}
    s_cbranch_scc1 {L('end')}
    s_load_dwordx2 s[4:5], s[0:1], {ka_w}
    s_load_dwordx2 s[8:9], s[0:1], {KA_WS}
    """)
    for (sr_, ka) in extra_ka: A(f"s_load_dwordx2 s[{sr_}:{sr_+1}], s[0:1], {ka}")
    A("""
    v_lshrrev_b32 v1, 6, v0
    v_and_b32 v2, 63, v0
    s_nop 0
    v_readfirstlane_b32 s13, v1
    s_waitcnt lgkmcnt(0)
    """)
    make_srd(A, 16, 8, WS_SIZE)

def gen_resgemm(A, name, ka_w, K, ws_x, res_from_x, to_out):
    kernel_begin(A, name)
    L = lambda s: f"{name}_{s}"
    gemm_prologue(A, L, 256, ka_w, [(6, KA_X if res_from_x else KA_OUT)])
    make_srd(A, 20, 4, K * 1024 * 2)
    make_srd(A, 28, 6, 2048 * 2048)
    A(f"""
    s_and_b32 s10, s2, 7
    s_lshr_b32 s11, s2, 3                 ; 0..31
    s_lshl_b32 s10, s10, 1
    s_lshr_b32 s12, s11, 4
    s_add_u32 s10, s10, s12               ; rb 0..15
    s_and_b32 s11, s11, 15                ; cb 0..15
    s_mul_i32 s24, s10, {128*K*2}
    s_add_u32 s24, s24, {ws_x}
    s_lshl_b32 s25, s11, 7
    """)
    g = Gemm(A, name, 128, 64, 4, 2, 4, K, K * 2, 2048, vbase=4, sbase=40, kperm=True)
    g.setup(13, 2, 0)
    vr_, vs_ = g.v_end, g.v_end + 1
    R = (g.v_end + 3) // 2 * 2
    A(f"""
    v_and_b32 v3, 15, v2
    v_lshlrev_b32 v3, 11, v3
    v_lshrrev_b32 v{vs_}, 4, v2
    v_lshl_add_u32 v{vr_}, v{vs_}, 3, v3
    v_lshl_add_u32 v{vs_}, v{vs_}, 4, v3
    s_lshl_b32 s26, s10, 7
    s_lshl_b32 s27, s{g.s_wm}, 5
    s_add_u32 s26, s26, s27
    s_lshl_b32 s26, s26, 11
    s_add_u32 s26, s26, s25
    s_lshl_b32 s27, s{g.s_wn}, 6
    s_add_u32 s26, s26, s27
    s_add_u32 s27, s26, {WS_H}
    s_add_u32 s32, s26, {16*2048}
    s_add_u32 s33, s27, {16*2048}
    """)
    rs, so = ("s[28:31]", (26, 32)) if res_from_x else ("s[16:19]", (27, 33))
    for n in range(2):
        for t in range(2):
            A(f"buffer_load_dwordx2 v[{R+4*n+2*t}:{R+4*n+2*t+1}], v{vr_}, {rs}, s{so[n]} offen offset:{t*32}")
    g.mainloop(0, 16, 20, 24, 25)
    A("s_nop 7")
    t_ = g.v_wa[0]
    os_, oo = ("s[28:31]", (26, 32)) if to_out else ("s[16:19]", (27, 33))
    for n in range(2):
        d = t_ + 8 * n
        for t in range(2):
            a = g.acc(t, n)
            for h in range(2):
                rr = R + 4 * n + 2 * t + h
                A(f"v_cvt_pk_bf16_f32 v{d+4}, v{a+2*h}, v{a+2*h+1}")
                A(f"v_lshlrev_b32 v{d+5}, 16, v{d+4}")
                A(f"v_and_b32 v{d+4}, 0xffff0000, v{d+4}")
                A(f"v_lshlrev_b32 v{d+6}, 16, v{rr}")
                A(f"v_and_b32 v{d+7}, 0xffff0000, v{rr}")
                A(f"v_add_f32 v{d+5}, v{d+5}, v{d+6}")
                A(f"v_add_f32 v{d+4}, v{d+4}, v{d+7}")
                A(f"v_cvt_pk_bf16_f32 v{d+2*t+h}, v{d+5}, v{d+4}")
        A("s_nop 1")
        A(f"v_permlane32_swap_b32 v{d}, v{d+2}"); A(f"v_permlane32_swap_b32 v{d+1}, v{d+3}")
        A("s_nop 1")
        A(f"v_permlane16_swap_b32 v{d}, v{d+2}"); A(f"v_permlane16_swap_b32 v{d+1}, v{d+3}")
        A(f"buffer_store_dwordx4 v[{d}:{d+3}], v{vs_}, {os_}, s{oo[n]} offen")
    A.label(L('end'))
    A("s_endpgm")
    return dict(vgpr=R + 8, grid=256, block=512, lds=g.lds_bytes)

def gen_ffn1(A, name="ffn1_kernel"):
    kernel_begin(A, name)
    L = lambda s: f"{name}_{s}"
    gemm_prologue(A, L, 224, KA_W1)
    make_srd(A, 20, 4, 1024 * 3584 * 2)
    A(f"""
    s_and_b32 s10, s2, 7
    s_lshr_b32 s11, s2, 3
    s_lshl_b32 s24, s10, 19
    s_add_u32 s24, s24, {WS_HN}
    s_lshl_b32 s25, s11, 8
    """)
    g = Gemm(A, name, 256, 128, 4, 2, 2, 1024, 2048, 7168, vbase=4, sbase=40)
    g.setup(13, 2, 0)
    g.mainloop(0, 16, 20, 24, 25)
    t_ = g.v_wa[0]
    A(f"""
    v_and_b32 v3, 15, v2
    v_mul_u32_u24 v3, 7168, v3
    v_lshrrev_b32 v1, 4, v2
    v_lshl_add_u32 v3, v1, 4, v3
    s_lshl_b32 s26, s10, 8
    s_lshl_b32 s27, s{g.s_wm}, 6
    s_add_u32 s26, s26, s27
    s_mul_i32 s26, s26, 7168
    s_lshl_b32 s27, s11, 8
    s_add_u32 s26, s26, s27
    s_lshl_b32 s27, s{g.s_wn}, 7
    s_add_u32 s26, s26, s27
    s_add_u32 s26, s26, {WS_F1}
    s_mov_b32 s28, {f2u(-1.4426950408889634):#x}
    s_nop 4
    """)
    cnt = 0
    for n in range(g.nt):
        for p in range(g.mt // 2):
            d = t_ + 4 * (cnt % 4); cnt += 1
            e = g.v_xb[0]
            for t in range(2):
                a = g.acc(2 * p + t, n)
                for h in range(2):
                    A(f"v_cvt_pk_bf16_f32 v{e}, v{a+2*h}, v{a+2*h+1}")
                    A(f"v_lshlrev_b32 v{a+2*h}, 16, v{e}")
                    A(f"v_and_b32 v{a+2*h+1}, 0xffff0000, v{e}")
                for r in range(4): A(f"v_mul_f32 v{e+r}, s28, v{a+r}")
                for r in range(4): A(f"v_exp_f32 v{e+r}, v{e+r}")
                A("s_nop 0")
                for r in range(4): A(f"v_add_f32 v{e+r}, 1.0, v{e+r}")
                for r in range(4): A(f"v_rcp_f32 v{e+r}, v{e+r}")
                A("s_nop 0")
                for r in range(4): A(f"v_mul_f32 v{a+r}, v{a+r}, v{e+r}")
                A(f"v_cvt_pk_bf16_f32 v{d+2*t}, v{a}, v{a+1}")
                A(f"v_cvt_pk_bf16_f32 v{d+2*t+1}, v{a+2}, v{a+3}")
            A(f"buffer_store_dwordx4 v[{d}:{d+3}], v3, s[16:19], s26 offen offset:{64*p}")
        A(f"s_add_u32 s26, s26, {16*7168}")
    A.label(L('end'))
    A("s_endpgm")
    return dict(vgpr=g.v_end, grid=224, block=512, lds=g.lds_bytes)

SC = (128 ** -0.5) * 1.4426950408889634
def gen_qattn(A, name="qattn_kernel"):
    kernel_begin(A, name)
    L = lambda s: f"{name}_{s}"
    gemm_prologue(A, L, 256, KA_WQ)
    make_srd(A, 20, 4, 1024 * 4096 * 2)
    A(f"""
    s_and_b32 s10, s2, 7
    s_lshr_b32 s11, s2, 3
    s_lshl_b32 s10, s10, 2
    s_and_b32 s12, s11, 3
    s_add_u32 s10, s10, s12               ; head
    s_lshr_b32 s11, s11, 2                ; rb
    s_lshl_b32 s24, s11, 19
    s_add_u32 s24, s24, {WS_XN}
    s_lshl_b32 s25, s10, 8
    """)
    g = Gemm(A, name, 256, 128, 8, 1, 2, 1024, 2048, 8192, vbase=4, sbase=40)
    g.setup(13, 2, 0)
    vK = g.v_end + (4 - g.v_end % 4) % 4
    vR = vK + 32
    vl16 = vR + 16; vl16b = vl16 + 1; vtrv = vl16 + 2; vtrm = vl16 + 3; vthr = vl16 + 4; vo_ = vl16 + 5; vt = vl16 + 6
    NV = vt + 8
    A(f"""
    v_lshlrev_b32 v{vl16}, 4, v2
    v_add_u32 v{vl16b}, 0x1000, v{vl16}
    s_lshl_b32 s26, s11, 3
    s_add_u32 s26, s26, s13               ; seg
    s_lshl_b32 s27, s26, 5
    s_add_u32 s27, s27, s10
    s_lshl_b32 s27, s27, 13               ; (seg*32+h)*8192
    s_add_u32 s28, s27, {WS_K}
    s_add_u32 s29, s27, {WS_VT}
    s_lshl_b32 s30, s26, 19               ; seg*CH_STEP
    s_lshl_b32 s31, s10, 13
    s_add_u32 s30, s30, s31
    s_add_u32 s30, s30, {WS_CH + CH_QKV}
    s_mov_b32 s34, {f2u(SC):#x}
    s_mov_b32 s36, 0
    s_mov_b32 s37, -1
    s_mov_b32 s38, -1
    s_mov_b32 s39, 0
    """)
    assert CH_STEP == 1 << 19
    for i in range(8):
        A(f"buffer_load_dwordx4 v[{vK+4*i}:{vK+4*i+3}], v{vl16 if i < 4 else vl16b}, s[16:19], s28 offen offset:{(i%4)*1024}")
    for i in range(4):
        A(f"buffer_load_dwordx4 v[{vR+4*i}:{vR+4*i+3}], v{vl16}, s[16:19], s30 offen offset:{i*1024}")
    g.mainloop(0, 16, 20, 24, 25)
    A("s_barrier")
    A("s_mul_i32 s31, s13, 10240")
    for i in range(10):
        A(f"s_add_u32 m0, s31, {i*1024}")
        if i < 8: A(f"s_add_u32 s35, s29, {i*1024}")
        else:     A(f"s_add_u32 s35, s30, {6144 + (i-8)*1024}")
        A(f"buffer_load_dwordx4 v{vl16}, s[16:19], s35 offen lds")
    n_, g_ = vt, vt + 1
    A(f"""
    v_and_b32 v{n_}, 15, v2
    v_lshrrev_b32 v{g_}, 4, v2
    v_lshrrev_b32 v{vt+2}, 1, v{g_}
    v_lshlrev_b32 v{vtrv}, 12, v{vt+2}
    v_and_b32 v{vt+2}, 3, v{n_}
    v_lshl_add_u32 v{vtrv}, v{vt+2}, 8, v{vtrv}
    v_and_b32 v{vt+3}, 1, v{g_}
    v_lshl_add_u32 v{vtrv}, v{vt+3}, 7, v{vtrv}
    v_lshrrev_b32 v{vt+4}, 2, v{n_}
    v_lshl_add_u32 v{vtrv}, v{vt+4}, 4, v{vtrv}
    v_add_u32 v{vtrv}, s31, v{vtrv}
    v_lshl_add_u32 v{vtrm}, v{vt+3}, 2, v{vt+4}
    v_lshlrev_b32 v{vtrm}, 8, v{vtrm}
    v_lshl_add_u32 v{vtrm}, v{vt+2}, 4, v{vtrm}
    v_add_u32 v{vtrm}, s31, v{vtrm}
    v_add_u32 v{vtrm}, 0x2000, v{vtrm}
    v_lshlrev_b32 v{vt+2}, 3, v{g_}
    v_sub_u32 v{vthr}, v{n_}, v{vt+2}
    v_lshlrev_b32 v{vo_}, 13, v{n_}
    v_lshl_add_u32 v{vo_}, v{g_}, 4, v{vo_}
    s_lshl_b32 s32, s26, 18               ; seg*32*8192
    s_lshl_b32 s33, s10, 8
    s_add_u32 s32, s32, s33
    s_add_u32 s32, s32, {WS_O}
    """)
    Qb = g.v_wa[0]
    for n in range(2):
        for ks in range(4):
            d = Qb + (n * 4 + ks) * 4; a0 = g.acc(2 * ks, n); a1 = g.acc(2 * ks + 1, n)
            A(f"v_cvt_pk_bf16_f32 v{d}, v{a0}, v{a0+1}"); A(f"v_cvt_pk_bf16_f32 v{d+1}, v{a0+2}, v{a0+3}")
            A(f"v_cvt_pk_bf16_f32 v{d+2}, v{a1}, v{a1+1}"); A(f"v_cvt_pk_bf16_f32 v{d+3}, v{a1+2}, v{a1+3}")
    S = g.v_acc
    P = g.v_acc + 24
    A("s_nop 1")
    for n in range(2):
        for ks in range(4):
            for t in range(3):
                d = S + 12 * n + 4 * t
                Aop = f"v[{vR+4*ks}:{vR+4*ks+3}]" if t == 2 else f"v[{vK+(t*4+ks)*4}:{vK+(t*4+ks)*4+3}]"
                q = Qb + (n * 4 + ks) * 4
                C = "0" if ks == 0 else f"v[{d}:{d+3}]"
                A(f"v_mfma_f32_16x16x32_bf16 v[{d}:{d+3}], {Aop}, v[{q}:{q+3}], {C}")
    A("s_nop 7")
    mx, tt = vt + 2, vt + 3
    rl = [vt + 4, vt + 5]
    A(f"v_mov_b32 v{vt+6}, 0xff800000")
    for n in range(2):
        s_ = S + 12 * n
        if n == 1: A(f"v_add_u32 v{vthr}, 16, v{vthr}")
        for o in range(8):
            A(f"v_cmp_gt_i32 vcc, {o}, v{vthr}")
            A("s_nop 1")
            A(f"v_cndmask_b32 v{s_+o}, v{s_+o}, v{vt+6}, vcc")
        A(f"""
        v_max3_f32 v{mx}, v{s_}, v{s_+1}, v{s_+2}
        v_max3_f32 v{mx}, v{mx}, v{s_+3}, v{s_+4}
        v_max3_f32 v{mx}, v{mx}, v{s_+5}, v{s_+6}
        v_max_f32 v{mx}, v{mx}, v{s_+7}
        s_mov_b64 exec, s[36:37]
        v_max3_f32 v{mx}, v{mx}, v{s_+8}, v{s_+9}
        v_max3_f32 v{mx}, v{mx}, v{s_+10}, v{s_+11}
        s_mov_b64 exec, -1
        v_mov_b32 v{tt}, v{mx}
        s_nop 1
        v_permlane32_swap_b32 v{mx}, v{tt}
        v_max_f32 v{mx}, v{mx}, v{tt}
        v_mov_b32 v{tt}, v{mx}
        s_nop 1
        v_permlane16_swap_b32 v{mx}, v{tt}
        v_max_f32 v{mx}, v{mx}, v{tt}
        v_mul_f32 v{mx}, s34, v{mx}
        """)
        for i in range(12): A(f"v_fma_f32 v{s_+i}, v{s_+i}, s34, -v{mx}")
        for i in range(12): A(f"v_exp_f32 v{s_+i}, v{s_+i}")
        A("s_mov_b64 exec, s[38:39]")
        for i in range(4): A(f"v_mov_b32 v{s_+8+i}, 0")
        A("s_mov_b64 exec, -1")
        sm = rl[n]
        A(f"v_add_f32 v{sm}, v{s_}, v{s_+1}")
        for i in range(2, 12): A(f"v_add_f32 v{sm}, v{sm}, v{s_+i}")
        for sw in ("v_permlane32_swap_b32", "v_permlane16_swap_b32"):
            A(f"v_mov_b32 v{tt}, v{sm}"); A("s_nop 1"); A(f"{sw} v{sm}, v{tt}"); A(f"v_add_f32 v{sm}, v{sm}, v{tt}")
        A(f"v_rcp_f32 v{sm}, v{sm}")
        A("s_nop 0")
        for i in range(12): A(f"v_mul_f32 v{s_+i}, v{s_+i}, v{sm}")
        for i in range(6): A(f"v_cvt_pk_bf16_f32 v{P+8*n+i}, v{s_+2*i}, v{s_+2*i+1}")
    A("s_waitcnt vmcnt(0)")
    O = g.v_acc + 40
    for p in range(4):
        fb = vK + 16 * (p & 1)
        for t in range(2):
            for u in range(2):
                A(f"ds_read_b64_tr_b16 v[{fb+4*t+2*u}:{fb+4*t+2*u+1}], v{vtrv} offset:{p*1024 + 8*t + 64*u}")
            A(f"ds_read_b64_tr_b16 v[{fb+8+2*t}:{fb+8+2*t+1}], v{vtrm} offset:{p*64 + 8*t}")
        A("s_waitcnt lgkmcnt(0)")
        ob = O + 16 * 0
        for n in range(2):
            for t in range(2):
                d = ob + (n * 2 + t) * 4
                A(f"v_mfma_f32_16x16x32_bf16 v[{d}:{d+3}], v[{fb+4*t}:{fb+4*t+3}], v[{P+8*n}:{P+8*n+3}], 0")
        A("s_nop 3")
        for n in range(2):
            for t in range(2):
                d = ob + (n * 2 + t) * 4
                A(f"v_mfma_f32_16x16x16_bf16 v[{d}:{d+3}], v[{fb+8+2*t}:{fb+8+2*t+1}], v[{P+8*n+4}:{P+8*n+5}], v[{d}:{d+3}]")
        A("s_nop 7")
        for n in range(2):
            d = vR + 8 * (p & 1) + 4 * n
            a0 = ob + n * 8; a1 = a0 + 4
            A(f"v_cvt_pk_bf16_f32 v{d}, v{a0}, v{a0+1}"); A(f"v_cvt_pk_bf16_f32 v{d+1}, v{a0+2}, v{a0+3}")
            A(f"v_cvt_pk_bf16_f32 v{d+2}, v{a1}, v{a1+1}"); A(f"v_cvt_pk_bf16_f32 v{d+3}, v{a1+2}, v{a1+3}")
            if n == 0: A(f"buffer_store_dwordx4 v[{d}:{d+3}], v{vo_}, s[16:19], s32 offen offset:{64*p}")
            else:
                A(f"s_add_u32 s33, s32, {16*8192}")
                A(f"buffer_store_dwordx4 v[{d}:{d+3}], v{vo_}, s[16:19], s33 offen offset:{64*p}")
    A.label(L('end'))
    A("s_endpgm")
    return dict(vgpr=NV, grid=256, block=512, lds=g.lds_bytes)
```

```python
MB = 1 << 20
WS_XN  = 0
WS_K   = 4 * MB
WS_VT  = 20 * MB
WS_O   = 36 * MB
WS_H   = 52 * MB
WS_HN  = 56 * MB
WS_F1  = 60 * MB
WS_DUMMY = 79 * MB
WS_CH  = 80 * MB
WS_SIZE = 256 * MB
KA_X, KA_MEM0, KA_WQ, KA_WK, KA_WV, KA_WO, KA_SEG, KA_BX, KA_W1, KA_W2, KA_OUT, KA_DBG, KA_WS = [8*i for i in range(13)]
HB = 8192
CH_MEM  = 0
CH_QKV  = 131072
CH_PART = 131072 + 262144
CH_STEP = 524288
CH_STEPS = 64
WS_CNT = 78 * MB
NCNT = 128
C_NONE = 0
C_KV = 1
C_PROG = 9
C_QA = 17
C_WO = 25
C_LN = 41
C_F1 = 49
C_SINK = 57
WS_Q  = 116 * MB
WS_P1 = 132 * MB
WS_P2 = 168 * MB
C_AT = 58
C_WOS = 74
C_LNR = 90
C_F1S = 106
C_F2S = 122
C_QO = 138
NCNT = 160
WS_TK = WS_CNT + 32768
LDS_TAB = 155648
WS_RDY = WS_CNT + 40960
C_KVG = 146
```

```python
from layout import *
from k_engine import *
def make_schedule(modes="BBBBBBBBMMMMMMFF", verbose=False, only=None, **kw):
    inst = []
    def add(key, pr, t, a, done, b0, bxs, bts, cnt, req, succ, nsucc=1, ready=False):
        inst.append(dict(key=key, pr=pr, t=t, a=a, done=done, b0=b0, bxs=bxs, bts=bts, cnt=cnt, req=req, succ=succ, nsucc=nsucc, ready=ready))
    k = 0
    for rt in range(4):
        for kv in range(2): add(None, (0, k), T_KVS, rt, C_KVG + rt, 32 * kv, 2, 0, 4, 0, None, ready=True); k += 1
    order = [('kv', 2), ('kv', 3), ('q', 0), ('kv', 4), ('q', 1), ('kv', 5), ('q', 2), ('kv', 6), ('q', 3), ('kv', 7), ('q', 4), ('q', 5), ('q', 6), ('q', 7)]
    for kind, rb in order:
        late = (kind == 'q' and rb >= 3) or (kind == 'kv' and rb >= 6)
        pr = (2, k) if late else (0, k)
        if kind == 'kv':
            add(None, pr, T_KVL, rb, C_KV + rb, 0, 1, 0, 2, 32, ('q', rb), ready=True); add(None, (pr[0], k + 0.5), T_KVL, rb, C_KV + rb, 16, 1, 0, 2, 32, ('q', rb), ready=True)
        else: add(('q', rb), pr, T_QO, rb, C_QO + rb, 32, 1, 0, 2, 16, ('at', 2 * rb), nsucc=3, ready=(rb < 2))
        k += 1
    D = {'B': (3.8, 26, 2.2, 9, 23, 1.6), 'M': (3.8, 14.5, 2.2, 9, 13, 1.6), 'F': (3.8, 6.2, 2.4, 6.2, 5.8, 2.0)}
    for g in range(16):
        m = modes[g]; d = D[m]
        rem = [sum(d[i:]) + 0.8 * (5 - i) for i in range(6)]
        P = lambda i: (1, -rem[i], g)
        add(('at', g), (-1, g), T_AT, g, C_AT + g, 0, 2, 0, 4, 32, ('wo', g))
        if m == 'F':
            np_, ng, nf = 4, 64, 56
            add(('wo', g), P(1), T_WOS, g, C_WOS + g, 0, 3, 0, 8, ng, ('ln', g))
            add(('f1', g), P(3), T_F1S, g, C_F1S + g, 0, 0, 3, 7, nf, ('f2', g))
            add(('f2', g), P(4), T_F2S, g, C_F2S + g, 0, 3, 0, 8, ng, ('fin', g))
        else:
            ls = 0 if m == 'B' else 1; np_ = 1 << ls; ng = 8 * np_; nf = 28
            add(('wo', g), P(1), T_WO, g, C_WOS + g, ls << 5, 0, 3, np_, ng, ('ln', g))
            add(('f1', g), P(3), T_F1, g, C_F1S + g, 0, 0, 3, 4, nf, ('f2', g))
            add(('f2', g), P(4), T_F2, g, C_F2S + g, ls << 5, 0, 3, np_, ng, ('fin', g))
        add(('ln', g), P(2), T_LNR, g, C_LNR + g, (np_ - 1) << 5, 0, 3, 4, 32, ('f1', g))
        add(('fin', g), P(5), T_FIN, g, C_SINK, (np_ - 1) << 5, 0, 3, 4, 0, None)
    inst.sort(key=lambda x: x['pr'])
    assert len(inst) <= 128 and all(inst[g]['key'] == ('at', g) for g in range(16))
    return inst
def ready_init(inst):
    m = 0
    for i, x in enumerate(inst):
        if x['ready']: m |= 1 << i
    return [(m >> (32 * k)) & 0xffffffff for k in range(4)]
def encode(inst):
    idx = {x['key']: i for i, x in enumerate(inst) if x['key']}
    words = []
    for x in inst:
        s = idx[x['succ']] if x['succ'] else 0
        words += [x['t'] | x['a'] << 4 | x['done'] << 8 | x['b0'] << 16 | x['bxs'] << 23 | x['bts'] << 25 | x['cnt'] << 27,
                  (x['req'] if x['succ'] else 0) | s << 8 | (x['nsucc'] if x['succ'] else 0) << 16]
    words += [0, 0] * (128 - len(inst))
    return 64, words

def exh_init(inst):
    m = 0
    for i in range(len(inst), 128): m |= 1 << i
    return m
```

```python
import sys
from asmlib import *
from layout import *
from k_misc import gen_prep
from k_chain5 import gen_chain
from k_engine import gen_worker
import sched4 as sched
NAME = "sequential_preLN__memory_aug_recurrent_mem_tr__dense_activation_silu__prompt"
def build(out, stamp=False, chain_kw={}, sched_kw={}):
    ref = open(f"cdna_kernels/{NAME}.s.ref").read().split("\n")
    head = [l for l in ref if l.startswith(";") and "@launch" not in l and "Override launch" not in l and "grid=ceil" not in l]
    lists = sched.make_schedule(**sched_kw)
    MAXT, words = sched.encode(lists)
    A = Asm()
    A.raw('.amdgcn_target "amdgcn-amd-amdhsa--gfx950"')
    rp = gen_prep(A, ready=sched.ready_init(lists))
    wl = {}
    def worker(A, L, rp, rs): wl['lds'] = gen_worker(A, L, "main_tasks", MAXT, wstamp=stamp, exh0=sched.exh_init(lists), repair=rp, repair_stub=rs)
    def after(A, L):
        A.raw(".p2align 4")
        A.raw(".type main_tasks,@object")
        A.raw("main_tasks:")
        for i in range(0, len(words), 8):
            A.raw("    .long " + ", ".join(f"{w:#x}" for w in words[i:i+8]))
        A.raw(f".size main_tasks, {len(words)*4}")
    kw = dict(nW=32, dlyA=2, dlyC=3); kw.update(chain_kw)
    r = gen_chain(A, "main_kernel", engine=True, worker=worker, after=after, stamp=stamp, **kw)
    lds = LDS_TAB + 64
    kernel_desc(A, "prep_kernel", rp['vgpr'], 102)
    kernel_desc(A, "main_kernel", 512, 102, accum=256)
    hdr = head + [f"; @launch kernel=prep_kernel grid=(512,1,1) block=(256,1,1) lds=0", f"; @launch kernel=main_kernel grid=(256,1,1) block=(256,1,1) lds={lds}"]
    open(out, "w").write("\n".join(hdr) + "\n" + compress(A.text()))
    return lists
if __name__ == "__main__":
    build(sys.argv[1] if len(sys.argv) > 1 else "v2.s", stamp=("--stamp" in sys.argv))
```

```python
from asmlib import *

XSC = ' sc1'
class Gemm:
    def __init__(self, A, pfx, BM, BN, WM, WN, NS, K, ldx, ldw, vbase, sbase, lds_base=0, kperm=False, agpr=False, spread=1, xsc1=False):
        self.agpr = agpr; self.spread = spread; self.xsc = (XSC if xsc1 else '')
        self.A = A; self.pfx = pfx
        self.BM, self.BN, self.WM, self.WN, self.NS, self.K = BM, BN, WM, WN, NS, K
        self.ldx, self.ldw = ldx, ldw
        self.NW = WM * WN
        self.TM = BM // WM; self.TN = BN // WN
        self.nt = self.TM // 16; self.mt = self.TN // 16
        self.mh = min(4, self.mt)
        self.UPK = self.mt // self.mh
        self.U = 2 * self.UPK
        self.XS = BM * 128; self.WS = 64 * BN * 2
        self.ldsX = lds_base; self.ldsW = lds_base + NS * self.XS
        self.lds_bytes = NS * (self.XS + self.WS)
        assert NS * self.XS <= 131072 and NS * self.WS <= 65536
        self.nX = BM // 8 // self.NW; self.nW = BN // 8 // self.NW
        assert self.nX * 8 * self.NW == BM and self.nW * 8 * self.NW == BN
        self.nD = self.nX + self.nW
        self.KS = K // 64
        self.kperm = kperm
        v = vbase
        if agpr: self.v_acc = 0
        else:
            self.v_acc = v; v += self.mt * self.nt * 4
        self.v_wa = [v, v + self.mh * 4]; v += 2 * self.mh * 4
        self.v_xb = [v, v + self.nt * 4]; v += 2 * self.nt * 4
        self.v_xr = v; v += 2
        self.v_xr2 = v; v += 2
        self.v_wr = v; v += self.mt
        self.v_dx = v; v += self.nX
        self.v_dw = v; v += self.nW
        self.v_tmp = v; v += 6
        self.v_end = v
        s = sbase
        self.s_mx = s; self.s_mw = s + 1; self.s_cnt = s + 2; self.s_wm = s + 3; self.s_wn = s + 4; self.s_t = s + 5
        self.s_end = s + 8

    def acc(self, m, n):
        return self.v_acc + (m * self.nt + n) * 4

    def setup(self, s_wave, v_lane, vmode, nat_as_perm=False):
        if nat_as_perm: vmode = 1
        A = self.A; t = self.v_tmp
        BN = self.BN
        import math
        lwn = int(math.log2(self.WN))
        A(f"s_lshr_b32 s{self.s_wm}, s{s_wave}, {lwn}")
        A(f"s_and_b32 s{self.s_wn}, s{s_wave}, {self.WN-1}")
        A(f"v_and_b32 v{t}, 15, v{v_lane}")
        A(f"v_lshrrev_b32 v{t+1}, 4, v{v_lane}")
        A(f"v_lshrrev_b32 v{t+2}, 1, v{t}")
        A(f"v_xor_b32 v{t+2}, v{t+2}, v{t+1}")
        if vmode:
            A(f"v_lshrrev_b32 v{t+3}, 2, v{t}")
            A(f"v_lshlrev_b32 v{t+3}, 3, v{t+3}")
            A(f"v_and_b32 v{t+4}, 3, v{t}")
            A(f"v_add_u32 v{t+3}, v{t+3}, v{t+4}")
        else:
            A(f"v_mov_b32 v{t+3}, v{t}")
        A(f"s_mul_i32 s{self.s_t}, s{self.s_wm}, {self.TM*128}")
        A(f"s_add_u32 s{self.s_t}, s{self.s_t}, {self.ldsX}")
        A(f"v_lshlrev_b32 v{t+3}, 7, v{t+3}")
        A(f"v_add_u32 v{t+3}, s{self.s_t}, v{t+3}")
        A(f"v_lshlrev_b32 v{t+4}, 4, v{t+2}")
        A(f"v_add_u32 v{self.v_xr}, v{t+3}, v{t+4}")
        A(f"v_xor_b32 v{t+4}, 64, v{t+4}")
        A(f"v_add_u32 v{self.v_xr+1}, v{t+3}, v{t+4}")
        if self.NS * self.XS > 65536:
            A(f"v_add_u32 v{self.v_xr2}, 0x10000, v{self.v_xr}")
            A(f"v_add_u32 v{self.v_xr2+1}, 0x10000, v{self.v_xr+1}")
        A(f"v_lshrrev_b32 v{t+2}, 2, v{t}")
        A(f"v_and_b32 v{t+3}, 3, v{v_lane}")
        A(f"v_and_b32 v{t+4}, 1, v{t+1}")
        if BN >= 128:
            A(f"v_lshlrev_b32 v{t+4}, 2, v{t+4}")
            A(f"v_or_b32 v{t+4}, v{t+4}, v{t+2}")
        else:
            A(f"v_lshlrev_b32 v{t+4}, 1, v{t+4}")
            A(f"v_lshrrev_b32 v{t+5}, 1, v{t+2}")
            A(f"v_or_b32 v{t+4}, v{t+4}, v{t+5}")
        A(f"v_lshlrev_b32 v{t+1}, 3, v{t+1}")
        A(f"v_add_u32 v{t+1}, v{t+1}, v{t+2}")
        A(f"v_mul_u32_u24 v{t+1}, {BN*2}, v{t+1}")
        A(f"v_lshlrev_b32 v{t+3}, 3, v{t+3}")
        A(f"v_add_u32 v{t+1}, v{t+1}, v{t+3}")
        A(f"v_add_u32 v{t+1}, {self.ldsW}, v{t+1}")
        A(f"s_mul_i32 s{self.s_t}, s{self.s_wn}, {self.mt}")
        for m in range(self.mt):
            A(f"s_add_u32 s{self.s_t+1}, s{self.s_t}, {m}")
            A(f"v_xor_b32 v{t+2}, s{self.s_t+1}, v{t+4}")
            A(f"v_lshlrev_b32 v{t+2}, 5, v{t+2}")
            A(f"v_add_u32 v{self.v_wr+m}, v{t+1}, v{t+2}")
        A(f"v_lshrrev_b32 v{t}, 3, v{v_lane}")
        A(f"v_and_b32 v{t+1}, 7, v{v_lane}")
        A(f"s_mul_i32 s{self.s_t}, s{s_wave}, {self.nX}")
        for j in range(self.nX):
            A(f"s_add_u32 s{self.s_t+1}, s{self.s_t}, {j}")
            A(f"s_lshl_b32 s{self.s_t+2}, s{self.s_t+1}, 3")
            A(f"v_add_u32 v{t+2}, s{self.s_t+2}, v{t}")
            if vmode:
                A(f"v_bfe_u32 v{t+3}, v{t+2}, 1, 1")
                A(f"v_bfe_u32 v{t+4}, v{t+2}, 3, 2")
                A(f"v_lshlrev_b32 v{t+4}, 1, v{t+4}")
                A(f"v_or_b32 v{t+3}, v{t+3}, v{t+4}")
            else:
                A(f"v_bfe_u32 v{t+3}, v{t+2}, 1, 3")
            A(f"v_xor_b32 v{t+3}, v{t+3}, v{t+1}")
            A(f"v_lshlrev_b32 v{t+3}, 4, v{t+3}")
            if nat_as_perm:
                A(f"v_bfe_u32 v{t+4}, v{t+2}, 2, 1")
                A(f"v_bfe_u32 v{t+5}, v{t+2}, 3, 2")
                A(f"v_and_b32 v{t+2}, 0xffe3, v{t+2}")
                A(f"v_lshl_or_b32 v{t+2}, v{t+4}, 4, v{t+2}")
                A(f"v_lshl_or_b32 v{t+2}, v{t+5}, 2, v{t+2}")
            A(f"v_mul_u32_u24 v{t+2}, {self.ldx}, v{t+2}")
            A(f"v_add_u32 v{self.v_dx+j}, v{t+2}, v{t+3}")
        A(f"s_mul_i32 s{self.s_mx}, s{s_wave}, {self.nX*1024}")
        A(f"s_add_u32 s{self.s_mx}, s{self.s_mx}, {self.ldsX}")
        lb = int(math.log2(BN * 2))
        A(f"v_lshlrev_b32 v{t}, 4, v{v_lane}")
        A(f"s_mul_i32 s{self.s_t}, s{s_wave}, {self.nW*1024}")
        for j in range(self.nW):
            A(f"s_add_u32 s{self.s_t+1}, s{self.s_t}, {j*1024}")
            A(f"v_add_u32 v{t+1}, s{self.s_t+1}, v{t}")
            A(f"v_lshrrev_b32 v{t+2}, {lb}, v{t+1}")
            A(f"v_and_b32 v{t+1}, {BN*2-1}, v{t+1}")
            A(f"v_bfe_u32 v{t+4}, v{t+2}, 3, 1")
            if BN >= 128:
                A(f"v_and_b32 v{t+3}, 3, v{t+2}")
                A(f"v_lshlrev_b32 v{t+4}, 2, v{t+4}")
            else:
                A(f"v_bfe_u32 v{t+3}, v{t+2}, 1, 1")
                A(f"v_lshlrev_b32 v{t+4}, 1, v{t+4}")
            A(f"v_or_b32 v{t+3}, v{t+3}, v{t+4}")
            A(f"v_lshlrev_b32 v{t+3}, 5, v{t+3}")
            A(f"v_xor_b32 v{t+1}, v{t+1}, v{t+3}")
            if self.kperm:
                A(f"v_bfe_u32 v{t+3}, v{t+2}, 3, 2")
                A(f"v_bfe_u32 v{t+4}, v{t+2}, 2, 1")
                A(f"v_and_b32 v{t+2}, 0x23, v{t+2}")
                A(f"v_lshlrev_b32 v{t+3}, 2, v{t+3}")
                A(f"v_lshlrev_b32 v{t+4}, 4, v{t+4}")
                A(f"v_or_b32 v{t+2}, v{t+2}, v{t+3}")
                A(f"v_or_b32 v{t+2}, v{t+2}, v{t+4}")
            A(f"v_mul_u32_u24 v{t+2}, {self.ldw}, v{t+2}")
            A(f"v_add_u32 v{self.v_dw+j}, v{t+2}, v{t+1}")
        A(f"s_mul_i32 s{self.s_mw}, s{s_wave}, {self.nW*1024}")
        A(f"s_add_u32 s{self.s_mw}, s{self.s_mw}, {self.ldsW}")
        for r in range(self.mt * self.nt * 4):
            A(f"v_accvgpr_write_b32 a{r}, 0" if self.agpr else f"v_mov_b32 v{self.v_acc+r}, 0")

    def dma_ops(self, b, srdX, srdW, s_xoff, s_woff):
        ops = []
        for j in range(self.nX):
            ops.append([f"s_add_u32 m0, s{self.s_mx}, {b*self.XS + j*1024}", "s_nop 0",
                        f"buffer_load_dwordx4 v{self.v_dx+j}, s[{srdX}:{srdX+3}], s{s_xoff} offen{self.xsc} lds"])
        for j in range(self.nW):
            ops.append([f"s_add_u32 m0, s{self.s_mw}, {b*self.WS + j*1024}", "s_nop 0",
                        f"buffer_load_dwordx4 v{self.v_dw+j}, s[{srdW}:{srdW+3}], s{s_woff} offen lds"])
        ops[-1] = ops[-1] + [f"s_add_u32 s{s_xoff}, s{s_xoff}, 128", f"s_add_u32 s{s_woff}, s{s_woff}, {64*self.ldw}"]
        return ops

    def read_ops(self, b, u, vmode):
        i = u // self.UPK; mhx = u % self.UPK
        ops = []
        wa = self.v_wa[u & 1]
        if mhx == 0:
            xb = self.v_xb[i & 1]
            for n in range(self.nt):
                if vmode:
                    off = b * self.XS + (n >> 1) * 4096 + (n & 1) * 512
                else:
                    off = b * self.XS + n * 2048
                xr = self.v_xr
                if off >= 65536: off -= 65536; xr = self.v_xr2
                ops.append([f"ds_read_b128 v[{xb+4*n}:{xb+4*n+3}], v{xr+i} offset:{off}"])
        for m in range(self.mh):
            for uu in range(2):
                off = b * self.WS + (32 * i + 4 * uu) * self.BN * 2
                r = wa + 4 * m + 2 * uu
                ops.append([f"ds_read_b64_tr_b16 v[{r}:{r+1}], v{self.v_wr+mhx*self.mh+m} offset:{off}"])
        return ops

    def mfma_ops(self, u, vmode):
        vmode = vmode == 2
        i = u // self.UPK; mhx = u % self.UPK
        wa = self.v_wa[u & 1]; xb = self.v_xb[i & 1]
        ops = []
        for m in range(self.mh):
            for n in range(self.nt):
                a = self.acc(mhx * self.mh + m, n)
                wf = f"v[{wa+4*m}:{wa+4*m+3}]"; xf = f"v[{xb+4*n}:{xb+4*n+3}]"
                c = f"a[{a}:{a+3}]" if self.agpr else f"v[{a}:{a+3}]"
                if vmode: ops.append(f"v_mfma_f32_16x16x32_bf16 {c}, {xf}, {wf}, {c}")
                else:     ops.append(f"v_mfma_f32_16x16x32_bf16 {c}, {wf}, {xf}, {c}")
        return ops

    def interleave(self, mf, side):
        A = self.A
        n = len(mf); k = len(side); j = 0
        for idx, m in enumerate(mf):
            A(m)
            want = (idx + 1) * k // n if n else k
            want = min(k, max(want, min(k, idx + 1))) if k <= n else want
            while j < want:
                for s in side[j]: A(s)
                j += 1
        while j < k:
            for s in side[j]: A(s)
            j += 1

    def stage(self, b, vmode, srdX, srdW, s_xoff, s_woff, dma, keep, last, carry):
        A = self.A; NS = self.NS
        for u in range(self.U):
            mf = self.mfma_ops(u, vmode)
            if u < self.U - 1:
                side = self.read_ops(b, u + 1, vmode)
                take = carry[:self.dpu]; carry = carry[self.dpu:]
                if u == self.U - 2: take += carry; carry = []
                self.interleave2(mf, side, take)
                A("s_waitcnt lgkmcnt(0)")
            else:
                if last:
                    for m in mf: A(m)
                else:
                    A(f"s_waitcnt vmcnt({keep})")
                    A("s_barrier")
                    side = self.read_ops((b + 1) % NS, 0, vmode)
                    take = []
                    if dma:
                        ops = self.dma_ops(b, srdX, srdW, s_xoff, s_woff)
                        take = ops[:self.dpu]; carry = ops[self.dpu:]
                    self.interleave2(mf, side, take)
                    A("s_waitcnt lgkmcnt(0)")
        return carry

    def interleave2(self, mf, reads, dmas):
        A = self.A; n = len(mf)
        slots = [[] for _ in range(n)]
        for i, r in enumerate(reads): slots[min(n - 1, i * n // max(len(reads), n) if len(reads) > n else i)].append(r)
        for i, d in enumerate(dmas): slots[min(n - 1, (i * n + n // 2) // len(dmas))].append(d)
        for m, sl in zip(mf, slots):
            A(m)
            for op in sl:
                for s in op: A(s)

    def mainloop(self, vmode, srdX, srdW, s_xoff, s_woff, s_groups=None, mid=None):
        self.s_groups = s_groups
        A = self.A; NS = self.NS; KS = self.KS; nD = self.nD
        self.dpu = -(-nD // self.spread)
        self.first_keep = None
        if mid is None:
            for b in range(NS):
                for op in self.dma_ops(b, srdX, srdW, s_xoff, s_woff):
                    for s in op: A(s)
            A(f"s_waitcnt vmcnt({(NS-1)*nD})")
        else:
            for b in range(NS):
                for j in range(self.nW):
                    A(f"s_add_u32 m0, s{self.s_mw}, {b*self.WS + j*1024}"); A("s_nop 0")
                    A(f"buffer_load_dwordx4 v{self.v_dw+j}, s[{srdW}:{srdW+3}], s{s_woff} offen lds")
                A(f"s_add_u32 s{s_woff}, s{s_woff}, {64*self.ldw}")
            mid()
            for b in range(NS):
                for j in range(self.nX):
                    A(f"s_add_u32 m0, s{self.s_mx}, {b*self.XS + j*1024}"); A("s_nop 0")
                    A(f"buffer_load_dwordx4 v{self.v_dx+j}, s[{srdX}:{srdX+3}], s{s_xoff} offen{self.xsc} lds")
                A(f"s_add_u32 s{s_xoff}, s{s_xoff}, 128")
            A(f"s_waitcnt vmcnt({(NS-1)*self.nX})")
            self.first_keep = [(NS - 2 - i) * self.nX + i * nD for i in range(NS - 1)]
        A("s_barrier")
        for op in self.read_ops(0, 0, vmode):
            for s in op: A(s)
        A("s_waitcnt lgkmcnt(0)")
        steady = KS - NS
        niter = steady // NS; rem = steady % NS
        lab = A.newlabel(self.pfx + "_loop")
        carry = []
        st = 0
        nst = [0]
        def one(b, dma, keepg, last):
            nonlocal carry
            k = keepg * nD
            if self.first_keep and nst[0] < len(self.first_keep): k = min(k, self.first_keep[nst[0]])
            nst[0] += 1
            carry = self.stage(b, vmode, srdX, srdW, s_xoff, s_woff, dma, k, last, carry)
        if s_groups is not None:
            assert rem == 0
            for b in range(NS): one(b, True, NS - 2, False)
            c0 = list(carry)
            skip = A.newlabel(self.pfx + "_skip")
            A(f"s_sub_u32 s{self.s_cnt}, s{s_groups}, 1")
            A(f"s_cmp_eq_u32 s{self.s_cnt}, 0")
            A(f"s_cbranch_scc1 {skip}")
            A.label(lab)
            for b in range(NS): one(b, True, NS - 2, False)
            assert carry == c0
            A(f"s_sub_u32 s{self.s_cnt}, s{self.s_cnt}, 1")
            A(f"s_cmp_lg_u32 s{self.s_cnt}, 0")
            A(f"s_cbranch_scc1 {lab}")
            A.label(skip)
        elif niter > 1:
            for b in range(NS): one(b, True, NS - 2, False)
            c0 = list(carry)
            A(f"s_mov_b32 s{self.s_cnt}, {niter-1}")
            A.label(lab)
            for b in range(NS): one(b, True, NS - 2, False)
            assert carry == c0
            A(f"s_sub_u32 s{self.s_cnt}, s{self.s_cnt}, 1")
            A(f"s_cmp_lg_u32 s{self.s_cnt}, 0")
            A(f"s_cbranch_scc1 {lab}")
        elif niter == 1:
            for b in range(NS): one(b, True, NS - 2, False)
        for i in range(rem): one(i % NS, True, NS - 2, False)
        for i in range(NS): one((rem + i) % NS, False, max(0, NS - 2 - i), i == NS - 1)

    def fetch(self, m, n, dst):
        a = self.acc(m, n)
        if not self.agpr: return a
        for r in range(4): self.A(f"v_accvgpr_read_b32 v{dst+r}, a{a+r}")
        return dst
```

```python
from asmlib import *
from layout import *
import math, struct

SCALE_LOG2E = (128 ** -0.5) * 1.4426950408889634
def f2u(x): return struct.unpack("<I", struct.pack("<f", x))[0]

def interleave(A, mf, side, per=3, start=0):
    k = 0
    for i, m in enumerate(mf):
        A(m)
        if i >= start:
            for _ in range(per):
                if k < len(side): A(side[k]); k += 1
    while k < len(side): A(side[k]); k += 1

def gen_chain(A, name="chain_kernel", dlyB=0, stamp=False, nsteps=64, POLLMAX=1 << 20, nokv=False, notouch=False, rounds=False, trace=False, worker=None, nW=16, dlyA=0, dlyC=0, engine=False, kv0n=128, after=None, NX=8, fakex=False, clk=False, vpos=1, init=None):
    QU = [128 // NX if x < NX else 0 for x in range(8)]; QB = [sum(QU[:x]) for x in range(8)]; q0 = 128 // NX
    kernel_begin(A, name)
    L = lambda s: f"{name}_{s}"
    SRD_WS, SRD_DBG, SRD_W = 16, 20, 24
    WS = f"s[{SRD_WS}:{SRD_WS+3}]"
    s_wave, s_xcc, s_tick, s_role, s_Q, s_j = 13, 12, 15, 34, 35, 36
    s_memsrc, s_qkvdst, s_qkvsrc, s_partdst, s_partsrc, s_memdst, s_k, s_step, s_pc, s_v = 40, 41, 42, 43, 44, 45, 46, 47, 48, 49
    s_hi, s_lo, s_c = 50, 52, 54
    t0, t1, t2 = 56, 57, 58
    s_nc, s_msk = 59, 95
    v_r3 = 20
    v_zero, vCnt, s_cnt = 4, 5, 88
    s_lastq, s_lastm, s_touch, s_partsrc2, s_touch2 = 90, 91, 92, 93, 94
    v_lane, v_idx = 2, 3
    v_offC, v_offA, v_l16, v_w1q, v_w1v, v_r1, v_d1, v_w2, v_r2, v_l4, v_dM, v_l16b = range(4, 16)
    v_t = 16
    vA = 24
    vVM = 40
    vK = 48
    vV = 80
    acc1 = 112
    vS = 136
    vP = 148
    vU = 160
    vUb = 192
    acc2 = 224
    vUm = 112
    vOne = 244
    vB = 136
    vPub = 252
    vTch = 128
    vTch = 156
    A(f"""
    s_cmp_ge_u32 s2, 256
    s_cbranch_scc1 {L('end')}
    {"s_memrealtime s[28:29]" if stamp else ""}
    s_load_dwordx2 s[4:5], s[0:1], {KA_DBG}
    s_load_dwordx2 s[6:7], s[0:1], {KA_WS}
    s_load_dwordx4 s[60:63], s[0:1], {KA_WQ}
    s_load_dwordx4 s[64:67], s[0:1], {KA_WV}
    s_getreg_b32 s{s_xcc}, hwreg(HW_REG_XCC_ID)
    s_and_b32 s{s_xcc}, s{s_xcc}, 7
    {"s_min_u32 s12, s12, 5" if fakex else ""}
    v_lshrrev_b32 v1, 6, v0
    v_and_b32 v{v_lane}, 63, v0
    s_nop 1
    v_readfirstlane_b32 s{s_wave}, v1
    s_waitcnt lgkmcnt(0)
    """)
    make_srd(A, SRD_DBG, 4, 256)
    if stamp: A("s_mov_b32 s3, s28")
    make_srd(A, SRD_WS, 6, WS_SIZE)
    DBG = f"s[{SRD_DBG}:{SRD_DBG+3}]"
    A(f"""
    s_lshl_b32 s{t0}, s{s_xcc}, 2
    v_mov_b32 v{v_t}, s{t0}
    v_mov_b32 v{v_t+1}, 1
    v_mov_b32 v{v_t+2}, 32
    v_mov_b32 v{v_t+3}, 1
    v_cmp_eq_u32 vcc, 0, v0
    s_and_saveexec_b64 s[32:33], vcc
    s_cbranch_execz {L('t1')}
    buffer_atomic_add v{v_t+1}, v{v_t}, {DBG}, 0 offen sc0
    s_waitcnt vmcnt(0)
    buffer_atomic_add v{v_t+3}, v{v_t+2}, {DBG}, 0 offen
    v_mov_b32 v{v_t+4}, 0
    ds_write_b32 v{v_t+4}, v{v_t+1}
    s_waitcnt vmcnt(0) lgkmcnt(0)
    {L('t1')}:
    s_mov_b64 exec, s[32:33]
    s_barrier
    v_mov_b32 v{v_t+4}, 0
    ds_read_b32 v{v_t+1}, v{v_t+4}
    s_waitcnt lgkmcnt(0)
    v_readfirstlane_b32 s{s_tick}, v{v_t+1}
    s_barrier
    s_mul_i32 s{s_role}, s{s_xcc}, {q0}
    s_add_u32 s{s_role}, s{s_role}, s{s_tick}
    s_cmp_lt_u32 s{s_xcc}, {NX}
    s_cselect_b32 s71, {q0}, 0
    s_cmp_lt_u32 s{s_tick}, s71
    s_cbranch_scc1 {L('haverole')}
    s_sub_u32 s80, s{s_tick}, s71
    s_and_b32 s14, s80, 15
    s_lshl_b32 s{t0}, s{s_xcc}, 4
    s_add_u32 s14, s14, s{t0}
    s_mov_b32 s81, 1
    s_mov_b32 s71, s{s_xcc}
    """)
    def flagwait(tag, all_waves):
        A(f"v_mov_b32 v{v_t}, 160")
        A(f"s_mov_b32 s{s_pc}, {POLLMAX}")
        A.label(L(tag))
        A(f"buffer_load_dword v{v_t+1}, v{v_t}, {DBG}, 0 offen sc1")
        A(f"s_sub_u32 s{s_pc}, s{s_pc}, 1")
        A(f"s_cbranch_scc1 {L('end')}")
        A("s_waitcnt vmcnt(0)")
        A(f"v_readfirstlane_b32 s{t0}, v{v_t+1}")
        A(f"s_cmp_lg_u32 s{t0}, 0")
        A(f"s_cbranch_scc1 {L(tag+'_ok')}")
        A("s_sleep 4")
        A(f"s_branch {L(tag)}")
        A.label(L(tag + '_ok'))
    if init:
        A(f"""
        v_mov_b32 v{v_t}, 44
        v_mov_b32 v{v_t+1}, 1
        v_cmp_eq_u32 vcc, 0, v0
        s_and_saveexec_b64 s[32:33], vcc
        s_cbranch_execz {L('i1')}
        buffer_atomic_add v{v_t+1}, v{v_t}, {DBG}, 0 offen sc0
        s_waitcnt vmcnt(0)
        v_mov_b32 v{v_t+4}, 0
        ds_write_b32 v{v_t+4}, v{v_t+1}
        s_waitcnt lgkmcnt(0)
        {L('i1')}:
        s_mov_b64 exec, s[32:33]
        s_barrier
        v_mov_b32 v{v_t+4}, 0
        ds_read_b32 v{v_t+1}, v{v_t+4}
        s_waitcnt lgkmcnt(0)
        v_readfirstlane_b32 s30, v{v_t+1}
        s_cmp_ge_u32 s30, 128
        s_cbranch_scc1 {L('i3')}
        """)
        init(A, L)
        A(f"""
        s_waitcnt vmcnt(0)
        s_barrier
        s_cmp_lg_u32 s{s_wave}, 0
        s_cbranch_scc1 {L('i4')}
        v_mov_b32 v{v_t}, 40
        v_mov_b32 v{v_t+1}, 1
        v_mov_b32 v{v_t+2}, 160
        v_mov_b32 v{v_t+3}, 1
        s_mov_b64 exec, 1
        buffer_atomic_add v{v_t+1}, v{v_t}, {DBG}, 0 offen sc0
        s_waitcnt vmcnt(0)
        v_readfirstlane_b32 s{t0}, v{v_t+1}
        s_cmp_eq_u32 s{t0}, 127
        s_cbranch_scc0 {L('i2')}
        buffer_store_dword v{v_t+3}, v{v_t+2}, {DBG}, 0 offen sc1
        {L('i2')}:
        s_mov_b64 exec, -1
        {L('i3')}:
        s_cmp_lg_u32 s{s_wave}, 0
        s_cbranch_scc1 {L('i4')}
        """)
        flagwait('iw', False)
        A.label(L('i4'))
        A("s_barrier")
    def repair(A, L2):
        D2 = "s[76:79]"
        A(f"s_cmp_eq_u32 s81, 0")
        A(f"s_cbranch_scc1 {L('rp_end')}")
        A(f"v_lshlrev_b32 v24, 2, v{v_lane}")
        A(f"buffer_load_dword v25, v24, {D2}, 0 offen sc1")
        A("s_waitcnt vmcnt(0)")
        A("v_readlane_b32 s24, v25, 8")
        A("s_cmp_lt_u32 s24, 256")
        A(f"s_cbranch_scc1 {L('rp_end')}")
        A("s_mov_b32 s81, 0")
        A("s_mov_b32 s25, 0")
        A("s_mov_b32 s26, s80")
        for x in range(8):
            A(f"v_readlane_b32 s24, v25, {x}")
            A(f"s_max_u32 s27, s24, {QU[x]}")
            A(f"s_sub_u32 s27, s27, {QU[x]}")
            A(f"s_cmp_gt_u32 s71, {x}")
            A(f"s_cselect_b32 s27, s27, 0")
            A(f"s_add_u32 s26, s26, s27")
            A(f"s_min_u32 s24, s24, {QU[x]}")
            A(f"s_sub_u32 s24, {QU[x]}, s24")
            A(f"s_add_u32 s25, s25, s24")
        A("s_cmp_ge_u32 s26, s25")
        A(f"s_cbranch_scc1 {L('rp_end')}")
        for x in range(8):
            A(f"v_readlane_b32 s24, v25, {x}")
            A(f"s_min_u32 s24, s24, {QU[x]}")
            A(f"s_add_u32 s8, s24, s26")
            A(f"s_add_u32 s8, s8, {QB[x]}")
            A(f"s_sub_u32 s24, {QU[x]}, s24")
            A(f"s_cmp_lt_u32 s26, s24")
            A(f"s_cbranch_scc1 {L('rp_take')}")
            A(f"s_sub_u32 s26, s26, s24")
        A(f"s_branch {L('rp_end')}")
        A.label(L('rp_take'))
        A("s_lshl_b32 s8, s8, 16")
        A("s_or_b32 s8, s8, 15")
        A(f"s_branch {L('bc')}")
        A.label(L('rp_end'))
    def repair_stub(A, L2):
        A.label(L('j_rep'))
        A(f"s_mov_b32 s{s_role}, s11")
        A(f"s_mov_b32 s{SRD_DBG}, s76"); A(f"s_mov_b32 s{SRD_DBG+1}, s77"); A(f"s_mov_b32 s{SRD_DBG+2}, 256"); A(f"s_mov_b32 s{SRD_DBG+3}, 0x00020000")
        A("s_barrier")
        A(f"s_branch {L('haverole')}")
    A.label(L('wentry'))
    A(f"s_mov_b32 s76, s{SRD_DBG}"); A(f"s_mov_b32 s77, s{SRD_DBG+1}"); A("s_mov_b32 s78, 256"); A("s_mov_b32 s79, 0x00020000")
    if worker: worker(A, L, repair, repair_stub)
    A(f"s_branch {L('end')}")
    A.label(L('haverole'))
    A(f"""
    s_lshr_b32 s{s_Q}, s{s_role}, 4
    s_and_b32 s{s_j}, s{s_role}, 15
    s_mov_b32 s{s_hi}, 0
    s_mov_b32 s{s_hi+1}, -1
    s_mov_b32 s{s_lo}, -1
    s_mov_b32 s{s_lo+1}, 0
    s_mov_b32 s{s_c}, {f2u(SCALE_LOG2E):#x}
    s_mov_b32 s{s_c+1}, {f2u(SCALE_LOG2E):#x}
    s_mov_b32 s{s_nc}, {f2u(-SCALE_LOG2E):#x}
    s_mov_b32 s{s_msk}, 0xffff0000
    """)
    n_, g_ = v_t, v_t + 1
    a, b, c, d_ = v_t + 2, v_t + 3, v_t + 4, v_t + 5
    A(f"""
    v_and_b32 v{n_}, 15, v{v_lane}
    v_lshrrev_b32 v{g_}, 4, v{v_lane}
    v_lshlrev_b32 v{v_l16}, 4, v{v_lane}
    v_add_u32 v{v_l16b}, 0x1000, v{v_l16}
    v_lshlrev_b32 v{v_l4}, 2, v{v_lane}
    v_lshlrev_b32 v{v_d1}, 3, v{v_lane}
    v_mov_b32 v{v_idx}, 0x44444444
    v_mov_b32 v{a}, 0xeeeeeeee
    v_cmp_lt_u32 vcc, 7, v{n_}
    s_nop 1
    v_cndmask_b32 v{v_idx}, v{v_idx}, v{a}, vcc
    v_lshrrev_b32 v{d_}, 5, v{v_lane}          ; t
    v_and_b32 v{c}, 1, v{g_}                   ; g'
    v_lshrrev_b32 v{a}, 2, v{n_}
    v_lshl_add_u32 v{b}, v{a}, 1, v{c}         ; 2G+g'
    v_mul_u32_u24 v{a}, 144, v{b}              ; (2G+g')*(128+16)
    v_lshl_add_u32 v{a}, v{d_}, 4, v{a}
    v_and_b32 v{b}, 3, v{n_}
    v_lshl_add_u32 v{a}, v{b}, 2, v{a}
    s_mul_i32 s{t0}, s{s_wave}, 3584
    v_add_u32 v{v_w1q}, s{t0}, v{a}
    v_lshrrev_b32 v{a}, 3, v{n_}
    v_lshl_add_u32 v{a}, v{a}, 2, v{c}
    v_bfe_u32 v{b}, v{n_}, 1, 1
    v_lshl_add_u32 v{a}, v{b}, 1, v{a}
    v_mul_u32_u24 v{a}, 144, v{a}
    v_bfe_u32 v{b}, v{n_}, 2, 1
    v_lshl_add_u32 v{a}, v{b}, 4, v{a}
    v_lshl_add_u32 v{a}, v{d_}, 3, v{a}
    v_and_b32 v{b}, 1, v{n_}
    v_lshl_add_u32 v{a}, v{b}, 2, v{a}
    s_add_u32 s{t0}, s{t0}, 2304
    v_add_u32 v{v_w1v}, s{t0}, v{a}
    v_lshrrev_b32 v{a}, 3, v{v_lane}
    v_lshl_add_u32 v{a}, v{a}, 4, v{v_l16}
    s_mul_i32 s{t0}, s{s_wave}, 1152
    v_add_u32 v{v_r1}, s{t0}, v{a}
    v_lshlrev_b32 v{a}, 8, v{g_}
    v_lshl_add_u32 v{a}, v{n_}, 3, v{a}
    s_cmp_eq_u32 s{s_wave}, 2
    s_cbranch_scc1 {L('d1v')}
    v_mov_b32 v{v_d1}, v{a}
    s_cmp_eq_u32 s{s_wave}, 3
    s_cbranch_scc0 {L('d1v')}
    v_lshrrev_b32 v{a}, 3, v{v_lane}
    v_and_b32 v{b}, 7, v{v_lane}
    v_lshlrev_b32 v{v_d1}, 8, v{a}
    v_lshl_add_u32 v{v_d1}, v{b}, 3, v{v_d1}
    v_lshrrev_b32 v{v_r1}, 2, v{b}
    v_lshlrev_b32 v{v_r1}, 2, v{v_r1}
    v_lshrrev_b32 v{v_offC}, 2, v{a}
    v_add_u32 v{v_r1}, v{v_r1}, v{v_offC}
    v_mul_u32_u24 v{v_r1}, 144, v{v_r1}
    v_and_b32 v{a}, 3, v{a}
    v_lshl_add_u32 v{v_r1}, v{a}, 5, v{v_r1}
    v_and_b32 v{b}, 3, v{b}
    v_lshl_add_u32 v{v_r1}, v{b}, 3, v{v_r1}
    v_add_u32 v{v_r1}, 2304, v{v_r1}
    {L('d1v')}:
    v_lshrrev_b32 v{a}, 3, v{n_}
    v_lshl_add_u32 v{a}, v{a}, 1, v{c}
    v_mul_u32_u24 v{a}, 160, v{a}
    v_mul_u32_u24 v{b}, 640, v{d_}
    v_add_u32 v{a}, v{a}, v{b}
    v_and_b32 v{b}, 7, v{n_}
    v_lshl_add_u32 v{a}, v{b}, 2, v{a}
    s_mul_i32 s{t0}, s{s_wave}, 2560
    s_add_u32 s{t0}, s{t0}, 14336
    v_add_u32 v{v_w2}, s{t0}, v{a}
    v_lshlrev_b32 v{a}, 3, v{v_lane}
    v_lshl_add_u32 v{a}, v{g_}, 5, v{a}
    s_mul_i32 s{t0}, s{s_wave}, 640
    s_add_u32 s{t0}, s{t0}, 14336
    v_add_u32 v{v_r2}, s{t0}, v{a}
    """)
    for r in range(8):
        if r in (0, 2, 4, 6): A(f"v_mov_b32 v{vOne+r}, 0x3f803f80")
        else: A(f"v_mov_b32 v{vOne+r}, 0")
    A(f"s_mov_b64 exec, s[{s_lo}:{s_lo+1}]")
    A(f"v_mov_b32 v{vOne+5}, 0x3f803f80"); A(f"v_mov_b32 v{vOne+7}, 0x3f803f80")
    A("s_mov_b64 exec, -1")
    for nt in range(4):
        A(f"v_mov_b32 v{vUb+8*nt+1}, 0"); A(f"v_mov_b32 v{vUb+8*nt+3}, 0")
    A(f"""
    s_lshl_b32 s{s_memsrc}, s{s_Q}, 14
    s_lshl_b32 s{t0}, s{s_wave}, 12
    s_add_u32 s{s_memsrc}, s{s_memsrc}, s{t0}
    s_add_u32 s{s_memsrc}, s{s_memsrc}, {WS_CH + CH_MEM}
    s_mul_i32 s{t1}, s{s_Q}, {4*HB}
    s_add_u32 s{t1}, s{t1}, {WS_CH + CH_QKV}
    s_mul_i32 s{t0}, s{s_wave}, {HB}
    s_add_u32 s{s_qkvsrc}, s{t1}, s{t0}
    s_lshr_b32 s{t0}, s{s_j}, 2
    s_mul_i32 s{t0}, s{t0}, {HB}
    s_add_u32 s{t1}, s{t1}, s{t0}
    s_and_b32 s{t0}, s{s_j}, 3
    s_lshl_b32 s{t2}, s{t0}, 10
    s_add_u32 s{s_qkvdst}, s{t1}, s{t2}
    s_lshl_b32 s{t2}, s{s_wave}, 7
    s_add_u32 s{s_qkvdst}, s{s_qkvdst}, s{t2}
    s_lshl_b32 s{t2}, s{t0}, 9
    s_add_u32 s{t2}, s{t2}, s{t1}
    s_add_u32 s{t2}, s{t2}, 4096
    s_cmp_eq_u32 s{s_wave}, 2
    s_cselect_b32 s{s_qkvdst}, s{t2}, s{s_qkvdst}
    s_lshl_b32 s{t2}, s{t0}, 6
    s_add_u32 s{t2}, s{t2}, s{t1}
    s_add_u32 s{t2}, s{t2}, 6144
    s_cmp_eq_u32 s{s_wave}, 3
    s_cselect_b32 s{s_qkvdst}, s{t2}, s{s_qkvdst}
    s_lshl_b32 s{t0}, s{s_j}, 13
    s_add_u32 s{t0}, s{t0}, {WS_CH + CH_PART}
    s_lshl_b32 s{t1}, s{s_wave}, 8
    s_add_u32 s{s_partsrc}, s{t0}, s{t1}
    s_add_u32 s{s_partsrc2}, s{s_partsrc}, 4096
    s_lshl_b32 s{t2}, s{s_Q}, 10
    s_add_u32 s{s_partdst}, s{s_partsrc}, s{t2}
    s_lshl_b32 s{s_memdst}, s{s_Q}, 14
    s_lshl_b32 s{t0}, s{s_wave}, 8
    s_add_u32 s{s_memdst}, s{s_memdst}, s{t0}
    s_lshl_b32 s{t0}, s{s_j}, 10
    s_add_u32 s{s_memdst}, s{s_memdst}, s{t0}
    s_add_u32 s{s_memdst}, s{s_memdst}, {WS_CH + CH_MEM + CH_STEP}
    s_lshl_b32 s{t0}, s{s_Q}, 2
    s_add_u32 s{t0}, s{t0}, s{s_wave}
    s_lshl_b32 s{t0}, s{t0}, 13
    s_add_u32 s{s_k}, s{t0}, {WS_K}
    s_add_u32 s{s_v}, s{t0}, {WS_VT}
    s_lshl_b32 s{s_touch}, s{s_Q}, 15
    s_lshl_b32 s{t0}, s{s_j}, 11
    s_add_u32 s{s_touch}, s{s_touch}, s{t0}
    s_and_b32 s{t0}, s{s_wave}, 1
    s_lshl_b32 s{t0}, s{t0}, 10
    s_add_u32 s{s_touch}, s{s_touch}, s{t0}
    s_mov_b32 s{t0}, {WS_K + 2*262144}
    s_mov_b32 s{t1}, {WS_VT + 2*262144}
    s_cmp_ge_u32 s{s_wave}, 2
    s_cselect_b32 s{t0}, s{t1}, s{t0}
    s_add_u32 s{s_touch}, s{s_touch}, s{t0}
    s_mul_i32 s{t0}, s{s_role}, 2048
    s_lshl_b32 s{t1}, s{s_wave}, 10
    s_add_u32 s{t0}, s{t0}, s{t1}
    s_add_u32 s{t0}, s{t0}, {WS_CH + CH_QKV + CH_STEP}
    s_lshl_b32 s{t1}, s{s_role}, 10
    s_add_u32 s{t1}, s{t1}, {WS_CH + CH_MEM + 2*CH_STEP}
    s_cmp_ge_u32 s{s_wave}, 2
    s_cselect_b32 s{s_touch2}, s{t1}, s{t0}
    s_mov_b32 s{s_lastq}, {WS_DUMMY}
    s_mov_b32 s{s_lastm}, {WS_DUMMY}
    """)
    for r in range(3): A(f"v_mov_b32 v{vPub+r}, 0")
    LW = 24576
    vq, vo, vtr1, vtr2 = vA, vA + 1, vA + 2, vA + 4
    A(f"""
    v_lshrrev_b32 v{a}, 2, v{v_lane}
    v_lshlrev_b32 v{a}, 13, v{a}
    v_and_b32 v{b}, 3, v{v_lane}
    v_lshl_add_u32 v{vq}, v{b}, 4, v{a}
    v_lshrrev_b32 v{a}, 3, v{v_lane}
    v_lshlrev_b32 v{a}, 11, v{a}
    v_and_b32 v{b}, 7, v{v_lane}
    v_lshl_add_u32 v{vo}, v{b}, 4, v{a}
    s_lshl_b32 s68, s{s_wave}, 15
    s_add_u32 s68, s68, {LW}
    s_lshl_b32 s69, s{s_wave}, 21
    s_lshl_b32 s{t0}, s{s_role}, 6
    s_add_u32 s69, s69, s{t0}
    s_lshl_b32 s70, s{s_Q}, 2
    s_add_u32 s70, s70, s{s_wave}
    s_lshl_b32 s70, s70, 18
    s_lshl_b32 s{t0}, s{s_j}, 7
    s_add_u32 s70, s70, s{t0}
    v_lshrrev_b32 v{d_}, 2, v{n_}            ; r
    v_and_b32 v{b}, 1, v{d_}
    v_lshrrev_b32 v{a}, 1, v{d_}
    v_lshl_add_u32 v{c}, v{a}, 3, v{b}
    v_lshrrev_b32 v{vtr1+1}, 1, v{g_}
    v_lshl_add_u32 v{c}, v{vtr1+1}, 4, v{c}
    v_and_b32 v{vtr2+1}, 1, v{g_}
    v_lshl_add_u32 v{c}, v{vtr2+1}, 2, v{c}
    v_lshlrev_b32 v{c}, 6, v{c}
    v_and_b32 v{vtr1}, 3, v{n_}
    v_lshlrev_b32 v{vtr1}, 3, v{vtr1}
    v_add_u32 v{c}, v{c}, v{vtr1}
    v_mov_b32 v{vtr2}, v{vtr1}
    v_add_u32 v{vtr1}, s68, v{c}
    v_lshl_add_u32 v{c}, v{g_}, 2, v{d_}
    v_lshlrev_b32 v{c}, 7, v{c}
    v_add_u32 v{c}, v{c}, v{vtr2}
    v_add_u32 v{vtr2}, s68, v{c}
    """)
    ptrs = [60, 62, 64, 66]
    def wdma(m):
        make_srd(A, SRD_W, ptrs[m], 8 << 20)
        reg = (m & 1) * 16384
        for i in range(16):
            A(f"s_add_u32 m0, s68, {reg + i*1024}")
            if m < 3:
                A(f"s_add_u32 s{t0}, s69, {i*16*8192}")
                A(f"buffer_load_dwordx4 v{vq}, s[{SRD_W}:{SRD_W+3}], s{t0} offen lds")
            else:
                A(f"s_add_u32 s{t0}, s70, {i*8*2048}")
                A(f"buffer_load_dwordx4 v{vo}, s[{SRD_W}:{SRD_W+3}], s{t0} offen lds")
    def aW1(tile, ks): return (tile * 4 + ks) * 8
    def aW2(nt, ks): return 192 + (nt * 2 + ks) * 8
    def wtr(m):
        reg = (m & 1) * 16384
        cnt = 0
        for t in range(2 if m < 3 else 4):
            for ks in range(4 if m < 3 else 2):
                for h in range(2):
                    for u in range(2):
                        if m < 3:
                            d = aW1(2 * m + t, ks) + 4 * h + 2 * u
                            off = reg + (64 * ks + 32 * h + 2 * u) * 64 + t * 32
                            A(f"ds_read_b64_tr_b16 a[{d}:{d+1}], v{vtr1} offset:{off}")
                        else:
                            d = aW2(t, ks) + 4 * h + 2 * u
                            off = reg + (64 * ks + 32 * h + 16 * u) * 128 + t * 32
                            A(f"ds_read_b64_tr_b16 a[{d}:{d+1}], v{vtr2} offset:{off}")
                        cnt += 1
                        if cnt % 8 == 0: A("s_waitcnt lgkmcnt(0)")
    def kvload(base, sreg):
        ops = []
        for i in range(8):
            vo_ = v_l16 if i < 4 else v_l16b
            ops.append(f"buffer_load_dwordx4 v[{base+4*i}:{base+4*i+3}], v{vo_}, {WS}, s{sreg} offen offset:{(i%4)*1024} sc1")
        return ops
    def maxops(regs, tmp):
        rest = list(regs); ops = []
        ops.append(f"v_max3_u32 v{tmp}, v{rest[0]}, v{rest[1]}, v{rest[2]}"); rest = rest[3:]
        while len(rest) >= 2:
            ops.append(f"v_max3_u32 v{tmp}, v{tmp}, v{rest[0]}, v{rest[1]}"); rest = rest[2:]
        if rest: ops.append(f"v_max_u32 v{tmp}, v{tmp}, v{rest[0]}")
        return ops
    def checkops(regs, lab, tmp):
        return maxops(regs, tmp) + [f"v_cmp_eq_u32 vcc, -1, v{tmp}", f"s_cbranch_vccnz {lab}"]
    def hook(tag):
        A(f"s_cmp_eq_u32 s{s_pc}, {POLLMAX-64}")
        A(f"s_cbranch_scc0 {L(tag+'_h')}")
        A(f"buffer_store_dwordx2 v[{vPub}:{vPub+1}], v{v_d1}, {WS}, s{s_lastq} offen sc1")
        A(f"buffer_store_dword v{vPub+2}, v{v_l4}, {WS}, s{s_lastm} offen sc1")
        A.label(L(tag + '_h'))
    def stamp_t(k):
        if trace:
            A("s_memtime s[72:73]")
            A(f"s_and_b32 s74, s{s_step}, 7"); A("s_lshl_b32 s74, s74, 3"); A(f"s_add_u32 s74, s74, {k}")
            A("s_mov_b32 m0, s74")
            A("s_waitcnt lgkmcnt(0)")
            A("v_writelane_b32 v255, s72, m0")
        elif stamp and rounds and k in (0, 2, 4):
            A(f"s_sub_u32 s74, {POLLMAX}, s{s_pc}"); A(f"s_add_u32 s{80+k}, s{80+k}, s74")
        elif stamp and not rounds:
            A("s_memtime s[72:73]"); A("s_waitcnt lgkmcnt(0)")
            A("s_sub_u32 s74, s72, s76"); A(f"s_add_u32 s{80+k}, s{80+k}, s74"); A("s_mov_b32 s76, s72")
    def utok_ops():
        mf = []
        for kk in range(4):
            for T in range(2):
                for nt in range(4):
                    d = vU + (T * 4 + nt) * 4; w = aW2(nt, kk >> 1) + 4 * (kk & 1); va = vV + (T * 4 + kk) * 4
                    C = "0" if kk == 0 else f"v[{d}:{d+3}]"
                    mf.append(f"v_mfma_f32_16x16x32_bf16 v[{d}:{d+3}], v[{va}:{va+3}], a[{w}:{w+3}], {C}")
        cv = []
        for T in range(2):
            for nt in range(4):
                d = vU + (T * 4 + nt) * 4
                cv.append(f"v_cvt_pk_bf16_f32 v{vUb+8*nt+4*T}, v{d}, v{d+1}")
                cv.append(f"v_cvt_pk_bf16_f32 v{vUb+8*nt+4*T+2}, v{d+2}, v{d+3}")
        return mf, cv
    def halves(d0, d1):
        return [f"v_permlane32_swap_b32 v{d0+r}, v{d1+r}" for r in range(4)] + [f"v_add_f32 v{d0+r}, v{d0+r}, v{d1+r}" for r in range(4)]
    wdma(0); wdma(1)
    A("s_waitcnt vmcnt(16)"); wtr(0); wdma(2)
    A("s_waitcnt vmcnt(16)"); wtr(1); wdma(3)
    A("s_waitcnt vmcnt(16)"); wtr(2)
    A("s_waitcnt vmcnt(0)"); wtr(3)
    def cntwait(tag, sidx, val):
        A(f"s_mov_b32 s{s_pc}, {POLLMAX}")
        A.label(L(tag))
        A(f"buffer_load_dword v{vCnt}, v{v_zero}, {WS}, s{sidx} offen sc1")
        A(f"s_sub_u32 s{s_pc}, s{s_pc}, 1")
        A(f"s_cbranch_scc1 {L('bail')}")
        A("s_waitcnt vmcnt(0)")
        A(f"v_readfirstlane_b32 s{t0}, v{vCnt}")
        A(f"s_cmp_ge_u32 s{t0}, {val}")
        A(f"s_cbranch_scc1 {L(tag+'_ok')}")
        A("s_sleep 2")
        A(f"s_branch {L(tag)}")
        A.label(L(tag + '_ok'))
    A(f"v_mov_b32 v{v_zero}, 0")
    if stamp:
        A("s_memrealtime s[72:73]"); A("s_waitcnt lgkmcnt(0)"); A("s_mov_b32 s75, s72")
    A("s_mov_b32 s89, 64")
    A(f"s_mov_b32 s{s_cnt}, {WS_CNT + C_KVG*128}")
    if init: flagwait('cw', True)
    if engine: cntwait('kv0', s_cnt, 64)
    for o in kvload(vK, s_k): A(o)
    for o in kvload(vV, s_v): A(o)
    A("s_waitcnt vmcnt(0)")
    mf, cv = utok_ops()
    for o in mf: A(o)
    A("s_nop 7")
    for o in cv: A(o)
    A(f"s_add_u32 s{s_v}, s{s_v}, 262144")
    for r in range(24): A(f"v_mov_b32 v{acc1+r}, 0")
    A(f"s_mov_b32 s{s_step}, 0")
    for p in range(4): A(f"v_add_u32 v{v_r3+p}, {p*3584}, v{v_r1}")
    if stamp:
        for k in range(8): A(f"s_mov_b32 s{80+k}, 0")
        A("s_memtime s[76:77]"); A("s_memrealtime s[78:79]"); A("s_waitcnt lgkmcnt(0)")
    A("s_barrier")
    for ks in range(4): A(f"buffer_load_dwordx4 v[{vA+4*ks}:{vA+4*ks+3}], v{v_l16}, {WS}, s{s_memsrc} offen offset:{ks*1024} sc1")
    A(f"s_mov_b32 s{s_pc}, {POLLMAX}")
    A(f"s_branch {L('loop')}")
    def pkadd(d, a, b): return f"v_pk_add_f32 v[{d}:{d+1}], v[{a}:{a+1}], v[{b}:{b+1}]"
    def pkmul(d, a, b): return f"v_pk_mul_f32 v[{d}:{d+1}], v[{a}:{a+1}], v[{b}:{b+1}]"
    def halves(d0, d1):
        return [f"v_permlane32_swap_b32 v{d0+r}, v{d1+r}" for r in range(4)] + [pkadd(d0, d0, d1), pkadd(d0 + 2, d0 + 2, d1 + 2)]
    def cload(ks): return f"buffer_load_dwordx4 v[{vA+4*ks}:{vA+4*ks+3}], v{v_l16}, {WS}, s{s_memsrc} offen offset:{ks*1024} sc1"
    def aload(ks): return f"buffer_load_dwordx4 v[{vA+4*ks}:{vA+4*ks+3}], v{v_l16}, {WS}, s{s_qkvsrc} offen offset:{ks*1024} sc1"
    def vmload(u): return f"buffer_load_dwordx4 v[{vVM+4*u}:{vVM+4*u+3}], v{v_l16b}, {WS}, s{s_qkvsrc} offen offset:{u*1024} sc1"
    def tmo(tag):
        A(f"s_sub_u32 s{s_pc}, s{s_pc}, 1")
        A(f"s_cbranch_scc1 {L('bail')}")
        hook(tag)
    def chk4(base, lab):
        return checkops(range(base, base + 4), lab, v_t)
    A.label(L('redo1'))
    A("s_nop 15")
    for r in range(24): A(f"v_mov_b32 v{acc1+r}, 0")
    A.label(L('pc'))
    for ks in range(4): A(cload(ks))
    tmo('pc')
    A.label(L('loop'))
    A("s_waitcnt vmcnt(0)")
    for o in checkops([vA + 4 * i + 3 for i in range(4)], L('pc'), v_t): A(o)
    stamp_t(0)
    if clk:
        A("s_memtime s[72:73]"); A("s_memrealtime s[74:75]"); A(f"s_mov_b32 m0, s{s_step}"); A("s_waitcnt lgkmcnt(0)")
        A("v_writelane_b32 v255, s72, m0"); A("v_writelane_b32 v1, s74, m0")
    mf = []
    for tile in range(6):
        for ks in range(4):
            d = acc1 + 4 * tile; w = aW1(tile, ks)
            mf.append(f"v_smfmac_f32_16x16x64_bf16 v[{d}:{d+3}], v[{vA+4*ks}:{vA+4*ks+3}], a[{w}:{w+7}], v{v_idx}")
    chk = checkops([vA + i for i in range(16) if i % 4 != 3], L('redo1'), v_t)
    vl = [] if (nokv or vpos != 0) else kvload(vV, s_v)
    interleave(A, mf[:16], chk + vl, per=1)
    post = []
    for which in range(2):
        d0 = acc1 + 8 * which
        post += halves(d0, d0 + 4) + [f"ds_write_b32 v{v_w1q}, v{d0+r} offset:{which*1152 + r*32}" for r in range(4)]
    interleave(A, mf[16:], post[:10], per=3)
    for o in post[10:]: A(o)
    for o in halves(acc1 + 16, acc1 + 20): A(o)
    for r in range(4): A(f"ds_write_b32 v{v_w1v}, v{acc1+16+r} offset:{r*32}")
    for r in range(8): A(f"v_mov_b32 v{acc2+r}, 0")
    A("s_waitcnt lgkmcnt(0)")
    if trace: stamp_t(7)
    A("s_barrier")
    A(f"s_cmp_eq_u32 s{s_wave}, 3")
    A(f"s_cbranch_scc0 {L('s1a')}")
    for p in range(4):
        A(f"ds_read2_b64 v[{vU+4*p}:{vU+4*p+3}], v{v_r3+p} offset0:0 offset1:36")
    A(f"s_branch {L('s1b')}")
    A.label(L('s1a'))
    for p in range(4):
        A(f"ds_read_b128 v[{vU+4*p}:{vU+4*p+3}], v{v_r1} offset:{p*3584}")
    A.label(L('s1b'))
    for r in range(8, 20): A(f"v_mov_b32 v{acc2+r}, 0")
    A("s_waitcnt lgkmcnt(2)")
    A(pkadd(vU, vU, vU + 4)); A(pkadd(vU + 2, vU + 2, vU + 6))
    A("s_waitcnt lgkmcnt(0)")
    A(pkadd(vU + 8, vU + 8, vU + 12)); A(pkadd(vU + 10, vU + 10, vU + 14))
    A(pkadd(vU, vU, vU + 8)); A(pkadd(vU + 2, vU + 2, vU + 10))
    A(f"v_cvt_pk_bf16_f32 v{vPub}, v{vU}, v{vU+1}")
    A(f"v_cvt_pk_bf16_f32 v{vPub+1}, v{vU+2}, v{vU+3}")
    A(f"v_min_u32 v{vPub}, -2, v{vPub}")
    A(f"v_min_u32 v{vPub+1}, -2, v{vPub+1}")
    A(f"buffer_store_dwordx2 v[{vPub}:{vPub+1}], v{v_d1}, {WS}, s{s_qkvdst} offen")
    A(f"s_mov_b32 s{s_lastq}, s{s_qkvdst}")
    A(f"s_cmp_eq_u32 s{s_step}, {nsteps-1}")
    A(f"s_cbranch_scc1 {L('fin')}")
    stamp_t(1)
    if dlyA: A(f"s_sleep {dlyA}")
    for ks in range(4): A(aload(ks))
    A(vmload(0)); A(vmload(1))
    A(f"s_mov_b32 s{s_pc}, {POLLMAX}")
    for r in range(16): A(f"v_mov_b32 v{vUm+r}, 0")
    A(f"s_branch {L('pa1')}")
    A.label(L('pa'))
    for ks in range(4): A(aload(ks))
    A(vmload(0)); A(vmload(1))
    tmo('pa')
    A.label(L('pa1'))
    A("s_waitcnt vmcnt(0)")
    for o in checkops([vA + 4 * i + 3 for i in range(6)], L('pa'), v_t): A(o)
    stamp_t(2)
    mf = []
    for ks in range(4):
        R = f"v[{vA+4*ks}:{vA+4*ks+3}]"
        for t in range(3):
            d = vS + 4 * t
            Aop = R if t == 2 else f"v[{vK+(t*4+ks)*4}:{vK+(t*4+ks)*4+3}]"
            C = "0" if ks == 0 else f"v[{d}:{d+3}]"
            mf.append(f"v_mfma_f32_16x16x32_bf16 v[{d}:{d+3}], {Aop}, {R}, {C}")
    chk = checkops([vA + i for i in range(24) if i % 4 != 3], L('pa'), v_t)
    interleave(A, mf, chk, per=1)
    um = []
    for nt in range(4):
        for ks in range(2):
            d = vUm + 4 * nt; w = aW2(nt, ks)
            um.append(f"v_smfmac_f32_16x16x64_bf16 v[{d}:{d+3}], v[{vVM+4*ks}:{vVM+4*ks+3}], a[{w}:{w+7}], v{v_idx}")
    mx, tt = v_t, v_t + 2
    A(um[0]); A("s_nop 6")
    sm1 = [f"v_max3_f32 v{mx}, v{vS}, v{vS+1}, v{vS+2}", f"v_max3_f32 v{mx}, v{mx}, v{vS+3}, v{vS+4}",
           f"v_max3_f32 v{mx}, v{mx}, v{vS+5}, v{vS+6}", f"v_max_f32 v{mx}, v{mx}, v{vS+7}", um[1],
           f"s_mov_b64 exec, s[{s_hi}:{s_hi+1}]", f"v_max3_f32 v{mx}, v{mx}, v{vS+8}, v{vS+9}", f"v_max3_f32 v{mx}, v{mx}, v{vS+10}, v{vS+11}",
           "s_mov_b64 exec, -1", f"v_mov_b32 v{tt}, v{mx}"]
    for o in sm1: A(o)
    A(um[2])
    A("s_nop 0")
    A(f"v_permlane32_swap_b32 v{mx}, v{tt}")
    A(f"v_max_f32 v{mx}, v{mx}, v{tt}")
    A(f"v_mov_b32 v{tt}, v{mx}")
    A(um[3])
    A("s_nop 0")
    A(f"v_permlane16_swap_b32 v{mx}, v{tt}")
    A(f"v_max_f32 v{mx}, v{mx}, v{tt}")
    A(f"v_mul_f32 v{mx}, s{s_nc}, v{mx}")
    ex = []
    for i in (8, 10, 0, 2, 4, 6):
        ex.append(f"v_pk_fma_f32 v[{vS+i}:{vS+i+1}], v[{vS+i}:{vS+i+1}], s[{s_c}:{s_c+1}], v[{mx}:{mx+1}] op_sel_hi:[1,1,0]")
    for i in list(range(8, 12)) + list(range(8)): ex.append(f"v_exp_f32 v{vS+i}, v{vS+i}")
    k = 0
    vl2 = kvload(vV, s_v) if vpos == 1 else []
    for i, o in enumerate(ex):
        A(o)
        if i % 4 == 3 and k < 4: A(um[4 + k]); k += 1
        if i % 2 == 1 and vl2: A(vl2.pop(0))
    Pb, X = vP + 4, vP + 6
    A(f"v_cvt_pk_bf16_f32 v{Pb}, v{vS+8}, v{vS+9}")
    A(f"v_cvt_pk_bf16_f32 v{Pb+1}, v{vS+10}, v{vS+11}")
    A(f"s_mov_b64 exec, s[{s_lo}:{s_lo+1}]")
    A(f"v_mov_b32 v{Pb}, 0"); A(f"v_mov_b32 v{Pb+1}, 0")
    A("s_mov_b64 exec, -1")
    A(f"v_mov_b32 v{X}, v{Pb}"); A(f"v_mov_b32 v{X+1}, v{Pb+1}")
    for i in range(4): A(f"v_cvt_pk_bf16_f32 v{vP+i}, v{vS+2*i}, v{vS+2*i+1}")
    A(f"v_permlane16_swap_b32 v{Pb}, v{X}")
    A(f"v_permlane16_swap_b32 v{Pb+1}, v{X+1}")
    for nt in range(2):
        d = vUm + 4 * nt
        A(f"v_cvt_pk_bf16_f32 v{vUb+8*nt+5}, v{d}, v{d+1}"); A(f"v_cvt_pk_bf16_f32 v{vUb+8*nt+7}, v{d+2}, v{d+3}")
    for i, src in enumerate((Pb, Pb + 1, X, X + 1)):
        A(f"v_mov_b32_dpp v{vP+i}, v{src} row_shr:8 row_mask:0xf bank_mask:0xc")
    d = vUm + 8
    A(f"v_cvt_pk_bf16_f32 v{vUb+21}, v{d}, v{d+1}"); A(f"v_cvt_pk_bf16_f32 v{vUb+23}, v{d+2}, v{d+3}")
    PA = f"v[{vP}:{vP+3}]"
    lr = acc2 + 16
    def fin_mf(nt):
        d = acc2 + 4 * nt
        return f"v_smfmac_f32_16x16x64_bf16 v[{d}:{d+3}], {PA}, v[{vUb+8*nt}:{vUb+8*nt+7}], v{v_idx}"
    A(f"v_smfmac_f32_16x16x64_bf16 v[{lr}:{lr+3}], {PA}, v[{vOne}:{vOne+7}], v{v_idx}")
    d = vUm + 12
    A(f"v_cvt_pk_bf16_f32 v{vUb+29}, v{d}, v{d+1}"); A(f"v_cvt_pk_bf16_f32 v{vUb+31}, v{d+2}, v{d+3}")
    for nt in range(4): A(fin_mf(nt))
    A("s_nop 1")
    lt = vS
    for r in range(4): A(f"v_mov_b32 v{lt+r}, v{lr+r}")
    h0 = halves(acc2, acc2 + 4)
    A(h0[0])
    for r in range(4): A(f"v_permlane32_swap_b32 v{lr+r}, v{lt+r}")
    A(pkadd(lr, lr, lt)); A(pkadd(lr + 2, lr + 2, lt + 2))
    for r in range(4): A(f"v_rcp_f32 v{lr+r}, v{lr+r}")
    for o in h0[1:]: A(o)
    for st in range(2):
        d0 = acc2 + 8 * st
        if st == 1:
            for o in halves(d0, d0 + 4): A(o)
        A(pkmul(d0, d0, lr)); A(pkmul(d0 + 2, d0 + 2, lr + 2))
        for r in range(4): A(f"ds_write_b32 v{v_w2}, v{d0+r} offset:{r*32+st*1280}")
    A(f"s_add_u32 s{s_k}, s{s_k}, 262144")
    A(f"s_add_u32 s{s_v}, s{s_v}, 262144")
    A("s_waitcnt lgkmcnt(0)")
    A("s_barrier")
    for p in range(4):
        A(f"ds_read_b64 v[{vB+2*p}:{vB+2*p+1}], v{v_r2} offset:{p*2560}")
    A("s_mov_b32 s96, 0x11111111"); A("s_mov_b32 s97, 0x11111111")
    A("s_waitcnt lgkmcnt(2)")
    A(pkadd(vB, vB, vB + 2))
    A("s_waitcnt lgkmcnt(0)")
    A(pkadd(vB + 4, vB + 4, vB + 6))
    A(pkadd(vB, vB, vB + 4))
    A(f"v_cvt_pk_bf16_f32 v{vB+8}, v{vB}, v{vB+1}")
    A(f"v_min_u32 v{vB+8}, -2, v{vB+8}")
    A("s_nop 1")
    A(f"v_mov_b32_dpp v{vB+9}, v{vB+8} quad_perm:[1,1,1,1] row_mask:0xf bank_mask:0xf")
    A(f"v_mov_b32_dpp v{vB+10}, v{vB+8} quad_perm:[2,2,2,2] row_mask:0xf bank_mask:0xf")
    A(f"v_mov_b32_dpp v{vB+11}, v{vB+8} quad_perm:[3,3,3,3] row_mask:0xf bank_mask:0xf")
    A("s_mov_b64 exec, s[96:97]")
    A(f"buffer_store_dwordx4 v[{vB+8}:{vB+11}], v{v_l4}, {WS}, s{s_partdst} offen sc1")
    A("s_mov_b64 exec, -1")
    stamp_t(3)
    mf, cv = utok_ops()
    side = []
    if vpos == 1: A("s_waitcnt vmcnt(1)")
    if engine:
        A(f"v_readfirstlane_b32 s{t0}, v{vCnt}")
        A(f"s_cmp_ge_u32 s{t0}, s89")
        A(f"s_cbranch_scc1 {L('kvn_ok')}")
        cntwait('kvn', s_cnt, "s89")
        A(f"s_add_u32 s{t0}, s{s_step}, 3")
        A(f"s_min_u32 s{t0}, s{t0}, 63")
        A(f"s_lshr_b32 s{t1}, s{t0}, 3")
        A(f"s_add_u32 s{t1}, s{t1}, {C_KV}")
        A(f"s_lshr_b32 s{t0}, s{t0}, 2")
        A(f"s_add_u32 s{t2}, s{t0}, {C_KVG}")
        A(f"s_cmp_lt_u32 s{t0}, 4")
        A(f"s_cselect_b32 s89, 64, 32")
        A(f"s_cselect_b32 s{t0}, s{t2}, s{t1}")
        A(f"s_lshl_b32 s{t0}, s{t0}, 7")
        A(f"s_add_u32 s{s_cnt}, s{t0}, {WS_CNT}")
        A(f"s_bitcmp1_b32 s{s_wave}, 0")
        A(f"s_cbranch_scc0 {L('nowt')}")
        A(f"v_mov_b32 v{vTch}, v{vPub}"); A(f"v_mov_b32 v{vTch+1}, v{vPub+1}")
        A(f"v_mov_b32_dpp v{vTch+2}, v{vPub} quad_perm:[1,1,3,3] row_mask:0xf bank_mask:0xf")
        A(f"v_mov_b32_dpp v{vTch+3}, v{vPub+1} quad_perm:[1,1,3,3] row_mask:0xf bank_mask:0xf")
        A("s_mov_b32 exec_lo, 0x55555555"); A("s_mov_b32 exec_hi, 0x55555555")
        A(f"buffer_store_dwordx4 v[{vTch}:{vTch+3}], v{v_d1}, {WS}, s{s_lastq} offen sc1")
        A("s_mov_b64 exec, -1")
        A.label(L('nowt'))
    if not nokv: side += kvload(vK, s_k)
    if not notouch:
        side.append(f"buffer_load_dwordx4 v[{vTch}:{vTch+3}], v{v_l16}, {WS}, s{s_touch} offen sc1")
        side.append(f"buffer_load_dwordx4 v[{vTch}:{vTch+3}], v{v_l16}, {WS}, s{s_touch2} offen sc1")
    if engine: side.append(f"buffer_load_dword v{vCnt}, v{v_zero}, {WS}, s{s_cnt} offen sc1")
    interleave(A, mf[:nW], side, per=1)
    if dlyB: A(f"s_sleep {dlyB}")
    stamp_t(6)
    def pbloads():
        for q in range(8):
            sb = s_partsrc if q < 4 else s_partsrc2
            A(f"buffer_load_dword v{vB+q}, v{v_l4}, {WS}, s{sb} offen offset:{(q%4)*1024} sc1")
    pbloads()
    A(f"s_mov_b32 s{s_pc}, {POLLMAX}")
    side = [f"v_mov_b32 v{acc1+r}, 0" for r in range(24)]
    side += [f"s_add_u32 s{r}, s{r}, {CH_STEP}" for r in (s_memsrc, s_qkvdst, s_qkvsrc, s_partdst, s_touch2)]
    side += [f"s_add_u32 s{s_touch}, s{s_touch}, 262144", f"s_add_u32 s{s_step}, s{s_step}, 1"]
    interleave(A, mf[nW:], side, per=2)
    A("s_nop 3")
    for o in cv: A(o)
    A(f"s_branch {L('pb1')}")
    A.label(L('pb'))
    pbloads()
    tmo('pb')
    A.label(L('pb1'))
    A("s_waitcnt vmcnt(0)")
    for o in checkops(range(vB, vB + 8), L('pb'), v_t): A(o)
    stamp_t(4)
    e = vS + 8
    x0 = vP
    for q in range(0, 8, 2):
        tgt = x0 + q
        A(f"v_lshlrev_b32 v{tgt}, 16, v{vB+q}"); A(f"v_and_b32 v{tgt+1}, s{s_msk}, v{vB+q}")
        A(f"v_lshlrev_b32 v{e}, 16, v{vB+q+1}"); A(f"v_and_b32 v{e+1}, s{s_msk}, v{vB+q+1}")
        A(pkadd(tgt, tgt, e))
    A(pkadd(x0, x0, x0 + 2)); A(pkadd(x0 + 4, x0 + 4, x0 + 6)); A(pkadd(x0, x0, x0 + 4))
    A(f"v_cvt_pk_bf16_f32 v{vPub+2}, v{x0}, v{x0+1}")
    A(f"v_min_u32 v{vPub+2}, -2, v{vPub+2}")
    A(f"buffer_store_dword v{vPub+2}, v{v_l4}, {WS}, s{s_memdst} offen")
    if dlyC: A(f"s_sleep {dlyC}")
    for ks in range(4): A(cload(ks))
    A(f"s_mov_b32 s{s_lastm}, s{s_memdst}")
    for r in (s_partsrc, s_partsrc2, s_memdst): A(f"s_add_u32 s{r}, s{r}, {CH_STEP}")
    A(f"s_mov_b32 s{s_pc}, {POLLMAX}")
    stamp_t(5)
    A(f"s_branch {L('loop')}")
    A.label(L('bail'))
    A(f"""
    v_mov_b32 v{v_t}, 48
    v_mov_b32 v{v_t+1}, 1
    s_mov_b64 exec, 1
    buffer_atomic_add v{v_t+1}, v{v_t}, {DBG}, 0 offen
    s_mov_b64 exec, -1
    """)
    A(f"s_branch {L('end')}")
    A.label(L('fin'))
    if engine:
        A(f"buffer_store_dwordx2 v[{vPub}:{vPub+1}], v{v_d1}, {WS}, s{s_lastq} offen sc1")
        A("s_barrier")
        A.label(L('fin2'))
    if stamp:
        A(f"s_load_dwordx2 s[4:5], s[0:1], {KA_WS if engine else 80}")
        A("s_memrealtime s[72:73]")
        A("s_waitcnt lgkmcnt(0)")
        make_srd(A, 24, 4, WS_SIZE if engine else 1 << 20)
        A("s_sub_u32 s87, s72, s78")
        if engine: A("s_mov_b32 s86, s78"); A("s_mov_b32 s85, s75"); A("s_mov_b32 s84, s3")
        A("s_waitcnt vmcnt(0)")
        for k in range(8): A(f"v_mov_b32 v{vA+k}, s{80+k}")
        A(f"""
        s_lshl_b32 s{t0}, s{s_role}, 7
        s_lshl_b32 s{t1}, s{s_wave}, 5
        s_add_u32 s{t0}, s{t0}, s{t1}
        s_lshl_b32 s{t1}, s{t0}, 3
        s_add_u32 s{t1}, s{t1}, {65536 + (WS_DUMMY + 0x80000 if engine else 0)}
        s_add_u32 s{t0}, s{t0}, {WS_DUMMY + 0x80000 if engine else 0}
        buffer_store_dword v255, v{v_l4}, s[24:27], s{t1} offen
        v_mov_b32 v{v_t}, 0
        s_mov_b64 exec, 1
        buffer_store_dwordx4 v[{vA}:{vA+3}], v{v_t}, s[24:27], s{t0} offen
        buffer_store_dwordx4 v[{vA+4}:{vA+7}], v{v_t}, s[24:27], s{t0} offen offset:16
        """)
    if clk:
        A("s_mov_b64 exec, -1")
        A(f"s_lshl_b32 s{t0}, s{s_role}, 2"); A(f"s_add_u32 s{t0}, s{t0}, s{s_wave}"); A(f"s_lshl_b32 s{t0}, s{t0}, 9")
        A(f"s_add_u32 s{t0}, s{t0}, {WS_DUMMY + 0x80000}")
        A(f"buffer_store_dword v255, v{v_l4}, {WS}, s{t0} offen"); A(f"buffer_store_dword v1, v{v_l4}, {WS}, s{t0} offen offset:256")
    if engine:
        A("s_mov_b64 exec, -1")
        A(f"s_add_u32 s14, s{s_role}, 128")
        A("s_mov_b32 s81, 0")
        A(f"s_branch {L('wentry')}")
    A.label(L('end'))
    A("s_endpgm")
    if after: after(A, L)
    return dict(lds=24576 + 4 * 32768)

if __name__ == "__main__":
    A = Asm()
    A.raw('.amdgcn_target "amdgcn-amd-amdhsa--gfx950"')
    hdr = []
    var = [dict(stamp=True, nW=32), dict(stamp=True, nW=24), dict(stamp=True, nW=32, dlyC=3), dict(stamp=True, nW=32, dlyC=5), dict(stamp=True, nW=32, dlyA=2, dlyC=3), dict(stamp=True, nW=32, dlyA=3, dlyC=4),
           dict(stamp=True, nW=32, dlyB=2, dlyC=3), dict(stamp=True, nW=28, dlyA=2, dlyC=4), dict(stamp=True, rounds=True, nW=32, dlyA=2, dlyC=3)]
    for i, d in enumerate(var):
        n = f"chain{i}_kernel"
        r = gen_chain(A, n, **d)
        hdr.append(f"; @launch kernel={n} grid=(256,1,1) block=(256,1,1) lds={r['lds']}")
    for i in range(len(var)):
        kernel_desc(A, f"chain{i}_kernel", 512, 102, accum=256)
    open("chain.s", "w").write("\n".join(hdr) + "\n" + A.text())
```

```python
from asmlib import *
from layout import *
from gemm import Gemm
from k_misc import ln_row, ln_core, f2u, SC

T_END, T_KVS, T_KVL, T_QA, T_WO, T_LN, T_F1, T_F2, T_QO, T_AT, T_WOS, T_LNR, T_F1S, T_F2S, T_FIN = range(15)
S_A, S_B, S_DONE = 10, 11, 98
WS = "s[16:19]"

def depwait(A, L, tag):
    A(f"""
    s_bitcmp1_b32 s8, 31
    s_cbranch_scc0 {L(tag+'_dw2')}
    s_cmp_lg_u32 s13, 0
    s_cbranch_scc1 {L(tag+'_dw1')}
    s_mov_b32 s52, {WS_RDY}
    s_bfe_u32 s53, s8, 0x50018
    s_mov_b32 s54, {1 << 20}
    v_mov_b32 v1, 0
    {L(tag+'_dw0')}:
    buffer_load_dword v3, v1, {WS}, s52 offen sc1
    s_sub_u32 s54, s54, 1
    s_cbranch_scc1 {L('end')}
    s_waitcnt vmcnt(0)
    v_readfirstlane_b32 s55, v3
    s_bitcmp1_b32 s55, s53
    s_cbranch_scc1 {L(tag+'_dw1')}
    s_sleep 2
    s_branch {L(tag+'_dw0')}
    {L(tag+'_dw1')}:
    s_barrier
    {L(tag+'_dw2')}:
    """)

def store_frag(A, g, base, s_seg0head, sc1=True):
    t = g.v_wa[0]; cnt = 0
    sc = " sc1" if sc1 else ""
    for n in range(g.nt):
        for p in range(g.mt // 2):
            d = t + 4 * (cnt % (g.mh * 2))
            a0 = g.fetch(2 * p, n, g.v_xb[0] + 8 * (cnt % 2)); a1 = g.fetch(2 * p + 1, n, g.v_xb[0] + 8 * (cnt % 2) + 4); cnt += 1
            A(f"v_cvt_pk_bf16_f32 v{d}, v{a0}, v{a0+1}"); A(f"v_cvt_pk_bf16_f32 v{d+1}, v{a0+2}, v{a0+3}")
            A(f"v_cvt_pk_bf16_f32 v{d+2}, v{a1}, v{a1+1}"); A(f"v_cvt_pk_bf16_f32 v{d+3}, v{a1+2}, v{a1+3}")
            A(f"buffer_store_dwordx4 v[{d}:{d+3}], v3, {WS}, s26 offen offset:{1024*p}{sc}")
        A(f"s_add_u32 s26, s26, {4096 if n % 2 == 0 else 32*8192 - 4096}")

def body_kv(A, L, tag, BM, BN, NS):
    ncb = 4096 // BN
    A(f"""
    s_cmp_ge_u32 s{S_B}, {ncb}
    s_cselect_b32 s4, s64, s62
    s_cselect_b32 s5, s65, s63
    s_cmp_ge_u32 s{S_B}, {2*ncb}
    s_cselect_b32 s4, s60, s4
    s_cselect_b32 s5, s61, s5
    s_mov_b32 s29, {WS_VT}
    s_cselect_b32 s29, {WS_Q}, s29
    """)
    make_srd(A, 20, 4, 1024 * 4096 * 2)
    per = (BM // 32) * CH_STEP // (2 * ncb)
    A(f"s_cmp_ge_u32 s{S_B}, {2*ncb}")
    A(f"s_cbranch_scc1 {L(tag+'_na')}")
    if BM == 128: A(f"s_branch {L(tag+'_na')}")
    A(f"s_mul_i32 s24, s{S_A}, {(BM//32)*CH_STEP}")
    A(f"s_mul_i32 s25, s{S_B}, {per}")
    A(f"s_add_u32 s24, s24, s25")
    A(f"s_add_u32 s24, s24, {WS_CH}")
    A("v_lshlrev_b32 v3, 4, v0")
    for r in range(4, 8): A(f"v_mov_b32 v{r}, -1")
    A(f"s_mov_b32 s25, {per // 4096}")
    A.label(L(tag + '_al'))
    A(f"buffer_store_dwordx4 v[4:7], v3, {WS}, s24 offen sc1")
    A("s_add_u32 s24, s24, 4096"); A("s_sub_u32 s25, s25, 1"); A("s_cmp_lg_u32 s25, 0")
    A(f"s_cbranch_scc1 {L(tag+'_al')}")
    A.label(L(tag + '_na'))
    A(f"""
    s_mul_i32 s24, s{S_A}, {BM*2048}
    s_add_u32 s24, s24, {WS_XN}
    s_and_b32 s12, s{S_B}, {ncb-1}
    s_mul_i32 s25, s12, {BN*2}
    s_cmp_ge_u32 s{S_B}, {ncb}
    s_cbranch_scc1 {L(tag+'_v')}
    s_mov_b32 s29, {WS_K}
    """)
    g = Gemm(A, tag, BM, BN, 2, 2, NS, 1024, 2048, 8192, vbase=4, sbase=30, agpr=True, spread=2, xsc1=True)
    g.setup(13, 2, 1)
    A(f"s_branch {L(tag+'_m')}")
    A.label(L(tag + '_v'))
    g.setup(13, 2, 0, nat_as_perm=True)
    A.label(L(tag + '_m'))
    g.mainloop(1, 16, 20, 24, 25)
    A(f"""
    v_lshlrev_b32 v3, 4, v2
    s_mul_i32 s26, s{S_A}, {BM//32}
    s_mul_i32 s27, s{g.s_wm}, {g.TM//32}
    s_add_u32 s26, s26, s27
    s_lshl_b32 s26, s26, 18
    s_mul_i32 s27, s12, {BN}
    s_mul_i32 s28, s{g.s_wn}, {g.TN}
    s_add_u32 s27, s27, s28
    s_lshr_b32 s28, s27, 7
    s_lshl_b32 s28, s28, 13
    s_add_u32 s26, s26, s28
    s_and_b32 s27, s27, 127
    s_lshl_b32 s27, s27, 5
    s_add_u32 s26, s26, s27
    s_add_u32 s26, s26, s29
    s_nop 3
    """)
    store_frag(A, g, 0, 26)
    A(f"s_branch {L('done')}")
    return g.lds_bytes

def attention(A, g, Qb, vK, vR, free, lds_v, s_out, vl, sc1=True):
    S = free; P = free + 24; O = free + 40; F = free + 56
    vtrv, vtrm, off = lds_v
    for n in range(2):
        for ks in range(4):
            for t in range(3):
                d = S + 12 * n + 4 * t
                Aop = f"v[{vR+4*ks}:{vR+4*ks+3}]" if t == 2 else f"v[{vK+(t*4+ks)*4}:{vK+(t*4+ks)*4+3}]"
                q = Qb + (n * 4 + ks) * 4
                C = "0" if ks == 0 else f"v[{d}:{d+3}]"
                A(f"v_mfma_f32_16x16x32_bf16 v[{d}:{d+3}], {Aop}, v[{q}:{q+3}], {C}")
    A("s_nop 7")
    mx, tt, sm = vl['t'], vl['t'] + 1, vl['t'] + 2
    for n in range(2):
        s_ = S + 12 * n
        for o in range(8):
            A(f"v_cmp_gt_i32 vcc, {o - 16*n}, v{vl['thr']}")
            A("s_nop 1")
            A(f"v_cndmask_b32 v{s_+o}, v{s_+o}, v{vl['ninf']}, vcc")
        A(f"""
        v_max3_f32 v{mx}, v{s_}, v{s_+1}, v{s_+2}
        v_max3_f32 v{mx}, v{mx}, v{s_+3}, v{s_+4}
        v_max3_f32 v{mx}, v{mx}, v{s_+5}, v{s_+6}
        v_max_f32 v{mx}, v{mx}, v{s_+7}
        s_mov_b64 exec, s[36:37]
        v_max3_f32 v{mx}, v{mx}, v{s_+8}, v{s_+9}
        v_max3_f32 v{mx}, v{mx}, v{s_+10}, v{s_+11}
        s_mov_b64 exec, -1
        v_mov_b32 v{tt}, v{mx}
        s_nop 1
        v_permlane32_swap_b32 v{mx}, v{tt}
        v_max_f32 v{mx}, v{mx}, v{tt}
        v_mov_b32 v{tt}, v{mx}
        s_nop 1
        v_permlane16_swap_b32 v{mx}, v{tt}
        v_max_f32 v{mx}, v{mx}, v{tt}
        """)
        for i in range(12): A(f"v_sub_f32 v{s_+i}, v{s_+i}, v{mx}")
        for i in range(12): A(f"v_mul_f32 v{s_+i}, s34, v{s_+i}")
        for i in range(12): A(f"v_exp_f32 v{s_+i}, v{s_+i}")
        A("s_mov_b64 exec, s[38:39]")
        for i in range(4): A(f"v_mov_b32 v{s_+8+i}, 0")
        A("s_mov_b64 exec, -1")
        A(f"v_add_f32 v{sm}, v{s_}, v{s_+1}")
        for i in range(2, 12): A(f"v_add_f32 v{sm}, v{sm}, v{s_+i}")
        for sw in ("v_permlane32_swap_b32", "v_permlane16_swap_b32"):
            A(f"v_mov_b32 v{tt}, v{sm}"); A("s_nop 1"); A(f"{sw} v{sm}, v{tt}"); A(f"v_add_f32 v{sm}, v{sm}, v{tt}")
        A(f"v_rcp_f32 v{sm}, v{sm}")
        A("s_nop 0")
        for i in range(12): A(f"v_mul_f32 v{s_+i}, v{s_+i}, v{sm}")
        for i in range(6): A(f"v_cvt_pk_bf16_f32 v{P+8*n+i}, v{s_+2*i}, v{s_+2*i+1}")
    A(f"s_waitcnt vmcnt({vl['vwait']})")
    sc = " sc1" if sc1 else ""
    for p in range(4):
        for t in range(2):
            for u in range(2):
                A(f"ds_read_b64_tr_b16 v[{F+4*t+2*u}:{F+4*t+2*u+1}], v{vtrv} offset:{off + p*1024 + 8*t + 64*u}")
            A(f"ds_read_b64_tr_b16 v[{F+8+2*t}:{F+8+2*t+1}], v{vtrm} offset:{off + p*64 + 8*t}")
        A("s_waitcnt lgkmcnt(0)")
        for n in range(2):
            for t in range(2):
                d = O + (n * 2 + t) * 4
                A(f"v_mfma_f32_16x16x32_bf16 v[{d}:{d+3}], v[{F+4*t}:{F+4*t+3}], v[{P+8*n}:{P+8*n+3}], 0")
        A("s_nop 3")
        for n in range(2):
            for t in range(2):
                d = O + (n * 2 + t) * 4
                A(f"v_mfma_f32_16x16x16_bf16 v[{d}:{d+3}], v[{F+8+2*t}:{F+8+2*t+1}], v[{P+8*n+4}:{P+8*n+5}], v[{d}:{d+3}]")
        A("s_nop 7")
        for n in range(2):
            d = S + 8 * (p & 1) + 4 * n
            a0 = O + n * 8; a1 = a0 + 4
            A(f"v_cvt_pk_bf16_f32 v{d}, v{a0}, v{a0+1}"); A(f"v_cvt_pk_bf16_f32 v{d+1}, v{a0+2}, v{a0+3}")
            A(f"v_cvt_pk_bf16_f32 v{d+2}, v{a1}, v{a1+1}"); A(f"v_cvt_pk_bf16_f32 v{d+3}, v{a1+2}, v{a1+3}")
            A(f"buffer_store_dwordx4 v[{d}:{d+3}], v{vl['o']}, {WS}, s{s_out + n} offen offset:{64*p}{sc}")

def chain_wait(A, L, tag, nseg, vR, vK, tmp, vl16, vl16b, vt, psleep=12, CS=CH_STEP, KS_=262144):
    A(f"s_add_u32 s33, s30, {(nseg-1)*CS + 7168}")
    A(f"s_mov_b32 s35, {1 << 19}")
    A.label(L(tag + '_w1'))
    A(f"buffer_load_dwordx4 v[{tmp}:{tmp+3}], v{vl16}, {WS}, s33 offen sc1")
    A("s_sub_u32 s35, s35, 1")
    A(f"s_cbranch_scc1 {L('end')}")
    A("s_waitcnt vmcnt(0)")
    A(f"v_cmp_eq_u32 vcc, -1, v{tmp+3}")
    A(f"s_cbranch_vccz {L(tag+'_w2')}")
    A(f"s_sleep {psleep}")
    A(f"s_branch {L(tag+'_w1')}")
    A.label(L(tag + '_w2'))
    for sg in range(nseg):
        A(f"s_add_u32 s33, s30, {sg*CS}")
        for i in range(4):
            A(f"buffer_load_dwordx4 v[{vR[sg]+4*i}:{vR[sg]+4*i+3}], v{vl16}, {WS}, s33 offen offset:{i*1024} sc1")
        for i in range(2):
            A(f"buffer_load_dwordx4 v[{tmp+8*sg+4*i}:{tmp+8*sg+4*i+3}], v{vl16b}, {WS}, s33 offen offset:{2048+i*1024} sc1")
    A("s_sub_u32 s35, s35, 1")
    A(f"s_cbranch_scc1 {L('end')}")
    A("s_waitcnt vmcnt(0)")
    rr = [vR[sg] + i for sg in range(nseg) for i in range(16)]
    A(f"v_max3_u32 v{vt}, v{rr[0]}, v{rr[1]}, v{rr[2]}")
    for i in range(3, len(rr) - 1, 2): A(f"v_max3_u32 v{vt}, v{vt}, v{rr[i]}, v{rr[i+1]}")
    A(f"v_max_u32 v{vt}, v{vt}, v{rr[-1]}")
    A("s_mov_b32 exec_lo, 0x00ff00ff"); A("s_mov_b32 exec_hi, 0x00ff00ff")
    A(f"v_mov_b32 v{vt}, 0")
    A("s_mov_b64 exec, -1")
    for i in range(0, 8 * nseg, 2): A(f"v_max3_u32 v{vt}, v{vt}, v{tmp+i}, v{tmp+i+1}")
    A(f"v_cmp_eq_u32 vcc, -1, v{vt}")
    A(f"s_cbranch_vccnz {L(tag+'_w2')}")
    for sg in range(nseg):
        A(f"s_add_u32 s32, s28, {sg*KS_}")
        for i in range(8):
            A(f"buffer_load_dwordx4 v[{vK[sg]+4*i}:{vK[sg]+4*i+3}], v{vl16 if i < 4 else vl16b}, {WS}, s32 offen offset:{(i%4)*1024} sc1")

def att_setup(A, vt, vtrv, vtrm, vthr, vo_, vninf):
    n_, g_ = vt, vt + 1
    A(f"""
    v_and_b32 v{n_}, 15, v2
    v_lshrrev_b32 v{g_}, 4, v2
    v_lshrrev_b32 v{vt+2}, 1, v{g_}
    v_lshlrev_b32 v{vtrv}, 12, v{vt+2}
    v_and_b32 v{vt+2}, 3, v{n_}
    v_lshl_add_u32 v{vtrv}, v{vt+2}, 8, v{vtrv}
    v_and_b32 v{vt+3}, 1, v{g_}
    v_lshl_add_u32 v{vtrv}, v{vt+3}, 7, v{vtrv}
    v_lshrrev_b32 v{vt+4}, 2, v{n_}
    v_lshl_add_u32 v{vtrv}, v{vt+4}, 4, v{vtrv}
    v_add_u32 v{vtrv}, s31, v{vtrv}
    v_lshl_add_u32 v{vtrm}, v{vt+3}, 2, v{vt+4}
    v_lshlrev_b32 v{vtrm}, 8, v{vtrm}
    v_lshl_add_u32 v{vtrm}, v{vt+2}, 4, v{vtrm}
    v_add_u32 v{vtrm}, s31, v{vtrm}
    v_add_u32 v{vtrm}, 0x2000, v{vtrm}
    v_lshlrev_b32 v{vt+2}, 3, v{g_}
    v_sub_u32 v{vthr}, v{n_}, v{vt+2}
    v_lshlrev_b32 v{vo_}, 13, v{n_}
    v_lshl_add_u32 v{vo_}, v{g_}, 4, v{vo_}
    v_mov_b32 v{vninf}, 0xff800000
    s_lshl_b32 s32, s26, 18
    s_lshl_b32 s33, s{S_B}, 8
    s_add_u32 s32, s32, s33
    s_add_u32 s32, s32, {WS_O}
    s_add_u32 s33, s32, {16*8192}
    """)

def body_qa(A, L, tag, BM=256, NS=3):
    nseg = BM // 128
    make_srd(A, 20, 60, 1024 * 4096 * 2)
    A(f"""
    s_mul_i32 s24, s{S_A}, {BM*2048}
    s_add_u32 s24, s24, {WS_XN}
    s_lshl_b32 s25, s{S_B}, 8
    """)
    g = Gemm(A, tag, BM, 128, 4, 1, NS, 1024, 2048, 8192, vbase=4, sbase=40, agpr=True, spread=2)
    g.setup(13, 2, 0)
    b0 = (g.v_end + 3) // 4 * 4
    vK = [b0 + 48 * i for i in range(nseg)]; vR = [v + 32 for v in vK]
    m0 = b0 + 48 * nseg
    vl16, vl16b, vtrv, vtrm, vthr, vo_, vninf, vt = m0, m0 + 1, m0 + 2, m0 + 3, m0 + 4, m0 + 5, m0 + 6, m0 + 7
    Qb = (m0 + 12 + 3) // 4 * 4
    assert Qb + 32 <= 256
    free = g.v_wa[0]; assert g.v_xr - free >= 64 or True
    A(f"""
    v_lshlrev_b32 v{vl16}, 4, v2
    v_add_u32 v{vl16b}, 0x1000, v{vl16}
    s_mul_i32 s26, s{S_A}, {BM//32}
    s_mul_i32 s27, s13, {nseg}
    s_add_u32 s26, s26, s27
    s_lshl_b32 s27, s26, 5
    s_add_u32 s27, s27, s{S_B}
    s_lshl_b32 s27, s27, 13
    s_add_u32 s28, s27, {WS_K}
    s_add_u32 s29, s27, {WS_VT}
    s_lshl_b32 s30, s26, 19
    s_lshl_b32 s31, s{S_B}, 13
    s_add_u32 s30, s30, s31
    s_add_u32 s30, s30, {WS_CH + CH_QKV}
    s_mov_b32 s34, {f2u(SC):#x}
    s_mov_b32 s36, 0
    s_mov_b32 s37, -1
    s_mov_b32 s38, -1
    s_mov_b32 s39, 0
    """)
    chain_wait(A, L, tag, nseg, vR, vK, Qb, vl16, vl16b, vt)
    g.mainloop(0, 16, 20, 24, 25)
    A("s_barrier")
    A(f"s_mul_i32 s31, s13, {10240*nseg}")
    for sg in range(nseg):
        for i in range(10):
            A(f"s_add_u32 m0, s31, {sg*10240 + i*1024}")
            if i < 8: A(f"s_add_u32 s35, s29, {sg*262144 + i*1024}")
            else:     A(f"s_add_u32 s35, s30, {sg*CH_STEP + 6144 + (i-8)*1024}")
            A(f"buffer_load_dwordx4 v{vl16}, {WS}, s35 offen sc1 lds")
    att_setup(A, vt, vtrv, vtrm, vthr, vo_, vninf)
    fr = 4
    assert b0 - fr >= 72, (b0,)
    for sg in range(nseg):
        for n in range(2):
            for ks in range(4):
                d = Qb + (n * 4 + ks) * 4
                a0 = g.fetch(2 * ks, 2 * sg + n, fr); a1 = g.fetch(2 * ks + 1, 2 * sg + n, fr + 4)
                A(f"v_cvt_pk_bf16_f32 v{d}, v{a0}, v{a0+1}"); A(f"v_cvt_pk_bf16_f32 v{d+1}, v{a0+2}, v{a0+3}")
                A(f"v_cvt_pk_bf16_f32 v{d+2}, v{a1}, v{a1+1}"); A(f"v_cvt_pk_bf16_f32 v{d+3}, v{a1+2}, v{a1+3}")
        A("s_nop 1")
        vw = 10 * (nseg - 1) if sg == 0 else 8
        attention(A, g, Qb, vK[sg], vR[sg], fr, (vtrv, vtrm, sg * 10240), 32, dict(thr=vthr, o=vo_, ninf=vninf, t=vt, vwait=vw))
        if sg + 1 < nseg:
            A(f"s_add_u32 s32, s32, {32*8192}"); A(f"s_add_u32 s33, s33, {32*8192}")
    A(f"s_branch {L('done')}")
    return g.lds_bytes

def body_res(A, L, tag, ka_w, K, ws_x, res_from_x, to_out, BM=128, BN=128, NS=4):
    A(f"s_load_dwordx2 s[4:5], s[0:1], {ka_w}")
    A(f"s_load_dwordx2 s[6:7], s[0:1], {KA_X if res_from_x else KA_OUT}")
    A("s_waitcnt lgkmcnt(0)")
    make_srd(A, 20, 4, K * 1024 * 2)
    make_srd(A, 24 + 4, 6, 2048 * 2048)
    A(f"""
    s_mul_i32 s24, s{S_A}, {BM*K*2}
    s_add_u32 s24, s24, {ws_x}
    s_mul_i32 s25, s{S_B}, {BN*2}
    """)
    g = Gemm(A, tag, BM, BN, 2, 2, NS, K, K * 2, 2048, vbase=4, sbase=40, kperm=True, spread=min(2, 2), xsc1=True)
    g.setup(13, 2, 0)
    vr_, vs_ = g.v_end, g.v_end + 1
    R = (g.v_end + 3) // 2 * 2
    npair = g.mt // 2
    A(f"""
    v_and_b32 v3, 15, v2
    v_lshlrev_b32 v3, 11, v3
    v_lshrrev_b32 v{vs_}, 4, v2
    v_lshl_add_u32 v{vr_}, v{vs_}, 3, v3
    v_lshl_add_u32 v{vs_}, v{vs_}, 4, v3
    s_mul_i32 s26, s{S_A}, {BM}
    s_mul_i32 s27, s{g.s_wm}, {g.TM}
    s_add_u32 s26, s26, s27
    s_lshl_b32 s26, s26, 11
    s_add_u32 s26, s26, s25
    s_mul_i32 s27, s{g.s_wn}, {g.TN*2}
    s_add_u32 s26, s26, s27
    s_add_u32 s27, s26, {WS_H}
    """)
    rs, rb_ = ("s[28:31]", 26) if res_from_x else (WS, 27)
    rsc = "" if res_from_x else " sc1"
    for n in range(g.nt):
        A(f"s_add_u32 s32, s{rb_}, {n*16*2048}")
        for m in range(g.mt):
            r = R + (n * g.mt + m) * 2
            A(f"buffer_load_dwordx2 v[{r}:{r+1}], v{vr_}, {rs}, s32 offen offset:{m*32}{rsc}")
    g.mainloop(0, 16, 20, 24, 25)
    A("s_nop 7")
    t_ = g.v_wa[0]
    os_, ob_ = ("s[28:31]", 26) if to_out else (WS, 27)
    osc = "" if to_out else " sc1"
    cnt = 0
    for n in range(g.nt):
        A(f"s_add_u32 s32, s{ob_}, {n*16*2048}")
        for p in range(npair):
            d = t_ + 8 * (cnt % 2); cnt += 1
            for t in range(2):
                a = g.acc(2 * p + t, n)
                for h in range(2):
                    rr = R + (n * g.mt + 2 * p + t) * 2 + h
                    A(f"v_cvt_pk_bf16_f32 v{d+4}, v{a+2*h}, v{a+2*h+1}")
                    A(f"v_lshlrev_b32 v{d+5}, 16, v{d+4}")
                    A(f"v_and_b32 v{d+4}, 0xffff0000, v{d+4}")
                    A(f"v_lshlrev_b32 v{d+6}, 16, v{rr}")
                    A(f"v_and_b32 v{d+7}, 0xffff0000, v{rr}")
                    A(f"v_add_f32 v{d+5}, v{d+5}, v{d+6}")
                    A(f"v_add_f32 v{d+4}, v{d+4}, v{d+7}")
                    A(f"v_cvt_pk_bf16_f32 v{d+2*t+h}, v{d+5}, v{d+4}")
            A("s_nop 1")
            A(f"v_permlane32_swap_b32 v{d}, v{d+2}"); A(f"v_permlane32_swap_b32 v{d+1}, v{d+3}")
            A("s_nop 1")
            A(f"v_permlane16_swap_b32 v{d}, v{d+2}"); A(f"v_permlane16_swap_b32 v{d+1}, v{d+3}")
            A(f"buffer_store_dwordx4 v[{d}:{d+3}], v{vs_}, {os_}, s32 offen offset:{64*p}{osc}")
    A(f"s_branch {L('done')}")
    assert R + g.nt * g.mt * 2 <= 256
    return g.lds_bytes

def silu_store(A, g, t_):
    cnt = 0
    for n in range(g.nt):
        for p in range(g.mt // 2):
            d = t_ + 4 * (cnt % 4); cnt += 1
            e = g.v_xb[0]
            for t in range(2):
                a = g.acc(2 * p + t, n)
                for h in range(2):
                    A(f"v_cvt_pk_bf16_f32 v{e}, v{a+2*h}, v{a+2*h+1}")
                    A(f"v_lshlrev_b32 v{a+2*h}, 16, v{e}")
                    A(f"v_and_b32 v{a+2*h+1}, 0xffff0000, v{e}")
                for r in range(4): A(f"v_mul_f32 v{e+r}, s28, v{a+r}")
                for r in range(4): A(f"v_exp_f32 v{e+r}, v{e+r}")
                A("s_nop 0")
                for r in range(4): A(f"v_add_f32 v{e+r}, 1.0, v{e+r}")
                for r in range(4): A(f"v_rcp_f32 v{e+r}, v{e+r}")
                A("s_nop 0")
                for r in range(4): A(f"v_mul_f32 v{a+r}, v{a+r}, v{e+r}")
                A(f"v_cvt_pk_bf16_f32 v{d+2*t}, v{a}, v{a+1}")
                A(f"v_cvt_pk_bf16_f32 v{d+2*t+1}, v{a+2}, v{a+3}")
            A(f"buffer_store_dwordx4 v[{d}:{d+3}], v3, {WS}, s26 offen offset:{64*p} sc1")
        A(f"s_add_u32 s26, s26, {16*7168}")

def body_f1(A, L, tag, BM=256, BN=128, NS=3):
    A(f"s_cmp_ge_u32 s{S_B}, {3584//BN}")
    A(f"s_cbranch_scc1 {L('skip')}")
    A(f"s_load_dwordx2 s[4:5], s[0:1], {KA_W1}")
    A("s_waitcnt lgkmcnt(0)")
    make_srd(A, 20, 4, 1024 * 3584 * 2)
    A(f"""
    s_mul_i32 s24, s{S_A}, {BM*2048}
    s_add_u32 s24, s24, {WS_HN}
    s_mul_i32 s25, s{S_B}, {BN*2}
    """)
    g = Gemm(A, tag, BM, BN, 2, 2, NS, 1024, 2048, 7168, vbase=4, sbase=40, spread=2, xsc1=True)
    g.setup(13, 2, 0)
    g.mainloop(0, 16, 20, 24, 25, mid=(lambda: depwait(A, L, tag)) if BN == 64 else None)
    t_ = g.v_wa[0]
    A(f"""
    v_and_b32 v3, 15, v2
    v_mul_u32_u24 v3, 7168, v3
    v_lshrrev_b32 v1, 4, v2
    v_lshl_add_u32 v3, v1, 4, v3
    s_mul_i32 s26, s{S_A}, {BM}
    s_mul_i32 s27, s{g.s_wm}, {g.TM}
    s_add_u32 s26, s26, s27
    s_mul_i32 s26, s26, 7168
    s_mul_i32 s27, s{S_B}, {BN*2}
    s_add_u32 s26, s26, s27
    s_mul_i32 s27, s{g.s_wn}, {g.TN*2}
    s_add_u32 s26, s26, s27
    s_add_u32 s26, s26, {WS_F1}
    s_mov_b32 s28, {f2u(-1.4426950408889634):#x}
    s_nop 4
    """)
    silu_store(A, g, t_)
    A(f"s_branch {L('done')}")
    return g.lds_bytes

def body_ln(A, L, tag, rows_per_wave=4):
    A(f"""
    v_lshlrev_b32 v3, 4, v2
    s_mul_i32 s26, s{S_A}, {4*rows_per_wave}
    s_mul_i32 s27, s13, {rows_per_wave}
    s_add_u32 s26, s26, s27
    s_lshl_b32 s26, s26, 11
    s_add_u32 s27, s26, {WS_HN}
    s_add_u32 s26, s26, {WS_H}
    s_mov_b32 s28, {rows_per_wave}
    """)
    A.label(L(tag + '_l'))
    ln_row(A, 16, 26, 16, 27, 3, sc1=True)
    A(f"""
    s_add_u32 s26, s26, 2048
    s_add_u32 s27, s27, 2048
    s_sub_u32 s28, s28, 1
    s_cmp_lg_u32 s28, 0
    s_cbranch_scc1 {L(tag+'_l')}
    s_branch {L('done')}
    """)
    return 0

def body_at(A, L, tag, nh=1):
    vK = [76 + 80 * i for i in range(nh)]; vR = [v + 32 for v in vK]; Qb = [v + 48 for v in vK]
    m0 = 76 + 80 * nh
    tmp = 4
    vl16, vl16b, vtrv, vtrm, vthr, vo_, vninf, vt = m0, m0 + 1, m0 + 2, m0 + 3, m0 + 4, m0 + 5, m0 + 6, m0 + 7
    assert vt + 8 <= 256
    A(f"""
    s_mul_i32 s{S_B}, s{S_B}, {nh}
    v_lshlrev_b32 v{vl16}, 4, v2
    v_add_u32 v{vl16b}, 0x1000, v{vl16}
    s_lshl_b32 s26, s{S_A}, 2
    s_add_u32 s26, s26, s13
    s_lshl_b32 s27, s26, 5
    s_add_u32 s27, s27, s{S_B}
    s_lshl_b32 s27, s27, 13
    s_add_u32 s28, s27, {WS_K}
    s_add_u32 s29, s27, {WS_VT}
    s_add_u32 s27, s27, {WS_Q}
    s_lshl_b32 s30, s26, 19
    s_lshl_b32 s31, s{S_B}, 13
    s_add_u32 s30, s30, s31
    s_add_u32 s30, s30, {WS_CH + CH_QKV}
    s_mov_b32 s34, {f2u(SC):#x}
    s_mov_b32 s36, 0
    s_mov_b32 s37, -1
    s_mov_b32 s38, -1
    s_mov_b32 s39, 0
    s_mul_i32 s31, s13, {10240*nh}
    """)
    for h in range(nh):
        for i in range(8):
            A(f"buffer_load_dwordx4 v[{Qb[h]+4*i}:{Qb[h]+4*i+3}], v{vl16 if i < 4 else vl16b}, {WS}, s27 offen offset:{(i%4)*1024} sc1")
        A("s_add_u32 s27, s27, 8192")
    att_setup(A, vt, vtrv, vtrm, vthr, vo_, vninf)
    chain_wait(A, L, tag, nh, vR, vK, tmp, vl16, vl16b, vt, psleep=2, CS=HB, KS_=8192)
    for h in range(nh):
        for i in range(10):
            A(f"s_add_u32 m0, s31, {h*10240 + i*1024}")
            if i < 8: A(f"s_add_u32 s35, s29, {h*8192 + i*1024}")
            else:     A(f"s_add_u32 s35, s30, {h*HB + 6144 + (i-8)*1024}")
            A(f"buffer_load_dwordx4 v{vl16}, {WS}, s35 offen sc1 lds")
    A(f"""
    s_lshl_b32 s32, s26, 18
    s_lshl_b32 s33, s{S_B}, 8
    s_add_u32 s32, s32, s33
    s_add_u32 s32, s32, {WS_O}
    s_add_u32 s33, s32, {16*8192}
    s_waitcnt vmcnt({10*nh})
    """)
    for h in range(nh):
        vw = 10 * (nh - 1) if h == 0 else 8
        attention(A, None, Qb[h], vK[h], vR[h], 4, (vtrv, vtrm, h * 10240), 32, dict(thr=vthr, o=vo_, ninf=vninf, t=vt, vwait=vw))
        if h + 1 < nh: A("s_add_u32 s32, s32, 256"); A("s_add_u32 s33, s33, 256")
    A(f"s_branch {L('done')}")
    return 40960 * nh

def body_red4(A, L, tag, fin):
    A(f"s_load_dwordx2 s[6:7], s[0:1], {KA_OUT if fin else KA_X}")
    A(f"""
    v_lshlrev_b32 v3, 4, v2
    v_lshlrev_b32 v1, 5, v2
    s_and_b32 s26, s{S_B}, 31
    s_lshr_b32 s35, s{S_B}, 5
    s_lshl_b32 s26, s26, 2
    s_add_u32 s26, s26, s13
    s_lshl_b32 s26, s26, 2
    s_lshl_b32 s27, s{S_A}, 9
    s_add_u32 s27, s27, s26
    s_lshl_b32 s27, s27, 12
    s_add_u32 s27, s27, {WS_P2 if fin else WS_P1}
    s_lshl_b32 s32, s{S_A}, 7
    s_add_u32 s32, s32, s26
    s_lshl_b32 s32, s32, 11
    s_add_u32 s33, s32, {WS_H}
    s_add_u32 s34, s32, {WS_HN}
    s_waitcnt lgkmcnt(0)
    """)
    make_srd(A, 28, 6, 2048 * 2048)
    P = lambda r: 32 + 40 * r
    for r in range(4):
        for i in range(16): A(f"v_mov_b32 v{P(r)+16+i}, 0")
    A("s_cmp_eq_u32 s35, 0")
    A(f"s_cbranch_scc1 {L(tag+'_np')}")
    for r in range(4):
        A(f"s_add_u32 s36, s27, {128*4096 + r*4096}")
        for i in range(4):
            q = P(r) + 16 + 4 * i
            A(f"buffer_load_dwordx4 v[{q}:{q+3}], v1, {WS}, s36 offen offset:{(i>>1)*2048 + (i&1)*16} sc1")
    A.label(L(tag + '_np'))
    for r in range(4):
        A(f"s_add_u32 s36, s27, {r*4096}")
        for i in range(4):
            q = P(r) + 4 * i
            A(f"buffer_load_dwordx4 v[{q}:{q+3}], v1, {WS}, s36 offen offset:{(i>>1)*2048 + (i&1)*16} sc1")
        q = P(r) + 32
        if fin:
            A(f"s_add_u32 s36, s33, {r*2048}")
            A(f"buffer_load_dwordx4 v[{q}:{q+3}], v3, {WS}, s36 offen sc1"); A(f"buffer_load_dwordx4 v[{q+4}:{q+7}], v3, {WS}, s36 offen offset:1024 sc1")
        else:
            A(f"s_add_u32 s36, s32, {r*2048}")
            A(f"buffer_load_dwordx4 v[{q}:{q+3}], v3, s[28:31], s36 offen"); A(f"buffer_load_dwordx4 v[{q+4}:{q+7}], v3, s[28:31], s36 offen offset:1024")
    nst = 2 if fin else 4
    for r in range(4):
        p = P(r)
        A(f"s_waitcnt vmcnt({(3-r)*6 + r*nst})")
        for i in range(0, 16, 2): A(f"v_pk_add_f32 v[{p+i}:{p+i+1}], v[{p+i}:{p+i+1}], v[{p+16+i}:{p+17+i}]")
        o = p + 16
        for i in range(8):
            A(f"v_cvt_pk_bf16_f32 v4, v{p+2*i}, v{p+2*i+1}")
            A(f"v_lshlrev_b32 v5, 16, v4"); A(f"v_and_b32 v4, 0xffff0000, v4")
            A(f"v_lshlrev_b32 v6, 16, v{p+32+i}"); A(f"v_and_b32 v7, 0xffff0000, v{p+32+i}")
            A(f"v_add_f32 v5, v5, v6"); A(f"v_add_f32 v4, v4, v7")
            A(f"v_cvt_pk_bf16_f32 v{o+i}, v5, v4")
            if not fin:
                A(f"v_lshlrev_b32 v{16+2*i}, 16, v{o+i}"); A(f"v_and_b32 v{17+2*i}, 0xffff0000, v{o+i}")
        if fin:
            A(f"buffer_store_dwordx4 v[{o}:{o+3}], v3, s[28:31], s32 offen"); A(f"buffer_store_dwordx4 v[{o+4}:{o+7}], v3, s[28:31], s32 offen offset:1024")
            A("s_add_u32 s32, s32, 2048")
        else:
            A(f"buffer_store_dwordx4 v[{o}:{o+3}], v3, {WS}, s33 offen sc1"); A(f"buffer_store_dwordx4 v[{o+4}:{o+7}], v3, {WS}, s33 offen offset:1024 sc1")
            ln_core(A, 16, 34, 3, " sc1")
            A("s_add_u32 s33, s33, 2048"); A("s_add_u32 s34, s34, 2048")
            A("s_nop 1")
    A(f"s_branch {L('done')}")
    return 0

def body_small(A, L, tag, kind):
    ka, K, ldx, ldw, wsx, wbytes = {'wos': (KA_WO, 1024, 8192, 2048, WS_O, 4096*2048), 'f2s': (KA_W2, 896, 7168, 2048, WS_F1, 3584*2048),
                                    'f1s': (KA_W1, 1024, 2048, 7168, WS_HN, 1024*7168)}[kind]
    A(f"s_load_dwordx2 s[4:5], s[0:1], {ka}")
    A(f"s_mul_i32 s24, s{S_A}, {128*ldx}")
    A(f"s_add_u32 s24, s24, {wsx}")
    if kind == 'f1s':
        A(f"s_lshl_b32 s25, s{S_B}, 7")
    else:
        A(f"""
        s_and_b32 s12, s{S_B}, 15
        s_lshr_b32 s29, s{S_B}, 4
        s_mul_i32 s26, s29, {K*2}
        s_add_u32 s24, s24, s26
        s_mul_i32 s25, s29, {K*ldw}
        s_lshl_b32 s26, s12, 7
        s_add_u32 s25, s25, s26
        """)
    A("s_waitcnt lgkmcnt(0)")
    make_srd(A, 20, 4, wbytes)
    g = Gemm(A, tag, 128, 64, 2, 2, 4, K, ldx, ldw, vbase=4, sbase=40, kperm=(kind != 'f1s'), spread=2, xsc1=True)
    g.setup(13, 2, 0)
    g.mainloop(0, 16, 20, 24, 25)
    if kind == 'f1s':
        t_ = g.v_wa[0]
        A(f"""
        v_and_b32 v3, 15, v2
        v_mul_u32_u24 v3, 7168, v3
        v_lshrrev_b32 v1, 4, v2
        v_lshl_add_u32 v3, v1, 4, v3
        s_lshl_b32 s26, s{S_A}, 7
        s_lshl_b32 s27, s{g.s_wm}, 6
        s_add_u32 s26, s26, s27
        s_mul_i32 s26, s26, 7168
        s_lshl_b32 s27, s{S_B}, 7
        s_add_u32 s26, s26, s27
        s_lshl_b32 s27, s{g.s_wn}, 6
        s_add_u32 s26, s26, s27
        s_add_u32 s26, s26, {WS_F1}
        s_mov_b32 s28, {f2u(-1.4426950408889634):#x}
        s_nop 4
        """)
        silu_store(A, g, t_)
    else:
        base = WS_P1 if kind == 'wos' else WS_P2
        A(f"""
        v_and_b32 v3, 15, v2
        v_lshlrev_b32 v3, 12, v3
        v_lshrrev_b32 v1, 4, v2
        v_lshl_add_u32 v3, v1, 4, v3
        s_lshl_b32 s26, s{S_A}, 2
        s_add_u32 s26, s26, s29
        s_lshl_b32 s26, s26, 7
        s_lshl_b32 s27, s{g.s_wm}, 6
        s_add_u32 s26, s26, s27
        s_lshl_b32 s26, s26, 12
        s_lshl_b32 s27, s12, 8
        s_add_u32 s26, s26, s27
        s_lshl_b32 s27, s{g.s_wn}, 7
        s_add_u32 s26, s26, s27
        s_add_u32 s26, s26, {base}
        s_nop 4
        """)
        for n in range(g.nt):
            for m in range(g.mt):
                a = g.acc(m, n)
                A(f"buffer_store_dwordx4 v[{a}:{a+3}], v3, {WS}, s26 offen offset:{64*m} sc1")
            A(f"s_add_u32 s26, s26, {16*4096}")
    A(f"s_branch {L('done')}")
    return g.lds_bytes

def body_red(A, L, tag, fin):
    A(f"s_load_dwordx2 s[6:7], s[0:1], {KA_OUT if fin else KA_X}")
    A(f"""
    v_lshlrev_b32 v3, 4, v2
    v_lshlrev_b32 v1, 5, v2
    s_and_b32 s26, s{S_B}, 31
    s_lshr_b32 s35, s{S_B}, 5
    s_lshl_b32 s26, s26, 2
    s_add_u32 s26, s26, s13
    s_lshl_b32 s27, s{S_A}, 9
    s_add_u32 s27, s27, s26
    s_lshl_b32 s27, s27, 12
    s_add_u32 s27, s27, {WS_P2 if fin else WS_P1}
    s_lshl_b32 s32, s{S_A}, 7
    s_add_u32 s32, s32, s26
    s_lshl_b32 s32, s32, 11               ; row*2048
    s_add_u32 s33, s32, {WS_H}
    s_add_u32 s34, s32, {WS_HN}
    s_waitcnt lgkmcnt(0)
    """)
    make_srd(A, 28, 6, 2048 * 2048)
    P = 32
    for r in range(P + 16, P + 128): A(f"v_mov_b32 v{r}, 0")
    depwait(A, L, tag)
    A("v_lshlrev_b32 v3, 4, v2"); A("v_lshlrev_b32 v1, 5, v2")
    for k in range(8):
        if k:
            A(f"s_cmp_lt_u32 s35, {k}")
            A(f"s_cbranch_scc1 {L(tag+'_np')}")
        for i in range(4):
            r = P + 16 * k + 4 * i
            A(f"buffer_load_dwordx4 v[{r}:{r+3}], v1, {WS}, s27 offen offset:{(i>>1)*2048 + (i&1)*16} sc1")
        A(f"s_add_u32 s27, s27, {128*4096}")
    A.label(L(tag + '_np'))
    if fin:
        A(f"buffer_load_dwordx4 v[8:11], v3, {WS}, s33 offen sc1"); A(f"buffer_load_dwordx4 v[12:15], v3, {WS}, s33 offen offset:1024 sc1")
    else:
        A(f"buffer_load_dwordx4 v[8:11], v3, s[28:31], s32 offen"); A(f"buffer_load_dwordx4 v[12:15], v3, s[28:31], s32 offen offset:1024")
    A("s_waitcnt vmcnt(0)")
    def pk(d, a): A(f"v_pk_add_f32 v[{d}:{d+1}], v[{d}:{d+1}], v[{a}:{a+1}]")
    A("s_cmp_lt_u32 s35, 4")
    A(f"s_cbranch_scc1 {L(tag+'_h4')}")
    for i in range(0, 64, 2): pk(P + i, P + 64 + i)
    A.label(L(tag + '_h4'))
    for i in range(0, 32, 2): pk(P + i, P + 32 + i)
    for i in range(0, 16, 2): pk(P + i, P + 16 + i)
    for i in range(8):
        A(f"v_cvt_pk_bf16_f32 v4, v{P+2*i}, v{P+2*i+1}")
        A(f"v_lshlrev_b32 v5, 16, v4"); A(f"v_and_b32 v4, 0xffff0000, v4")
        A(f"v_lshlrev_b32 v6, 16, v{8+i}"); A(f"v_and_b32 v7, 0xffff0000, v{8+i}")
        A(f"v_add_f32 v5, v5, v6"); A(f"v_add_f32 v4, v4, v7")
        A(f"v_cvt_pk_bf16_f32 v{P+64+i}, v5, v4")
        if not fin:
            A(f"v_lshlrev_b32 v{16+2*i}, 16, v{P+64+i}"); A(f"v_and_b32 v{17+2*i}, 0xffff0000, v{P+64+i}")
    o = P + 64
    if fin:
        A(f"buffer_store_dwordx4 v[{o}:{o+3}], v3, s[28:31], s32 offen"); A(f"buffer_store_dwordx4 v[{o+4}:{o+7}], v3, s[28:31], s32 offen offset:1024")
    else:
        A(f"buffer_store_dwordx4 v[{o}:{o+3}], v3, {WS}, s33 offen sc1"); A(f"buffer_store_dwordx4 v[{o+4}:{o+7}], v3, {WS}, s33 offen offset:1024 sc1")
        ln_core(A, 16, 34, 3, " sc1")
    A(f"s_branch {L('done')}")
    return 0

def pre_part(A, L, tag, which, BN, w8=False):
    ka, Ktot, ldx, wsx, base = {'wo': (KA_WO, 4096, 8192, WS_O, WS_P1), 'f2': (KA_W2, 3584, 7168, WS_F1, WS_P2)}[which]
    A(f"s_load_dwordx2 s[4:5], s[0:1], {ka}")
    A(f"s_mov_b32 s48, {ldx}")
    A(f"s_mov_b32 s50, {base}")
    A(f"s_mov_b32 s51, {Ktot*2048}")
    A(f"s_mul_i32 s24, s{S_A}, {128*ldx}")
    A(f"s_add_u32 s24, s24, {wsx}")
    if BN == 128:
        A(f"s_and_b32 s12, s{S_B}, 7")
        A(f"s_bfe_u32 s29, s{S_B}, 0x20003")
        A(f"s_lshr_b32 s26, s{S_B}, 5")
        A(f"s_lshr_b32 s27, {Ktot}, s26")
        A(f"s_lshr_b32 s49, s27, 8")
        A(f"s_sub_u32 s49, s49, 1")
        A(f"s_mul_i32 s27, s27, s29")
    elif w8:
        A(f"s_lshr_b32 s12, s{S_B}, 4"); A("s_lshl_b32 s12, s12, 1"); A(f"s_and_b32 s26, s{S_B}, 1"); A("s_add_u32 s12, s12, s26")
        A(f"s_bfe_u32 s29, s{S_B}, 0x30001")
        A(f"s_lshl_b32 s27, s29, 9")
        A(f"s_mov_b32 s49, 1")
    else:
        A(f"s_lshr_b32 s12, s{S_B}, 3"); A("s_lshl_b32 s12, s12, 1"); A(f"s_and_b32 s26, s{S_B}, 1"); A("s_add_u32 s12, s12, s26")
        A(f"s_bfe_u32 s29, s{S_B}, 0x20001")
        A(f"s_lshl_b32 s27, s29, 10")
        A(f"s_mov_b32 s49, 3")
        if which == 'f2':
            A("s_cmp_eq_u32 s29, 3"); A("s_cselect_b32 s49, 1, s49")
    A(f"s_lshl_b32 s26, s27, 1")
    A(f"s_add_u32 s24, s24, s26")
    A(f"s_lshl_b32 s25, s27, 11")
    A(f"s_mul_i32 s26, s12, {BN*2}")
    A(f"s_add_u32 s25, s25, s26")
    A(f"s_branch {L('b_g%d' % BN)}")

def body_part(A, L, BN):
    tag = f"g{BN}"
    A("s_waitcnt lgkmcnt(0)")
    A("s_mov_b32 s20, s4"); A("s_and_b32 s21, s5, 0xffff"); A("s_mov_b32 s22, s51"); A("s_mov_b32 s23, 0x00020000")
    g = Gemm(A, tag, 128, BN, 2, 2, 4, 1024, "s48", 2048, vbase=4, sbase=40, kperm=True, spread=2, xsc1=True)
    g.setup(13, 2, 0)
    g.mainloop(0, 16, 20, 24, 25, s_groups=49, mid=(lambda: depwait(A, L, tag)) if BN == 64 else None)
    A(f"""
    v_and_b32 v3, 15, v2
    v_lshlrev_b32 v3, 12, v3
    v_lshrrev_b32 v1, 4, v2
    v_lshl_add_u32 v3, v1, 4, v3
    s_lshl_b32 s26, s{S_A}, 2
    s_add_u32 s26, s26, s29
    s_lshl_b32 s26, s26, 7
    s_lshl_b32 s27, s{g.s_wm}, 6
    s_add_u32 s26, s26, s27
    s_lshl_b32 s26, s26, 12
    s_mul_i32 s27, s12, {BN*4}
    s_add_u32 s26, s26, s27
    s_mul_i32 s27, s{g.s_wn}, {BN*2}
    s_add_u32 s26, s26, s27
    s_add_u32 s26, s26, s50
    s_nop 4
    """)
    for n in range(g.nt):
        for m in range(g.mt):
            a = g.acc(m, n)
            A(f"buffer_store_dwordx4 v[{a}:{a+3}], v3, {WS}, s26 offen offset:{64*m} sc1")
        A(f"s_add_u32 s26, s26, {16*4096}")
    A(f"s_branch {L('done')}")
    return g.lds_bytes

PROBE0 = WS_CH + 3 * CH_STEP + CH_QKV + 31 * HB + 8188
def gen_worker(A, L, table_label, MAXT, POLLMAX=1 << 20, wstamp=False, psleep=3, exh0=0, repair=None, repair_stub=None, premask=0):
    A(f"""
    s_getpc_b64 s[100:101]
    {L('pc0')}:
    s_add_u32 s100, s100, {table_label}-{L('pc0')}
    s_addc_u32 s101, s101, 0
    s_bfe_u32 s88, s14, 0x30004
    s_mul_i32 s99, s14, {MAXT*8}
    {L('next')}:
    {"s_memrealtime s[90:91]" if wstamp else ""}
    s_add_u32 s99, s99, 8
    s_cmp_lg_u32 s13, 0
    s_cbranch_scc1 {L('go2')}
    s_mov_b32 s29, {POLLMAX}
    s_mov_b32 s97, s88
    s_mov_b32 s83, 0
    {L('grp')}:
    s_lshl_b32 s96, s97, 9
    s_add_u32 s96, s96, {WS_TK}
    v_lshlrev_b32 v5, 2, v2
    v_add_u32 v5, {WS_RDY}, v5
    s_lshl_b32 s24, s97, 7
    s_add_u32 s24, s24, {128 - 32}
    s_mov_b64 exec, 0xf00
    v_add_u32 v5, s24, v5
    s_mov_b32 exec_lo, 0xffff0000
    s_mov_b32 exec_hi, 0
    v_lshlrev_b32 v5, 21, v2
    v_add_u32 v5, {(PROBE0 - (16 << 21)) & 0xffffffff:#x}, v5
    {L('scan')}:
    s_mov_b64 exec, -1
    """)
    repair(A, L)
    A(f"""
    s_mov_b32 exec_lo, 0xffff0f0f
    s_mov_b32 exec_hi, 0
    buffer_load_dword v24, v5, {WS}, 0 offen sc1
    s_waitcnt vmcnt(0)
    v_cmp_eq_u32 vcc, -1, v24
    s_mov_b64 exec, -1
    v_readlane_b32 s24, v24, 0
    v_readlane_b32 s25, v24, 1
    v_readlane_b32 s26, v24, 2
    v_readlane_b32 s27, v24, 3
    v_readlane_b32 s84, v24, 8
    v_readlane_b32 s85, v24, 9
    v_readlane_b32 s86, v24, 10
    v_readlane_b32 s87, v24, 11
    s_or_b32 s86, s86, {(exh0 >> 64) & 0xffffffff:#x}
    s_or_b32 s87, s87, {(exh0 >> 96) & 0xffffffff:#x}
    s_and_b32 s28, s24, s84
    s_and_b32 s28, s28, {premask:#x}
    s_lshl_b32 s28, s28, 2
    s_andn2_b32 s28, s28, s24
    s_lshr_b32 s30, vcc_lo, 16
    s_andn2_b32 s24, s24, s30
    s_andn2_b32 s28, s28, s84
    s_mov_b32 s35, s28
    s_andn2_b64 s[24:25], s[24:25], s[84:85]
    s_andn2_b64 s[26:27], s[26:27], s[86:87]
    {L('pick')}:
    s_ff1_i32_b64 s30, s[24:25]
    s_cmp_lg_u32 s30, -1
    s_cbranch_scc0 {L('pick2')}
    s_bitset0_b64 s[24:25], s30
    s_branch {L('claim')}
    {L('pick2')}:
    s_ff1_i32_b64 s30, s[26:27]
    s_cmp_lg_u32 s30, -1
    s_cbranch_scc0 {L('pick3')}
    s_bitset0_b64 s[26:27], s30
    s_add_u32 s30, s30, 64
    s_branch {L('claim')}
    {L('pick3')}:
    s_ff1_i32_b32 s30, s35
    s_cmp_lg_u32 s30, -1
    s_cbranch_scc0 {L('idle')}
    s_bitset0_b32 s35, s30
    {L('claim')}:
    s_lshl_b32 s31, s30, 3
    s_load_dwordx2 s[8:9], s[100:101], s31
    s_lshl_b32 s31, s30, 2
    v_mov_b32 v30, s31
    v_mov_b32 v31, 1
    s_mov_b64 exec, 1
    buffer_atomic_add v31, v30, {WS}, s96 offen sc0
    s_waitcnt vmcnt(0) lgkmcnt(0)
    s_mov_b64 exec, -1
    v_readfirstlane_b32 s31, v31
    s_lshr_b32 s32, s8, 25
    s_add_u32 s33, s31, 1
    s_cmp_lt_u32 s33, s32
    s_cbranch_scc1 {L('got')}
    {L('ex3')}:
    s_cmp_lt_u32 s31, s32
    s_cbranch_scc0 {L('pick')}
    s_lshr_b32 s33, s30, 5
    s_lshl_b32 s33, s33, 2
    s_lshl_b32 s34, s97, 7
    s_add_u32 s33, s33, s34
    s_add_u32 s33, s33, {WS_RDY + 128}
    s_lshl_b32 s34, 1, s30
    v_mov_b32 v30, s33
    v_mov_b32 v31, s34
    s_mov_b64 exec, 1
    buffer_atomic_or v31, v30, {WS}, 0 offen
    s_mov_b64 exec, -1
    {L('got')}:
    s_bfe_u32 s32, s8, 0x40010
    s_lshl_b32 s32, s32, 4
    s_bfe_u32 s33, s8, 0x30014
    s_lshl_b32 s33, s97, s33
    s_add_u32 s32, s32, s33
    s_bfe_u32 s33, s8, 0x20017
    s_lshl_b32 s33, s31, s33
    s_add_u32 s32, s32, s33
    s_and_b32 s8, s8, 0xffff
    s_lshl_b32 s32, s32, 16
    s_or_b32 s8, s8, s32
    s_cmp_ge_u32 s30, 32
    s_cbranch_scc1 {L('bc')}
    s_bitcmp1_b32 s28, s30
    s_cbranch_scc0 {L('bc')}
    s_bitset1_b32 s8, 31
    s_lshl_b32 s32, s30, 24
    s_or_b32 s8, s8, s32
    s_branch {L('bc')}
    {L('idle')}:
    s_and_b64 s[24:25], s[84:85], s[86:87]
    s_cmp_eq_u64 s[24:25], -1
    s_cbranch_scc0 {L('idle2')}
    s_add_u32 s83, s83, 1
    s_cmp_ge_u32 s83, 8
    s_cbranch_scc1 {L('quit')}
    {L('rot')}:
    s_add_u32 s97, s97, 1
    s_and_b32 s97, s97, 7
    s_branch {L('grp')}
    {L('idle2')}:
    s_mov_b32 s83, 0
    s_sleep {psleep}
    s_sub_u32 s29, s29, 1
    s_cbranch_scc1 {L('quit')}
    s_and_b32 s24, s29, 63
    s_cmp_eq_u32 s24, 0
    s_cbranch_scc1 {L('rot')}
    s_branch {L('scan')}
    {L('quit')}:
    s_mov_b32 s8, 0
    {L('bc')}:
    v_mov_b32 v30, {LDS_TAB}
    v_mov_b32 v28, s8
    v_mov_b32 v29, s9
    ds_write_b64 v30, v[28:29]
    s_waitcnt lgkmcnt(0)
    {L('go2')}:
    s_barrier
    v_mov_b32 v30, {LDS_TAB}
    ds_read_b64 v[28:29], v30
    s_waitcnt lgkmcnt(0)
    v_readfirstlane_b32 s8, v28
    v_readfirstlane_b32 s82, v29
    {"s_memrealtime s[92:93]" if wstamp else ""}
    s_and_b32 s12, s8, 15
    s_cmp_eq_u32 s12, 0
    s_cbranch_scc1 {L('end')}
    s_bfe_u32 s{S_A}, s8, 0x40004
    s_bfe_u32 s{S_DONE}, s8, 0x80008
    s_bfe_u32 s{S_B}, s8, 0x80010
    """)
    labels = {T_KVS: 'kvs', T_KVL: 'kvl', T_WO: 'wo', T_F1: 'f1', T_F2: 'f2', T_QO: 'kvl', T_AT: 'at', T_WOS: 'wos', T_LNR: 'lnr', T_F1S: 'f1s', T_F2S: 'f2s', T_FIN: 'fin', T_QA: 'wo8', T_LN: 'f28'}
    for t, n in labels.items():
        A(f"s_cmp_eq_u32 s12, {t}")
        A(f"s_cbranch_scc1 {L('j_'+n)}")
    A(f"s_cmp_eq_u32 s12, 15")
    A(f"s_cbranch_scc1 {L('j_rep')}")
    A(f"s_branch {L('end')}")
    repair_stub(A, L)
    for n in dict.fromkeys(labels.values()):
        A.label(L('j_' + n))
        A(f"s_branch {L('b_'+n)}")
    A.label(L('skip'))
    A("s_barrier")
    A(f"s_branch {L('next')}")
    A.label(L('done'))
    A(f"""
    s_waitcnt vmcnt(0)
    s_barrier
    s_cmp_lg_u32 s13, 1
    s_cbranch_scc1 {L('next')}
    """)
    if wstamp:
        A(f"""
        s_memrealtime s[94:95]
        s_lshl_b32 s24, s99, 1
        s_add_u32 s24, s24, {WS_DUMMY + 65536}
        s_waitcnt lgkmcnt(0)
        v_mov_b32 v4, s90
        v_mov_b32 v5, s92
        v_mov_b32 v6, s94
        s_lshl_b32 s25, s{S_A}, 8
        s_and_b32 s26, s8, 0x00ff000f
        s_or_b32 s25, s25, s26
        v_mov_b32 v7, s25
        v_mov_b32 v8, 0
        s_mov_b64 exec, 1
        buffer_store_dwordx4 v[4:7], v8, {WS}, s24 offen
        s_mov_b64 exec, -1
        s_nop 1
        """)
    A(f"""
    s_lshl_b32 s24, s{S_DONE}, 7
    s_add_u32 s24, s24, {WS_CNT}
    v_mov_b32 v4, 0
    v_mov_b32 v5, 1
    s_mov_b64 exec, 1
    buffer_atomic_add v5, v4, {WS}, s24 offen sc0
    s_and_b32 s25, s82, 255
    s_bfe_u32 s26, s82, 0x70008
    s_bfe_u32 s27, s82, 0x20010
    s_lshr_b32 s28, s26, 5
    s_lshl_b32 s28, s28, 2
    s_and_b32 s26, s26, 31
    s_lshl_b32 s27, s27, s26
    v_mov_b32 v6, s28
    v_mov_b32 v7, s27
    s_mov_b32 s28, {WS_RDY}
    s_waitcnt vmcnt(0)
    v_readfirstlane_b32 s26, v5
    s_add_u32 s26, s26, 1
    s_cmp_eq_u32 s26, s25
    s_cbranch_scc0 {L('nosucc')}
    buffer_atomic_or v7, v6, {WS}, s28 offen
    {L('nosucc')}:
    s_mov_b64 exec, -1
    s_branch {L('next')}
    """)
    lds = []
    A.label(L('b_wo'));  pre_part(A, L, 'wo', 'wo', 128)
    A.label(L('b_f2'));  pre_part(A, L, 'f2', 'f2', 128)
    A.label(L('b_wos')); pre_part(A, L, 'wos', 'wo', 64)
    A.label(L('b_f2s')); pre_part(A, L, 'f2s', 'f2', 64)
    A.label(L('b_wo8')); pre_part(A, L, 'wo8', 'wo', 64, True)
    A.label(L('b_f28')); pre_part(A, L, 'f28', 'f2', 64, True)
    def variant(name, alt):
        A.label(L('b_' + name))
        A(f"s_bitcmp1_b32 s82, 24")
        A(f"s_cbranch_scc1 {L('b_'+alt)}")
    variant('lnr', 'lnr4'); lds.append(body_red(A, L, 'lnr', False))
    variant('fin', 'fin4'); lds.append(body_red(A, L, 'fin', True))
    variant('at', 'at2');  lds.append(body_at(A, L, 'at'))
    A.label(L('b_lnr4')); lds.append(body_red4(A, L, 'lnr4', False))
    A.label(L('b_fin4')); lds.append(body_red4(A, L, 'fin4', True))
    A.label(L('b_at2')); lds.append(body_at(A, L, 'at2', 2))
    A.label(L('b_f1l')); lds.append(body_f1(A, L, 'f1l', 256, 128, 3))
    A.label(L('b_g64')); lds.append(body_part(A, L, 64))
    A.label(L('b_g128')); lds.append(body_part(A, L, 128))
    A.label(L('b_f1s')); lds.append(body_f1(A, L, 'f1s', 128, 64, 6))
    variant('f1', 'f1l'); lds.append(body_f1(A, L, 'f1', 128, 128, 4))
    A.label(L('b_kvt')); lds.append(body_kv(A, L, 'kvt', 128, 64, 6))
    variant('kvs', 'kvt'); lds.append(body_kv(A, L, 'kvs', 128, 128, 4))
    A.label(L('b_kvl')); lds.append(body_kv(A, L, 'kvl', 256, 256, 2))
    return max(lds)

def task(t, a=0, b=0, done=C_SINK, d1=(0, 0), d2=(0, 0)):
    return (t | a << 8 | b << 16 | done << 24, d1[0] | d1[1] << 8 | d2[0] << 16 | d2[1] << 24)
```

```python
from asmlib import *
from layout import *
from gemm import Gemm
import struct
def f2u(x): return struct.unpack("<I", struct.pack("<f", x))[0]

def wave_sum(A, v, t):
    for ctl in ("quad_perm:[1,0,3,2]", "quad_perm:[2,3,0,1]", "row_half_mirror", "row_mirror"):
        A("s_nop 1")
        A(f"v_add_f32_dpp v{v}, v{v}, v{v} {ctl} row_mask:0xf bank_mask:0xf")
    for sw in ("v_permlane16_swap_b32", "v_permlane32_swap_b32"):
        A(f"v_mov_b32 v{t}, v{v}")
        A("s_nop 1")
        A(f"{sw} v{v}, v{t}")
        A(f"v_add_f32 v{v}, v{v}, v{t}")

def rnd_bf16(A, v):
    A(f"v_cvt_pk_bf16_f32 v{v}, v{v}, v{v}")
    A(f"v_and_b32 v{v}, 0xffff0000, v{v}")

def ln_core(A, srd_out, s_out, v_off, sc):
    x = 8; f = 16; sm = 4; t = 5; mu = 6; r = 7
    A(f"v_add_f32 v{sm}, v{f}, v{f+1}")
    for i in range(2, 16): A(f"v_add_f32 v{sm}, v{sm}, v{f+i}")
    wave_sum(A, sm, t)
    A(f"v_mul_f32 v{mu}, {f2u(1/1024):#x}, v{sm}")
    A(f"v_sub_f32 v{t}, v{f}, v{mu}")
    A(f"v_mul_f32 v{sm}, v{t}, v{t}")
    for i in range(1, 16):
        A(f"v_sub_f32 v{t}, v{f+i}, v{mu}")
        A(f"v_fmac_f32 v{sm}, v{t}, v{t}")
    wave_sum(A, sm, t)
    A(f"v_mul_f32 v{sm}, {f2u(1/1024):#x}, v{sm}")
    rnd_bf16(A, sm); rnd_bf16(A, mu)
    A(f"v_add_f32 v{sm}, {f2u(1e-5):#x}, v{sm}")
    rnd_bf16(A, sm)
    A(f"v_sqrt_f32 v{sm}, v{sm}")
    A("s_nop 0")
    rnd_bf16(A, sm)
    A(f"v_rcp_f32 v{r}, v{sm}")
    for i in range(16): A(f"v_sub_f32 v{f+i}, v{f+i}, v{mu}")
    for i in range(8):
        A(f"v_cvt_pk_bf16_f32 v{x+i}, v{f+2*i}, v{f+2*i+1}")
        A(f"v_lshlrev_b32 v{f+2*i}, 16, v{x+i}")
        A(f"v_and_b32 v{f+2*i+1}, 0xffff0000, v{x+i}")
        A(f"v_mul_f32 v{f+2*i}, v{f+2*i}, v{r}")
        A(f"v_mul_f32 v{f+2*i+1}, v{f+2*i+1}, v{r}")
        A(f"v_cvt_pk_bf16_f32 v{x+i}, v{f+2*i}, v{f+2*i+1}")
    A(f"buffer_store_dwordx4 v[{x}:{x+3}], v{v_off}, s[{srd_out}:{srd_out+3}], s{s_out} offen{sc}")
    A(f"buffer_store_dwordx4 v[{x+4}:{x+7}], v{v_off}, s[{srd_out}:{srd_out+3}], s{s_out} offen offset:1024{sc}")

def ln_row(A, srd_in, s_in, srd_out, s_out, v_off, sc1=False):
    sc = ' sc1' if sc1 else ''
    x = 8; f = 16
    A(f"buffer_load_dwordx4 v[{x}:{x+3}], v{v_off}, s[{srd_in}:{srd_in+3}], s{s_in} offen{sc}")
    A(f"buffer_load_dwordx4 v[{x+4}:{x+7}], v{v_off}, s[{srd_in}:{srd_in+3}], s{s_in} offen offset:1024{sc}")
    A("s_waitcnt vmcnt(0)")
    for i in range(8):
        A(f"v_lshlrev_b32 v{f+2*i}, 16, v{x+i}")
        A(f"v_and_b32 v{f+2*i+1}, 0xffff0000, v{x+i}")
    ln_core(A, srd_out, s_out, v_off, sc)

def gen_prep(A, name="prep_kernel", ready=None, warm=0):
    kernel_begin(A, name)
    L = lambda s: f"{name}_{s}"
    FILL = CH_STEP * 65
    per = FILL // 512
    A(f"""
    s_cmp_ge_u32 s2, 512
    s_cbranch_scc1 {L('end')}
    s_load_dwordx4 s[4:7], s[0:1], {KA_X}
    s_load_dwordx2 s[8:9], s[0:1], {KA_WS}
    v_lshrrev_b32 v1, 6, v0
    v_and_b32 v2, 63, v0
    v_lshlrev_b32 v3, 4, v2
    v_readfirstlane_b32 s13, v1
    s_waitcnt lgkmcnt(0)
    """)
    make_srd(A, 16, 4, 2048 * 2048)
    make_srd(A, 20, 8, WS_SIZE)
    make_srd(A, 24, 6, 16384)
    if warm:
        A(f"s_load_dwordx8 s[40:47], s[0:1], {KA_WQ}")
        A("s_lshr_b32 s36, s2, 7"); A("s_and_b32 s37, s2, 127"); A("s_lshl_b32 s37, s37, 16")
        A("v_lshlrev_b32 v45, 4, v0")
        A("s_waitcnt lgkmcnt(0)")
        A("s_mov_b32 s48, s40"); A("s_mov_b32 s49, s41")
        for k in range(1, 4):
            A(f"s_cmp_eq_u32 s36, {k}"); A(f"s_cselect_b32 s48, s{40+2*k}, s48"); A(f"s_cselect_b32 s49, s{41+2*k}, s49")
        make_srd(A, 52, 48, 8 << 20)
        for i in range(16):
            A(f"buffer_load_dwordx4 v[{48+4*i}:{51+4*i}], v45, s[52:55], s37 offen")
            A("s_add_u32 s37, s37, 4096")
    A(f"""
    v_mov_b32 v40, -1
    v_mov_b32 v41, -1
    v_mov_b32 v42, -1
    v_mov_b32 v43, -1
    v_lshlrev_b32 v44, 4, v0
    s_mul_i32 s32, s2, {16384 if ready else 66560}
    s_add_u32 s32, s32, {WS_CH + 131072}
    """)
    for i in range(4 if ready else 17):
        if i == 16:
            A("v_cmp_gt_u32 vcc, 64, v0"); A("s_and_saveexec_b64 s[30:31], vcc")
        A(f"buffer_store_dwordx4 v[40:43], v44, s[20:23], s32 offen")
        A(f"s_add_u32 s32, s32, 4096")
    A("s_mov_b64 exec, -1")
    A(f"s_cmp_eq_u32 s2, 8")
    A(f"s_cbranch_scc0 {L('nz')}")
    for r in range(8, 12): A(f"v_mov_b32 v{r}, 0")
    A(f"s_mov_b32 s32, {WS_CNT}")
    for i in range(11):
        A(f"buffer_store_dwordx4 v[8:11], v44, s[20:23], s32 offen")
        A(f"s_add_u32 s32, s32, 4096")
    if ready:
        A("s_waitcnt vmcnt(0)")
        for r in range(4): A(f"v_mov_b32 v{8+r}, {ready[r]:#x}")
        A(f"s_mov_b32 s32, {WS_RDY}")
        A("s_mov_b64 s[34:35], exec"); A("v_cmp_eq_u32 vcc, 0, v0"); A("s_and_b64 exec, exec, vcc")
        A(f"buffer_store_dwordx4 v[8:11], v44, s[20:23], s32 offen")
        A("s_mov_b64 exec, s[34:35]")
    A("s_nop 1")
    A.label(L('nz'))
    A(f"s_cmp_ge_u32 s2, 8")
    A(f"s_cbranch_scc1 {L('ln')}")
    A(f"""
    v_and_b32 v4, 7, v2
    v_lshlrev_b32 v4, 11, v4              ; row*2048
    v_lshrrev_b32 v5, 4, v2
    v_lshl_add_u32 v4, v5, 5, v4          ; kg*32
    v_bfe_u32 v5, v2, 3, 1
    v_lshl_add_u32 v4, v5, 4, v4          ; hi*16
    v_lshl_add_u32 v4, v1, 7, v4
    s_lshl_b32 s32, s2, 14
    s_add_u32 s32, s32, {WS_CH + CH_MEM}
    """)
    for i in range(4):
        A(f"buffer_load_dwordx4 v[{8+4*i}:{11+4*i}], v4, s[24:27], 0 offen offset:{i*512}")
    A("s_waitcnt vmcnt(0)")
    for r in range(8, 24): A(f"v_min_u32 v{r}, -2, v{r}")
    for i in range(4):
        A(f"buffer_store_dwordx4 v[{8+4*i}:{11+4*i}], v44, s[20:23], s32 offen")
        A(f"s_add_u32 s32, s32, 4096")
    A("s_nop 1")
    A.label(L('ln'))
    A(f"""
    s_lshl_b32 s32, s2, 2
    s_add_u32 s32, s32, s13
    s_lshl_b32 s32, s32, 11
    s_add_u32 s33, s32, {WS_XN}
    """)
    ln_row(A, 16, 32, 20, 33, 3)
    A.label(L('end'))
    A("s_endpgm")
    return dict(vgpr=112 if warm else 48, grid=512, block=256, lds=0)

def gen_ln2(A, name="ln2_kernel"):
    kernel_begin(A, name)
    L = lambda s: f"{name}_{s}"
    A(f"""
    s_cmp_ge_u32 s2, 512
    s_cbranch_scc1 {L('end')}
    s_load_dwordx2 s[8:9], s[0:1], {KA_WS}
    v_lshrrev_b32 v1, 6, v0
    v_and_b32 v2, 63, v0
    v_lshlrev_b32 v3, 4, v2
    v_readfirstlane_b32 s13, v1
    s_waitcnt lgkmcnt(0)
    """)
    make_srd(A, 20, 8, WS_SIZE)
    A(f"""
    s_lshl_b32 s26, s2, 2
    s_add_u32 s26, s26, s13
    s_lshl_b32 s26, s26, 11
    s_add_u32 s27, s26, {WS_HN}
    s_add_u32 s26, s26, {WS_H}
    """)
    ln_row(A, 20, 26, 20, 27, 3)
    A.label(L('end'))
    A("s_endpgm")
    return dict(vgpr=48, grid=512, block=256, lds=0)

def gemm_prologue(A, L, nwg, ka_w, extra_ka=()):
    A(f"""
    s_cmp_ge_u32 s2, {nwg}
    s_cbranch_scc1 {L('end')}
    s_load_dwordx2 s[4:5], s[0:1], {ka_w}
    s_load_dwordx2 s[8:9], s[0:1], {KA_WS}
    """)
    for (sr_, ka) in extra_ka: A(f"s_load_dwordx2 s[{sr_}:{sr_+1}], s[0:1], {ka}")
    A("""
    v_lshrrev_b32 v1, 6, v0
    v_and_b32 v2, 63, v0
    s_nop 0
    v_readfirstlane_b32 s13, v1
    s_waitcnt lgkmcnt(0)
    """)
    make_srd(A, 16, 8, WS_SIZE)

def gen_resgemm(A, name, ka_w, K, ws_x, res_from_x, to_out):
    kernel_begin(A, name)
    L = lambda s: f"{name}_{s}"
    gemm_prologue(A, L, 256, ka_w, [(6, KA_X if res_from_x else KA_OUT)])
    make_srd(A, 20, 4, K * 1024 * 2)
    make_srd(A, 28, 6, 2048 * 2048)
    A(f"""
    s_and_b32 s10, s2, 7
    s_lshr_b32 s11, s2, 3                 ; 0..31
    s_lshl_b32 s10, s10, 1
    s_lshr_b32 s12, s11, 4
    s_add_u32 s10, s10, s12               ; rb 0..15
    s_and_b32 s11, s11, 15                ; cb 0..15
    s_mul_i32 s24, s10, {128*K*2}
    s_add_u32 s24, s24, {ws_x}
    s_lshl_b32 s25, s11, 7
    """)
    g = Gemm(A, name, 128, 64, 4, 2, 4, K, K * 2, 2048, vbase=4, sbase=40, kperm=True)
    g.setup(13, 2, 0)
    vr_, vs_ = g.v_end, g.v_end + 1
    R = (g.v_end + 3) // 2 * 2
    A(f"""
    v_and_b32 v3, 15, v2
    v_lshlrev_b32 v3, 11, v3
    v_lshrrev_b32 v{vs_}, 4, v2
    v_lshl_add_u32 v{vr_}, v{vs_}, 3, v3
    v_lshl_add_u32 v{vs_}, v{vs_}, 4, v3
    s_lshl_b32 s26, s10, 7
    s_lshl_b32 s27, s{g.s_wm}, 5
    s_add_u32 s26, s26, s27
    s_lshl_b32 s26, s26, 11
    s_add_u32 s26, s26, s25
    s_lshl_b32 s27, s{g.s_wn}, 6
    s_add_u32 s26, s26, s27
    s_add_u32 s27, s26, {WS_H}
    s_add_u32 s32, s26, {16*2048}
    s_add_u32 s33, s27, {16*2048}
    """)
    rs, so = ("s[28:31]", (26, 32)) if res_from_x else ("s[16:19]", (27, 33))
    for n in range(2):
        for t in range(2):
            A(f"buffer_load_dwordx2 v[{R+4*n+2*t}:{R+4*n+2*t+1}], v{vr_}, {rs}, s{so[n]} offen offset:{t*32}")
    g.mainloop(0, 16, 20, 24, 25)
    A("s_nop 7")
    t_ = g.v_wa[0]
    os_, oo = ("s[28:31]", (26, 32)) if to_out else ("s[16:19]", (27, 33))
    for n in range(2):
        d = t_ + 8 * n
        for t in range(2):
            a = g.acc(t, n)
            for h in range(2):
                rr = R + 4 * n + 2 * t + h
                A(f"v_cvt_pk_bf16_f32 v{d+4}, v{a+2*h}, v{a+2*h+1}")
                A(f"v_lshlrev_b32 v{d+5}, 16, v{d+4}")
                A(f"v_and_b32 v{d+4}, 0xffff0000, v{d+4}")
                A(f"v_lshlrev_b32 v{d+6}, 16, v{rr}")
                A(f"v_and_b32 v{d+7}, 0xffff0000, v{rr}")
                A(f"v_add_f32 v{d+5}, v{d+5}, v{d+6}")
                A(f"v_add_f32 v{d+4}, v{d+4}, v{d+7}")
                A(f"v_cvt_pk_bf16_f32 v{d+2*t+h}, v{d+5}, v{d+4}")
        A("s_nop 1")
        A(f"v_permlane32_swap_b32 v{d}, v{d+2}"); A(f"v_permlane32_swap_b32 v{d+1}, v{d+3}")
        A("s_nop 1")
        A(f"v_permlane16_swap_b32 v{d}, v{d+2}"); A(f"v_permlane16_swap_b32 v{d+1}, v{d+3}")
        A(f"buffer_store_dwordx4 v[{d}:{d+3}], v{vs_}, {os_}, s{oo[n]} offen")
    A.label(L('end'))
    A("s_endpgm")
    return dict(vgpr=R + 8, grid=256, block=512, lds=g.lds_bytes)

def gen_ffn1(A, name="ffn1_kernel"):
    kernel_begin(A, name)
    L = lambda s: f"{name}_{s}"
    gemm_prologue(A, L, 224, KA_W1)
    make_srd(A, 20, 4, 1024 * 3584 * 2)
    A(f"""
    s_and_b32 s10, s2, 7
    s_lshr_b32 s11, s2, 3
    s_lshl_b32 s24, s10, 19
    s_add_u32 s24, s24, {WS_HN}
    s_lshl_b32 s25, s11, 8
    """)
    g = Gemm(A, name, 256, 128, 4, 2, 2, 1024, 2048, 7168, vbase=4, sbase=40)
    g.setup(13, 2, 0)
    g.mainloop(0, 16, 20, 24, 25)
    t_ = g.v_wa[0]
    A(f"""
    v_and_b32 v3, 15, v2
    v_mul_u32_u24 v3, 7168, v3
    v_lshrrev_b32 v1, 4, v2
    v_lshl_add_u32 v3, v1, 4, v3
    s_lshl_b32 s26, s10, 8
    s_lshl_b32 s27, s{g.s_wm}, 6
    s_add_u32 s26, s26, s27
    s_mul_i32 s26, s26, 7168
    s_lshl_b32 s27, s11, 8
    s_add_u32 s26, s26, s27
    s_lshl_b32 s27, s{g.s_wn}, 7
    s_add_u32 s26, s26, s27
    s_add_u32 s26, s26, {WS_F1}
    s_mov_b32 s28, {f2u(-1.4426950408889634):#x}
    s_nop 4
    """)
    cnt = 0
    for n in range(g.nt):
        for p in range(g.mt // 2):
            d = t_ + 4 * (cnt % 4); cnt += 1
            e = g.v_xb[0]
            for t in range(2):
                a = g.acc(2 * p + t, n)
                for h in range(2):
                    A(f"v_cvt_pk_bf16_f32 v{e}, v{a+2*h}, v{a+2*h+1}")
                    A(f"v_lshlrev_b32 v{a+2*h}, 16, v{e}")
                    A(f"v_and_b32 v{a+2*h+1}, 0xffff0000, v{e}")
                for r in range(4): A(f"v_mul_f32 v{e+r}, s28, v{a+r}")
                for r in range(4): A(f"v_exp_f32 v{e+r}, v{e+r}")
                A("s_nop 0")
                for r in range(4): A(f"v_add_f32 v{e+r}, 1.0, v{e+r}")
                for r in range(4): A(f"v_rcp_f32 v{e+r}, v{e+r}")
                A("s_nop 0")
                for r in range(4): A(f"v_mul_f32 v{a+r}, v{a+r}, v{e+r}")
                A(f"v_cvt_pk_bf16_f32 v{d+2*t}, v{a}, v{a+1}")
                A(f"v_cvt_pk_bf16_f32 v{d+2*t+1}, v{a+2}, v{a+3}")
            A(f"buffer_store_dwordx4 v[{d}:{d+3}], v3, s[16:19], s26 offen offset:{64*p}")
        A(f"s_add_u32 s26, s26, {16*7168}")
    A.label(L('end'))
    A("s_endpgm")
    return dict(vgpr=g.v_end, grid=224, block=512, lds=g.lds_bytes)

SC = (128 ** -0.5) * 1.4426950408889634
def gen_qattn(A, name="qattn_kernel"):
    kernel_begin(A, name)
    L = lambda s: f"{name}_{s}"
    gemm_prologue(A, L, 256, KA_WQ)
    make_srd(A, 20, 4, 1024 * 4096 * 2)
    A(f"""
    s_and_b32 s10, s2, 7
    s_lshr_b32 s11, s2, 3
    s_lshl_b32 s10, s10, 2
    s_and_b32 s12, s11, 3
    s_add_u32 s10, s10, s12               ; head
    s_lshr_b32 s11, s11, 2                ; rb
    s_lshl_b32 s24, s11, 19
    s_add_u32 s24, s24, {WS_XN}
    s_lshl_b32 s25, s10, 8
    """)
    g = Gemm(A, name, 256, 128, 8, 1, 2, 1024, 2048, 8192, vbase=4, sbase=40)
    g.setup(13, 2, 0)
    vK = g.v_end + (4 - g.v_end % 4) % 4
    vR = vK + 32
    vl16 = vR + 16; vl16b = vl16 + 1; vtrv = vl16 + 2; vtrm = vl16 + 3; vthr = vl16 + 4; vo_ = vl16 + 5; vt = vl16 + 6
    NV = vt + 8
    A(f"""
    v_lshlrev_b32 v{vl16}, 4, v2
    v_add_u32 v{vl16b}, 0x1000, v{vl16}
    s_lshl_b32 s26, s11, 3
    s_add_u32 s26, s26, s13               ; seg
    s_lshl_b32 s27, s26, 5
    s_add_u32 s27, s27, s10
    s_lshl_b32 s27, s27, 13               ; (seg*32+h)*8192
    s_add_u32 s28, s27, {WS_K}
    s_add_u32 s29, s27, {WS_VT}
    s_lshl_b32 s30, s26, 19               ; seg*CH_STEP
    s_lshl_b32 s31, s10, 13
    s_add_u32 s30, s30, s31
    s_add_u32 s30, s30, {WS_CH + CH_QKV}
    s_mov_b32 s34, {f2u(SC):#x}
    s_mov_b32 s36, 0
    s_mov_b32 s37, -1
    s_mov_b32 s38, -1
    s_mov_b32 s39, 0
    """)
    assert CH_STEP == 1 << 19
    for i in range(8):
        A(f"buffer_load_dwordx4 v[{vK+4*i}:{vK+4*i+3}], v{vl16 if i < 4 else vl16b}, s[16:19], s28 offen offset:{(i%4)*1024}")
    for i in range(4):
        A(f"buffer_load_dwordx4 v[{vR+4*i}:{vR+4*i+3}], v{vl16}, s[16:19], s30 offen offset:{i*1024}")
    g.mainloop(0, 16, 20, 24, 25)
    A("s_barrier")
    A("s_mul_i32 s31, s13, 10240")
    for i in range(10):
        A(f"s_add_u32 m0, s31, {i*1024}")
        if i < 8: A(f"s_add_u32 s35, s29, {i*1024}")
        else:     A(f"s_add_u32 s35, s30, {6144 + (i-8)*1024}")
        A(f"buffer_load_dwordx4 v{vl16}, s[16:19], s35 offen lds")
    n_, g_ = vt, vt + 1
    A(f"""
    v_and_b32 v{n_}, 15, v2
    v_lshrrev_b32 v{g_}, 4, v2
    v_lshrrev_b32 v{vt+2}, 1, v{g_}
    v_lshlrev_b32 v{vtrv}, 12, v{vt+2}
    v_and_b32 v{vt+2}, 3, v{n_}
    v_lshl_add_u32 v{vtrv}, v{vt+2}, 8, v{vtrv}
    v_and_b32 v{vt+3}, 1, v{g_}
    v_lshl_add_u32 v{vtrv}, v{vt+3}, 7, v{vtrv}
    v_lshrrev_b32 v{vt+4}, 2, v{n_}
    v_lshl_add_u32 v{vtrv}, v{vt+4}, 4, v{vtrv}
    v_add_u32 v{vtrv}, s31, v{vtrv}
    v_lshl_add_u32 v{vtrm}, v{vt+3}, 2, v{vt+4}
    v_lshlrev_b32 v{vtrm}, 8, v{vtrm}
    v_lshl_add_u32 v{vtrm}, v{vt+2}, 4, v{vtrm}
    v_add_u32 v{vtrm}, s31, v{vtrm}
    v_add_u32 v{vtrm}, 0x2000, v{vtrm}
    v_lshlrev_b32 v{vt+2}, 3, v{g_}
    v_sub_u32 v{vthr}, v{n_}, v{vt+2}
    v_lshlrev_b32 v{vo_}, 13, v{n_}
    v_lshl_add_u32 v{vo_}, v{g_}, 4, v{vo_}
    s_lshl_b32 s32, s26, 18               ; seg*32*8192
    s_lshl_b32 s33, s10, 8
    s_add_u32 s32, s32, s33
    s_add_u32 s32, s32, {WS_O}
    """)
    Qb = g.v_wa[0]
    for n in range(2):
        for ks in range(4):
            d = Qb + (n * 4 + ks) * 4; a0 = g.acc(2 * ks, n); a1 = g.acc(2 * ks + 1, n)
            A(f"v_cvt_pk_bf16_f32 v{d}, v{a0}, v{a0+1}"); A(f"v_cvt_pk_bf16_f32 v{d+1}, v{a0+2}, v{a0+3}")
            A(f"v_cvt_pk_bf16_f32 v{d+2}, v{a1}, v{a1+1}"); A(f"v_cvt_pk_bf16_f32 v{d+3}, v{a1+2}, v{a1+3}")
    S = g.v_acc
    P = g.v_acc + 24
    A("s_nop 1")
    for n in range(2):
        for ks in range(4):
            for t in range(3):
                d = S + 12 * n + 4 * t
                Aop = f"v[{vR+4*ks}:{vR+4*ks+3}]" if t == 2 else f"v[{vK+(t*4+ks)*4}:{vK+(t*4+ks)*4+3}]"
                q = Qb + (n * 4 + ks) * 4
                C = "0" if ks == 0 else f"v[{d}:{d+3}]"
                A(f"v_mfma_f32_16x16x32_bf16 v[{d}:{d+3}], {Aop}, v[{q}:{q+3}], {C}")
    A("s_nop 7")
    mx, tt = vt + 2, vt + 3
    rl = [vt + 4, vt + 5]
    A(f"v_mov_b32 v{vt+6}, 0xff800000")
    for n in range(2):
        s_ = S + 12 * n
        if n == 1: A(f"v_add_u32 v{vthr}, 16, v{vthr}")
        for o in range(8):
            A(f"v_cmp_gt_i32 vcc, {o}, v{vthr}")
            A("s_nop 1")
            A(f"v_cndmask_b32 v{s_+o}, v{s_+o}, v{vt+6}, vcc")
        A(f"""
        v_max3_f32 v{mx}, v{s_}, v{s_+1}, v{s_+2}
        v_max3_f32 v{mx}, v{mx}, v{s_+3}, v{s_+4}
        v_max3_f32 v{mx}, v{mx}, v{s_+5}, v{s_+6}
        v_max_f32 v{mx}, v{mx}, v{s_+7}
        s_mov_b64 exec, s[36:37]
        v_max3_f32 v{mx}, v{mx}, v{s_+8}, v{s_+9}
        v_max3_f32 v{mx}, v{mx}, v{s_+10}, v{s_+11}
        s_mov_b64 exec, -1
        v_mov_b32 v{tt}, v{mx}
        s_nop 1
        v_permlane32_swap_b32 v{mx}, v{tt}
        v_max_f32 v{mx}, v{mx}, v{tt}
        v_mov_b32 v{tt}, v{mx}
        s_nop 1
        v_permlane16_swap_b32 v{mx}, v{tt}
        v_max_f32 v{mx}, v{mx}, v{tt}
        v_mul_f32 v{mx}, s34, v{mx}
        """)
        for i in range(12): A(f"v_fma_f32 v{s_+i}, v{s_+i}, s34, -v{mx}")
        for i in range(12): A(f"v_exp_f32 v{s_+i}, v{s_+i}")
        A("s_mov_b64 exec, s[38:39]")
        for i in range(4): A(f"v_mov_b32 v{s_+8+i}, 0")
        A("s_mov_b64 exec, -1")
        sm = rl[n]
        A(f"v_add_f32 v{sm}, v{s_}, v{s_+1}")
        for i in range(2, 12): A(f"v_add_f32 v{sm}, v{sm}, v{s_+i}")
        for sw in ("v_permlane32_swap_b32", "v_permlane16_swap_b32"):
            A(f"v_mov_b32 v{tt}, v{sm}"); A("s_nop 1"); A(f"{sw} v{sm}, v{tt}"); A(f"v_add_f32 v{sm}, v{sm}, v{tt}")
        A(f"v_rcp_f32 v{sm}, v{sm}")
        A("s_nop 0")
        for i in range(12): A(f"v_mul_f32 v{s_+i}, v{s_+i}, v{sm}")
        for i in range(6): A(f"v_cvt_pk_bf16_f32 v{P+8*n+i}, v{s_+2*i}, v{s_+2*i+1}")
    A("s_waitcnt vmcnt(0)")
    O = g.v_acc + 40
    for p in range(4):
        fb = vK + 16 * (p & 1)
        for t in range(2):
            for u in range(2):
                A(f"ds_read_b64_tr_b16 v[{fb+4*t+2*u}:{fb+4*t+2*u+1}], v{vtrv} offset:{p*1024 + 8*t + 64*u}")
            A(f"ds_read_b64_tr_b16 v[{fb+8+2*t}:{fb+8+2*t+1}], v{vtrm} offset:{p*64 + 8*t}")
        A("s_waitcnt lgkmcnt(0)")
        ob = O + 16 * 0
        for n in range(2):
            for t in range(2):
                d = ob + (n * 2 + t) * 4
                A(f"v_mfma_f32_16x16x32_bf16 v[{d}:{d+3}], v[{fb+4*t}:{fb+4*t+3}], v[{P+8*n}:{P+8*n+3}], 0")
        A("s_nop 3")
        for n in range(2):
            for t in range(2):
                d = ob + (n * 2 + t) * 4
                A(f"v_mfma_f32_16x16x16_bf16 v[{d}:{d+3}], v[{fb+8+2*t}:{fb+8+2*t+1}], v[{P+8*n+4}:{P+8*n+5}], v[{d}:{d+3}]")
        A("s_nop 7")
        for n in range(2):
            d = vR + 8 * (p & 1) + 4 * n
            a0 = ob + n * 8; a1 = a0 + 4
            A(f"v_cvt_pk_bf16_f32 v{d}, v{a0}, v{a0+1}"); A(f"v_cvt_pk_bf16_f32 v{d+1}, v{a0+2}, v{a0+3}")
            A(f"v_cvt_pk_bf16_f32 v{d+2}, v{a1}, v{a1+1}"); A(f"v_cvt_pk_bf16_f32 v{d+3}, v{a1+2}, v{a1+3}")
            if n == 0: A(f"buffer_store_dwordx4 v[{d}:{d+3}], v{vo_}, s[16:19], s32 offen offset:{64*p}")
            else:
                A(f"s_add_u32 s33, s32, {16*8192}")
                A(f"buffer_store_dwordx4 v[{d}:{d+3}], v{vo_}, s[16:19], s33 offen offset:{64*p}")
    A.label(L('end'))
    A("s_endpgm")
    return dict(vgpr=NV, grid=256, block=512, lds=g.lds_bytes)

def gen_init(ready):
    def init(A, L):
        A(f"s_load_dwordx4 s[4:7], s[0:1], {KA_X}")
        A(f"""
        v_lshlrev_b32 v3, 4, v2
        v_lshlrev_b32 v44, 4, v0
        v_mov_b32 v40, -1
        v_mov_b32 v41, -1
        v_mov_b32 v42, -1
        v_mov_b32 v43, -1
        s_lshl_b32 s32, s30, 16
        s_add_u32 s32, s32, {WS_CH + 131072}
        s_waitcnt lgkmcnt(0)
        """)
        make_srd(A, 24, 4, 2048 * 2048)
        make_srd(A, 36, 6, 16384)
        A(f"""
        s_lshl_b32 s34, s30, 2
        s_add_u32 s34, s34, s13
        s_lshl_b32 s34, s34, 13
        s_add_u32 s35, s34, {WS_XN}
        """)
        for r in range(4):
            A(f"buffer_load_dwordx4 v[{48+8*r}:{51+8*r}], v3, s[24:27], s34 offen")
            A(f"buffer_load_dwordx4 v[{52+8*r}:{55+8*r}], v3, s[24:27], s34 offen offset:1024")
            A("s_add_u32 s34, s34, 2048")
        for i in range(16):
            A(f"buffer_store_dwordx4 v[40:43], v44, s[16:19], s32 offen sc1")
            A(f"s_add_u32 s32, s32, 4096")
        A("s_waitcnt vmcnt(16)")
        for r in range(4):
            for i in range(8):
                A(f"v_lshlrev_b32 v{16+2*i}, 16, v{48+8*r+i}")
                A(f"v_and_b32 v{17+2*i}, 0xffff0000, v{48+8*r+i}")
            ln_core(A, 16, 35, 3, " sc1")
            A("s_add_u32 s35, s35, 2048")
            A("s_nop 1")
        A("s_cmp_eq_u32 s30, 8")
        A(f"s_cbranch_scc0 {L('in_nz')}")
        for r in range(8, 12): A(f"v_mov_b32 v{r}, 0")
        A(f"s_mov_b32 s32, {WS_CNT}")
        for i in range(11):
            A(f"buffer_store_dwordx4 v[8:11], v44, s[16:19], s32 offen sc1")
            A(f"s_add_u32 s32, s32, 4096")
        A("s_waitcnt vmcnt(0)")
        for r in range(4): A(f"v_mov_b32 v{8+r}, {ready[r]:#x}")
        A(f"s_mov_b32 s32, {WS_RDY}")
        A("v_cmp_eq_u32 vcc, 0, v0"); A("s_and_b64 exec, exec, vcc")
        A(f"buffer_store_dwordx4 v[8:11], v44, s[16:19], s32 offen sc1")
        A("s_mov_b64 exec, -1")
        A.label(L('in_nz'))
        A("s_cmp_ge_u32 s30, 8")
        A(f"s_cbranch_scc1 {L('in_end')}")
        A(f"""
        v_lshrrev_b32 v1, 6, v0
        v_and_b32 v4, 7, v2
        v_lshlrev_b32 v4, 11, v4
        v_lshrrev_b32 v5, 4, v2
        v_lshl_add_u32 v4, v5, 5, v4
        v_bfe_u32 v5, v2, 3, 1
        v_lshl_add_u32 v4, v5, 4, v4
        v_lshl_add_u32 v4, v1, 7, v4
        s_lshl_b32 s32, s30, 14
        s_add_u32 s32, s32, {WS_CH + CH_MEM}
        """)
        for i in range(4):
            A(f"buffer_load_dwordx4 v[{48+4*i}:{51+4*i}], v4, s[36:39], 0 offen offset:{i*512}")
        A("s_waitcnt vmcnt(0)")
        for r in range(48, 64): A(f"v_min_u32 v{r}, -2, v{r}")
        for i in range(4):
            A(f"buffer_store_dwordx4 v[{48+4*i}:{51+4*i}], v44, s[16:19], s32 offen sc1")
            A(f"s_add_u32 s32, s32, 4096")
        A.label(L('in_end'))
    return init
```

```python
from layout import *
from k_engine import *
def make_schedule(modes="BBBBBBBBMMMMMFFE", verbose=False, only=None, pre=True, bigM=9, **kw):
    assert modes[14] == 'F' and modes[15] in 'FE' and 'E' not in modes[:15]
    inst = []
    def add(key, pr, t, a, done, b0, bxs, bts, cnt, req, succ, nsucc=1, ready=False, var=0):
        inst.append(dict(key=key, pr=pr, t=t, a=a, done=done, b0=b0, bxs=bxs, bts=bts, cnt=cnt, req=req, succ=succ, nsucc=nsucc, ready=ready, var=var))
    k = 0
    for rt in range(4):
        for kv in range(2): add(None, (0, k), T_KVS, rt, C_KVG + rt, 32 * kv, 2, 0, 4, 0, None, ready=True); k += 1
    order = [('kv', 2), ('kv', 3), ('q', 0), ('kv', 4), ('q', 1), ('kv', 5), ('q', 2), ('kv', 6), ('q', 3), ('kv', 7), ('q', 4), ('q', 5), ('q', 6), ('q', 7)]
    for kind, rb in order:
        late = (kind == 'q' and rb >= 3) or (kind == 'kv' and rb >= 6)
        pr = (2, k) if late else (0, k)
        if kind == 'kv':
            add(None, pr, T_KVL, rb, C_KV + rb, 0, 1, 0, 2, 32, ('q', rb), ready=True); add(None, (pr[0], k + 0.5), T_KVL, rb, C_KV + rb, 16, 1, 0, 2, 32, ('q', rb), ready=True)
        else: add(('q', rb), pr, T_QO, rb, C_QO + rb, 32, 1, 0, 2, 16, ('at', 2 * rb), nsucc=3, ready=(rb < 2))
        k += 1
    D = {'B': (6, 26, 4, 15, 23, 3), 'M': (6, 14.5, 4, 9, 13, 3), 'F': (3.8, 6.2, 2.4, 6.2, 5.8, 2.0), 'E': (3.8, 4.2, 2.6, 5, 4.2, 2.2)}
    for g in range(16):
        m = modes[g]; d = D[m]
        rem = [sum(d[i:]) + 0.8 * (5 - i) for i in range(6)]
        P = (lambda i: (-0.5, i, g)) if (g >= 14 and pre) else (lambda i: (1, -rem[i], g))
        big = m == 'B' or (m == 'M' and g < bigM)
        if big: add(('at', g), (-1, g), T_AT, g, C_AT + g, 0, 1, 0, 2, 16, ('wo', g), var=1)
        else:   add(('at', g), (-1, g), T_AT, g, C_AT + g, 0, 2, 0, 4, 32, ('wo', g))
        np2 = None
        if m == 'E':
            np_, np2, nf = 8, 7, 56
            add(('wo', g), P(1), T_QA, g, C_WOS + g, 0, 4, 0, 16, 128, ('ln', g))
            add(('f1', g), P(3), T_F1S, g, C_F1S + g, 0, 0, 3, 7, nf, ('f2', g))
            add(('f2', g), P(4), T_LN, g, C_F2S + g, 0, 4, 0, 14, 112, ('fin', g))
        elif m == 'F':
            np_, ng, nf = 4, 64, 56
            add(('wo', g), P(1), T_WOS, g, C_WOS + g, 0, 3, 0, 8, ng, ('ln', g))
            add(('f1', g), P(3), T_F1S, g, C_F1S + g, 0, 0, 3, 7, nf, ('f2', g))
            add(('f2', g), P(4), T_F2S, g, C_F2S + g, 0, 3, 0, 8, ng, ('fin', g))
        else:
            ls = 0 if m == 'B' else 1; np_ = 1 << ls; ng = 8 * np_; nf = 28
            add(('wo', g), P(1), T_WO, g, C_WOS + g, ls << 5, 0, 3, np_, ng, ('ln', g))
            if m == 'B':
                if g % 2 == 0: add(('f1', g), P(3), T_F1, g // 2, C_F1S + g, 0, 0, 3, 4, nf, ('f2', g), nsucc=3, var=1)
            else: add(('f1', g), P(3), T_F1, g, C_F1S + g, 0, 0, 3, 4, nf, ('f2', g))
            add(('f2', g), P(4), T_F2, g, C_F2S + g, ls << 5, 0, 3, np_, ng, ('fin', g))
        if m == 'B': add(('ln', g), P(2), T_LNR, g, C_LNR + (g & ~1), 0, 0, 3, 1, 16, ('f1', g & ~1), var=1)
        elif big:    add(('ln', g), P(2), T_LNR, g, C_LNR + g, (np_ - 1) << 5, 0, 3, 1, 8, ('f1', g), var=1)
        else:        add(('ln', g), P(2), T_LNR, g, C_LNR + g, (np_ - 1) << 5, 0, 3, 4, 32, ('f1', g))
        if big: add(('fin', g), P(5), T_FIN, g, C_SINK, (np_ - 1) << 5, 0, 3, 1, 0, None, var=1)
        else:   add(('fin', g), P(5), T_FIN, g, C_SINK, ((np2 or np_) - 1) << 5, 0, 3, 4, 0, None)
    inst.sort(key=lambda x: x['pr'])
    assert len(inst) <= 128 and all(inst[g]['key'] == ('at', g) for g in range(16))
    return inst
def ready_init(inst):
    m = 0
    for i, x in enumerate(inst):
        if x['ready']: m |= 1 << i
    return [(m >> (32 * k)) & 0xffffffff for k in range(4)]
def encode(inst):
    idx = {x['key']: i for i, x in enumerate(inst) if x['key']}
    words = []
    for x in inst:
        s = idx[x['succ']] if x['succ'] else 0
        pred = [p for p in inst if p['succ'] == x['key'] and x['key'] and p['t'] not in (T_QO, T_KVL)]
        dep = (pred[0]['done'] | (pred[0]['req'] - 1) << 8) if pred else 0
        words += [x['t'] | x['a'] << 4 | x['done'] << 8 | (x['b0'] >> 4) << 16 | x['bxs'] << 20 | x['bts'] << 23 | x['cnt'] << 25,
                  (x['req'] if x['succ'] else 0) | s << 8 | (x['nsucc'] if x['succ'] else 0) << 16 | x['var'] << 24]
        if x['nsucc'] == 3 and x['succ'] and x['succ'][0] == 'f2': assert idx[('f2', x['succ'][1] + 1)] == s + 1 and (s & 31) != 31
    words += [0, 0] * (128 - len(inst))
    return 64, words

def exh_init(inst):
    m = 0
    for i in range(len(inst), 128): m |= 1 << i
    return m
```

```python
import sys
from asmlib import *
from layout import *
from k_misc import gen_init
from k_chain5 import gen_chain
from k_engine import gen_worker
import sched4 as sched
NAME = "sequential_preLN__memory_aug_recurrent_mem_tr__dense_activation_silu__prompt"
def build(out, stamp=False, chain_kw={}, sched_kw={}, aslist=True, eng_kw={}):
    ref = open(f"cdna_kernels/{NAME}.s.ref").read().split("\n")
    head = [l for l in ref if l.startswith(";") and "@launch" not in l and "Override launch" not in l and "grid=ceil" not in l]
    lists = sched.make_schedule(**sched_kw)
    MAXT, words = sched.encode(lists)
    A = Asm()
    A.raw('.amdgcn_target "amdgcn-amd-amdhsa--gfx950"')
    K = NAME + "_kernel"
    def worker(A, L, rp, rs): gen_worker(A, L, "main_tasks", MAXT, wstamp=stamp, exh0=sched.exh_init(lists), repair=rp, repair_stub=rs, premask=0x3ff << 14, **eng_kw)
    def after(A, L):
        A.raw(".p2align 4"); A.raw(".type main_tasks,@object"); A.raw("main_tasks:")
        for i in range(0, len(words), 8):
            A.raw("    .long " + ", ".join(f"{w:#x}" for w in words[i:i+8]))
        A.raw(f".size main_tasks, {len(words)*4}")
    kw = dict(nW=32, dlyA=2, dlyC=3); kw.update(chain_kw)
    A2 = A
    gen_chain(A, "mk", engine=True, worker=worker, after=after, stamp=stamp, init=gen_init(sched.ready_init(lists)), **kw)
    lds = LDS_TAB + 64
    kernel_desc(A, K, 512, 102, accum=256)
    txt = compress(A.text())
    txt = txt.replace(".globl mk\n", f".globl {K}\n").replace(".type mk,@function\nmk:\n", f".type {K},@function\n{K}:\n")
    if aslist: hdr = head + [f"; @launch kernel={K} grid=(256,1,1) block=(256,1,1) lds={lds}"]
    else: hdr = head + [f"; @launch grid=(256,1,1) block=(256,1,1) lds={lds}"]
    open(out, "w").write("\n".join(hdr) + "\n" + txt)
if __name__ == "__main__":
    build(sys.argv[1], stamp=("--stamp" in sys.argv), aslist=("--single" not in sys.argv))
```

```python
import sys
from asmlib import *
from layout import *
from k_misc import gen_init2
from k_chain5 import gen_chain
from k_engine import gen_worker
import sched4 as sched
NAME = "sequential_preLN__memory_aug_recurrent_mem_tr__dense_activation_silu__prompt"
def build(out, stamp=False, chain_kw={}, sched_kw={}, aslist=True, eng_kw={}, warm=False, early=True):
    ref = open(f"cdna_kernels/{NAME}.s.ref").read().split("\n")
    head = [l for l in ref if l.startswith(";") and "@launch" not in l and "Override launch" not in l and "grid=ceil" not in l]
    lists = sched.make_schedule(**sched_kw)
    MAXT, words = sched.encode(lists)
    A = Asm()
    A.raw('.amdgcn_target "amdgcn-amd-amdhsa--gfx950"')
    K = NAME + "_kernel"
    def worker(A, L, rp, rs): gen_worker(A, L, "main_tasks", MAXT, wstamp=stamp, exh0=sched.exh_init(lists), repair=rp, repair_stub=rs, premask=0x3ff << 14, tiny=bool(sched_kw.get('ntiny', 1)), **eng_kw)
    def after(A, L):
        A.raw(".p2align 4"); A.raw(".type main_tasks,@object"); A.raw("main_tasks:")
        for i in range(0, len(words), 8):
            A.raw("    .long " + ", ".join(f"{w:#x}" for w in words[i:i+8]))
        A.raw(f".size main_tasks, {len(words)*4}")
    kw = dict(nW=32, dlyA=2, dlyC=3, kv0n=128 if sched_kw.get('ntiny', 1) else 64); kw.update(chain_kw)
    rdy = sched.ready_init(lists); r1 = rdy; r2 = None
    if early:
        m = 0
        for i, x in enumerate(lists):
            if x['t'] == 1 and x['a'] == 0: m |= 1 << i
        r1 = [(m >> (32 * k)) & 0xffffffff for k in range(4)]; r2 = rdy
    kw['ready2'] = r2
    gen_chain(A, "mk", engine=True, worker=worker, after=after, stamp=stamp, init2=gen_init2(r1, warm), **kw)
    lds = LDS_TAB + 64
    kernel_desc(A, K, 512, 102, accum=256)
    txt = compress(A.text())
    txt = txt.replace(".globl mk\n", f".globl {K}\n").replace(".type mk,@function\nmk:\n", f".type {K},@function\n{K}:\n")
    if aslist: hdr = head + [f"; @launch kernel={K} grid=(256,1,1) block=(256,1,1) lds={lds}"]
    else: hdr = head + [f"; @launch grid=(256,1,1) block=(256,1,1) lds={lds}"]
    open(out, "w").write("\n".join(hdr) + "\n" + txt)
if __name__ == "__main__":
    build(sys.argv[1], stamp=("--stamp" in sys.argv), aslist=("--single" not in sys.argv))
```

```python
from asmlib import *
from layout import *
import math, struct

SCALE_LOG2E = (128 ** -0.5) * 1.4426950408889634
def f2u(x): return struct.unpack("<I", struct.pack("<f", x))[0]

def interleave(A, mf, side, per=3, start=0):
    k = 0
    for i, m in enumerate(mf):
        A(m)
        if i >= start:
            for _ in range(per):
                if k < len(side): A(side[k]); k += 1
    while k < len(side): A(side[k]); k += 1

def gen_chain(A, name="chain_kernel", dlyB=0, stamp=False, nsteps=64, POLLMAX=1 << 20, nokv=False, notouch=False, rounds=False, trace=False, worker=None, nW=16, dlyA=0, dlyC=0, engine=False, kv0n=128, after=None, NX=8, fakex=False, clk=False, vpos=1, init=None, init2=None, codepf=0, ready2=None):
    WX = lambda x: x if x < 4 else 28 + x
    QU = [128 // NX if x < NX else 0 for x in range(8)]; QB = [sum(QU[:x]) for x in range(8)]; q0 = 128 // NX
    kernel_begin(A, name)
    L = lambda s: f"{name}_{s}"
    SRD_WS, SRD_DBG, SRD_W = 16, 20, 24
    WS = f"s[{SRD_WS}:{SRD_WS+3}]"
    s_wave, s_xcc, s_tick, s_role, s_Q, s_j = 13, 12, 15, 34, 35, 36
    s_memsrc, s_qkvdst, s_qkvsrc, s_partdst, s_partsrc, s_memdst, s_k, s_step, s_pc, s_v = 40, 41, 42, 43, 44, 45, 46, 47, 48, 49
    s_hi, s_lo, s_c = 50, 52, 54
    t0, t1, t2 = 56, 57, 58
    s_nc, s_msk = 59, 95
    v_r3 = 20
    v_zero, vCnt, s_cnt = 4, 5, 88
    s_lastq, s_lastm, s_touch, s_partsrc2, s_touch2 = 90, 91, 92, 93, 94
    v_lane, v_idx = 2, 3
    v_offC, v_offA, v_l16, v_w1q, v_w1v, v_r1, v_d1, v_w2, v_r2, v_l4, v_dM, v_l16b = range(4, 16)
    v_t = 16
    vA = 24
    vVM = 40
    vK = 48
    vV = 80
    acc1 = 112
    vS = 136
    vP = 148
    vU = 160
    vUb = 192
    acc2 = 224
    vUm = 112
    vOne = 244
    vB = 136
    vPub = 252
    vTch = 128
    vTch = 156
    A(f"""
    s_cmp_ge_u32 s2, 256
    s_cbranch_scc1 {L('end')}
    """)
    if codepf:
        A("s_getpc_b64 s[30:31]")
        A("s_bfe_u32 s32, s2, 0x20003")
        A("s_lshl_b32 s32, s32, 16")
        A("v_lshlrev_b32 v4, 7, v0")
        A("v_add_u32 v4, s32, v4")
        A(f"v_min_u32 v5, {codepf - 256}, v4")
        A("v_add_u32 v4, 0x8000, v4")
        A(f"v_min_u32 v4, {codepf - 256}, v4")
        A("global_load_dword v6, v5, s[30:31]")
        A("global_load_dword v7, v4, s[30:31]")
    A(f"""
    {"s_memrealtime s[28:29]" if stamp else ""}
    s_load_dwordx2 s[4:5], s[0:1], {KA_DBG}
    s_load_dwordx2 s[6:7], s[0:1], {KA_WS}
    s_load_dwordx4 s[60:63], s[0:1], {KA_WQ}
    s_load_dwordx4 s[8:11], s[0:1], {KA_X}
    s_load_dwordx4 s[64:67], s[0:1], {KA_WV}
    s_getreg_b32 s{s_xcc}, hwreg(HW_REG_XCC_ID)
    s_and_b32 s{s_xcc}, s{s_xcc}, 7
    {"s_min_u32 s12, s12, 5" if fakex else ""}
    v_lshrrev_b32 v1, 6, v0
    v_and_b32 v{v_lane}, 63, v0
    s_nop 1
    v_readfirstlane_b32 s{s_wave}, v1
    s_waitcnt lgkmcnt(0)
    """)
    make_srd(A, SRD_DBG, 4, 256)
    if stamp: A("s_mov_b32 s3, s28")
    make_srd(A, SRD_WS, 6, WS_SIZE)
    DBG = f"s[{SRD_DBG}:{SRD_DBG+3}]"
    A(f"""
    s_lshl_b32 s{t0}, s{s_xcc}, 2
    s_add_u32 s{t1}, s{t0}, 112
    s_cmp_ge_u32 s{s_xcc}, 4
    s_cselect_b32 s{t0}, s{t1}, s{t0}
    v_mov_b32 v{v_t}, s{t0}
    v_mov_b32 v{v_t+1}, 1
    v_mov_b32 v{v_t+2}, 32
    v_mov_b32 v{v_t+3}, 1
    v_cmp_eq_u32 vcc, 0, v0
    s_and_saveexec_b64 s[32:33], vcc
    s_cbranch_execz {L('t0')}
    buffer_atomic_add v{v_t+1}, v{v_t}, {DBG}, 0 offen sc0
    {L('t0')}:
    s_mov_b64 exec, s[32:33]
    """)
    if init2: init2[0](A, L)
    if stamp: A('s_memrealtime s[40:41]')
    else: A("s_waitcnt vmcnt(0)")
    A(f"""
    v_cmp_eq_u32 vcc, 0, v0
    s_and_saveexec_b64 s[32:33], vcc
    s_cbranch_execz {L('t1')}
    v_mov_b32 v{v_t+4}, 0
    ds_write_b32 v{v_t+4}, v{v_t+1}
    s_waitcnt lgkmcnt(0)
    {L('t1')}:
    s_mov_b64 exec, s[32:33]
    """)
    if init2: init2[1](A, L)
    if stamp: A('s_memrealtime s[42:43]')
    def last_actions(a):
        A(f"buffer_store_dword v{a+3}, v{a+2}, {DBG}, 0 offen sc1")
        if ready2:
            A("s_mov_b64 exec, 15")
            A(f"v_lshlrev_b32 v{a}, 2, v{v_lane}")
            for k in range(4):
                A(f"s_mov_b32 s{t0}, {ready2[k]:#x}"); A(f"v_writelane_b32 v{a+1}, s{t0}, {k}")
            A(f"s_mov_b32 s{t0}, {WS_RDY}")
            A(f"buffer_atomic_or v{a+1}, v{a}, {WS}, s{t0} offen")
    def early_signal(a, tag):
        if not ready2: return
        A("s_cmp_ge_u32 s2, 16")
        A(f"s_cbranch_scc1 {L(tag+'_e')}")
        A(f"v_mov_b32 v{a}, 164"); A(f"v_mov_b32 v{a+1}, 1")
        A(f"buffer_atomic_add v{a+1}, v{a}, {DBG}, 0 offen sc0")
        A("s_waitcnt vmcnt(0)")
        A(f"v_readfirstlane_b32 s{t0}, v{a+1}")
        A(f"s_cmp_eq_u32 s{t0}, 15")
        A(f"s_cbranch_scc0 {L(tag+'_e')}")
        A(f"v_mov_b32 v{a}, 68"); A(f"v_mov_b32 v{a+1}, 1")
        A(f"buffer_store_dword v{a+1}, v{a}, {DBG}, 0 offen sc1")
        A("s_nop 1")
        A.label(L(tag + '_e'))
    def signal_init(tag):
        A(f"""
        s_barrier
        s_cmp_lg_u32 s{s_wave}, 0
        s_cbranch_scc1 {L(tag+'_s2')}
        s_mov_b64 exec, 1
        """)
        early_signal(v_t, tag)
        A(f"""
        v_mov_b32 v{v_t}, 160
        v_mov_b32 v{v_t+1}, 1
        v_mov_b32 v{v_t+2}, 64
        v_mov_b32 v{v_t+3}, 1
        buffer_atomic_add v{v_t+1}, v{v_t}, {DBG}, 0 offen sc0
        s_waitcnt vmcnt(0)
        v_readfirstlane_b32 s{t0}, v{v_t+1}
        s_cmp_eq_u32 s{t0}, 255
        s_cbranch_scc0 {L(tag+'_s1')}
        """)
        last_actions(v_t)
        A(f"""
        {L(tag+'_s1')}:
        s_mov_b64 exec, -1
        {L(tag+'_s2')}:
        """)
    A(f"""
    s_barrier
    v_mov_b32 v{v_t+4}, 0
    ds_read_b32 v{v_t+1}, v{v_t+4}
    s_waitcnt lgkmcnt(0)
    v_readfirstlane_b32 s{s_tick}, v{v_t+1}
    s_barrier
    s_mov_b32 s38, 1
    s_mul_i32 s{s_role}, s{s_xcc}, {q0}
    s_add_u32 s{s_role}, s{s_role}, s{s_tick}
    s_cmp_lt_u32 s{s_xcc}, {NX}
    s_cselect_b32 s71, {q0}, 0
    s_cmp_lt_u32 s{s_tick}, s71
    s_cbranch_scc1 {L('haverole')}
    s_sub_u32 s80, s{s_tick}, s71
    s_and_b32 s14, s80, 15
    s_lshl_b32 s{t0}, s{s_xcc}, 4
    s_add_u32 s14, s14, s{t0}
    s_mov_b32 s81, 1
    s_mov_b32 s71, s{s_xcc}
    """)
    def flagwait(tag, all_waves, off=64):
        A(f"v_mov_b32 v{v_t}, {off}")
        A(f"s_mov_b32 s{s_pc}, {POLLMAX}")
        A.label(L(tag))
        A(f"buffer_load_dword v{v_t+1}, v{v_t}, {DBG}, 0 offen sc1")
        A(f"s_sub_u32 s{s_pc}, s{s_pc}, 1")
        A(f"s_cbranch_scc1 {L('end')}")
        A("s_waitcnt vmcnt(0)")
        A(f"v_readfirstlane_b32 s{t0}, v{v_t+1}")
        A(f"s_cmp_lg_u32 s{t0}, 0")
        A(f"s_cbranch_scc1 {L(tag+'_ok')}")
        A("s_sleep 4")
        A(f"s_branch {L(tag)}")
        A.label(L(tag + '_ok'))
    if init2:
        A("s_waitcnt vmcnt(0)")
        if stamp: A('s_memrealtime s[44:45]')
        signal_init('ws')
        A(f"s_cmp_lg_u32 s{s_wave}, 0")
        A(f"s_cbranch_scc1 {L('i5')}")
        flagwait('iw2', False, 68 if ready2 else 64)
        A.label(L('i5'))
        A("s_barrier")
        if stamp:
            A("s_waitcnt lgkmcnt(0)")
            A("v_mov_b32 v4, s3"); A("v_mov_b32 v5, s40"); A("v_mov_b32 v6, s42"); A("v_mov_b32 v7, s44"); A("v_mov_b32 v8, 0")
            A("s_lshl_b32 s24, s14, 10"); A(f"s_add_u32 s24, s24, {WS_DUMMY + 65536}")
            A("s_mov_b64 exec, 1"); A(f"buffer_store_dwordx4 v[4:7], v8, {WS}, s24 offen"); A("s_mov_b64 exec, -1")
    if init:
        A(f"""
        v_mov_b32 v{v_t}, 44
        v_mov_b32 v{v_t+1}, 1
        v_cmp_eq_u32 vcc, 0, v0
        s_and_saveexec_b64 s[32:33], vcc
        s_cbranch_execz {L('i1')}
        buffer_atomic_add v{v_t+1}, v{v_t}, {DBG}, 0 offen sc0
        s_waitcnt vmcnt(0)
        v_mov_b32 v{v_t+4}, 0
        ds_write_b32 v{v_t+4}, v{v_t+1}
        s_waitcnt lgkmcnt(0)
        {L('i1')}:
        s_mov_b64 exec, s[32:33]
        s_barrier
        v_mov_b32 v{v_t+4}, 0
        ds_read_b32 v{v_t+1}, v{v_t+4}
        s_waitcnt lgkmcnt(0)
        v_readfirstlane_b32 s30, v{v_t+1}
        s_cmp_ge_u32 s30, 128
        s_cbranch_scc1 {L('i3')}
        """)
        init(A, L)
        A(f"""
        s_waitcnt vmcnt(0)
        s_barrier
        s_cmp_lg_u32 s{s_wave}, 0
        s_cbranch_scc1 {L('i4')}
        v_mov_b32 v{v_t}, 160
        v_mov_b32 v{v_t+1}, 1
        v_mov_b32 v{v_t+2}, 64
        v_mov_b32 v{v_t+3}, 1
        s_mov_b64 exec, 1
        buffer_atomic_add v{v_t+1}, v{v_t}, {DBG}, 0 offen sc0
        s_waitcnt vmcnt(0)
        v_readfirstlane_b32 s{t0}, v{v_t+1}
        s_cmp_eq_u32 s{t0}, 127
        s_cbranch_scc0 {L('i2')}
        buffer_store_dword v{v_t+3}, v{v_t+2}, {DBG}, 0 offen sc1
        {L('i2')}:
        s_mov_b64 exec, -1
        {L('i3')}:
        s_cmp_lg_u32 s{s_wave}, 0
        s_cbranch_scc1 {L('i4')}
        """)
        flagwait('iw', False)
        A.label(L('i4'))
        A("s_barrier")
    def repair(A, L2):
        D2 = "s[76:79]"
        A(f"s_cmp_eq_u32 s81, 0")
        A(f"s_cbranch_scc1 {L('rp_end')}")
        A(f"v_lshlrev_b32 v24, 2, v{v_lane}")
        A(f"buffer_load_dword v25, v24, {D2}, 0 offen sc1")
        A("s_waitcnt vmcnt(0)")
        A("s_mov_b32 s24, 0")
        for x in range(8):
            A(f"v_readlane_b32 s25, v25, {WX(x)}"); A("s_add_u32 s24, s24, s25")
        A("s_cmp_lt_u32 s24, 256")
        A(f"s_cbranch_scc1 {L('rp_end')}")
        A("s_mov_b32 s81, 0")
        A("s_mov_b32 s25, 0")
        A("s_mov_b32 s26, s80")
        for x in range(8):
            A(f"v_readlane_b32 s24, v25, {WX(x)}")
            A(f"s_max_u32 s27, s24, {QU[x]}")
            A(f"s_sub_u32 s27, s27, {QU[x]}")
            A(f"s_cmp_gt_u32 s71, {x}")
            A(f"s_cselect_b32 s27, s27, 0")
            A(f"s_add_u32 s26, s26, s27")
            A(f"s_min_u32 s24, s24, {QU[x]}")
            A(f"s_sub_u32 s24, {QU[x]}, s24")
            A(f"s_add_u32 s25, s25, s24")
        A("s_cmp_ge_u32 s26, s25")
        A(f"s_cbranch_scc1 {L('rp_end')}")
        for x in range(8):
            A(f"v_readlane_b32 s24, v25, {WX(x)}")
            A(f"s_min_u32 s24, s24, {QU[x]}")
            A(f"s_add_u32 s8, s24, s26")
            A(f"s_add_u32 s8, s8, {QB[x]}")
            A(f"s_sub_u32 s24, {QU[x]}, s24")
            A(f"s_cmp_lt_u32 s26, s24")
            A(f"s_cbranch_scc1 {L('rp_take')}")
            A(f"s_sub_u32 s26, s26, s24")
        A(f"s_branch {L('rp_end')}")
        A.label(L('rp_take'))
        A("s_lshl_b32 s8, s8, 16")
        A("s_or_b32 s8, s8, 15")
        A(f"s_branch {L('bc')}")
        A.label(L('rp_end'))
    def repair_stub(A, L2):
        A.label(L('j_rep'))
        A(f"s_mov_b32 s{s_role}, s11")
        A("s_mov_b32 s38, 0")
        A(f"s_mov_b32 s{SRD_DBG}, s76"); A(f"s_mov_b32 s{SRD_DBG+1}, s77"); A(f"s_mov_b32 s{SRD_DBG+2}, 256"); A(f"s_mov_b32 s{SRD_DBG+3}, 0x00020000")
        A("s_barrier")
        A(f"s_branch {L('haverole')}")
    A.label(L('wentry'))
    A(f"s_mov_b32 s76, s{SRD_DBG}"); A(f"s_mov_b32 s77, s{SRD_DBG+1}"); A("s_mov_b32 s78, 256"); A("s_mov_b32 s79, 0x00020000")
    if worker: worker(A, L, repair, repair_stub)
    A(f"s_branch {L('end')}")
    A.label(L('haverole'))
    A(f"""
    s_lshr_b32 s{s_Q}, s{s_role}, 4
    s_and_b32 s{s_j}, s{s_role}, 15
    s_mov_b32 s{s_hi}, 0
    s_mov_b32 s{s_hi+1}, -1
    s_mov_b32 s{s_lo}, -1
    s_mov_b32 s{s_lo+1}, 0
    s_mov_b32 s{s_c}, {f2u(SCALE_LOG2E):#x}
    s_mov_b32 s{s_c+1}, {f2u(SCALE_LOG2E):#x}
    s_mov_b32 s{s_nc}, {f2u(-SCALE_LOG2E):#x}
    s_mov_b32 s{s_msk}, 0xffff0000
    """)
    n_, g_ = v_t, v_t + 1
    a, b, c, d_ = v_t + 2, v_t + 3, v_t + 4, v_t + 5
    A(f"""
    v_and_b32 v{n_}, 15, v{v_lane}
    v_lshrrev_b32 v{g_}, 4, v{v_lane}
    v_lshlrev_b32 v{v_l16}, 4, v{v_lane}
    v_add_u32 v{v_l16b}, 0x1000, v{v_l16}
    v_lshlrev_b32 v{v_l4}, 2, v{v_lane}
    v_lshlrev_b32 v{v_d1}, 3, v{v_lane}
    v_mov_b32 v{v_idx}, 0x44444444
    v_mov_b32 v{a}, 0xeeeeeeee
    v_cmp_lt_u32 vcc, 7, v{n_}
    s_nop 1
    v_cndmask_b32 v{v_idx}, v{v_idx}, v{a}, vcc
    v_lshrrev_b32 v{d_}, 5, v{v_lane}          ; t
    v_and_b32 v{c}, 1, v{g_}                   ; g'
    v_lshrrev_b32 v{a}, 2, v{n_}
    v_lshl_add_u32 v{b}, v{a}, 1, v{c}         ; 2G+g'
    v_mul_u32_u24 v{a}, 144, v{b}              ; (2G+g')*(128+16)
    v_lshl_add_u32 v{a}, v{d_}, 4, v{a}
    v_and_b32 v{b}, 3, v{n_}
    v_lshl_add_u32 v{a}, v{b}, 2, v{a}
    s_mul_i32 s{t0}, s{s_wave}, 3584
    v_add_u32 v{v_w1q}, s{t0}, v{a}
    v_lshrrev_b32 v{a}, 3, v{n_}
    v_lshl_add_u32 v{a}, v{a}, 2, v{c}
    v_bfe_u32 v{b}, v{n_}, 1, 1
    v_lshl_add_u32 v{a}, v{b}, 1, v{a}
    v_mul_u32_u24 v{a}, 144, v{a}
    v_bfe_u32 v{b}, v{n_}, 2, 1
    v_lshl_add_u32 v{a}, v{b}, 4, v{a}
    v_lshl_add_u32 v{a}, v{d_}, 3, v{a}
    v_and_b32 v{b}, 1, v{n_}
    v_lshl_add_u32 v{a}, v{b}, 2, v{a}
    s_add_u32 s{t0}, s{t0}, 2304
    v_add_u32 v{v_w1v}, s{t0}, v{a}
    v_lshrrev_b32 v{a}, 3, v{v_lane}
    v_lshl_add_u32 v{a}, v{a}, 4, v{v_l16}
    s_mul_i32 s{t0}, s{s_wave}, 1152
    v_add_u32 v{v_r1}, s{t0}, v{a}
    v_lshlrev_b32 v{a}, 8, v{g_}
    v_lshl_add_u32 v{a}, v{n_}, 3, v{a}
    s_cmp_eq_u32 s{s_wave}, 2
    s_cbranch_scc1 {L('d1v')}
    v_mov_b32 v{v_d1}, v{a}
    s_cmp_eq_u32 s{s_wave}, 3
    s_cbranch_scc0 {L('d1v')}
    v_lshrrev_b32 v{a}, 3, v{v_lane}
    v_and_b32 v{b}, 7, v{v_lane}
    v_lshlrev_b32 v{v_d1}, 8, v{a}
    v_lshl_add_u32 v{v_d1}, v{b}, 3, v{v_d1}
    v_lshrrev_b32 v{v_r1}, 2, v{b}
    v_lshlrev_b32 v{v_r1}, 2, v{v_r1}
    v_lshrrev_b32 v{v_offC}, 2, v{a}
    v_add_u32 v{v_r1}, v{v_r1}, v{v_offC}
    v_mul_u32_u24 v{v_r1}, 144, v{v_r1}
    v_and_b32 v{a}, 3, v{a}
    v_lshl_add_u32 v{v_r1}, v{a}, 5, v{v_r1}
    v_and_b32 v{b}, 3, v{b}
    v_lshl_add_u32 v{v_r1}, v{b}, 3, v{v_r1}
    v_add_u32 v{v_r1}, 2304, v{v_r1}
    {L('d1v')}:
    v_lshrrev_b32 v{a}, 3, v{n_}
    v_lshl_add_u32 v{a}, v{a}, 1, v{c}
    v_mul_u32_u24 v{a}, 160, v{a}
    v_mul_u32_u24 v{b}, 640, v{d_}
    v_add_u32 v{a}, v{a}, v{b}
    v_and_b32 v{b}, 7, v{n_}
    v_lshl_add_u32 v{a}, v{b}, 2, v{a}
    s_mul_i32 s{t0}, s{s_wave}, 2560
    s_add_u32 s{t0}, s{t0}, 14336
    v_add_u32 v{v_w2}, s{t0}, v{a}
    v_lshlrev_b32 v{a}, 3, v{v_lane}
    v_lshl_add_u32 v{a}, v{g_}, 5, v{a}
    s_mul_i32 s{t0}, s{s_wave}, 640
    s_add_u32 s{t0}, s{t0}, 14336
    v_add_u32 v{v_r2}, s{t0}, v{a}
    """)
    for r in range(8):
        if r in (0, 2, 4, 6): A(f"v_mov_b32 v{vOne+r}, 0x3f803f80")
        else: A(f"v_mov_b32 v{vOne+r}, 0")
    A(f"s_mov_b64 exec, s[{s_lo}:{s_lo+1}]")
    A(f"v_mov_b32 v{vOne+5}, 0x3f803f80"); A(f"v_mov_b32 v{vOne+7}, 0x3f803f80")
    A("s_mov_b64 exec, -1")
    for nt in range(4):
        A(f"v_mov_b32 v{vUb+8*nt+1}, 0"); A(f"v_mov_b32 v{vUb+8*nt+3}, 0")
    A(f"""
    s_lshl_b32 s{s_memsrc}, s{s_Q}, 14
    s_lshl_b32 s{t0}, s{s_wave}, 12
    s_add_u32 s{s_memsrc}, s{s_memsrc}, s{t0}
    s_add_u32 s{s_memsrc}, s{s_memsrc}, {WS_CH + CH_MEM}
    s_mul_i32 s{t1}, s{s_Q}, {4*HB}
    s_add_u32 s{t1}, s{t1}, {WS_CH + CH_QKV}
    s_mul_i32 s{t0}, s{s_wave}, {HB}
    s_add_u32 s{s_qkvsrc}, s{t1}, s{t0}
    s_lshr_b32 s{t0}, s{s_j}, 2
    s_mul_i32 s{t0}, s{t0}, {HB}
    s_add_u32 s{t1}, s{t1}, s{t0}
    s_and_b32 s{t0}, s{s_j}, 3
    s_lshl_b32 s{t2}, s{t0}, 10
    s_add_u32 s{s_qkvdst}, s{t1}, s{t2}
    s_lshl_b32 s{t2}, s{s_wave}, 7
    s_add_u32 s{s_qkvdst}, s{s_qkvdst}, s{t2}
    s_lshl_b32 s{t2}, s{t0}, 9
    s_add_u32 s{t2}, s{t2}, s{t1}
    s_add_u32 s{t2}, s{t2}, 4096
    s_cmp_eq_u32 s{s_wave}, 2
    s_cselect_b32 s{s_qkvdst}, s{t2}, s{s_qkvdst}
    s_lshl_b32 s{t2}, s{t0}, 6
    s_add_u32 s{t2}, s{t2}, s{t1}
    s_add_u32 s{t2}, s{t2}, 6144
    s_cmp_eq_u32 s{s_wave}, 3
    s_cselect_b32 s{s_qkvdst}, s{t2}, s{s_qkvdst}
    s_lshl_b32 s{t0}, s{s_j}, 13
    s_add_u32 s{t0}, s{t0}, {WS_CH + CH_PART}
    s_lshl_b32 s{t1}, s{s_wave}, 8
    s_add_u32 s{s_partsrc}, s{t0}, s{t1}
    s_add_u32 s{s_partsrc2}, s{s_partsrc}, 4096
    s_lshl_b32 s{t2}, s{s_Q}, 10
    s_add_u32 s{s_partdst}, s{s_partsrc}, s{t2}
    s_lshl_b32 s{s_memdst}, s{s_Q}, 14
    s_lshl_b32 s{t0}, s{s_wave}, 8
    s_add_u32 s{s_memdst}, s{s_memdst}, s{t0}
    s_lshl_b32 s{t0}, s{s_j}, 10
    s_add_u32 s{s_memdst}, s{s_memdst}, s{t0}
    s_add_u32 s{s_memdst}, s{s_memdst}, {WS_CH + CH_MEM + CH_STEP}
    s_lshl_b32 s{t0}, s{s_Q}, 2
    s_add_u32 s{t0}, s{t0}, s{s_wave}
    s_lshl_b32 s{t0}, s{t0}, 13
    s_add_u32 s{s_k}, s{t0}, {WS_K}
    s_add_u32 s{s_v}, s{t0}, {WS_VT}
    s_lshl_b32 s{s_touch}, s{s_Q}, 15
    s_lshl_b32 s{t0}, s{s_j}, 11
    s_add_u32 s{s_touch}, s{s_touch}, s{t0}
    s_and_b32 s{t0}, s{s_wave}, 1
    s_lshl_b32 s{t0}, s{t0}, 10
    s_add_u32 s{s_touch}, s{s_touch}, s{t0}
    s_mov_b32 s{t0}, {WS_K + 2*262144}
    s_mov_b32 s{t1}, {WS_VT + 2*262144}
    s_cmp_ge_u32 s{s_wave}, 2
    s_cselect_b32 s{t0}, s{t1}, s{t0}
    s_add_u32 s{s_touch}, s{s_touch}, s{t0}
    s_mul_i32 s{t0}, s{s_role}, 2048
    s_lshl_b32 s{t1}, s{s_wave}, 10
    s_add_u32 s{t0}, s{t0}, s{t1}
    s_add_u32 s{t0}, s{t0}, {WS_CH + CH_QKV + CH_STEP}
    s_lshl_b32 s{t1}, s{s_role}, 10
    s_add_u32 s{t1}, s{t1}, {WS_CH + CH_MEM + 2*CH_STEP}
    s_cmp_ge_u32 s{s_wave}, 2
    s_cselect_b32 s{s_touch2}, s{t1}, s{t0}
    s_mov_b32 s{s_lastq}, {WS_DUMMY}
    s_mov_b32 s{s_lastm}, {WS_DUMMY}
    """)
    for r in range(3): A(f"v_mov_b32 v{vPub+r}, 0")
    LW = 24576
    vq, vo, vtr1, vtr2 = vA, vA + 1, vA + 2, vA + 4
    A(f"""
    v_lshrrev_b32 v{a}, 2, v{v_lane}
    v_lshlrev_b32 v{a}, 13, v{a}
    v_and_b32 v{b}, 3, v{v_lane}
    v_lshl_add_u32 v{vq}, v{b}, 4, v{a}
    v_lshrrev_b32 v{a}, 3, v{v_lane}
    v_lshlrev_b32 v{a}, 11, v{a}
    v_and_b32 v{b}, 7, v{v_lane}
    v_lshl_add_u32 v{vo}, v{b}, 4, v{a}
    s_lshl_b32 s68, s{s_wave}, 15
    s_add_u32 s68, s68, {LW}
    s_lshl_b32 s69, s{s_wave}, 21
    s_lshl_b32 s{t0}, s{s_role}, 6
    s_add_u32 s69, s69, s{t0}
    s_lshl_b32 s70, s{s_Q}, 2
    s_add_u32 s70, s70, s{s_wave}
    s_lshl_b32 s70, s70, 18
    s_lshl_b32 s{t0}, s{s_j}, 7
    s_add_u32 s70, s70, s{t0}
    v_lshrrev_b32 v{d_}, 2, v{n_}            ; r
    v_and_b32 v{b}, 1, v{d_}
    v_lshrrev_b32 v{a}, 1, v{d_}
    v_lshl_add_u32 v{c}, v{a}, 3, v{b}
    v_lshrrev_b32 v{vtr1+1}, 1, v{g_}
    v_lshl_add_u32 v{c}, v{vtr1+1}, 4, v{c}
    v_and_b32 v{vtr2+1}, 1, v{g_}
    v_lshl_add_u32 v{c}, v{vtr2+1}, 2, v{c}
    v_lshlrev_b32 v{c}, 6, v{c}
    v_and_b32 v{vtr1}, 3, v{n_}
    v_lshlrev_b32 v{vtr1}, 3, v{vtr1}
    v_add_u32 v{c}, v{c}, v{vtr1}
    v_mov_b32 v{vtr2}, v{vtr1}
    v_add_u32 v{vtr1}, s68, v{c}
    v_lshl_add_u32 v{c}, v{g_}, 2, v{d_}
    v_lshlrev_b32 v{c}, 7, v{c}
    v_add_u32 v{c}, v{c}, v{vtr2}
    v_add_u32 v{vtr2}, s68, v{c}
    """)
    ptrs = [60, 62, 64, 66]
    def wdma(m):
        make_srd(A, SRD_W, ptrs[m], 8 << 20)
        reg = (m & 1) * 16384
        for i in range(16):
            A(f"s_add_u32 m0, s68, {reg + i*1024}")
            if m < 3:
                A(f"s_add_u32 s{t0}, s69, {i*16*8192}")
                A(f"buffer_load_dwordx4 v{vq}, s[{SRD_W}:{SRD_W+3}], s{t0} offen lds")
            else:
                A(f"s_add_u32 s{t0}, s70, {i*8*2048}")
                A(f"buffer_load_dwordx4 v{vo}, s[{SRD_W}:{SRD_W+3}], s{t0} offen lds")
    def aW1(tile, ks): return (tile * 4 + ks) * 8
    def aW2(nt, ks): return 192 + (nt * 2 + ks) * 8
    def wtr(m):
        reg = (m & 1) * 16384
        cnt = 0
        for t in range(2 if m < 3 else 4):
            for ks in range(4 if m < 3 else 2):
                for h in range(2):
                    for u in range(2):
                        if m < 3:
                            d = aW1(2 * m + t, ks) + 4 * h + 2 * u
                            off = reg + (64 * ks + 32 * h + 2 * u) * 64 + t * 32
                            A(f"ds_read_b64_tr_b16 a[{d}:{d+1}], v{vtr1} offset:{off}")
                        else:
                            d = aW2(t, ks) + 4 * h + 2 * u
                            off = reg + (64 * ks + 32 * h + 16 * u) * 128 + t * 32
                            A(f"ds_read_b64_tr_b16 a[{d}:{d+1}], v{vtr2} offset:{off}")
                        cnt += 1
                        if cnt % 8 == 0: A("s_waitcnt lgkmcnt(0)")
    def kvload(base, sreg):
        ops = []
        for i in range(8):
            vo_ = v_l16 if i < 4 else v_l16b
            ops.append(f"buffer_load_dwordx4 v[{base+4*i}:{base+4*i+3}], v{vo_}, {WS}, s{sreg} offen offset:{(i%4)*1024} sc1")
        return ops
    def maxops(regs, tmp):
        rest = list(regs); ops = []
        ops.append(f"v_max3_u32 v{tmp}, v{rest[0]}, v{rest[1]}, v{rest[2]}"); rest = rest[3:]
        while len(rest) >= 2:
            ops.append(f"v_max3_u32 v{tmp}, v{tmp}, v{rest[0]}, v{rest[1]}"); rest = rest[2:]
        if rest: ops.append(f"v_max_u32 v{tmp}, v{tmp}, v{rest[0]}")
        return ops
    def checkops(regs, lab, tmp):
        return maxops(regs, tmp) + [f"v_cmp_eq_u32 vcc, -1, v{tmp}", f"s_cbranch_vccnz {lab}"]
    def hook(tag):
        A(f"s_and_b32 s{t0}, s{s_pc}, 63")
        A(f"s_cmp_eq_u32 s{t0}, 0")
        A(f"s_cbranch_scc0 {L(tag+'_h')}")
        A("buffer_wbl2 sc1")
        A.label(L(tag + '_h'))
    def stamp_t(k):
        if trace:
            A("s_memtime s[72:73]")
            A(f"s_and_b32 s74, s{s_step}, 7"); A("s_lshl_b32 s74, s74, 3"); A(f"s_add_u32 s74, s74, {k}")
            A("s_mov_b32 m0, s74")
            A("s_waitcnt lgkmcnt(0)")
            A("v_writelane_b32 v255, s72, m0")
        elif stamp and rounds and k in (0, 2, 4):
            A(f"s_sub_u32 s74, {POLLMAX}, s{s_pc}"); A(f"s_add_u32 s{80+k}, s{80+k}, s74")
        elif stamp and not rounds:
            A("s_memtime s[72:73]"); A("s_waitcnt lgkmcnt(0)")
            A("s_sub_u32 s74, s72, s76"); A(f"s_add_u32 s{80+k}, s{80+k}, s74"); A("s_mov_b32 s76, s72")
    def utok_ops():
        mf = []
        for kk in range(4):
            for T in range(2):
                for nt in range(4):
                    d = vU + (T * 4 + nt) * 4; w = aW2(nt, kk >> 1) + 4 * (kk & 1); va = vV + (T * 4 + kk) * 4
                    C = "0" if kk == 0 else f"v[{d}:{d+3}]"
                    mf.append(f"v_mfma_f32_16x16x32_bf16 v[{d}:{d+3}], v[{va}:{va+3}], a[{w}:{w+3}], {C}")
        cv = []
        for T in range(2):
            for nt in range(4):
                d = vU + (T * 4 + nt) * 4
                cv.append(f"v_cvt_pk_bf16_f32 v{vUb+8*nt+4*T}, v{d}, v{d+1}")
                cv.append(f"v_cvt_pk_bf16_f32 v{vUb+8*nt+4*T+2}, v{d+2}, v{d+3}")
        return mf, cv
    def halves(d0, d1):
        return [f"v_permlane32_swap_b32 v{d0+r}, v{d1+r}" for r in range(4)] + [f"v_add_f32 v{d0+r}, v{d0+r}, v{d1+r}" for r in range(4)]
    if init2:
        A("s_cmp_eq_u32 s38, 0")
        A(f"s_cbranch_scc1 {L('cs1')}")
        A("s_waitcnt vmcnt(0)")
        A("s_barrier")
        A(f"s_cmp_lg_u32 s{s_wave}, 0")
        A(f"s_cselect_b32 s38, 0, 1")
        A(f"s_cbranch_scc1 {L('cs1')}")
        A("s_mov_b64 exec, 1")
        early_signal(100, 'cs')
        A("v_mov_b32 v100, 160"); A("v_mov_b32 v101, 1"); A("v_mov_b32 v102, 64"); A("v_mov_b32 v103, 1")
        A(f"buffer_atomic_add v101, v100, {DBG}, 0 offen sc0")
        A("s_mov_b64 exec, -1")
        A.label(L('cs1'))
    wdma(0); wdma(1)
    if init2:
        A("s_cmp_eq_u32 s38, 0")
        A(f"s_cbranch_scc1 {L('cs2')}")
        A("s_waitcnt vmcnt(32)")
        A(f"v_readfirstlane_b32 s{t0}, v101")
        A(f"s_cmp_eq_u32 s{t0}, 255")
        A(f"s_cbranch_scc0 {L('cs2')}")
        A("s_mov_b64 exec, 1")
        last_actions(100)
        A("s_mov_b64 exec, -1")
        A("s_waitcnt vmcnt(0)")
        A.label(L('cs2'))
    A("s_waitcnt vmcnt(16)"); wtr(0); wdma(2)
    A("s_waitcnt vmcnt(16)"); wtr(1); wdma(3)
    A("s_waitcnt vmcnt(16)"); wtr(2)
    A("s_waitcnt vmcnt(0)"); wtr(3)
    def cntwait(tag, sidx, val):
        A(f"s_mov_b32 s{s_pc}, {POLLMAX}")
        A.label(L(tag))
        A(f"buffer_load_dword v{vCnt}, v{v_zero}, {WS}, s{sidx} offen sc1")
        A(f"s_sub_u32 s{s_pc}, s{s_pc}, 1")
        A(f"s_cbranch_scc1 {L('bail')}")
        A("s_waitcnt vmcnt(0)")
        A(f"v_readfirstlane_b32 s{t0}, v{vCnt}")
        A(f"s_cmp_ge_u32 s{t0}, {val}")
        A(f"s_cbranch_scc1 {L(tag+'_ok')}")
        A("s_sleep 2")
        A(f"s_branch {L(tag)}")
        A.label(L(tag + '_ok'))
    A(f"v_mov_b32 v{v_zero}, 0")
    if stamp:
        A("s_memrealtime s[72:73]"); A("s_waitcnt lgkmcnt(0)"); A("s_mov_b32 s75, s72")
    A("s_mov_b32 s89, 64")
    A(f"s_mov_b32 s{s_cnt}, {WS_CNT + C_KVG*128}")
    if init or init2: flagwait('cw', True)
    if engine: cntwait('kv0', s_cnt, kv0n)
    for o in kvload(vK, s_k): A(o)
    for o in kvload(vV, s_v): A(o)
    A("s_waitcnt vmcnt(0)")
    mf, cv = utok_ops()
    for o in mf: A(o)
    A("s_nop 7")
    for o in cv: A(o)
    A(f"s_add_u32 s{s_v}, s{s_v}, 262144")
    for r in range(24): A(f"v_mov_b32 v{acc1+r}, 0")
    A(f"s_mov_b32 s{s_step}, 0")
    for p in range(4): A(f"v_add_u32 v{v_r3+p}, {p*3584}, v{v_r1}")
    if stamp:
        for k in range(8): A(f"s_mov_b32 s{80+k}, 0")
        A("s_memtime s[76:77]"); A("s_memrealtime s[78:79]"); A("s_waitcnt lgkmcnt(0)")
    A("s_barrier")
    for ks in range(4): A(f"buffer_load_dwordx4 v[{vA+4*ks}:{vA+4*ks+3}], v{v_l16}, {WS}, s{s_memsrc} offen offset:{ks*1024} sc1")
    A(f"s_mov_b32 s{s_pc}, {POLLMAX}")
    A(f"s_branch {L('loop')}")
    def pkadd(d, a, b): return f"v_pk_add_f32 v[{d}:{d+1}], v[{a}:{a+1}], v[{b}:{b+1}]"
    def pkmul(d, a, b): return f"v_pk_mul_f32 v[{d}:{d+1}], v[{a}:{a+1}], v[{b}:{b+1}]"
    def halves(d0, d1):
        return [f"v_permlane32_swap_b32 v{d0+r}, v{d1+r}" for r in range(4)] + [pkadd(d0, d0, d1), pkadd(d0 + 2, d0 + 2, d1 + 2)]
    def cload(ks): return f"buffer_load_dwordx4 v[{vA+4*ks}:{vA+4*ks+3}], v{v_l16}, {WS}, s{s_memsrc} offen offset:{ks*1024} sc1"
    def aload(ks): return f"buffer_load_dwordx4 v[{vA+4*ks}:{vA+4*ks+3}], v{v_l16}, {WS}, s{s_qkvsrc} offen offset:{ks*1024} sc1"
    def vmload(u): return f"buffer_load_dwordx4 v[{vVM+4*u}:{vVM+4*u+3}], v{v_l16b}, {WS}, s{s_qkvsrc} offen offset:{u*1024} sc1"
    def tmo(tag):
        A(f"s_sub_u32 s{s_pc}, s{s_pc}, 1")
        A(f"s_cbranch_scc1 {L('bail')}")
        hook(tag)
    def chk4(base, lab):
        return checkops(range(base, base + 4), lab, v_t)
    A.label(L('redo1'))
    A("s_nop 15")
    for r in range(24): A(f"v_mov_b32 v{acc1+r}, 0")
    A.label(L('pc'))
    for ks in range(4): A(cload(ks))
    tmo('pc')
    A.label(L('loop'))
    A("s_waitcnt vmcnt(0)")
    for o in checkops([vA + 4 * i + 3 for i in range(4)], L('pc'), v_t): A(o)
    stamp_t(0)
    if clk:
        A("s_memtime s[72:73]"); A("s_memrealtime s[74:75]"); A(f"s_mov_b32 m0, s{s_step}"); A("s_waitcnt lgkmcnt(0)")
        A("v_writelane_b32 v255, s72, m0"); A("v_writelane_b32 v1, s74, m0")
    mf = []
    for tile in range(6):
        for ks in range(4):
            d = acc1 + 4 * tile; w = aW1(tile, ks)
            mf.append(f"v_smfmac_f32_16x16x64_bf16 v[{d}:{d+3}], v[{vA+4*ks}:{vA+4*ks+3}], a[{w}:{w+7}], v{v_idx}")
    chk = checkops([vA + i for i in range(16) if i % 4 != 3], L('redo1'), v_t)
    vl = [] if (nokv or vpos != 0) else kvload(vV, s_v)
    interleave(A, mf[:16], chk + vl, per=1)
    post = []
    for which in range(2):
        d0 = acc1 + 8 * which
        post += halves(d0, d0 + 4) + [f"ds_write_b32 v{v_w1q}, v{d0+r} offset:{which*1152 + r*32}" for r in range(4)]
    interleave(A, mf[16:], post[:10], per=3)
    for o in post[10:]: A(o)
    for o in halves(acc1 + 16, acc1 + 20): A(o)
    for r in range(4): A(f"ds_write_b32 v{v_w1v}, v{acc1+16+r} offset:{r*32}")
    for r in range(8): A(f"v_mov_b32 v{acc2+r}, 0")
    A("s_waitcnt lgkmcnt(0)")
    if trace: stamp_t(7)
    A("s_barrier")
    A(f"s_cmp_eq_u32 s{s_wave}, 3")
    A(f"s_cbranch_scc0 {L('s1a')}")
    for p in range(4):
        A(f"ds_read2_b64 v[{vU+4*p}:{vU+4*p+3}], v{v_r3+p} offset0:0 offset1:36")
    A(f"s_branch {L('s1b')}")
    A.label(L('s1a'))
    for p in range(4):
        A(f"ds_read_b128 v[{vU+4*p}:{vU+4*p+3}], v{v_r1} offset:{p*3584}")
    A.label(L('s1b'))
    for r in range(8, 20): A(f"v_mov_b32 v{acc2+r}, 0")
    A("s_waitcnt lgkmcnt(2)")
    A(pkadd(vU, vU, vU + 4)); A(pkadd(vU + 2, vU + 2, vU + 6))
    A("s_waitcnt lgkmcnt(0)")
    A(pkadd(vU + 8, vU + 8, vU + 12)); A(pkadd(vU + 10, vU + 10, vU + 14))
    A(pkadd(vU, vU, vU + 8)); A(pkadd(vU + 2, vU + 2, vU + 10))
    A(f"v_cvt_pk_bf16_f32 v{vPub}, v{vU}, v{vU+1}")
    A(f"v_cvt_pk_bf16_f32 v{vPub+1}, v{vU+2}, v{vU+3}")
    A(f"v_min_u32 v{vPub}, -2, v{vPub}")
    A(f"v_min_u32 v{vPub+1}, -2, v{vPub+1}")
    A(f"buffer_store_dwordx2 v[{vPub}:{vPub+1}], v{v_d1}, {WS}, s{s_qkvdst} offen")
    A(f"s_mov_b32 s{s_lastq}, s{s_qkvdst}")
    A(f"s_cmp_eq_u32 s{s_step}, {nsteps-1}")
    A(f"s_cbranch_scc1 {L('fin')}")
    stamp_t(1)
    if dlyA: A(f"s_sleep {dlyA}")
    for ks in range(4): A(aload(ks))
    A(vmload(0)); A(vmload(1))
    A(f"s_mov_b32 s{s_pc}, {POLLMAX}")
    for r in range(16): A(f"v_mov_b32 v{vUm+r}, 0")
    A(f"s_branch {L('pa1')}")
    A.label(L('pa'))
    for ks in range(4): A(aload(ks))
    A(vmload(0)); A(vmload(1))
    tmo('pa')
    A.label(L('pa1'))
    A("s_waitcnt vmcnt(0)")
    for o in checkops([vA + 4 * i + 3 for i in range(6)], L('pa'), v_t): A(o)
    stamp_t(2)
    mf = []
    for ks in range(4):
        R = f"v[{vA+4*ks}:{vA+4*ks+3}]"
        for t in range(3):
            d = vS + 4 * t
            Aop = R if t == 2 else f"v[{vK+(t*4+ks)*4}:{vK+(t*4+ks)*4+3}]"
            C = "0" if ks == 0 else f"v[{d}:{d+3}]"
            mf.append(f"v_mfma_f32_16x16x32_bf16 v[{d}:{d+3}], {Aop}, {R}, {C}")
    chk = checkops([vA + i for i in range(24) if i % 4 != 3], L('pa'), v_t)
    interleave(A, mf, chk, per=1)
    um = []
    for nt in range(4):
        for ks in range(2):
            d = vUm + 4 * nt; w = aW2(nt, ks)
            um.append(f"v_smfmac_f32_16x16x64_bf16 v[{d}:{d+3}], v[{vVM+4*ks}:{vVM+4*ks+3}], a[{w}:{w+7}], v{v_idx}")
    mx, tt = v_t, v_t + 2
    A(um[0]); A("s_nop 6")
    sm1 = [f"v_max3_f32 v{mx}, v{vS}, v{vS+1}, v{vS+2}", f"v_max3_f32 v{mx}, v{mx}, v{vS+3}, v{vS+4}",
           f"v_max3_f32 v{mx}, v{mx}, v{vS+5}, v{vS+6}", f"v_max_f32 v{mx}, v{mx}, v{vS+7}", um[1],
           f"s_mov_b64 exec, s[{s_hi}:{s_hi+1}]", f"v_max3_f32 v{mx}, v{mx}, v{vS+8}, v{vS+9}", f"v_max3_f32 v{mx}, v{mx}, v{vS+10}, v{vS+11}",
           "s_mov_b64 exec, -1", f"v_mov_b32 v{tt}, v{mx}"]
    for o in sm1: A(o)
    A(um[2])
    A("s_nop 0")
    A(f"v_permlane32_swap_b32 v{mx}, v{tt}")
    A(f"v_max_f32 v{mx}, v{mx}, v{tt}")
    A(f"v_mov_b32 v{tt}, v{mx}")
    A(um[3])
    A("s_nop 0")
    A(f"v_permlane16_swap_b32 v{mx}, v{tt}")
    A(f"v_max_f32 v{mx}, v{mx}, v{tt}")
    A(f"v_mul_f32 v{mx}, s{s_nc}, v{mx}")
    ex = []
    for i in (8, 10, 0, 2, 4, 6):
        ex.append(f"v_pk_fma_f32 v[{vS+i}:{vS+i+1}], v[{vS+i}:{vS+i+1}], s[{s_c}:{s_c+1}], v[{mx}:{mx+1}] op_sel_hi:[1,1,0]")
    for i in list(range(8, 12)) + list(range(8)): ex.append(f"v_exp_f32 v{vS+i}, v{vS+i}")
    k = 0
    vl2 = kvload(vV, s_v) if vpos == 1 else []
    for i, o in enumerate(ex):
        A(o)
        if i % 4 == 3 and k < 4: A(um[4 + k]); k += 1
        if i % 2 == 1 and vl2: A(vl2.pop(0))
    Pb, X = vP + 4, vP + 6
    A(f"v_cvt_pk_bf16_f32 v{Pb}, v{vS+8}, v{vS+9}")
    A(f"v_cvt_pk_bf16_f32 v{Pb+1}, v{vS+10}, v{vS+11}")
    A(f"s_mov_b64 exec, s[{s_lo}:{s_lo+1}]")
    A(f"v_mov_b32 v{Pb}, 0"); A(f"v_mov_b32 v{Pb+1}, 0")
    A("s_mov_b64 exec, -1")
    A(f"v_mov_b32 v{X}, v{Pb}"); A(f"v_mov_b32 v{X+1}, v{Pb+1}")
    for i in range(4): A(f"v_cvt_pk_bf16_f32 v{vP+i}, v{vS+2*i}, v{vS+2*i+1}")
    A(f"v_permlane16_swap_b32 v{Pb}, v{X}")
    A(f"v_permlane16_swap_b32 v{Pb+1}, v{X+1}")
    for nt in range(2):
        d = vUm + 4 * nt
        A(f"v_cvt_pk_bf16_f32 v{vUb+8*nt+5}, v{d}, v{d+1}"); A(f"v_cvt_pk_bf16_f32 v{vUb+8*nt+7}, v{d+2}, v{d+3}")
    for i, src in enumerate((Pb, Pb + 1, X, X + 1)):
        A(f"v_mov_b32_dpp v{vP+i}, v{src} row_shr:8 row_mask:0xf bank_mask:0xc")
    d = vUm + 8
    A(f"v_cvt_pk_bf16_f32 v{vUb+21}, v{d}, v{d+1}"); A(f"v_cvt_pk_bf16_f32 v{vUb+23}, v{d+2}, v{d+3}")
    PA = f"v[{vP}:{vP+3}]"
    lr = acc2 + 16
    def fin_mf(nt):
        d = acc2 + 4 * nt
        return f"v_smfmac_f32_16x16x64_bf16 v[{d}:{d+3}], {PA}, v[{vUb+8*nt}:{vUb+8*nt+7}], v{v_idx}"
    A(f"v_smfmac_f32_16x16x64_bf16 v[{lr}:{lr+3}], {PA}, v[{vOne}:{vOne+7}], v{v_idx}")
    d = vUm + 12
    A(f"v_cvt_pk_bf16_f32 v{vUb+29}, v{d}, v{d+1}"); A(f"v_cvt_pk_bf16_f32 v{vUb+31}, v{d+2}, v{d+3}")
    for nt in range(4): A(fin_mf(nt))
    A("s_nop 1")
    lt = vS
    for r in range(4): A(f"v_mov_b32 v{lt+r}, v{lr+r}")
    h0 = halves(acc2, acc2 + 4)
    A(h0[0])
    for r in range(4): A(f"v_permlane32_swap_b32 v{lr+r}, v{lt+r}")
    A(pkadd(lr, lr, lt)); A(pkadd(lr + 2, lr + 2, lt + 2))
    for r in range(4): A(f"v_rcp_f32 v{lr+r}, v{lr+r}")
    for o in h0[1:]: A(o)
    for st in range(2):
        d0 = acc2 + 8 * st
        if st == 1:
            for o in halves(d0, d0 + 4): A(o)
        A(pkmul(d0, d0, lr)); A(pkmul(d0 + 2, d0 + 2, lr + 2))
        for r in range(4): A(f"ds_write_b32 v{v_w2}, v{d0+r} offset:{r*32+st*1280}")
    A(f"s_add_u32 s{s_k}, s{s_k}, 262144")
    A(f"s_add_u32 s{s_v}, s{s_v}, 262144")
    A("s_waitcnt lgkmcnt(0)")
    A("s_barrier")
    for p in range(4):
        A(f"ds_read_b64 v[{vB+2*p}:{vB+2*p+1}], v{v_r2} offset:{p*2560}")
    A("s_mov_b32 s96, 0x11111111"); A("s_mov_b32 s97, 0x11111111")
    A("s_waitcnt lgkmcnt(2)")
    A(pkadd(vB, vB, vB + 2))
    A("s_waitcnt lgkmcnt(0)")
    A(pkadd(vB + 4, vB + 4, vB + 6))
    A(pkadd(vB, vB, vB + 4))
    A(f"v_cvt_pk_bf16_f32 v{vB+8}, v{vB}, v{vB+1}")
    A(f"v_min_u32 v{vB+8}, -2, v{vB+8}")
    A("s_nop 1")
    A(f"v_mov_b32_dpp v{vB+9}, v{vB+8} quad_perm:[1,1,1,1] row_mask:0xf bank_mask:0xf")
    A(f"v_mov_b32_dpp v{vB+10}, v{vB+8} quad_perm:[2,2,2,2] row_mask:0xf bank_mask:0xf")
    A(f"v_mov_b32_dpp v{vB+11}, v{vB+8} quad_perm:[3,3,3,3] row_mask:0xf bank_mask:0xf")
    A("s_mov_b64 exec, s[96:97]")
    A(f"buffer_store_dwordx4 v[{vB+8}:{vB+11}], v{v_l4}, {WS}, s{s_partdst} offen sc1")
    A("s_mov_b64 exec, -1")
    stamp_t(3)
    mf, cv = utok_ops()
    side = []
    if vpos == 1: A("s_waitcnt vmcnt(1)")
    if engine:
        A(f"v_readfirstlane_b32 s{t0}, v{vCnt}")
        A(f"s_cmp_ge_u32 s{t0}, s89")
        A(f"s_cbranch_scc1 {L('kvn_ok')}")
        cntwait('kvn', s_cnt, "s89")
        A(f"s_add_u32 s{t0}, s{s_step}, 3")
        A(f"s_min_u32 s{t0}, s{t0}, 63")
        A(f"s_lshr_b32 s{t1}, s{t0}, 3")
        A(f"s_add_u32 s{t1}, s{t1}, {C_KV}")
        A(f"s_lshr_b32 s{t0}, s{t0}, 2")
        A(f"s_add_u32 s{t2}, s{t0}, {C_KVG}")
        A(f"s_cmp_lt_u32 s{t0}, 4")
        A(f"s_cselect_b32 s89, 64, 32")
        A(f"s_cselect_b32 s{t0}, s{t2}, s{t1}")
        A(f"s_lshl_b32 s{t0}, s{t0}, 7")
        A(f"s_add_u32 s{s_cnt}, s{t0}, {WS_CNT}")
        A(f"s_bitcmp1_b32 s{s_wave}, 0")
        A(f"s_cbranch_scc0 {L('nowt')}")
        A(f"v_mov_b32 v{vTch}, v{vPub}"); A(f"v_mov_b32 v{vTch+1}, v{vPub+1}")
        A(f"v_mov_b32_dpp v{vTch+2}, v{vPub} quad_perm:[1,1,3,3] row_mask:0xf bank_mask:0xf")
        A(f"v_mov_b32_dpp v{vTch+3}, v{vPub+1} quad_perm:[1,1,3,3] row_mask:0xf bank_mask:0xf")
        A("s_mov_b32 exec_lo, 0x55555555"); A("s_mov_b32 exec_hi, 0x55555555")
        A(f"buffer_store_dwordx4 v[{vTch}:{vTch+3}], v{v_d1}, {WS}, s{s_lastq} offen sc1")
        A("s_mov_b64 exec, -1")
        A.label(L('nowt'))
    if not nokv: side += kvload(vK, s_k)
    if not notouch:
        side.append(f"buffer_load_dwordx4 v[{vTch}:{vTch+3}], v{v_l16}, {WS}, s{s_touch} offen sc1")
        side.append(f"buffer_load_dwordx4 v[{vTch}:{vTch+3}], v{v_l16}, {WS}, s{s_touch2} offen sc1")
    if engine: side.append(f"buffer_load_dword v{vCnt}, v{v_zero}, {WS}, s{s_cnt} offen sc1")
    interleave(A, mf[:nW], side, per=1)
    if dlyB: A(f"s_sleep {dlyB}")
    stamp_t(6)
    def pbloads():
        for q in range(8):
            sb = s_partsrc if q < 4 else s_partsrc2
            A(f"buffer_load_dword v{vB+q}, v{v_l4}, {WS}, s{sb} offen offset:{(q%4)*1024} sc1")
    pbloads()
    A(f"s_mov_b32 s{s_pc}, {POLLMAX}")
    side = [f"v_mov_b32 v{acc1+r}, 0" for r in range(24)]
    side += [f"s_add_u32 s{r}, s{r}, {CH_STEP}" for r in (s_memsrc, s_qkvdst, s_qkvsrc, s_partdst, s_touch2)]
    side += [f"s_add_u32 s{s_touch}, s{s_touch}, 262144", f"s_add_u32 s{s_step}, s{s_step}, 1"]
    interleave(A, mf[nW:], side, per=2)
    A("s_nop 3")
    for o in cv: A(o)
    A(f"s_branch {L('pb1')}")
    A.label(L('pb'))
    pbloads()
    tmo('pb')
    A.label(L('pb1'))
    A("s_waitcnt vmcnt(0)")
    for o in checkops(range(vB, vB + 8), L('pb'), v_t): A(o)
    stamp_t(4)
    e = vS + 8
    x0 = vP
    for q in range(0, 8, 2):
        tgt = x0 + q
        A(f"v_lshlrev_b32 v{tgt}, 16, v{vB+q}"); A(f"v_and_b32 v{tgt+1}, s{s_msk}, v{vB+q}")
        A(f"v_lshlrev_b32 v{e}, 16, v{vB+q+1}"); A(f"v_and_b32 v{e+1}, s{s_msk}, v{vB+q+1}")
        A(pkadd(tgt, tgt, e))
    A(pkadd(x0, x0, x0 + 2)); A(pkadd(x0 + 4, x0 + 4, x0 + 6)); A(pkadd(x0, x0, x0 + 4))
    A(f"v_cvt_pk_bf16_f32 v{vPub+2}, v{x0}, v{x0+1}")
    A(f"v_min_u32 v{vPub+2}, -2, v{vPub+2}")
    A(f"buffer_store_dword v{vPub+2}, v{v_l4}, {WS}, s{s_memdst} offen")
    if dlyC: A(f"s_sleep {dlyC}")
    for ks in range(4): A(cload(ks))
    A(f"s_mov_b32 s{s_lastm}, s{s_memdst}")
    for r in (s_partsrc, s_partsrc2, s_memdst): A(f"s_add_u32 s{r}, s{r}, {CH_STEP}")
    A(f"s_mov_b32 s{s_pc}, {POLLMAX}")
    stamp_t(5)
    A(f"s_branch {L('loop')}")
    A.label(L('bail'))
    A(f"""
    v_mov_b32 v{v_t}, 48
    v_mov_b32 v{v_t+1}, 1
    s_mov_b64 exec, 1
    buffer_atomic_add v{v_t+1}, v{v_t}, {DBG}, 0 offen
    s_mov_b64 exec, -1
    """)
    A(f"s_branch {L('end')}")
    A.label(L('fin'))
    if engine:
        A(f"buffer_store_dwordx2 v[{vPub}:{vPub+1}], v{v_d1}, {WS}, s{s_lastq} offen sc1")
        A(f"buffer_store_dword v{vPub+2}, v{v_l4}, {WS}, s{s_lastm} offen sc1")
        A("s_barrier")
        A.label(L('fin2'))
    if stamp:
        A(f"s_load_dwordx2 s[4:5], s[0:1], {KA_WS if engine else 80}")
        A("s_memrealtime s[72:73]")
        A("s_waitcnt lgkmcnt(0)")
        make_srd(A, 24, 4, WS_SIZE if engine else 1 << 20)
        A("s_sub_u32 s87, s72, s78")
        if engine: A("s_mov_b32 s86, s78"); A("s_mov_b32 s85, s75"); A("s_mov_b32 s84, s3")
        A("s_waitcnt vmcnt(0)")
        for k in range(8): A(f"v_mov_b32 v{vA+k}, s{80+k}")
        A(f"""
        s_lshl_b32 s{t0}, s{s_role}, 7
        s_lshl_b32 s{t1}, s{s_wave}, 5
        s_add_u32 s{t0}, s{t0}, s{t1}
        s_lshl_b32 s{t1}, s{t0}, 3
        s_add_u32 s{t1}, s{t1}, {65536 + (WS_DUMMY + 0x80000 if engine else 0)}
        s_add_u32 s{t0}, s{t0}, {WS_DUMMY + 0x80000 if engine else 0}
        buffer_store_dword v255, v{v_l4}, s[24:27], s{t1} offen
        v_mov_b32 v{v_t}, 0
        s_mov_b64 exec, 1
        buffer_store_dwordx4 v[{vA}:{vA+3}], v{v_t}, s[24:27], s{t0} offen
        buffer_store_dwordx4 v[{vA+4}:{vA+7}], v{v_t}, s[24:27], s{t0} offen offset:16
        """)
    if clk:
        A("s_mov_b64 exec, -1")
        A(f"s_lshl_b32 s{t0}, s{s_role}, 2"); A(f"s_add_u32 s{t0}, s{t0}, s{s_wave}"); A(f"s_lshl_b32 s{t0}, s{t0}, 9")
        A(f"s_add_u32 s{t0}, s{t0}, {WS_DUMMY + 0x80000}")
        A(f"buffer_store_dword v255, v{v_l4}, {WS}, s{t0} offen"); A(f"buffer_store_dword v1, v{v_l4}, {WS}, s{t0} offen offset:256")
    if engine:
        A("s_mov_b64 exec, -1")
        A(f"s_add_u32 s14, s{s_role}, 128")
        A("s_mov_b32 s81, 0")
        A(f"s_branch {L('wentry')}")
    A.label(L('end'))
    A("s_endpgm")
    if after: after(A, L)
    return dict(lds=24576 + 4 * 32768)

if __name__ == "__main__":
    A = Asm()
    A.raw('.amdgcn_target "amdgcn-amd-amdhsa--gfx950"')
    hdr = []
    var = [dict(stamp=True, nW=32), dict(stamp=True, nW=24), dict(stamp=True, nW=32, dlyC=3), dict(stamp=True, nW=32, dlyC=5), dict(stamp=True, nW=32, dlyA=2, dlyC=3), dict(stamp=True, nW=32, dlyA=3, dlyC=4),
           dict(stamp=True, nW=32, dlyB=2, dlyC=3), dict(stamp=True, nW=28, dlyA=2, dlyC=4), dict(stamp=True, rounds=True, nW=32, dlyA=2, dlyC=3)]
    for i, d in enumerate(var):
        n = f"chain{i}_kernel"
        r = gen_chain(A, n, **d)
        hdr.append(f"; @launch kernel={n} grid=(256,1,1) block=(256,1,1) lds={r['lds']}")
    for i in range(len(var)):
        kernel_desc(A, f"chain{i}_kernel", 512, 102, accum=256)
    open("chain.s", "w").write("\n".join(hdr) + "\n" + A.text())
```

```python
from asmlib import *
from layout import *
from gemm import Gemm
import struct
def f2u(x): return struct.unpack("<I", struct.pack("<f", x))[0]

def wave_sum(A, v, t):
    for ctl in ("quad_perm:[1,0,3,2]", "quad_perm:[2,3,0,1]", "row_half_mirror", "row_mirror"):
        A("s_nop 1")
        A(f"v_add_f32_dpp v{v}, v{v}, v{v} {ctl} row_mask:0xf bank_mask:0xf")
    for sw in ("v_permlane16_swap_b32", "v_permlane32_swap_b32"):
        A(f"v_mov_b32 v{t}, v{v}")
        A("s_nop 1")
        A(f"{sw} v{v}, v{t}")
        A(f"v_add_f32 v{v}, v{v}, v{t}")

def rnd_bf16(A, v):
    A(f"v_cvt_pk_bf16_f32 v{v}, v{v}, v{v}")
    A(f"v_and_b32 v{v}, 0xffff0000, v{v}")

def ln_core(A, srd_out, s_out, v_off, sc):
    x = 8; f = 16; sm = 4; t = 5; mu = 6; r = 7
    A(f"v_add_f32 v{sm}, v{f}, v{f+1}")
    for i in range(2, 16): A(f"v_add_f32 v{sm}, v{sm}, v{f+i}")
    wave_sum(A, sm, t)
    A(f"v_mul_f32 v{mu}, {f2u(1/1024):#x}, v{sm}")
    A(f"v_sub_f32 v{t}, v{f}, v{mu}")
    A(f"v_mul_f32 v{sm}, v{t}, v{t}")
    for i in range(1, 16):
        A(f"v_sub_f32 v{t}, v{f+i}, v{mu}")
        A(f"v_fmac_f32 v{sm}, v{t}, v{t}")
    wave_sum(A, sm, t)
    A(f"v_mul_f32 v{sm}, {f2u(1/1024):#x}, v{sm}")
    rnd_bf16(A, sm); rnd_bf16(A, mu)
    A(f"v_add_f32 v{sm}, {f2u(1e-5):#x}, v{sm}")
    rnd_bf16(A, sm)
    A(f"v_sqrt_f32 v{sm}, v{sm}")
    A("s_nop 0")
    rnd_bf16(A, sm)
    A(f"v_rcp_f32 v{r}, v{sm}")
    for i in range(16): A(f"v_sub_f32 v{f+i}, v{f+i}, v{mu}")
    for i in range(8):
        A(f"v_cvt_pk_bf16_f32 v{x+i}, v{f+2*i}, v{f+2*i+1}")
        A(f"v_lshlrev_b32 v{f+2*i}, 16, v{x+i}")
        A(f"v_and_b32 v{f+2*i+1}, 0xffff0000, v{x+i}")
        A(f"v_mul_f32 v{f+2*i}, v{f+2*i}, v{r}")
        A(f"v_mul_f32 v{f+2*i+1}, v{f+2*i+1}, v{r}")
        A(f"v_cvt_pk_bf16_f32 v{x+i}, v{f+2*i}, v{f+2*i+1}")
    A(f"buffer_store_dwordx4 v[{x}:{x+3}], v{v_off}, s[{srd_out}:{srd_out+3}], s{s_out} offen{sc}")
    A(f"buffer_store_dwordx4 v[{x+4}:{x+7}], v{v_off}, s[{srd_out}:{srd_out+3}], s{s_out} offen offset:1024{sc}")

def ln_row(A, srd_in, s_in, srd_out, s_out, v_off, sc1=False):
    sc = ' sc1' if sc1 else ''
    x = 8; f = 16
    A(f"buffer_load_dwordx4 v[{x}:{x+3}], v{v_off}, s[{srd_in}:{srd_in+3}], s{s_in} offen{sc}")
    A(f"buffer_load_dwordx4 v[{x+4}:{x+7}], v{v_off}, s[{srd_in}:{srd_in+3}], s{s_in} offen offset:1024{sc}")
    A("s_waitcnt vmcnt(0)")
    for i in range(8):
        A(f"v_lshlrev_b32 v{f+2*i}, 16, v{x+i}")
        A(f"v_and_b32 v{f+2*i+1}, 0xffff0000, v{x+i}")
    ln_core(A, srd_out, s_out, v_off, sc)

def gen_prep(A, name="prep_kernel", ready=None, warm=0):
    kernel_begin(A, name)
    L = lambda s: f"{name}_{s}"
    FILL = CH_STEP * 65
    per = FILL // 512
    A(f"""
    s_cmp_ge_u32 s2, 512
    s_cbranch_scc1 {L('end')}
    s_load_dwordx4 s[4:7], s[0:1], {KA_X}
    s_load_dwordx2 s[8:9], s[0:1], {KA_WS}
    v_lshrrev_b32 v1, 6, v0
    v_and_b32 v2, 63, v0
    v_lshlrev_b32 v3, 4, v2
    v_readfirstlane_b32 s13, v1
    s_waitcnt lgkmcnt(0)
    """)
    make_srd(A, 16, 4, 2048 * 2048)
    make_srd(A, 20, 8, WS_SIZE)
    make_srd(A, 24, 6, 16384)
    if warm:
        A(f"s_load_dwordx8 s[40:47], s[0:1], {KA_WQ}")
        A("s_lshr_b32 s36, s2, 7"); A("s_and_b32 s37, s2, 127"); A("s_lshl_b32 s37, s37, 16")
        A("v_lshlrev_b32 v45, 4, v0")
        A("s_waitcnt lgkmcnt(0)")
        A("s_mov_b32 s48, s40"); A("s_mov_b32 s49, s41")
        for k in range(1, 4):
            A(f"s_cmp_eq_u32 s36, {k}"); A(f"s_cselect_b32 s48, s{40+2*k}, s48"); A(f"s_cselect_b32 s49, s{41+2*k}, s49")
        make_srd(A, 52, 48, 8 << 20)
        for i in range(16):
            A(f"buffer_load_dwordx4 v[{48+4*i}:{51+4*i}], v45, s[52:55], s37 offen")
            A("s_add_u32 s37, s37, 4096")
    A(f"""
    v_mov_b32 v40, -1
    v_mov_b32 v41, -1
    v_mov_b32 v42, -1
    v_mov_b32 v43, -1
    v_lshlrev_b32 v44, 4, v0
    s_mul_i32 s32, s2, {16384 if ready else 66560}
    s_add_u32 s32, s32, {WS_CH + 131072}
    """)
    for i in range(4 if ready else 17):
        if i == 16:
            A("v_cmp_gt_u32 vcc, 64, v0"); A("s_and_saveexec_b64 s[30:31], vcc")
        A(f"buffer_store_dwordx4 v[40:43], v44, s[20:23], s32 offen")
        A(f"s_add_u32 s32, s32, 4096")
    A("s_mov_b64 exec, -1")
    A(f"s_cmp_eq_u32 s2, 8")
    A(f"s_cbranch_scc0 {L('nz')}")
    for r in range(8, 12): A(f"v_mov_b32 v{r}, 0")
    A(f"s_mov_b32 s32, {WS_CNT}")
    for i in range(11):
        A(f"buffer_store_dwordx4 v[8:11], v44, s[20:23], s32 offen")
        A(f"s_add_u32 s32, s32, 4096")
    if ready:
        A("s_waitcnt vmcnt(0)")
        for r in range(4): A(f"v_mov_b32 v{8+r}, {ready[r]:#x}")
        A(f"s_mov_b32 s32, {WS_RDY}")
        A("s_mov_b64 s[34:35], exec"); A("v_cmp_eq_u32 vcc, 0, v0"); A("s_and_b64 exec, exec, vcc")
        A(f"buffer_store_dwordx4 v[8:11], v44, s[20:23], s32 offen")
        A("s_mov_b64 exec, s[34:35]")
    A("s_nop 1")
    A.label(L('nz'))
    A(f"s_cmp_ge_u32 s2, 8")
    A(f"s_cbranch_scc1 {L('ln')}")
    A(f"""
    v_and_b32 v4, 7, v2
    v_lshlrev_b32 v4, 11, v4              ; row*2048
    v_lshrrev_b32 v5, 4, v2
    v_lshl_add_u32 v4, v5, 5, v4          ; kg*32
    v_bfe_u32 v5, v2, 3, 1
    v_lshl_add_u32 v4, v5, 4, v4          ; hi*16
    v_lshl_add_u32 v4, v1, 7, v4
    s_lshl_b32 s32, s2, 14
    s_add_u32 s32, s32, {WS_CH + CH_MEM}
    """)
    for i in range(4):
        A(f"buffer_load_dwordx4 v[{8+4*i}:{11+4*i}], v4, s[24:27], 0 offen offset:{i*512}")
    A("s_waitcnt vmcnt(0)")
    for r in range(8, 24): A(f"v_min_u32 v{r}, -2, v{r}")
    for i in range(4):
        A(f"buffer_store_dwordx4 v[{8+4*i}:{11+4*i}], v44, s[20:23], s32 offen")
        A(f"s_add_u32 s32, s32, 4096")
    A("s_nop 1")
    A.label(L('ln'))
    A(f"""
    s_lshl_b32 s32, s2, 2
    s_add_u32 s32, s32, s13
    s_lshl_b32 s32, s32, 11
    s_add_u32 s33, s32, {WS_XN}
    """)
    ln_row(A, 16, 32, 20, 33, 3)
    A.label(L('end'))
    A("s_endpgm")
    return dict(vgpr=112 if warm else 48, grid=512, block=256, lds=0)

def gen_ln2(A, name="ln2_kernel"):
    kernel_begin(A, name)
    L = lambda s: f"{name}_{s}"
    A(f"""
    s_cmp_ge_u32 s2, 512
    s_cbranch_scc1 {L('end')}
    s_load_dwordx2 s[8:9], s[0:1], {KA_WS}
    v_lshrrev_b32 v1, 6, v0
    v_and_b32 v2, 63, v0
    v_lshlrev_b32 v3, 4, v2
    v_readfirstlane_b32 s13, v1
    s_waitcnt lgkmcnt(0)
    """)
    make_srd(A, 20, 8, WS_SIZE)
    A(f"""
    s_lshl_b32 s26, s2, 2
    s_add_u32 s26, s26, s13
    s_lshl_b32 s26, s26, 11
    s_add_u32 s27, s26, {WS_HN}
    s_add_u32 s26, s26, {WS_H}
    """)
    ln_row(A, 20, 26, 20, 27, 3)
    A.label(L('end'))
    A("s_endpgm")
    return dict(vgpr=48, grid=512, block=256, lds=0)

def gemm_prologue(A, L, nwg, ka_w, extra_ka=()):
    A(f"""
    s_cmp_ge_u32 s2, {nwg}
    s_cbranch_scc1 {L('end')}
    s_load_dwordx2 s[4:5], s[0:1], {ka_w}
    s_load_dwordx2 s[8:9], s[0:1], {KA_WS}
    """)
    for (sr_, ka) in extra_ka: A(f"s_load_dwordx2 s[{sr_}:{sr_+1}], s[0:1], {ka}")
    A("""
    v_lshrrev_b32 v1, 6, v0
    v_and_b32 v2, 63, v0
    s_nop 0
    v_readfirstlane_b32 s13, v1
    s_waitcnt lgkmcnt(0)
    """)
    make_srd(A, 16, 8, WS_SIZE)

def gen_resgemm(A, name, ka_w, K, ws_x, res_from_x, to_out):
    kernel_begin(A, name)
    L = lambda s: f"{name}_{s}"
    gemm_prologue(A, L, 256, ka_w, [(6, KA_X if res_from_x else KA_OUT)])
    make_srd(A, 20, 4, K * 1024 * 2)
    make_srd(A, 28, 6, 2048 * 2048)
    A(f"""
    s_and_b32 s10, s2, 7
    s_lshr_b32 s11, s2, 3                 ; 0..31
    s_lshl_b32 s10, s10, 1
    s_lshr_b32 s12, s11, 4
    s_add_u32 s10, s10, s12               ; rb 0..15
    s_and_b32 s11, s11, 15                ; cb 0..15
    s_mul_i32 s24, s10, {128*K*2}
    s_add_u32 s24, s24, {ws_x}
    s_lshl_b32 s25, s11, 7
    """)
    g = Gemm(A, name, 128, 64, 4, 2, 4, K, K * 2, 2048, vbase=4, sbase=40, kperm=True)
    g.setup(13, 2, 0)
    vr_, vs_ = g.v_end, g.v_end + 1
    R = (g.v_end + 3) // 2 * 2
    A(f"""
    v_and_b32 v3, 15, v2
    v_lshlrev_b32 v3, 11, v3
    v_lshrrev_b32 v{vs_}, 4, v2
    v_lshl_add_u32 v{vr_}, v{vs_}, 3, v3
    v_lshl_add_u32 v{vs_}, v{vs_}, 4, v3
    s_lshl_b32 s26, s10, 7
    s_lshl_b32 s27, s{g.s_wm}, 5
    s_add_u32 s26, s26, s27
    s_lshl_b32 s26, s26, 11
    s_add_u32 s26, s26, s25
    s_lshl_b32 s27, s{g.s_wn}, 6
    s_add_u32 s26, s26, s27
    s_add_u32 s27, s26, {WS_H}
    s_add_u32 s32, s26, {16*2048}
    s_add_u32 s33, s27, {16*2048}
    """)
    rs, so = ("s[28:31]", (26, 32)) if res_from_x else ("s[16:19]", (27, 33))
    for n in range(2):
        for t in range(2):
            A(f"buffer_load_dwordx2 v[{R+4*n+2*t}:{R+4*n+2*t+1}], v{vr_}, {rs}, s{so[n]} offen offset:{t*32}")
    g.mainloop(0, 16, 20, 24, 25)
    A("s_nop 7")
    t_ = g.v_wa[0]
    os_, oo = ("s[28:31]", (26, 32)) if to_out else ("s[16:19]", (27, 33))
    for n in range(2):
        d = t_ + 8 * n
        for t in range(2):
            a = g.acc(t, n)
            for h in range(2):
                rr = R + 4 * n + 2 * t + h
                A(f"v_cvt_pk_bf16_f32 v{d+4}, v{a+2*h}, v{a+2*h+1}")
                A(f"v_lshlrev_b32 v{d+5}, 16, v{d+4}")
                A(f"v_and_b32 v{d+4}, 0xffff0000, v{d+4}")
                A(f"v_lshlrev_b32 v{d+6}, 16, v{rr}")
                A(f"v_and_b32 v{d+7}, 0xffff0000, v{rr}")
                A(f"v_add_f32 v{d+5}, v{d+5}, v{d+6}")
                A(f"v_add_f32 v{d+4}, v{d+4}, v{d+7}")
                A(f"v_cvt_pk_bf16_f32 v{d+2*t+h}, v{d+5}, v{d+4}")
        A("s_nop 1")
        A(f"v_permlane32_swap_b32 v{d}, v{d+2}"); A(f"v_permlane32_swap_b32 v{d+1}, v{d+3}")
        A("s_nop 1")
        A(f"v_permlane16_swap_b32 v{d}, v{d+2}"); A(f"v_permlane16_swap_b32 v{d+1}, v{d+3}")
        A(f"buffer_store_dwordx4 v[{d}:{d+3}], v{vs_}, {os_}, s{oo[n]} offen")
    A.label(L('end'))
    A("s_endpgm")
    return dict(vgpr=R + 8, grid=256, block=512, lds=g.lds_bytes)

def gen_ffn1(A, name="ffn1_kernel"):
    kernel_begin(A, name)
    L = lambda s: f"{name}_{s}"
    gemm_prologue(A, L, 224, KA_W1)
    make_srd(A, 20, 4, 1024 * 3584 * 2)
    A(f"""
    s_and_b32 s10, s2, 7
    s_lshr_b32 s11, s2, 3
    s_lshl_b32 s24, s10, 19
    s_add_u32 s24, s24, {WS_HN}
    s_lshl_b32 s25, s11, 8
    """)
    g = Gemm(A, name, 256, 128, 4, 2, 2, 1024, 2048, 7168, vbase=4, sbase=40)
    g.setup(13, 2, 0)
    g.mainloop(0, 16, 20, 24, 25)
    t_ = g.v_wa[0]
    A(f"""
    v_and_b32 v3, 15, v2
    v_mul_u32_u24 v3, 7168, v3
    v_lshrrev_b32 v1, 4, v2
    v_lshl_add_u32 v3, v1, 4, v3
    s_lshl_b32 s26, s10, 8
    s_lshl_b32 s27, s{g.s_wm}, 6
    s_add_u32 s26, s26, s27
    s_mul_i32 s26, s26, 7168
    s_lshl_b32 s27, s11, 8
    s_add_u32 s26, s26, s27
    s_lshl_b32 s27, s{g.s_wn}, 7
    s_add_u32 s26, s26, s27
    s_add_u32 s26, s26, {WS_F1}
    s_mov_b32 s28, {f2u(-1.4426950408889634):#x}
    s_nop 4
    """)
    cnt = 0
    for n in range(g.nt):
        for p in range(g.mt // 2):
            d = t_ + 4 * (cnt % 4); cnt += 1
            e = g.v_xb[0]
            for t in range(2):
                a = g.acc(2 * p + t, n)
                for h in range(2):
                    A(f"v_cvt_pk_bf16_f32 v{e}, v{a+2*h}, v{a+2*h+1}")
                    A(f"v_lshlrev_b32 v{a+2*h}, 16, v{e}")
                    A(f"v_and_b32 v{a+2*h+1}, 0xffff0000, v{e}")
                for r in range(4): A(f"v_mul_f32 v{e+r}, s28, v{a+r}")
                for r in range(4): A(f"v_exp_f32 v{e+r}, v{e+r}")
                A("s_nop 0")
                for r in range(4): A(f"v_add_f32 v{e+r}, 1.0, v{e+r}")
                for r in range(4): A(f"v_rcp_f32 v{e+r}, v{e+r}")
                A("s_nop 0")
                for r in range(4): A(f"v_mul_f32 v{a+r}, v{a+r}, v{e+r}")
                A(f"v_cvt_pk_bf16_f32 v{d+2*t}, v{a}, v{a+1}")
                A(f"v_cvt_pk_bf16_f32 v{d+2*t+1}, v{a+2}, v{a+3}")
            A(f"buffer_store_dwordx4 v[{d}:{d+3}], v3, s[16:19], s26 offen offset:{64*p}")
        A(f"s_add_u32 s26, s26, {16*7168}")
    A.label(L('end'))
    A("s_endpgm")
    return dict(vgpr=g.v_end, grid=224, block=512, lds=g.lds_bytes)

SC = (128 ** -0.5) * 1.4426950408889634
def gen_qattn(A, name="qattn_kernel"):
    kernel_begin(A, name)
    L = lambda s: f"{name}_{s}"
    gemm_prologue(A, L, 256, KA_WQ)
    make_srd(A, 20, 4, 1024 * 4096 * 2)
    A(f"""
    s_and_b32 s10, s2, 7
    s_lshr_b32 s11, s2, 3
    s_lshl_b32 s10, s10, 2
    s_and_b32 s12, s11, 3
    s_add_u32 s10, s10, s12               ; head
    s_lshr_b32 s11, s11, 2                ; rb
    s_lshl_b32 s24, s11, 19
    s_add_u32 s24, s24, {WS_XN}
    s_lshl_b32 s25, s10, 8
    """)
    g = Gemm(A, name, 256, 128, 8, 1, 2, 1024, 2048, 8192, vbase=4, sbase=40)
    g.setup(13, 2, 0)
    vK = g.v_end + (4 - g.v_end % 4) % 4
    vR = vK + 32
    vl16 = vR + 16; vl16b = vl16 + 1; vtrv = vl16 + 2; vtrm = vl16 + 3; vthr = vl16 + 4; vo_ = vl16 + 5; vt = vl16 + 6
    NV = vt + 8
    A(f"""
    v_lshlrev_b32 v{vl16}, 4, v2
    v_add_u32 v{vl16b}, 0x1000, v{vl16}
    s_lshl_b32 s26, s11, 3
    s_add_u32 s26, s26, s13               ; seg
    s_lshl_b32 s27, s26, 5
    s_add_u32 s27, s27, s10
    s_lshl_b32 s27, s27, 13               ; (seg*32+h)*8192
    s_add_u32 s28, s27, {WS_K}
    s_add_u32 s29, s27, {WS_VT}
    s_lshl_b32 s30, s26, 19               ; seg*CH_STEP
    s_lshl_b32 s31, s10, 13
    s_add_u32 s30, s30, s31
    s_add_u32 s30, s30, {WS_CH + CH_QKV}
    s_mov_b32 s34, {f2u(SC):#x}
    s_mov_b32 s36, 0
    s_mov_b32 s37, -1
    s_mov_b32 s38, -1
    s_mov_b32 s39, 0
    """)
    assert CH_STEP == 1 << 19
    for i in range(8):
        A(f"buffer_load_dwordx4 v[{vK+4*i}:{vK+4*i+3}], v{vl16 if i < 4 else vl16b}, s[16:19], s28 offen offset:{(i%4)*1024}")
    for i in range(4):
        A(f"buffer_load_dwordx4 v[{vR+4*i}:{vR+4*i+3}], v{vl16}, s[16:19], s30 offen offset:{i*1024}")
    g.mainloop(0, 16, 20, 24, 25)
    A("s_barrier")
    A("s_mul_i32 s31, s13, 10240")
    for i in range(10):
        A(f"s_add_u32 m0, s31, {i*1024}")
        if i < 8: A(f"s_add_u32 s35, s29, {i*1024}")
        else:     A(f"s_add_u32 s35, s30, {6144 + (i-8)*1024}")
        A(f"buffer_load_dwordx4 v{vl16}, s[16:19], s35 offen lds")
    n_, g_ = vt, vt + 1
    A(f"""
    v_and_b32 v{n_}, 15, v2
    v_lshrrev_b32 v{g_}, 4, v2
    v_lshrrev_b32 v{vt+2}, 1, v{g_}
    v_lshlrev_b32 v{vtrv}, 12, v{vt+2}
    v_and_b32 v{vt+2}, 3, v{n_}
    v_lshl_add_u32 v{vtrv}, v{vt+2}, 8, v{vtrv}
    v_and_b32 v{vt+3}, 1, v{g_}
    v_lshl_add_u32 v{vtrv}, v{vt+3}, 7, v{vtrv}
    v_lshrrev_b32 v{vt+4}, 2, v{n_}
    v_lshl_add_u32 v{vtrv}, v{vt+4}, 4, v{vtrv}
    v_add_u32 v{vtrv}, s31, v{vtrv}
    v_lshl_add_u32 v{vtrm}, v{vt+3}, 2, v{vt+4}
    v_lshlrev_b32 v{vtrm}, 8, v{vtrm}
    v_lshl_add_u32 v{vtrm}, v{vt+2}, 4, v{vtrm}
    v_add_u32 v{vtrm}, s31, v{vtrm}
    v_add_u32 v{vtrm}, 0x2000, v{vtrm}
    v_lshlrev_b32 v{vt+2}, 3, v{g_}
    v_sub_u32 v{vthr}, v{n_}, v{vt+2}
    v_lshlrev_b32 v{vo_}, 13, v{n_}
    v_lshl_add_u32 v{vo_}, v{g_}, 4, v{vo_}
    s_lshl_b32 s32, s26, 18               ; seg*32*8192
    s_lshl_b32 s33, s10, 8
    s_add_u32 s32, s32, s33
    s_add_u32 s32, s32, {WS_O}
    """)
    Qb = g.v_wa[0]
    for n in range(2):
        for ks in range(4):
            d = Qb + (n * 4 + ks) * 4; a0 = g.acc(2 * ks, n); a1 = g.acc(2 * ks + 1, n)
            A(f"v_cvt_pk_bf16_f32 v{d}, v{a0}, v{a0+1}"); A(f"v_cvt_pk_bf16_f32 v{d+1}, v{a0+2}, v{a0+3}")
            A(f"v_cvt_pk_bf16_f32 v{d+2}, v{a1}, v{a1+1}"); A(f"v_cvt_pk_bf16_f32 v{d+3}, v{a1+2}, v{a1+3}")
    S = g.v_acc
    P = g.v_acc + 24
    A("s_nop 1")
    for n in range(2):
        for ks in range(4):
            for t in range(3):
                d = S + 12 * n + 4 * t
                Aop = f"v[{vR+4*ks}:{vR+4*ks+3}]" if t == 2 else f"v[{vK+(t*4+ks)*4}:{vK+(t*4+ks)*4+3}]"
                q = Qb + (n * 4 + ks) * 4
                C = "0" if ks == 0 else f"v[{d}:{d+3}]"
                A(f"v_mfma_f32_16x16x32_bf16 v[{d}:{d+3}], {Aop}, v[{q}:{q+3}], {C}")
    A("s_nop 7")
    mx, tt = vt + 2, vt + 3
    rl = [vt + 4, vt + 5]
    A(f"v_mov_b32 v{vt+6}, 0xff800000")
    for n in range(2):
        s_ = S + 12 * n
        if n == 1: A(f"v_add_u32 v{vthr}, 16, v{vthr}")
        for o in range(8):
            A(f"v_cmp_gt_i32 vcc, {o}, v{vthr}")
            A("s_nop 1")
            A(f"v_cndmask_b32 v{s_+o}, v{s_+o}, v{vt+6}, vcc")
        A(f"""
        v_max3_f32 v{mx}, v{s_}, v{s_+1}, v{s_+2}
        v_max3_f32 v{mx}, v{mx}, v{s_+3}, v{s_+4}
        v_max3_f32 v{mx}, v{mx}, v{s_+5}, v{s_+6}
        v_max_f32 v{mx}, v{mx}, v{s_+7}
        s_mov_b64 exec, s[36:37]
        v_max3_f32 v{mx}, v{mx}, v{s_+8}, v{s_+9}
        v_max3_f32 v{mx}, v{mx}, v{s_+10}, v{s_+11}
        s_mov_b64 exec, -1
        v_mov_b32 v{tt}, v{mx}
        s_nop 1
        v_permlane32_swap_b32 v{mx}, v{tt}
        v_max_f32 v{mx}, v{mx}, v{tt}
        v_mov_b32 v{tt}, v{mx}
        s_nop 1
        v_permlane16_swap_b32 v{mx}, v{tt}
        v_max_f32 v{mx}, v{mx}, v{tt}
        v_mul_f32 v{mx}, s34, v{mx}
        """)
        for i in range(12): A(f"v_fma_f32 v{s_+i}, v{s_+i}, s34, -v{mx}")
        for i in range(12): A(f"v_exp_f32 v{s_+i}, v{s_+i}")
        A("s_mov_b64 exec, s[38:39]")
        for i in range(4): A(f"v_mov_b32 v{s_+8+i}, 0")
        A("s_mov_b64 exec, -1")
        sm = rl[n]
        A(f"v_add_f32 v{sm}, v{s_}, v{s_+1}")
        for i in range(2, 12): A(f"v_add_f32 v{sm}, v{sm}, v{s_+i}")
        for sw in ("v_permlane32_swap_b32", "v_permlane16_swap_b32"):
            A(f"v_mov_b32 v{tt}, v{sm}"); A("s_nop 1"); A(f"{sw} v{sm}, v{tt}"); A(f"v_add_f32 v{sm}, v{sm}, v{tt}")
        A(f"v_rcp_f32 v{sm}, v{sm}")
        A("s_nop 0")
        for i in range(12): A(f"v_mul_f32 v{s_+i}, v{s_+i}, v{sm}")
        for i in range(6): A(f"v_cvt_pk_bf16_f32 v{P+8*n+i}, v{s_+2*i}, v{s_+2*i+1}")
    A("s_waitcnt vmcnt(0)")
    O = g.v_acc + 40
    for p in range(4):
        fb = vK + 16 * (p & 1)
        for t in range(2):
            for u in range(2):
                A(f"ds_read_b64_tr_b16 v[{fb+4*t+2*u}:{fb+4*t+2*u+1}], v{vtrv} offset:{p*1024 + 8*t + 64*u}")
            A(f"ds_read_b64_tr_b16 v[{fb+8+2*t}:{fb+8+2*t+1}], v{vtrm} offset:{p*64 + 8*t}")
        A("s_waitcnt lgkmcnt(0)")
        ob = O + 16 * 0
        for n in range(2):
            for t in range(2):
                d = ob + (n * 2 + t) * 4
                A(f"v_mfma_f32_16x16x32_bf16 v[{d}:{d+3}], v[{fb+4*t}:{fb+4*t+3}], v[{P+8*n}:{P+8*n+3}], 0")
        A("s_nop 3")
        for n in range(2):
            for t in range(2):
                d = ob + (n * 2 + t) * 4
                A(f"v_mfma_f32_16x16x16_bf16 v[{d}:{d+3}], v[{fb+8+2*t}:{fb+8+2*t+1}], v[{P+8*n+4}:{P+8*n+5}], v[{d}:{d+3}]")
        A("s_nop 7")
        for n in range(2):
            d = vR + 8 * (p & 1) + 4 * n
            a0 = ob + n * 8; a1 = a0 + 4
            A(f"v_cvt_pk_bf16_f32 v{d}, v{a0}, v{a0+1}"); A(f"v_cvt_pk_bf16_f32 v{d+1}, v{a0+2}, v{a0+3}")
            A(f"v_cvt_pk_bf16_f32 v{d+2}, v{a1}, v{a1+1}"); A(f"v_cvt_pk_bf16_f32 v{d+3}, v{a1+2}, v{a1+3}")
            if n == 0: A(f"buffer_store_dwordx4 v[{d}:{d+3}], v{vo_}, s[16:19], s32 offen offset:{64*p}")
            else:
                A(f"s_add_u32 s33, s32, {16*8192}")
                A(f"buffer_store_dwordx4 v[{d}:{d+3}], v{vo_}, s[16:19], s33 offen offset:{64*p}")
    A.label(L('end'))
    A("s_endpgm")
    return dict(vgpr=NV, grid=256, block=512, lds=g.lds_bytes)

def gen_init(ready):
    def init(A, L):
        A(f"s_load_dwordx4 s[4:7], s[0:1], {KA_X}")
        A(f"""
        v_lshlrev_b32 v3, 4, v2
        v_lshlrev_b32 v44, 4, v0
        v_mov_b32 v40, -1
        v_mov_b32 v41, -1
        v_mov_b32 v42, -1
        v_mov_b32 v43, -1
        s_lshl_b32 s32, s30, 16
        s_add_u32 s32, s32, {WS_CH + 131072}
        s_waitcnt lgkmcnt(0)
        """)
        make_srd(A, 24, 4, 2048 * 2048)
        make_srd(A, 36, 6, 16384)
        A(f"""
        s_lshl_b32 s34, s30, 2
        s_add_u32 s34, s34, s13
        s_lshl_b32 s34, s34, 13
        s_add_u32 s35, s34, {WS_XN}
        """)
        for r in range(4):
            A(f"buffer_load_dwordx4 v[{48+8*r}:{51+8*r}], v3, s[24:27], s34 offen")
            A(f"buffer_load_dwordx4 v[{52+8*r}:{55+8*r}], v3, s[24:27], s34 offen offset:1024")
            A("s_add_u32 s34, s34, 2048")
        for i in range(16):
            A(f"buffer_store_dwordx4 v[40:43], v44, s[16:19], s32 offen sc1")
            A(f"s_add_u32 s32, s32, 4096")
        A("s_waitcnt vmcnt(16)")
        for r in range(4):
            for i in range(8):
                A(f"v_lshlrev_b32 v{16+2*i}, 16, v{48+8*r+i}")
                A(f"v_and_b32 v{17+2*i}, 0xffff0000, v{48+8*r+i}")
            ln_core(A, 16, 35, 3, " sc1")
            A("s_add_u32 s35, s35, 2048")
            A("s_nop 1")
        A("s_cmp_eq_u32 s30, 8")
        A(f"s_cbranch_scc0 {L('in_nz')}")
        for r in range(8, 12): A(f"v_mov_b32 v{r}, 0")
        A(f"s_mov_b32 s32, {WS_CNT}")
        for i in range(11):
            A(f"buffer_store_dwordx4 v[8:11], v44, s[16:19], s32 offen sc1")
            A(f"s_add_u32 s32, s32, 4096")
        A("s_waitcnt vmcnt(0)")
        for r in range(4): A(f"v_mov_b32 v{8+r}, {ready[r]:#x}")
        A(f"s_mov_b32 s32, {WS_RDY}")
        A("v_cmp_eq_u32 vcc, 0, v0"); A("s_and_b64 exec, exec, vcc")
        A(f"buffer_store_dwordx4 v[8:11], v44, s[16:19], s32 offen sc1")
        A("s_mov_b64 exec, -1")
        A.label(L('in_nz'))
        A("s_cmp_ge_u32 s30, 8")
        A(f"s_cbranch_scc1 {L('in_end')}")
        A(f"""
        v_lshrrev_b32 v1, 6, v0
        v_and_b32 v4, 7, v2
        v_lshlrev_b32 v4, 11, v4
        v_lshrrev_b32 v5, 4, v2
        v_lshl_add_u32 v4, v5, 5, v4
        v_bfe_u32 v5, v2, 3, 1
        v_lshl_add_u32 v4, v5, 4, v4
        v_lshl_add_u32 v4, v1, 7, v4
        s_lshl_b32 s32, s30, 14
        s_add_u32 s32, s32, {WS_CH + CH_MEM}
        """)
        for i in range(4):
            A(f"buffer_load_dwordx4 v[{48+4*i}:{51+4*i}], v4, s[36:39], 0 offen offset:{i*512}")
        A("s_waitcnt vmcnt(0)")
        for r in range(48, 64): A(f"v_min_u32 v{r}, -2, v{r}")
        for i in range(4):
            A(f"buffer_store_dwordx4 v[{48+4*i}:{51+4*i}], v44, s[16:19], s32 offen sc1")
            A(f"s_add_u32 s32, s32, 4096")
        A.label(L('in_end'))
    return init

def ln_multi(A, rows, srd_out, v_off, sc):
    def each(fn):
        for r in rows: fn(*r)
    def E(fmt):
        for (x, f, t, so) in rows: A(fmt.format(x=x, f=f, sm=t, t=t + 1, mu=t + 2, r=t + 3, so=so))
    for i in range(8):
        E("v_lshlrev_b32 v%s, 16, v%s" % ("{f}+%d" % (2*i), "{x}+%d" % i)) if False else None
    for i in range(8):
        for (x, f, t, so) in rows:
            A(f"v_lshlrev_b32 v{f+2*i}, 16, v{x+i}"); A(f"v_and_b32 v{f+2*i+1}, 0xffff0000, v{x+i}")
    def wsum():
        for ctl in ("quad_perm:[1,0,3,2]", "quad_perm:[2,3,0,1]", "row_half_mirror", "row_mirror"):
            A("s_nop 1" if len(rows) < 3 else "s_nop 0")
            E("v_add_f32_dpp v{sm}, v{sm}, v{sm} " + ctl + " row_mask:0xf bank_mask:0xf")
        for sw in ("v_permlane16_swap_b32", "v_permlane32_swap_b32"):
            E("v_mov_b32 v{t}, v{sm}"); A("s_nop 1"); E(sw + " v{sm}, v{t}"); E("v_add_f32 v{sm}, v{sm}, v{t}")
    def rnd(k):
        E("v_cvt_pk_bf16_f32 v{%s}, v{%s}, v{%s}" % (k, k, k)); E("v_and_b32 v{%s}, 0xffff0000, v{%s}" % (k, k))
    for (x, f, t, so) in rows: A(f"v_add_f32 v{t}, v{f}, v{f+1}")
    for i in range(2, 16):
        for (x, f, t, so) in rows: A(f"v_add_f32 v{t}, v{t}, v{f+i}")
    wsum()
    E("v_mul_f32 v{mu}, %s, v{sm}" % hex(f2u(1/1024)))
    for i in range(16):
        for (x, f, t, so) in rows:
            A(f"v_sub_f32 v{t+1}, v{f+i}, v{t+2}")
            A(f"v_mul_f32 v{t}, v{t+1}, v{t+1}" if i == 0 else f"v_fmac_f32 v{t}, v{t+1}, v{t+1}")
    wsum()
    E("v_mul_f32 v{sm}, %s, v{sm}" % hex(f2u(1/1024)))
    rnd('sm'); rnd('mu')
    E("v_add_f32 v{sm}, %s, v{sm}" % hex(f2u(1e-5)))
    rnd('sm')
    E("v_sqrt_f32 v{sm}, v{sm}"); A("s_nop 0")
    rnd('sm')
    E("v_rcp_f32 v{r}, v{sm}")
    for (x, f, t, so) in rows:
        for i in range(16): A(f"v_sub_f32 v{f+i}, v{f+i}, v{t+2}")
    for (x, f, t, so) in rows:
        for i in range(8):
            A(f"v_cvt_pk_bf16_f32 v{x+i}, v{f+2*i}, v{f+2*i+1}")
            A(f"v_lshlrev_b32 v{f+2*i}, 16, v{x+i}"); A(f"v_and_b32 v{f+2*i+1}, 0xffff0000, v{x+i}")
            A(f"v_mul_f32 v{f+2*i}, v{f+2*i}, v{t+3}"); A(f"v_mul_f32 v{f+2*i+1}, v{f+2*i+1}, v{t+3}")
            A(f"v_cvt_pk_bf16_f32 v{x+i}, v{f+2*i}, v{f+2*i+1}")
        A(f"buffer_store_dwordx4 v[{x}:{x+3}], v{v_off}, s[{srd_out}:{srd_out+3}], s{so} offen{sc}")
        A(f"buffer_store_dwordx4 v[{x+4}:{x+7}], v{v_off}, s[{srd_out}:{srd_out+3}], s{so} offen offset:1024{sc}")

def gen_init2(ready, warm=True):
    def a(A, L):
        make_srd(A, 24, 8, 2048 * 2048)
        make_srd(A, 36, 10, 16384)
        A(f"""
        v_lshlrev_b32 v3, 4, v2
        v_lshlrev_b32 v44, 4, v0
        v_mov_b32 v40, -1
        v_mov_b32 v41, -1
        v_mov_b32 v42, -1
        v_mov_b32 v43, -1
        s_lshl_b32 s34, s2, 2
        s_add_u32 s34, s34, s13
        s_lshl_b32 s34, s34, 12
        s_add_u32 s35, s34, {WS_XN}
        s_add_u32 s30, s35, 2048
        buffer_load_dwordx4 v[48:51], v3, s[24:27], s34 offen
        buffer_load_dwordx4 v[52:55], v3, s[24:27], s34 offen offset:1024
        buffer_load_dwordx4 v[56:59], v3, s[24:27], s34 offen offset:2048
        buffer_load_dwordx4 v[60:63], v3, s[24:27], s34 offen offset:3072
        s_cmp_ge_u32 s2, 8
        s_cbranch_scc1 {L('ia1')}
        v_and_b32 v4, 7, v2
        v_lshlrev_b32 v4, 11, v4
        v_lshrrev_b32 v5, 4, v2
        v_lshl_add_u32 v4, v5, 5, v4
        v_bfe_u32 v5, v2, 3, 1
        v_lshl_add_u32 v4, v5, 4, v4
        v_lshl_add_u32 v4, v1, 7, v4
        """)
        for i in range(4):
            A(f"buffer_load_dwordx4 v[{112+4*i}:{115+4*i}], v4, s[36:39], 0 offen offset:{i*512}")
        A.label(L('ia1'))
        if warm:
            A("s_lshr_b32 s31, s2, 6")
            A("s_mov_b32 s40, s60"); A("s_mov_b32 s41, s61")
            for k in range(1, 4):
                A(f"s_cmp_eq_u32 s31, {k}"); A(f"s_cselect_b32 s40, s{60+2*k}, s40"); A(f"s_cselect_b32 s41, s{61+2*k}, s41")
            make_srd(A, 44, 40, 8 << 20)
            A("s_and_b32 s31, s2, 63"); A("s_lshl_b32 s31, s31, 17")
            A("v_lshlrev_b32 v5, 7, v0")
            for i in range(4):
                A(f"buffer_load_dword v{104+i}, v5, s[44:47], s31 offen")
                A("s_add_u32 s31, s31, 32768")
        A(f"s_lshl_b32 s31, s2, 15")
        A(f"s_add_u32 s31, s31, {WS_CH + 131072}")
        for i in range(8):
            A(f"buffer_store_dwordx4 v[40:43], v44, s[16:19], s31 offen sc1")
            A(f"s_add_u32 s31, s31, 4096")
        A(f"s_waitcnt vmcnt({12 if warm else 8})")
    def b(A, L):
        ln_multi(A, [(48, 64, 96, 35), (56, 80, 100, 30)], 16, 3, " sc1")
        A("s_cmp_eq_u32 s2, 8")
        A(f"s_cbranch_scc0 {L('in_nz')}")
        for r in range(8, 12): A(f"v_mov_b32 v{r}, 0")
        A(f"s_mov_b32 s31, {WS_CNT}")
        for i in range(11):
            A(f"buffer_store_dwordx4 v[8:11], v44, s[16:19], s31 offen sc1")
            A(f"s_add_u32 s31, s31, 4096")
        A("s_waitcnt vmcnt(0)")
        for r in range(4): A(f"v_mov_b32 v{8+r}, {ready[r]:#x}")
        A(f"s_mov_b32 s31, {WS_RDY}")
        A("v_cmp_eq_u32 vcc, 0, v0"); A("s_and_b64 exec, exec, vcc")
        A(f"buffer_store_dwordx4 v[8:11], v44, s[16:19], s31 offen sc1")
        A("s_mov_b64 exec, -1")
        A.label(L('in_nz'))
        A("s_cmp_ge_u32 s2, 8")
        A(f"s_cbranch_scc1 {L('in_end')}")
        A(f"s_lshl_b32 s31, s2, 14")
        A(f"s_add_u32 s31, s31, {WS_CH + CH_MEM}")
        for r in range(112, 128): A(f"v_min_u32 v{r}, -2, v{r}")
        for i in range(4):
            A(f"buffer_store_dwordx4 v[{112+4*i}:{115+4*i}], v44, s[16:19], s31 offen sc1")
            A(f"s_add_u32 s31, s31, 4096")
        A.label(L('in_end'))
    return a, b
```

```python
from layout import *
from k_engine import *
def make_schedule(modes="BBBBBBBBMMMMMFFE", verbose=False, only=None, pre=True, bigM=9, ntiny=1, **kw):
    assert modes[14] == 'F' and modes[15] in 'FE' and 'E' not in modes[:15]
    inst = []
    def add(key, pr, t, a, done, b0, bxs, bts, cnt, req, succ, nsucc=1, ready=False, var=0):
        inst.append(dict(key=key, pr=pr, t=t, a=a, done=done, b0=b0, bxs=bxs, bts=bts, cnt=cnt, req=req, succ=succ, nsucc=nsucc, ready=ready, var=var))
    k = 0
    for rt in range(4):
        for kv in range(2):
            if rt < ntiny: add(None, (0, k), T_KVS, rt, C_KVG + rt, 64 * kv, 3, 0, 8, 0, None, ready=True, var=1)
            else: add(None, (0, k), T_KVS, rt, C_KVG + rt, 32 * kv, 2, 0, 4, 0, None, ready=True)
            k += 1
    order = [('kv', 2), ('kv', 3), ('q', 0), ('kv', 4), ('q', 1), ('kv', 5), ('q', 2), ('kv', 6), ('q', 3), ('kv', 7), ('q', 4), ('q', 5), ('q', 6), ('q', 7)]
    for kind, rb in order:
        late = (kind == 'q' and rb >= 3) or (kind == 'kv' and rb >= 6)
        pr = (2, k) if late else (0, k)
        if kind == 'kv':
            add(None, pr, T_KVL, rb, C_KV + rb, 0, 1, 0, 2, 32, ('q', rb), ready=True); add(None, (pr[0], k + 0.5), T_KVL, rb, C_KV + rb, 16, 1, 0, 2, 32, ('q', rb), ready=True)
        else: add(('q', rb), pr, T_QO, rb, C_QO + rb, 32, 1, 0, 2, 16, ('at', 2 * rb), nsucc=3, ready=(rb < 2))
        k += 1
    D = {'B': (6, 26, 4, 15, 23, 3), 'M': (6, 14.5, 4, 9, 13, 3), 'F': (3.8, 6.2, 2.4, 6.2, 5.8, 2.0), 'E': (3.8, 4.2, 2.6, 5, 4.2, 2.2)}
    for g in range(16):
        m = modes[g]; d = D[m]
        rem = [sum(d[i:]) + 0.8 * (5 - i) for i in range(6)]
        P = (lambda i: (-0.5, i, g)) if (g >= 14 and pre) else (lambda i: (1, -rem[i], g))
        big = m == 'B' or (m == 'M' and g < bigM)
        if big: add(('at', g), (-1, g), T_AT, g, C_AT + g, 0, 1, 0, 2, 16, ('wo', g), var=1)
        else:   add(('at', g), (-1, g), T_AT, g, C_AT + g, 0, 2, 0, 4, 32, ('wo', g))
        np2 = None
        if m == 'E':
            np_, np2, nf = 8, 7, 56
            add(('wo', g), P(1), T_QA, g, C_WOS + g, 0, 4, 0, 16, 128, ('ln', g))
            add(('f1', g), P(3), T_F1S, g, C_F1S + g, 0, 0, 3, 7, nf, ('f2', g))
            add(('f2', g), P(4), T_LN, g, C_F2S + g, 0, 4, 0, 14, 112, ('fin', g))
        elif m == 'F':
            np_, ng, nf = 4, 64, 56
            add(('wo', g), P(1), T_WOS, g, C_WOS + g, 0, 3, 0, 8, ng, ('ln', g))
            add(('f1', g), P(3), T_F1S, g, C_F1S + g, 0, 0, 3, 7, nf, ('f2', g))
            add(('f2', g), P(4), T_F2S, g, C_F2S + g, 0, 3, 0, 8, ng, ('fin', g))
        else:
            ls = 0 if m == 'B' else 1; np_ = 1 << ls; ng = 8 * np_; nf = 28
            add(('wo', g), P(1), T_WO, g, C_WOS + g, ls << 5, 0, 3, np_, ng, ('ln', g))
            if m == 'B':
                if g % 2 == 0: add(('f1', g), P(3), T_F1, g // 2, C_F1S + g, 0, 0, 3, 4, nf, ('f2', g), nsucc=3, var=1)
            else: add(('f1', g), P(3), T_F1, g, C_F1S + g, 0, 0, 3, 4, nf, ('f2', g))
            add(('f2', g), P(4), T_F2, g, C_F2S + g, ls << 5, 0, 3, np_, ng, ('fin', g))
        if m == 'B': add(('ln', g), P(2), T_LNR, g, C_LNR + (g & ~1), 0, 0, 3, 1, 16, ('f1', g & ~1), var=1)
        elif big:    add(('ln', g), P(2), T_LNR, g, C_LNR + g, (np_ - 1) << 5, 0, 3, 1, 8, ('f1', g), var=1)
        else:        add(('ln', g), P(2), T_LNR, g, C_LNR + g, (np_ - 1) << 5, 0, 3, 4, 32, ('f1', g))
        if big: add(('fin', g), P(5), T_FIN, g, C_SINK, (np_ - 1) << 5, 0, 3, 1, 0, None, var=1)
        else:   add(('fin', g), P(5), T_FIN, g, C_SINK, ((np2 or np_) - 1) << 5, 0, 3, 4, 0, None)
    inst.sort(key=lambda x: x['pr'])
    assert len(inst) <= 128 and all(inst[g]['key'] == ('at', g) for g in range(16))
    return inst
def ready_init(inst):
    m = 0
    for i, x in enumerate(inst):
        if x['ready']: m |= 1 << i
    return [(m >> (32 * k)) & 0xffffffff for k in range(4)]
def encode(inst):
    idx = {x['key']: i for i, x in enumerate(inst) if x['key']}
    words = []
    for x in inst:
        s = idx[x['succ']] if x['succ'] else 0
        pred = [p for p in inst if p['succ'] == x['key'] and x['key'] and p['t'] not in (T_QO, T_KVL)]
        dep = (pred[0]['done'] | (pred[0]['req'] - 1) << 8) if pred else 0
        words += [x['t'] | x['a'] << 4 | x['done'] << 8 | (x['b0'] >> 4) << 16 | x['bxs'] << 20 | x['bts'] << 23 | x['cnt'] << 25,
                  (x['req'] if x['succ'] else 0) | s << 8 | (x['nsucc'] if x['succ'] else 0) << 16 | x['var'] << 24]
        if x['nsucc'] == 3 and x['succ'] and x['succ'][0] == 'f2': assert idx[('f2', x['succ'][1] + 1)] == s + 1 and (s & 31) != 31
    words += [0, 0] * (128 - len(inst))
    return 64, words

def exh_init(inst):
    m = 0
    for i in range(len(inst), 128): m |= 1 << i
    return m
```

```python
import build3
base_s = dict(ntiny=0, modes="BBBBBBMMMMMMMFFE"); base_c = dict(codepf=130816, vpos=0)
build3.build('t_a.s', sched_kw=base_s, chain_kw=base_c, early=False)
build3.build('t_b.s', sched_kw=base_s, chain_kw=base_c, early=True)
build3.build('t_c.s', sched_kw={**base_s, 'ntiny': 1}, chain_kw=base_c, early=True)
build3.build('n1fx.s', sched_kw=base_s, chain_kw={**base_c, 'fakex': True}, early=True)
```

```python
from asmlib import *
from layout import *
import math, struct

SCALE_LOG2E = (128 ** -0.5) * 1.4426950408889634
def f2u(x): return struct.unpack("<I", struct.pack("<f", x))[0]

def interleave(A, mf, side, per=3, start=0):
    k = 0
    for i, m in enumerate(mf):
        A(m)
        if i >= start:
            for _ in range(per):
                if k < len(side): A(side[k]); k += 1
    while k < len(side): A(side[k]); k += 1

def gen_chain(A, name="chain_kernel", dlyB=0, stamp=False, nsteps=64, POLLMAX=1 << 20, nokv=False, notouch=False, rounds=False, trace=False, worker=None, nW=16, dlyA=0, dlyC=0, engine=False, kv0n=128, after=None, NX=8, fakex=False, clk=False, vpos=1, init=None, init2=None, codepf=0, ready2=None, wreg=False, wnt='', wntm=(0, 1, 2, 3), word=(0, 1, 2, 3)):
    WX = lambda x: x if x < 4 else 28 + x
    QU = [128 // NX if x < NX else 0 for x in range(8)]; QB = [sum(QU[:x]) for x in range(8)]; q0 = 128 // NX
    kernel_begin(A, name)
    L = lambda s: f"{name}_{s}"
    SRD_WS, SRD_DBG, SRD_W = 16, 20, 24
    WS = f"s[{SRD_WS}:{SRD_WS+3}]"
    s_wave, s_xcc, s_tick, s_role, s_Q, s_j = 13, 12, 15, 34, 35, 36
    s_memsrc, s_qkvdst, s_qkvsrc, s_partdst, s_partsrc, s_memdst, s_k, s_step, s_pc, s_v = 40, 41, 42, 43, 44, 45, 46, 47, 48, 49
    s_hi, s_lo, s_c = 50, 52, 54
    t0, t1, t2 = 56, 57, 58
    s_nc, s_msk = 59, 95
    v_r3 = 20
    v_zero, vCnt, s_cnt = 4, 5, 88
    s_lastq, s_lastm, s_touch, s_partsrc2, s_touch2 = 90, 91, 92, 93, 94
    v_lane, v_idx = 2, 3
    v_offC, v_offA, v_l16, v_w1q, v_w1v, v_r1, v_d1, v_w2, v_r2, v_l4, v_dM, v_l16b = range(4, 16)
    v_t = 16
    vA = 24
    vVM = 40
    vK = 48
    vV = 80
    acc1 = 112
    vS = 136
    vP = 148
    vU = 160
    vUb = 192
    acc2 = 224
    vUm = 112
    vOne = 244
    vB = 136
    vPub = 252
    vTch = 128
    vTch = 156
    A(f"""
    s_cmp_ge_u32 s2, 256
    s_cbranch_scc1 {L('end')}
    """)
    if codepf:
        A("s_getpc_b64 s[30:31]")
        A("s_bfe_u32 s32, s2, 0x20003")
        A("s_lshl_b32 s32, s32, 16")
        A("v_lshlrev_b32 v4, 7, v0")
        A("v_add_u32 v4, s32, v4")
        A(f"v_min_u32 v5, {codepf - 256}, v4")
        A("v_add_u32 v4, 0x8000, v4")
        A(f"v_min_u32 v4, {codepf - 256}, v4")
        A("global_load_dword v6, v5, s[30:31]")
        A("global_load_dword v7, v4, s[30:31]")
    A(f"""
    {"s_memrealtime s[28:29]" if stamp else ""}
    s_load_dwordx2 s[4:5], s[0:1], {KA_DBG}
    s_load_dwordx2 s[6:7], s[0:1], {KA_WS}
    s_load_dwordx4 s[60:63], s[0:1], {KA_WQ}
    s_load_dwordx4 s[8:11], s[0:1], {KA_X}
    s_load_dwordx4 s[64:67], s[0:1], {KA_WV}
    s_getreg_b32 s{s_xcc}, hwreg(HW_REG_XCC_ID)
    s_and_b32 s{s_xcc}, s{s_xcc}, 7
    {"s_min_u32 s12, s12, 5" if fakex else ""}
    v_lshrrev_b32 v1, 6, v0
    v_and_b32 v{v_lane}, 63, v0
    s_nop 1
    v_readfirstlane_b32 s{s_wave}, v1
    s_waitcnt lgkmcnt(0)
    """)
    make_srd(A, SRD_DBG, 4, 256)
    if stamp: A("s_mov_b32 s3, s28")
    make_srd(A, SRD_WS, 6, WS_SIZE)
    DBG = f"s[{SRD_DBG}:{SRD_DBG+3}]"
    A(f"""
    s_lshl_b32 s{t0}, s{s_xcc}, 2
    s_add_u32 s{t1}, s{t0}, 112
    s_cmp_ge_u32 s{s_xcc}, 4
    s_cselect_b32 s{t0}, s{t1}, s{t0}
    v_mov_b32 v{v_t}, s{t0}
    v_mov_b32 v{v_t+1}, 1
    v_mov_b32 v{v_t+2}, 32
    v_mov_b32 v{v_t+3}, 1
    v_cmp_eq_u32 vcc, 0, v0
    s_and_saveexec_b64 s[32:33], vcc
    s_cbranch_execz {L('t0')}
    buffer_atomic_add v{v_t+1}, v{v_t}, {DBG}, 0 offen sc0
    {L('t0')}:
    s_mov_b64 exec, s[32:33]
    """)
    if init2: init2[0](A, L)
    if stamp: A('s_memrealtime s[40:41]')
    else: A("s_waitcnt vmcnt(0)")
    A(f"""
    v_cmp_eq_u32 vcc, 0, v0
    s_and_saveexec_b64 s[32:33], vcc
    s_cbranch_execz {L('t1')}
    v_mov_b32 v{v_t+4}, 0
    ds_write_b32 v{v_t+4}, v{v_t+1}
    s_waitcnt lgkmcnt(0)
    {L('t1')}:
    s_mov_b64 exec, s[32:33]
    """)
    if init2: init2[1](A, L)
    if stamp: A('s_memrealtime s[42:43]')
    def last_actions(a):
        A(f"buffer_store_dword v{a+3}, v{a+2}, {DBG}, 0 offen sc1")
        if ready2:
            A("s_mov_b64 exec, 15")
            A(f"v_lshlrev_b32 v{a}, 2, v{v_lane}")
            for k in range(4):
                A(f"s_mov_b32 s{t0}, {ready2[k]:#x}"); A(f"v_writelane_b32 v{a+1}, s{t0}, {k}")
            A(f"s_mov_b32 s{t0}, {WS_RDY}")
            A(f"buffer_atomic_or v{a+1}, v{a}, {WS}, s{t0} offen")
    def early_signal(a, tag):
        if not ready2: return
        A("s_cmp_ge_u32 s2, 16")
        A(f"s_cbranch_scc1 {L(tag+'_e')}")
        A(f"v_mov_b32 v{a}, 164"); A(f"v_mov_b32 v{a+1}, 1")
        A(f"buffer_atomic_add v{a+1}, v{a}, {DBG}, 0 offen sc0")
        A("s_waitcnt vmcnt(0)")
        A(f"v_readfirstlane_b32 s{t0}, v{a+1}")
        A(f"s_cmp_eq_u32 s{t0}, 15")
        A(f"s_cbranch_scc0 {L(tag+'_e')}")
        A(f"v_mov_b32 v{a}, 68"); A(f"v_mov_b32 v{a+1}, 1")
        A(f"buffer_store_dword v{a+1}, v{a}, {DBG}, 0 offen sc1")
        A("s_nop 1")
        A.label(L(tag + '_e'))
    def signal_init(tag):
        A(f"""
        s_barrier
        s_cmp_lg_u32 s{s_wave}, 0
        s_cbranch_scc1 {L(tag+'_s2')}
        s_mov_b64 exec, 1
        """)
        early_signal(v_t, tag)
        A(f"""
        v_mov_b32 v{v_t}, 160
        v_mov_b32 v{v_t+1}, 1
        v_mov_b32 v{v_t+2}, 64
        v_mov_b32 v{v_t+3}, 1
        buffer_atomic_add v{v_t+1}, v{v_t}, {DBG}, 0 offen sc0
        s_waitcnt vmcnt(0)
        v_readfirstlane_b32 s{t0}, v{v_t+1}
        s_cmp_eq_u32 s{t0}, 255
        s_cbranch_scc0 {L(tag+'_s1')}
        """)
        last_actions(v_t)
        A(f"""
        {L(tag+'_s1')}:
        s_mov_b64 exec, -1
        {L(tag+'_s2')}:
        """)
    A(f"""
    s_barrier
    v_mov_b32 v{v_t+4}, 0
    ds_read_b32 v{v_t+1}, v{v_t+4}
    s_waitcnt lgkmcnt(0)
    v_readfirstlane_b32 s{s_tick}, v{v_t+1}
    s_barrier
    s_mov_b32 s38, 1
    s_mul_i32 s{s_role}, s{s_xcc}, {q0}
    s_add_u32 s{s_role}, s{s_role}, s{s_tick}
    s_cmp_lt_u32 s{s_xcc}, {NX}
    s_cselect_b32 s71, {q0}, 0
    s_cmp_lt_u32 s{s_tick}, s71
    s_cbranch_scc1 {L('haverole')}
    s_sub_u32 s80, s{s_tick}, s71
    s_and_b32 s14, s80, 15
    s_lshl_b32 s{t0}, s{s_xcc}, 4
    s_add_u32 s14, s14, s{t0}
    s_mov_b32 s81, 1
    s_mov_b32 s71, s{s_xcc}
    """)
    def flagwait(tag, all_waves, off=64):
        A(f"v_mov_b32 v{v_t}, {off}")
        A(f"s_mov_b32 s{s_pc}, {POLLMAX}")
        A.label(L(tag))
        A(f"buffer_load_dword v{v_t+1}, v{v_t}, {DBG}, 0 offen sc1")
        A(f"s_sub_u32 s{s_pc}, s{s_pc}, 1")
        A(f"s_cbranch_scc1 {L('end')}")
        A("s_waitcnt vmcnt(0)")
        A(f"v_readfirstlane_b32 s{t0}, v{v_t+1}")
        A(f"s_cmp_lg_u32 s{t0}, 0")
        A(f"s_cbranch_scc1 {L(tag+'_ok')}")
        A("s_sleep 4")
        A(f"s_branch {L(tag)}")
        A.label(L(tag + '_ok'))
    if init2:
        A("s_waitcnt vmcnt(0)")
        if stamp: A('s_memrealtime s[44:45]')
        signal_init('ws')
        A(f"s_cmp_lg_u32 s{s_wave}, 0")
        A(f"s_cbranch_scc1 {L('i5')}")
        flagwait('iw2', False, 68 if ready2 else 64)
        A.label(L('i5'))
        A("s_barrier")
        if stamp:
            A("s_waitcnt lgkmcnt(0)")
            A("v_mov_b32 v4, s3"); A("v_mov_b32 v5, s40"); A("v_mov_b32 v6, s42"); A("v_mov_b32 v7, s44"); A("v_mov_b32 v8, 0")
            A("s_lshl_b32 s24, s14, 10"); A(f"s_add_u32 s24, s24, {WS_DUMMY + 65536}")
            A("s_mov_b64 exec, 1"); A(f"buffer_store_dwordx4 v[4:7], v8, {WS}, s24 offen"); A("s_mov_b64 exec, -1")
    if init:
        A(f"""
        v_mov_b32 v{v_t}, 44
        v_mov_b32 v{v_t+1}, 1
        v_cmp_eq_u32 vcc, 0, v0
        s_and_saveexec_b64 s[32:33], vcc
        s_cbranch_execz {L('i1')}
        buffer_atomic_add v{v_t+1}, v{v_t}, {DBG}, 0 offen sc0
        s_waitcnt vmcnt(0)
        v_mov_b32 v{v_t+4}, 0
        ds_write_b32 v{v_t+4}, v{v_t+1}
        s_waitcnt lgkmcnt(0)
        {L('i1')}:
        s_mov_b64 exec, s[32:33]
        s_barrier
        v_mov_b32 v{v_t+4}, 0
        ds_read_b32 v{v_t+1}, v{v_t+4}
        s_waitcnt lgkmcnt(0)
        v_readfirstlane_b32 s30, v{v_t+1}
        s_cmp_ge_u32 s30, 128
        s_cbranch_scc1 {L('i3')}
        """)
        init(A, L)
        A(f"""
        s_waitcnt vmcnt(0)
        s_barrier
        s_cmp_lg_u32 s{s_wave}, 0
        s_cbranch_scc1 {L('i4')}
        v_mov_b32 v{v_t}, 160
        v_mov_b32 v{v_t+1}, 1
        v_mov_b32 v{v_t+2}, 64
        v_mov_b32 v{v_t+3}, 1
        s_mov_b64 exec, 1
        buffer_atomic_add v{v_t+1}, v{v_t}, {DBG}, 0 offen sc0
        s_waitcnt vmcnt(0)
        v_readfirstlane_b32 s{t0}, v{v_t+1}
        s_cmp_eq_u32 s{t0}, 127
        s_cbranch_scc0 {L('i2')}
        buffer_store_dword v{v_t+3}, v{v_t+2}, {DBG}, 0 offen sc1
        {L('i2')}:
        s_mov_b64 exec, -1
        {L('i3')}:
        s_cmp_lg_u32 s{s_wave}, 0
        s_cbranch_scc1 {L('i4')}
        """)
        flagwait('iw', False)
        A.label(L('i4'))
        A("s_barrier")
    def repair(A, L2):
        D2 = "s[76:79]"
        A(f"s_cmp_eq_u32 s81, 0")
        A(f"s_cbranch_scc1 {L('rp_end')}")
        A(f"v_lshlrev_b32 v24, 2, v{v_lane}")
        A(f"buffer_load_dword v25, v24, {D2}, 0 offen sc1")
        A("s_waitcnt vmcnt(0)")
        A("s_mov_b32 s24, 0")
        for x in range(8):
            A(f"v_readlane_b32 s25, v25, {WX(x)}"); A("s_add_u32 s24, s24, s25")
        A("s_cmp_lt_u32 s24, 256")
        A(f"s_cbranch_scc1 {L('rp_end')}")
        A("s_mov_b32 s81, 0")
        A("s_mov_b32 s25, 0")
        A("s_mov_b32 s26, s80")
        for x in range(8):
            A(f"v_readlane_b32 s24, v25, {WX(x)}")
            A(f"s_max_u32 s27, s24, {QU[x]}")
            A(f"s_sub_u32 s27, s27, {QU[x]}")
            A(f"s_cmp_gt_u32 s71, {x}")
            A(f"s_cselect_b32 s27, s27, 0")
            A(f"s_add_u32 s26, s26, s27")
            A(f"s_min_u32 s24, s24, {QU[x]}")
            A(f"s_sub_u32 s24, {QU[x]}, s24")
            A(f"s_add_u32 s25, s25, s24")
        A("s_cmp_ge_u32 s26, s25")
        A(f"s_cbranch_scc1 {L('rp_end')}")
        for x in range(8):
            A(f"v_readlane_b32 s24, v25, {WX(x)}")
            A(f"s_min_u32 s24, s24, {QU[x]}")
            A(f"s_add_u32 s8, s24, s26")
            A(f"s_add_u32 s8, s8, {QB[x]}")
            A(f"s_sub_u32 s24, {QU[x]}, s24")
            A(f"s_cmp_lt_u32 s26, s24")
            A(f"s_cbranch_scc1 {L('rp_take')}")
            A(f"s_sub_u32 s26, s26, s24")
        A(f"s_branch {L('rp_end')}")
        A.label(L('rp_take'))
        A("s_lshl_b32 s8, s8, 16")
        A("s_or_b32 s8, s8, 15")
        A(f"s_branch {L('bc')}")
        A.label(L('rp_end'))
    def repair_stub(A, L2):
        A.label(L('j_rep'))
        A(f"s_mov_b32 s{s_role}, s11")
        A("s_mov_b32 s38, 0")
        A(f"s_mov_b32 s{SRD_DBG}, s76"); A(f"s_mov_b32 s{SRD_DBG+1}, s77"); A(f"s_mov_b32 s{SRD_DBG+2}, 256"); A(f"s_mov_b32 s{SRD_DBG+3}, 0x00020000")
        A("s_barrier")
        A(f"s_branch {L('haverole')}")
    A.label(L('wentry'))
    A(f"s_mov_b32 s76, s{SRD_DBG}"); A(f"s_mov_b32 s77, s{SRD_DBG+1}"); A("s_mov_b32 s78, 256"); A("s_mov_b32 s79, 0x00020000")
    if worker: worker(A, L, repair, repair_stub)
    A(f"s_branch {L('end')}")
    A.label(L('haverole'))
    A(f"""
    s_lshr_b32 s{s_Q}, s{s_role}, 4
    s_and_b32 s{s_j}, s{s_role}, 15
    s_mov_b32 s{s_hi}, 0
    s_mov_b32 s{s_hi+1}, -1
    s_mov_b32 s{s_lo}, -1
    s_mov_b32 s{s_lo+1}, 0
    s_mov_b32 s{s_c}, {f2u(SCALE_LOG2E):#x}
    s_mov_b32 s{s_c+1}, {f2u(SCALE_LOG2E):#x}
    s_mov_b32 s{s_nc}, {f2u(-SCALE_LOG2E):#x}
    s_mov_b32 s{s_msk}, 0xffff0000
    """)
    n_, g_ = v_t, v_t + 1
    a, b, c, d_ = v_t + 2, v_t + 3, v_t + 4, v_t + 5
    A(f"""
    v_and_b32 v{n_}, 15, v{v_lane}
    v_lshrrev_b32 v{g_}, 4, v{v_lane}
    v_lshlrev_b32 v{v_l16}, 4, v{v_lane}
    v_add_u32 v{v_l16b}, 0x1000, v{v_l16}
    v_lshlrev_b32 v{v_l4}, 2, v{v_lane}
    v_lshlrev_b32 v{v_d1}, 3, v{v_lane}
    v_mov_b32 v{v_idx}, 0x44444444
    v_mov_b32 v{a}, 0xeeeeeeee
    v_cmp_lt_u32 vcc, 7, v{n_}
    s_nop 1
    v_cndmask_b32 v{v_idx}, v{v_idx}, v{a}, vcc
    v_lshrrev_b32 v{d_}, 5, v{v_lane}          ; t
    v_and_b32 v{c}, 1, v{g_}                   ; g'
    v_lshrrev_b32 v{a}, 2, v{n_}
    v_lshl_add_u32 v{b}, v{a}, 1, v{c}         ; 2G+g'
    v_mul_u32_u24 v{a}, 144, v{b}              ; (2G+g')*(128+16)
    v_lshl_add_u32 v{a}, v{d_}, 4, v{a}
    v_and_b32 v{b}, 3, v{n_}
    v_lshl_add_u32 v{a}, v{b}, 2, v{a}
    s_mul_i32 s{t0}, s{s_wave}, 3584
    v_add_u32 v{v_w1q}, s{t0}, v{a}
    v_lshrrev_b32 v{a}, 3, v{n_}
    v_lshl_add_u32 v{a}, v{a}, 2, v{c}
    v_bfe_u32 v{b}, v{n_}, 1, 1
    v_lshl_add_u32 v{a}, v{b}, 1, v{a}
    v_mul_u32_u24 v{a}, 144, v{a}
    v_bfe_u32 v{b}, v{n_}, 2, 1
    v_lshl_add_u32 v{a}, v{b}, 4, v{a}
    v_lshl_add_u32 v{a}, v{d_}, 3, v{a}
    v_and_b32 v{b}, 1, v{n_}
    v_lshl_add_u32 v{a}, v{b}, 2, v{a}
    s_add_u32 s{t0}, s{t0}, 2304
    v_add_u32 v{v_w1v}, s{t0}, v{a}
    v_lshrrev_b32 v{a}, 3, v{v_lane}
    v_lshl_add_u32 v{a}, v{a}, 4, v{v_l16}
    s_mul_i32 s{t0}, s{s_wave}, 1152
    v_add_u32 v{v_r1}, s{t0}, v{a}
    v_lshlrev_b32 v{a}, 8, v{g_}
    v_lshl_add_u32 v{a}, v{n_}, 3, v{a}
    s_cmp_eq_u32 s{s_wave}, 2
    s_cbranch_scc1 {L('d1v')}
    v_mov_b32 v{v_d1}, v{a}
    s_cmp_eq_u32 s{s_wave}, 3
    s_cbranch_scc0 {L('d1v')}
    v_lshrrev_b32 v{a}, 3, v{v_lane}
    v_and_b32 v{b}, 7, v{v_lane}
    v_lshlrev_b32 v{v_d1}, 8, v{a}
    v_lshl_add_u32 v{v_d1}, v{b}, 3, v{v_d1}
    v_lshrrev_b32 v{v_r1}, 2, v{b}
    v_lshlrev_b32 v{v_r1}, 2, v{v_r1}
    v_lshrrev_b32 v{v_offC}, 2, v{a}
    v_add_u32 v{v_r1}, v{v_r1}, v{v_offC}
    v_mul_u32_u24 v{v_r1}, 144, v{v_r1}
    v_and_b32 v{a}, 3, v{a}
    v_lshl_add_u32 v{v_r1}, v{a}, 5, v{v_r1}
    v_and_b32 v{b}, 3, v{b}
    v_lshl_add_u32 v{v_r1}, v{b}, 3, v{v_r1}
    v_add_u32 v{v_r1}, 2304, v{v_r1}
    {L('d1v')}:
    v_lshrrev_b32 v{a}, 3, v{n_}
    v_lshl_add_u32 v{a}, v{a}, 1, v{c}
    v_mul_u32_u24 v{a}, 160, v{a}
    v_mul_u32_u24 v{b}, 640, v{d_}
    v_add_u32 v{a}, v{a}, v{b}
    v_and_b32 v{b}, 7, v{n_}
    v_lshl_add_u32 v{a}, v{b}, 2, v{a}
    s_mul_i32 s{t0}, s{s_wave}, 2560
    s_add_u32 s{t0}, s{t0}, 14336
    v_add_u32 v{v_w2}, s{t0}, v{a}
    v_lshlrev_b32 v{a}, 3, v{v_lane}
    v_lshl_add_u32 v{a}, v{g_}, 5, v{a}
    s_mul_i32 s{t0}, s{s_wave}, 640
    s_add_u32 s{t0}, s{t0}, 14336
    v_add_u32 v{v_r2}, s{t0}, v{a}
    """)
    for r in range(8):
        if r in (0, 2, 4, 6): A(f"v_mov_b32 v{vOne+r}, 0x3f803f80")
        else: A(f"v_mov_b32 v{vOne+r}, 0")
    A(f"s_mov_b64 exec, s[{s_lo}:{s_lo+1}]")
    A(f"v_mov_b32 v{vOne+5}, 0x3f803f80"); A(f"v_mov_b32 v{vOne+7}, 0x3f803f80")
    A("s_mov_b64 exec, -1")
    for nt in range(4):
        A(f"v_mov_b32 v{vUb+8*nt+1}, 0"); A(f"v_mov_b32 v{vUb+8*nt+3}, 0")
    A(f"""
    s_lshl_b32 s{s_memsrc}, s{s_Q}, 14
    s_lshl_b32 s{t0}, s{s_wave}, 12
    s_add_u32 s{s_memsrc}, s{s_memsrc}, s{t0}
    s_add_u32 s{s_memsrc}, s{s_memsrc}, {WS_CH + CH_MEM}
    s_mul_i32 s{t1}, s{s_Q}, {4*HB}
    s_add_u32 s{t1}, s{t1}, {WS_CH + CH_QKV}
    s_mul_i32 s{t0}, s{s_wave}, {HB}
    s_add_u32 s{s_qkvsrc}, s{t1}, s{t0}
    s_lshr_b32 s{t0}, s{s_j}, 2
    s_mul_i32 s{t0}, s{t0}, {HB}
    s_add_u32 s{t1}, s{t1}, s{t0}
    s_and_b32 s{t0}, s{s_j}, 3
    s_lshl_b32 s{t2}, s{t0}, 10
    s_add_u32 s{s_qkvdst}, s{t1}, s{t2}
    s_lshl_b32 s{t2}, s{s_wave}, 7
    s_add_u32 s{s_qkvdst}, s{s_qkvdst}, s{t2}
    s_lshl_b32 s{t2}, s{t0}, 9
    s_add_u32 s{t2}, s{t2}, s{t1}
    s_add_u32 s{t2}, s{t2}, 4096
    s_cmp_eq_u32 s{s_wave}, 2
    s_cselect_b32 s{s_qkvdst}, s{t2}, s{s_qkvdst}
    s_lshl_b32 s{t2}, s{t0}, 6
    s_add_u32 s{t2}, s{t2}, s{t1}
    s_add_u32 s{t2}, s{t2}, 6144
    s_cmp_eq_u32 s{s_wave}, 3
    s_cselect_b32 s{s_qkvdst}, s{t2}, s{s_qkvdst}
    s_lshl_b32 s{t0}, s{s_j}, 13
    s_add_u32 s{t0}, s{t0}, {WS_CH + CH_PART}
    s_lshl_b32 s{t1}, s{s_wave}, 8
    s_add_u32 s{s_partsrc}, s{t0}, s{t1}
    s_add_u32 s{s_partsrc2}, s{s_partsrc}, 4096
    s_lshl_b32 s{t2}, s{s_Q}, 10
    s_add_u32 s{s_partdst}, s{s_partsrc}, s{t2}
    s_lshl_b32 s{s_memdst}, s{s_Q}, 14
    s_lshl_b32 s{t0}, s{s_wave}, 8
    s_add_u32 s{s_memdst}, s{s_memdst}, s{t0}
    s_lshl_b32 s{t0}, s{s_j}, 10
    s_add_u32 s{s_memdst}, s{s_memdst}, s{t0}
    s_add_u32 s{s_memdst}, s{s_memdst}, {WS_CH + CH_MEM + CH_STEP}
    s_lshl_b32 s{t0}, s{s_Q}, 2
    s_add_u32 s{t0}, s{t0}, s{s_wave}
    s_lshl_b32 s{t0}, s{t0}, 13
    s_add_u32 s{s_k}, s{t0}, {WS_K}
    s_add_u32 s{s_v}, s{t0}, {WS_VT}
    s_lshl_b32 s{s_touch}, s{s_Q}, 15
    s_lshl_b32 s{t0}, s{s_j}, 11
    s_add_u32 s{s_touch}, s{s_touch}, s{t0}
    s_and_b32 s{t0}, s{s_wave}, 1
    s_lshl_b32 s{t0}, s{t0}, 10
    s_add_u32 s{s_touch}, s{s_touch}, s{t0}
    s_mov_b32 s{t0}, {WS_K + 2*262144}
    s_mov_b32 s{t1}, {WS_VT + 2*262144}
    s_cmp_ge_u32 s{s_wave}, 2
    s_cselect_b32 s{t0}, s{t1}, s{t0}
    s_add_u32 s{s_touch}, s{s_touch}, s{t0}
    s_mul_i32 s{t0}, s{s_role}, 2048
    s_lshl_b32 s{t1}, s{s_wave}, 10
    s_add_u32 s{t0}, s{t0}, s{t1}
    s_add_u32 s{t0}, s{t0}, {WS_CH + CH_QKV + CH_STEP}
    s_lshl_b32 s{t1}, s{s_role}, 10
    s_add_u32 s{t1}, s{t1}, {WS_CH + CH_MEM + 2*CH_STEP}
    s_cmp_ge_u32 s{s_wave}, 2
    s_cselect_b32 s{s_touch2}, s{t1}, s{t0}
    s_mov_b32 s{s_lastq}, {WS_DUMMY}
    s_mov_b32 s{s_lastm}, {WS_DUMMY}
    """)
    for r in range(3): A(f"v_mov_b32 v{vPub+r}, 0")
    LW = 24576
    vq, vo, vtr1, vtr2 = vA, vA + 1, vA + 2, vA + 4
    A(f"""
    v_lshrrev_b32 v{a}, 2, v{v_lane}
    v_lshlrev_b32 v{a}, 13, v{a}
    v_and_b32 v{b}, 3, v{v_lane}
    v_lshl_add_u32 v{vq}, v{b}, 4, v{a}
    v_lshrrev_b32 v{a}, 3, v{v_lane}
    v_lshlrev_b32 v{a}, 11, v{a}
    v_and_b32 v{b}, 7, v{v_lane}
    v_lshl_add_u32 v{vo}, v{b}, 4, v{a}
    s_lshl_b32 s68, s{s_wave}, 15
    s_add_u32 s68, s68, {LW}
    s_lshl_b32 s69, s{s_wave}, 21
    s_lshl_b32 s{t0}, s{s_role}, 6
    s_add_u32 s69, s69, s{t0}
    s_lshl_b32 s70, s{s_Q}, 2
    s_add_u32 s70, s70, s{s_wave}
    s_lshl_b32 s70, s70, 18
    s_lshl_b32 s{t0}, s{s_j}, 7
    s_add_u32 s70, s70, s{t0}
    v_lshrrev_b32 v{d_}, 2, v{n_}            ; r
    v_and_b32 v{b}, 1, v{d_}
    v_lshrrev_b32 v{a}, 1, v{d_}
    v_lshl_add_u32 v{c}, v{a}, 3, v{b}
    v_lshrrev_b32 v{vtr1+1}, 1, v{g_}
    v_lshl_add_u32 v{c}, v{vtr1+1}, 4, v{c}
    v_and_b32 v{vtr2+1}, 1, v{g_}
    v_lshl_add_u32 v{c}, v{vtr2+1}, 2, v{c}
    v_lshlrev_b32 v{c}, 6, v{c}
    v_and_b32 v{vtr1}, 3, v{n_}
    v_lshlrev_b32 v{vtr1}, 3, v{vtr1}
    v_add_u32 v{c}, v{c}, v{vtr1}
    v_mov_b32 v{vtr2}, v{vtr1}
    v_add_u32 v{vtr1}, s68, v{c}
    v_lshl_add_u32 v{c}, v{g_}, 2, v{d_}
    v_lshlrev_b32 v{c}, 7, v{c}
    v_add_u32 v{c}, v{c}, v{vtr2}
    v_add_u32 v{vtr2}, s68, v{c}
    """)
    ptrs = [60, 62, 64, 66]
    wnt_all = wnt
    def wdma(m):
        wnt = wnt_all if (m in wntm) else ''
        make_srd(A, SRD_W, ptrs[m], 8 << 20)
        reg = (word.index(m) & 1) * 16384
        for i in range(16):
            A(f"s_add_u32 m0, s68, {reg + i*1024}")
            if m < 3:
                A(f"s_add_u32 s{t0}, s69, {i*16*8192}")
                A(f"buffer_load_dwordx4 v{vq}, s[{SRD_W}:{SRD_W+3}], s{t0} offen{wnt} lds")
            else:
                A(f"s_add_u32 s{t0}, s70, {i*8*2048}")
                A(f"buffer_load_dwordx4 v{vo}, s[{SRD_W}:{SRD_W+3}], s{t0} offen{wnt} lds")
    def aW1(tile, ks): return (tile * 4 + ks) * 8
    def aW2(nt, ks): return 192 + (nt * 2 + ks) * 8
    def wtr(m):
        reg = (word.index(m) & 1) * 16384
        cnt = 0
        for t in range(2 if m < 3 else 4):
            for ks in range(4 if m < 3 else 2):
                for h in range(2):
                    for u in range(2):
                        if m < 3:
                            d = aW1(2 * m + t, ks) + 4 * h + 2 * u
                            off = reg + (64 * ks + 32 * h + 2 * u) * 64 + t * 32
                            A(f"ds_read_b64_tr_b16 a[{d}:{d+1}], v{vtr1} offset:{off}")
                        else:
                            d = aW2(t, ks) + 4 * h + 2 * u
                            off = reg + (64 * ks + 32 * h + 16 * u) * 128 + t * 32
                            A(f"ds_read_b64_tr_b16 a[{d}:{d+1}], v{vtr2} offset:{off}")
                        cnt += 1
                        if cnt % 8 == 0: A("s_waitcnt lgkmcnt(0)")
    def kvload(base, sreg):
        ops = []
        for i in range(8):
            vo_ = v_l16 if i < 4 else v_l16b
            ops.append(f"buffer_load_dwordx4 v[{base+4*i}:{base+4*i+3}], v{vo_}, {WS}, s{sreg} offen offset:{(i%4)*1024} sc1")
        return ops
    def maxops(regs, tmp):
        rest = list(regs); ops = []
        ops.append(f"v_max3_u32 v{tmp}, v{rest[0]}, v{rest[1]}, v{rest[2]}"); rest = rest[3:]
        while len(rest) >= 2:
            ops.append(f"v_max3_u32 v{tmp}, v{tmp}, v{rest[0]}, v{rest[1]}"); rest = rest[2:]
        if rest: ops.append(f"v_max_u32 v{tmp}, v{tmp}, v{rest[0]}")
        return ops
    def checkops(regs, lab, tmp):
        return maxops(regs, tmp) + [f"v_cmp_eq_u32 vcc, -1, v{tmp}", f"s_cbranch_vccnz {lab}"]
    def hook(tag):
        A(f"s_and_b32 s{t0}, s{s_pc}, 63")
        A(f"s_cmp_eq_u32 s{t0}, 0")
        A(f"s_cbranch_scc0 {L(tag+'_h')}")
        A("buffer_wbl2 sc1")
        A.label(L(tag + '_h'))
    def stamp_t(k):
        if trace:
            A("s_memtime s[72:73]")
            A(f"s_and_b32 s74, s{s_step}, 7"); A("s_lshl_b32 s74, s74, 3"); A(f"s_add_u32 s74, s74, {k}")
            A("s_mov_b32 m0, s74")
            A("s_waitcnt lgkmcnt(0)")
            A("v_writelane_b32 v255, s72, m0")
        elif stamp and rounds and k in (0, 2, 4):
            A(f"s_sub_u32 s74, {POLLMAX}, s{s_pc}"); A(f"s_add_u32 s{80+k}, s{80+k}, s74")
        elif stamp and not rounds:
            A("s_memtime s[72:73]"); A("s_waitcnt lgkmcnt(0)")
            A("s_sub_u32 s74, s72, s76"); A(f"s_add_u32 s{80+k}, s{80+k}, s74"); A("s_mov_b32 s76, s72")
    def utok_ops():
        mf = []
        for kk in range(4):
            for T in range(2):
                for nt in range(4):
                    d = vU + (T * 4 + nt) * 4; w = aW2(nt, kk >> 1) + 4 * (kk & 1); va = vV + (T * 4 + kk) * 4
                    C = "0" if kk == 0 else f"v[{d}:{d+3}]"
                    mf.append(f"v_mfma_f32_16x16x32_bf16 v[{d}:{d+3}], v[{va}:{va+3}], a[{w}:{w+3}], {C}")
        cv = []
        for T in range(2):
            for nt in range(4):
                d = vU + (T * 4 + nt) * 4
                cv.append(f"v_cvt_pk_bf16_f32 v{vUb+8*nt+4*T}, v{d}, v{d+1}")
                cv.append(f"v_cvt_pk_bf16_f32 v{vUb+8*nt+4*T+2}, v{d+2}, v{d+3}")
        return mf, cv
    def halves(d0, d1):
        return [f"v_permlane32_swap_b32 v{d0+r}, v{d1+r}" for r in range(4)] + [f"v_add_f32 v{d0+r}, v{d0+r}, v{d1+r}" for r in range(4)]
    if init2:
        A("s_cmp_eq_u32 s38, 0")
        A(f"s_cbranch_scc1 {L('cs1')}")
        A("s_waitcnt vmcnt(0)")
        A("s_barrier")
        A(f"s_cmp_lg_u32 s{s_wave}, 0")
        A(f"s_cselect_b32 s38, 0, 1")
        A(f"s_cbranch_scc1 {L('cs1')}")
        A("s_mov_b64 exec, 1")
        early_signal(100, 'cs')
        A("v_mov_b32 v100, 160"); A("v_mov_b32 v101, 1"); A("v_mov_b32 v102, 64"); A("v_mov_b32 v103, 1")
        A(f"buffer_atomic_add v101, v100, {DBG}, 0 offen sc0")
        A("s_mov_b64 exec, -1")
        A.label(L('cs1'))
    wdma(word[0]); wdma(word[1])
    if init2:
        A("s_cmp_eq_u32 s38, 0")
        A(f"s_cbranch_scc1 {L('cs2')}")
        A("s_waitcnt vmcnt(32)")
        A(f"v_readfirstlane_b32 s{t0}, v101")
        A(f"s_cmp_eq_u32 s{t0}, 255")
        A(f"s_cbranch_scc0 {L('cs2')}")
        A("s_mov_b64 exec, 1")
        last_actions(100)
        A("s_mov_b64 exec, -1")
        A("s_waitcnt vmcnt(0)")
        A.label(L('cs2'))
    if not wreg:
        A("s_waitcnt vmcnt(16)"); wtr(word[0]); wdma(word[2])
        A("s_waitcnt vmcnt(16)"); wtr(word[1]); wdma(word[3])
        A("s_waitcnt vmcnt(16)"); wtr(word[2])
        A("s_waitcnt vmcnt(0)"); wtr(word[3])
    else:
        RB = 104
        for m in (2, 3):
            make_srd(A, SRD_W, ptrs[m], 8 << 20)
            for i in range(16):
                r = RB + (m - 2) * 64 + 4 * i
                if m < 3:
                    A(f"s_add_u32 s{t0}, s69, {i*16*8192}")
                    A(f"buffer_load_dwordx4 v[{r}:{r+3}], v{vq}, s[{SRD_W}:{SRD_W+3}], s{t0} offen")
                else:
                    A(f"s_add_u32 s{t0}, s70, {i*8*2048}")
                    A(f"buffer_load_dwordx4 v[{r}:{r+3}], v{vo}, s[{SRD_W}:{SRD_W+3}], s{t0} offen")
        A(f"v_add_u32 v{vA+6}, s68, v{v_l16}")
        A("s_waitcnt vmcnt(48)"); wtr(0)
        A("s_waitcnt vmcnt(32)"); wtr(1)
        for m in (2, 3):
            A(f"s_waitcnt vmcnt({16 if m == 2 else 0})")
            for i in range(16):
                r = RB + (m - 2) * 64 + 4 * i
                A(f"ds_write_b128 v{vA+6}, v[{r}:{r+3}] offset:{(m & 1)*16384 + i*1024}")
                if i % 8 == 7: A("s_waitcnt lgkmcnt(0)")
            wtr(m)
        for nt in range(4):
            A(f"v_mov_b32 v{vUb+8*nt+1}, 0"); A(f"v_mov_b32 v{vUb+8*nt+3}, 0")
    def cntwait(tag, sidx, val):
        A(f"s_mov_b32 s{s_pc}, {POLLMAX}")
        A.label(L(tag))
        A(f"buffer_load_dword v{vCnt}, v{v_zero}, {WS}, s{sidx} offen sc1")
        A(f"s_sub_u32 s{s_pc}, s{s_pc}, 1")
        A(f"s_cbranch_scc1 {L('bail')}")
        A("s_waitcnt vmcnt(0)")
        A(f"v_readfirstlane_b32 s{t0}, v{vCnt}")
        A(f"s_cmp_ge_u32 s{t0}, {val}")
        A(f"s_cbranch_scc1 {L(tag+'_ok')}")
        A("s_sleep 2")
        A(f"s_branch {L(tag)}")
        A.label(L(tag + '_ok'))
    A(f"v_mov_b32 v{v_zero}, 0")
    if stamp:
        A("s_memrealtime s[72:73]"); A("s_waitcnt lgkmcnt(0)"); A("s_mov_b32 s75, s72")
    A("s_mov_b32 s89, 64")
    A(f"s_mov_b32 s{s_cnt}, {WS_CNT + C_KVG*128}")
    if init or init2: flagwait('cw', True)
    if engine: cntwait('kv0', s_cnt, kv0n)
    for o in kvload(vK, s_k): A(o)
    for o in kvload(vV, s_v): A(o)
    A("s_waitcnt vmcnt(0)")
    mf, cv = utok_ops()
    for o in mf: A(o)
    A("s_nop 7")
    for o in cv: A(o)
    A(f"s_add_u32 s{s_v}, s{s_v}, 262144")
    for r in range(24): A(f"v_mov_b32 v{acc1+r}, 0")
    A(f"s_mov_b32 s{s_step}, 0")
    for p in range(4): A(f"v_add_u32 v{v_r3+p}, {p*3584}, v{v_r1}")
    if stamp:
        for k in range(8): A(f"s_mov_b32 s{80+k}, 0")
        A("s_memtime s[76:77]"); A("s_memrealtime s[78:79]"); A("s_waitcnt lgkmcnt(0)")
    A("s_barrier")
    for ks in range(4): A(f"buffer_load_dwordx4 v[{vA+4*ks}:{vA+4*ks+3}], v{v_l16}, {WS}, s{s_memsrc} offen offset:{ks*1024} sc1")
    A(f"s_mov_b32 s{s_pc}, {POLLMAX}")
    A(f"s_branch {L('loop')}")
    def pkadd(d, a, b): return f"v_pk_add_f32 v[{d}:{d+1}], v[{a}:{a+1}], v[{b}:{b+1}]"
    def pkmul(d, a, b): return f"v_pk_mul_f32 v[{d}:{d+1}], v[{a}:{a+1}], v[{b}:{b+1}]"
    def halves(d0, d1):
        return [f"v_permlane32_swap_b32 v{d0+r}, v{d1+r}" for r in range(4)] + [pkadd(d0, d0, d1), pkadd(d0 + 2, d0 + 2, d1 + 2)]
    def cload(ks): return f"buffer_load_dwordx4 v[{vA+4*ks}:{vA+4*ks+3}], v{v_l16}, {WS}, s{s_memsrc} offen offset:{ks*1024} sc1"
    def aload(ks): return f"buffer_load_dwordx4 v[{vA+4*ks}:{vA+4*ks+3}], v{v_l16}, {WS}, s{s_qkvsrc} offen offset:{ks*1024} sc1"
    def vmload(u): return f"buffer_load_dwordx4 v[{vVM+4*u}:{vVM+4*u+3}], v{v_l16b}, {WS}, s{s_qkvsrc} offen offset:{u*1024} sc1"
    def tmo(tag):
        A(f"s_sub_u32 s{s_pc}, s{s_pc}, 1")
        A(f"s_cbranch_scc1 {L('bail')}")
        hook(tag)
    def chk4(base, lab):
        return checkops(range(base, base + 4), lab, v_t)
    A.label(L('redo1'))
    A("s_nop 15")
    for r in range(24): A(f"v_mov_b32 v{acc1+r}, 0")
    A.label(L('pc'))
    for ks in range(4): A(cload(ks))
    tmo('pc')
    A.label(L('loop'))
    A("s_waitcnt vmcnt(0)")
    for o in checkops([vA + 4 * i + 3 for i in range(4)], L('pc'), v_t): A(o)
    stamp_t(0)
    if clk:
        A("s_memtime s[72:73]"); A("s_memrealtime s[74:75]"); A(f"s_mov_b32 m0, s{s_step}"); A("s_waitcnt lgkmcnt(0)")
        A("v_writelane_b32 v255, s72, m0"); A("v_writelane_b32 v1, s74, m0")
    mf = []
    for tile in range(6):
        for ks in range(4):
            d = acc1 + 4 * tile; w = aW1(tile, ks)
            mf.append(f"v_smfmac_f32_16x16x64_bf16 v[{d}:{d+3}], v[{vA+4*ks}:{vA+4*ks+3}], a[{w}:{w+7}], v{v_idx}")
    chk = checkops([vA + i for i in range(16) if i % 4 != 3], L('redo1'), v_t)
    vl = [] if (nokv or vpos != 0) else kvload(vV, s_v)
    interleave(A, mf[:16], chk + vl, per=1)
    post = []
    for which in range(2):
        d0 = acc1 + 8 * which
        post += halves(d0, d0 + 4) + [f"ds_write_b32 v{v_w1q}, v{d0+r} offset:{which*1152 + r*32}" for r in range(4)]
    interleave(A, mf[16:20], post[:10], per=3)
    interleave(A, mf[20:], post[10:], per=3)
    A("s_nop 6")
    for o in halves(acc1 + 16, acc1 + 20): A(o)
    for r in range(4): A(f"ds_write_b32 v{v_w1v}, v{acc1+16+r} offset:{r*32}")
    for r in range(8): A(f"v_mov_b32 v{acc2+r}, 0")
    A("s_waitcnt lgkmcnt(0)")
    if trace: stamp_t(7)
    A("s_barrier")
    A(f"s_cmp_eq_u32 s{s_wave}, 3")
    A(f"s_cbranch_scc0 {L('s1a')}")
    for p in range(4):
        A(f"ds_read2_b64 v[{vU+4*p}:{vU+4*p+3}], v{v_r3+p} offset0:0 offset1:36")
    A(f"s_branch {L('s1b')}")
    A.label(L('s1a'))
    for p in range(4):
        A(f"ds_read_b128 v[{vU+4*p}:{vU+4*p+3}], v{v_r1} offset:{p*3584}")
    A.label(L('s1b'))
    for r in range(8, 20): A(f"v_mov_b32 v{acc2+r}, 0")
    A("s_waitcnt lgkmcnt(2)")
    A(pkadd(vU, vU, vU + 4)); A(pkadd(vU + 2, vU + 2, vU + 6))
    A("s_waitcnt lgkmcnt(0)")
    A(pkadd(vU + 8, vU + 8, vU + 12)); A(pkadd(vU + 10, vU + 10, vU + 14))
    A(pkadd(vU, vU, vU + 8)); A(pkadd(vU + 2, vU + 2, vU + 10))
    A(f"v_cvt_pk_bf16_f32 v{vPub}, v{vU}, v{vU+1}")
    A(f"v_cvt_pk_bf16_f32 v{vPub+1}, v{vU+2}, v{vU+3}")
    A(f"v_min_u32 v{vPub}, -2, v{vPub}")
    A(f"v_min_u32 v{vPub+1}, -2, v{vPub+1}")
    A(f"buffer_store_dwordx2 v[{vPub}:{vPub+1}], v{v_d1}, {WS}, s{s_qkvdst} offen")
    A(f"s_mov_b32 s{s_lastq}, s{s_qkvdst}")
    A(f"s_cmp_eq_u32 s{s_step}, {nsteps-1}")
    A(f"s_cbranch_scc1 {L('fin')}")
    stamp_t(1)
    if dlyA: A(f"s_sleep {dlyA}")
    for ks in range(4): A(aload(ks))
    A(vmload(0)); A(vmload(1))
    A(f"s_mov_b32 s{s_pc}, {POLLMAX}")
    for r in range(16): A(f"v_mov_b32 v{vUm+r}, 0")
    A(f"s_branch {L('pa1')}")
    A.label(L('pa'))
    for ks in range(4): A(aload(ks))
    A(vmload(0)); A(vmload(1))
    tmo('pa')
    A.label(L('pa1'))
    A("s_waitcnt vmcnt(0)")
    for o in checkops([vA + 4 * i + 3 for i in range(6)], L('pa'), v_t): A(o)
    stamp_t(2)
    mf = []
    for ks in range(4):
        R = f"v[{vA+4*ks}:{vA+4*ks+3}]"
        for t in range(3):
            d = vS + 4 * t
            Aop = R if t == 2 else f"v[{vK+(t*4+ks)*4}:{vK+(t*4+ks)*4+3}]"
            C = "0" if ks == 0 else f"v[{d}:{d+3}]"
            mf.append(f"v_mfma_f32_16x16x32_bf16 v[{d}:{d+3}], {Aop}, {R}, {C}")
    chk = checkops([vA + i for i in range(24) if i % 4 != 3], L('pa'), v_t)
    interleave(A, mf, chk, per=1)
    um = []
    for nt in range(4):
        for ks in range(2):
            d = vUm + 4 * nt; w = aW2(nt, ks)
            um.append(f"v_smfmac_f32_16x16x64_bf16 v[{d}:{d+3}], v[{vVM+4*ks}:{vVM+4*ks+3}], a[{w}:{w+7}], v{v_idx}")
    mx, tt = v_t, v_t + 2
    A(um[0]); A("s_nop 6")
    sm1 = [f"v_max3_f32 v{mx}, v{vS}, v{vS+1}, v{vS+2}", f"v_max3_f32 v{mx}, v{mx}, v{vS+3}, v{vS+4}",
           f"v_max3_f32 v{mx}, v{mx}, v{vS+5}, v{vS+6}", f"v_max_f32 v{mx}, v{mx}, v{vS+7}", um[1],
           f"s_mov_b64 exec, s[{s_hi}:{s_hi+1}]", f"v_max3_f32 v{mx}, v{mx}, v{vS+8}, v{vS+9}", f"v_max3_f32 v{mx}, v{mx}, v{vS+10}, v{vS+11}",
           "s_mov_b64 exec, -1", f"v_mov_b32 v{tt}, v{mx}"]
    for o in sm1: A(o)
    A(um[2])
    A("s_nop 0")
    A(f"v_permlane32_swap_b32 v{mx}, v{tt}")
    A(f"v_max_f32 v{mx}, v{mx}, v{tt}")
    A(f"v_mov_b32 v{tt}, v{mx}")
    A(um[3])
    A("s_nop 0")
    A(f"v_permlane16_swap_b32 v{mx}, v{tt}")
    A(f"v_max_f32 v{mx}, v{mx}, v{tt}")
    ex = []
    for i in (8, 10, 0, 2, 4, 6):
        ex.append(f"v_pk_add_f32 v[{vS+i}:{vS+i+1}], v[{vS+i}:{vS+i+1}], v[{mx}:{mx+1}] op_sel_hi:[1,0] neg_lo:[0,1] neg_hi:[0,1]")
    for i in (8, 10, 0, 2, 4, 6):
        ex.append(f"v_pk_mul_f32 v[{vS+i}:{vS+i+1}], v[{vS+i}:{vS+i+1}], s[{s_c}:{s_c+1}]")
    for i in list(range(8, 12)) + list(range(8)): ex.append(f"v_exp_f32 v{vS+i}, v{vS+i}")
    k = 0
    vl2 = kvload(vV, s_v) if vpos == 1 else []
    for i, o in enumerate(ex):
        A(o)
        if i % 5 == 4 and k < 4: A(um[4 + k]); k += 1
        if i % 2 == 1 and vl2: A(vl2.pop(0))
    Pb, X = vP + 4, vP + 6
    A(f"v_cvt_pk_bf16_f32 v{Pb}, v{vS+8}, v{vS+9}")
    A(f"v_cvt_pk_bf16_f32 v{Pb+1}, v{vS+10}, v{vS+11}")
    A(f"s_mov_b64 exec, s[{s_lo}:{s_lo+1}]")
    A(f"v_mov_b32 v{Pb}, 0"); A(f"v_mov_b32 v{Pb+1}, 0")
    A("s_mov_b64 exec, -1")
    A(f"v_mov_b32 v{X}, v{Pb}"); A(f"v_mov_b32 v{X+1}, v{Pb+1}")
    for i in range(4): A(f"v_cvt_pk_bf16_f32 v{vP+i}, v{vS+2*i}, v{vS+2*i+1}")
    A(f"v_permlane16_swap_b32 v{Pb}, v{X}")
    A(f"v_permlane16_swap_b32 v{Pb+1}, v{X+1}")
    for nt in range(2):
        d = vUm + 4 * nt
        A(f"v_cvt_pk_bf16_f32 v{vUb+8*nt+5}, v{d}, v{d+1}"); A(f"v_cvt_pk_bf16_f32 v{vUb+8*nt+7}, v{d+2}, v{d+3}")
    for i, src in enumerate((Pb, Pb + 1, X, X + 1)):
        A(f"v_mov_b32_dpp v{vP+i}, v{src} row_shr:8 row_mask:0xf bank_mask:0xc")
    d = vUm + 8
    A(f"v_cvt_pk_bf16_f32 v{vUb+21}, v{d}, v{d+1}"); A(f"v_cvt_pk_bf16_f32 v{vUb+23}, v{d+2}, v{d+3}")
    PA = f"v[{vP}:{vP+3}]"
    lr = acc2 + 16
    def fin_mf(nt):
        d = acc2 + 4 * nt
        return f"v_smfmac_f32_16x16x64_bf16 v[{d}:{d+3}], {PA}, v[{vUb+8*nt}:{vUb+8*nt+7}], v{v_idx}"
    A(f"v_smfmac_f32_16x16x64_bf16 v[{lr}:{lr+3}], {PA}, v[{vOne}:{vOne+7}], v{v_idx}")
    d = vUm + 12
    A(f"v_cvt_pk_bf16_f32 v{vUb+29}, v{d}, v{d+1}"); A(f"v_cvt_pk_bf16_f32 v{vUb+31}, v{d+2}, v{d+3}")
    for nt in range(4): A(fin_mf(nt))
    A("s_nop 1")
    lt = vS
    for r in range(4): A(f"v_mov_b32 v{lt+r}, v{lr+r}")
    h0 = halves(acc2, acc2 + 4)
    A(h0[0])
    for r in range(4): A(f"v_permlane32_swap_b32 v{lr+r}, v{lt+r}")
    A(pkadd(lr, lr, lt)); A(pkadd(lr + 2, lr + 2, lt + 2))
    for r in range(4): A(f"v_rcp_f32 v{lr+r}, v{lr+r}")
    for o in h0[1:]: A(o)
    for st in range(2):
        d0 = acc2 + 8 * st
        if st == 1:
            for o in halves(d0, d0 + 4): A(o)
        A(pkmul(d0, d0, lr)); A(pkmul(d0 + 2, d0 + 2, lr + 2))
        for r in range(4): A(f"ds_write_b32 v{v_w2}, v{d0+r} offset:{r*32+st*1280}")
    A(f"s_add_u32 s{s_k}, s{s_k}, 262144")
    A(f"s_add_u32 s{s_v}, s{s_v}, 262144")
    A("s_waitcnt lgkmcnt(0)")
    A("s_barrier")
    for p in range(4):
        A(f"ds_read_b64 v[{vB+2*p}:{vB+2*p+1}], v{v_r2} offset:{p*2560}")
    A("s_mov_b32 s96, 0x11111111"); A("s_mov_b32 s97, 0x11111111")
    A("s_waitcnt lgkmcnt(2)")
    A(pkadd(vB, vB, vB + 2))
    A("s_waitcnt lgkmcnt(0)")
    A(pkadd(vB + 4, vB + 4, vB + 6))
    A(pkadd(vB, vB, vB + 4))
    A(f"v_cvt_pk_bf16_f32 v{vB+8}, v{vB}, v{vB+1}")
    A(f"v_min_u32 v{vB+8}, -2, v{vB+8}")
    A("s_nop 1")
    A(f"v_mov_b32_dpp v{vB+9}, v{vB+8} quad_perm:[1,1,1,1] row_mask:0xf bank_mask:0xf")
    A(f"v_mov_b32_dpp v{vB+10}, v{vB+8} quad_perm:[2,2,2,2] row_mask:0xf bank_mask:0xf")
    A(f"v_mov_b32_dpp v{vB+11}, v{vB+8} quad_perm:[3,3,3,3] row_mask:0xf bank_mask:0xf")
    A("s_mov_b64 exec, s[96:97]")
    A(f"buffer_store_dwordx4 v[{vB+8}:{vB+11}], v{v_l4}, {WS}, s{s_partdst} offen sc1")
    A("s_mov_b64 exec, -1")
    stamp_t(3)
    mf, cv = utok_ops()
    side = []
    if vpos == 1: A("s_waitcnt vmcnt(1)")
    if engine:
        A(f"v_readfirstlane_b32 s{t0}, v{vCnt}")
        A(f"s_cmp_ge_u32 s{t0}, s89")
        A(f"s_cbranch_scc1 {L('kvn_ok')}")
        cntwait('kvn', s_cnt, "s89")
        A(f"s_add_u32 s{t0}, s{s_step}, 3")
        A(f"s_min_u32 s{t0}, s{t0}, 63")
        A(f"s_lshr_b32 s{t1}, s{t0}, 3")
        A(f"s_add_u32 s{t1}, s{t1}, {C_KV}")
        A(f"s_lshr_b32 s{t0}, s{t0}, 2")
        A(f"s_add_u32 s{t2}, s{t0}, {C_KVG}")
        A(f"s_cmp_lt_u32 s{t0}, 4")
        A(f"s_cselect_b32 s89, 64, 32")
        A(f"s_cselect_b32 s{t0}, s{t2}, s{t1}")
        A(f"s_lshl_b32 s{t0}, s{t0}, 7")
        A(f"s_add_u32 s{s_cnt}, s{t0}, {WS_CNT}")
        A(f"s_bitcmp1_b32 s{s_wave}, 0")
        A(f"s_cbranch_scc0 {L('nowt')}")
        A(f"v_mov_b32 v{vTch}, v{vPub}"); A(f"v_mov_b32 v{vTch+1}, v{vPub+1}")
        A(f"v_mov_b32_dpp v{vTch+2}, v{vPub} quad_perm:[1,1,3,3] row_mask:0xf bank_mask:0xf")
        A(f"v_mov_b32_dpp v{vTch+3}, v{vPub+1} quad_perm:[1,1,3,3] row_mask:0xf bank_mask:0xf")
        A("s_mov_b32 exec_lo, 0x55555555"); A("s_mov_b32 exec_hi, 0x55555555")
        A(f"buffer_store_dwordx4 v[{vTch}:{vTch+3}], v{v_d1}, {WS}, s{s_lastq} offen sc1")
        A("s_mov_b64 exec, -1")
        A.label(L('nowt'))
    if not nokv: side += kvload(vK, s_k)
    if not notouch:
        side.append(f"buffer_load_dwordx4 v[{vTch}:{vTch+3}], v{v_l16}, {WS}, s{s_touch} offen sc1")
        side.append(f"buffer_load_dwordx4 v[{vTch}:{vTch+3}], v{v_l16}, {WS}, s{s_touch2} offen sc1")
    if engine: side.append(f"buffer_load_dword v{vCnt}, v{v_zero}, {WS}, s{s_cnt} offen sc1")
    interleave(A, mf[:nW], side, per=1)
    if dlyB: A(f"s_sleep {dlyB}")
    stamp_t(6)
    def pbloads():
        for q in range(8):
            sb = s_partsrc if q < 4 else s_partsrc2
            A(f"buffer_load_dword v{vB+q}, v{v_l4}, {WS}, s{sb} offen offset:{(q%4)*1024} sc1")
    pbloads()
    A(f"s_mov_b32 s{s_pc}, {POLLMAX}")
    side = [f"v_mov_b32 v{acc1+r}, 0" for r in range(24)]
    side += [f"s_add_u32 s{r}, s{r}, {CH_STEP}" for r in (s_memsrc, s_qkvdst, s_qkvsrc, s_partdst, s_touch2)]
    side += [f"s_add_u32 s{s_touch}, s{s_touch}, 262144", f"s_add_u32 s{s_step}, s{s_step}, 1"]
    interleave(A, mf[nW:], side, per=2)
    A("s_nop 3")
    for o in cv: A(o)
    A(f"s_branch {L('pb1')}")
    A.label(L('pb'))
    pbloads()
    tmo('pb')
    A.label(L('pb1'))
    A("s_waitcnt vmcnt(0)")
    for o in checkops(range(vB, vB + 8), L('pb'), v_t): A(o)
    stamp_t(4)
    e = vS + 8
    x0 = vP
    for q in range(0, 8, 2):
        tgt = x0 + q
        A(f"v_lshlrev_b32 v{tgt}, 16, v{vB+q}"); A(f"v_and_b32 v{tgt+1}, s{s_msk}, v{vB+q}")
        A(f"v_lshlrev_b32 v{e}, 16, v{vB+q+1}"); A(f"v_and_b32 v{e+1}, s{s_msk}, v{vB+q+1}")
        A(pkadd(tgt, tgt, e))
    A(pkadd(x0, x0, x0 + 2)); A(pkadd(x0 + 4, x0 + 4, x0 + 6)); A(pkadd(x0, x0, x0 + 4))
    A(f"v_cvt_pk_bf16_f32 v{vPub+2}, v{x0}, v{x0+1}")
    A(f"v_min_u32 v{vPub+2}, -2, v{vPub+2}")
    A(f"buffer_store_dword v{vPub+2}, v{v_l4}, {WS}, s{s_memdst} offen")
    if dlyC: A(f"s_sleep {dlyC}")
    for ks in range(4): A(cload(ks))
    A(f"s_mov_b32 s{s_lastm}, s{s_memdst}")
    for r in (s_partsrc, s_partsrc2, s_memdst): A(f"s_add_u32 s{r}, s{r}, {CH_STEP}")
    A(f"s_mov_b32 s{s_pc}, {POLLMAX}")
    stamp_t(5)
    A(f"s_branch {L('loop')}")
    A.label(L('bail'))
    A(f"""
    v_mov_b32 v{v_t}, 48
    v_mov_b32 v{v_t+1}, 1
    s_mov_b64 exec, 1
    buffer_atomic_add v{v_t+1}, v{v_t}, {DBG}, 0 offen
    s_mov_b64 exec, -1
    """)
    A(f"s_branch {L('end')}")
    A.label(L('fin'))
    if engine:
        A(f"buffer_store_dwordx2 v[{vPub}:{vPub+1}], v{v_d1}, {WS}, s{s_lastq} offen sc1")
        A(f"buffer_store_dword v{vPub+2}, v{v_l4}, {WS}, s{s_lastm} offen sc1")
        A("s_barrier")
        A.label(L('fin2'))
    if stamp:
        A(f"s_load_dwordx2 s[4:5], s[0:1], {KA_WS if engine else 80}")
        A("s_memrealtime s[72:73]")
        A("s_waitcnt lgkmcnt(0)")
        make_srd(A, 24, 4, WS_SIZE if engine else 1 << 20)
        A("s_sub_u32 s87, s72, s78")
        if engine: A("s_mov_b32 s86, s78"); A("s_mov_b32 s85, s75"); A("s_mov_b32 s84, s3")
        A("s_waitcnt vmcnt(0)")
        for k in range(8): A(f"v_mov_b32 v{vA+k}, s{80+k}")
        A(f"""
        s_lshl_b32 s{t0}, s{s_role}, 7
        s_lshl_b32 s{t1}, s{s_wave}, 5
        s_add_u32 s{t0}, s{t0}, s{t1}
        s_lshl_b32 s{t1}, s{t0}, 3
        s_add_u32 s{t1}, s{t1}, {65536 + (WS_DUMMY + 0x80000 if engine else 0)}
        s_add_u32 s{t0}, s{t0}, {WS_DUMMY + 0x80000 if engine else 0}
        buffer_store_dword v255, v{v_l4}, s[24:27], s{t1} offen
        v_mov_b32 v{v_t}, 0
        s_mov_b64 exec, 1
        buffer_store_dwordx4 v[{vA}:{vA+3}], v{v_t}, s[24:27], s{t0} offen
        buffer_store_dwordx4 v[{vA+4}:{vA+7}], v{v_t}, s[24:27], s{t0} offen offset:16
        """)
    if clk:
        A("s_mov_b64 exec, -1")
        A(f"s_lshl_b32 s{t0}, s{s_role}, 2"); A(f"s_add_u32 s{t0}, s{t0}, s{s_wave}"); A(f"s_lshl_b32 s{t0}, s{t0}, 9")
        A(f"s_add_u32 s{t0}, s{t0}, {WS_DUMMY + 0x80000}")
        A(f"buffer_store_dword v255, v{v_l4}, {WS}, s{t0} offen"); A(f"buffer_store_dword v1, v{v_l4}, {WS}, s{t0} offen offset:256")
    if engine:
        A("s_mov_b64 exec, -1")
        A(f"s_add_u32 s14, s{s_role}, 128")
        A("s_mov_b32 s81, 0")
        A(f"s_branch {L('wentry')}")
    A.label(L('end'))
    A("s_endpgm")
    if after: after(A, L)
    return dict(lds=24576 + 4 * 32768)

if __name__ == "__main__":
    A = Asm()
    A.raw('.amdgcn_target "amdgcn-amd-amdhsa--gfx950"')
    hdr = []
    var = [dict(stamp=True, nW=32), dict(stamp=True, nW=24), dict(stamp=True, nW=32, dlyC=3), dict(stamp=True, nW=32, dlyC=5), dict(stamp=True, nW=32, dlyA=2, dlyC=3), dict(stamp=True, nW=32, dlyA=3, dlyC=4),
           dict(stamp=True, nW=32, dlyB=2, dlyC=3), dict(stamp=True, nW=28, dlyA=2, dlyC=4), dict(stamp=True, rounds=True, nW=32, dlyA=2, dlyC=3)]
    for i, d in enumerate(var):
        n = f"chain{i}_kernel"
        r = gen_chain(A, n, **d)
        hdr.append(f"; @launch kernel={n} grid=(256,1,1) block=(256,1,1) lds={r['lds']}")
    for i in range(len(var)):
        kernel_desc(A, f"chain{i}_kernel", 512, 102, accum=256)
    open("chain.s", "w").write("\n".join(hdr) + "\n" + A.text())
```

```python
import build3, sys
base_c = dict(codepf=122880, vpos=0, word=(1,2,0,3), dlyA=0, dlyC=4)
S = dict(ntiny=0, modes="BBBBBBMMMMMMMFFE")
out = sys.argv[1] if len(sys.argv) > 1 else "cdna_kernels/" + build3.NAME + ".s"
build3.build(out, sched_kw=S, chain_kw=base_c)
build3.build("finalfx.s", sched_kw=S, chain_kw={**base_c, 'fakex': True})
```

```python
from asmlib import *
from layout import *
import math, struct

SCALE_LOG2E = (128 ** -0.5) * 1.4426950408889634
def f2u(x): return struct.unpack("<I", struct.pack("<f", x))[0]

def interleave(A, mf, side, per=3, start=0):
    k = 0
    for i, m in enumerate(mf):
        A(m)
        if i >= start:
            for _ in range(per):
                if k < len(side): A(side[k]); k += 1
    while k < len(side): A(side[k]); k += 1

def gen_chain(A, name="chain_kernel", dlyB=0, stamp=False, nsteps=64, POLLMAX=1 << 20, nokv=False, notouch=False, rounds=False, trace=False, worker=None, nW=16, dlyA=0, dlyC=0, engine=False, kv0n=128, after=None, NX=8, fakex=False, clk=False, vpos=1, init=None, init2=None, codepf=0, ready2=None, wreg=False, wnt='', wntm=(0, 1, 2, 3), word=(0, 1, 2, 3), pipeB=False):
    WX = lambda x: x if x < 4 else 28 + x
    QU = [128 // NX if x < NX else 0 for x in range(8)]; QB = [sum(QU[:x]) for x in range(8)]; q0 = 128 // NX
    kernel_begin(A, name)
    L = lambda s: f"{name}_{s}"
    SRD_WS, SRD_DBG, SRD_W = 16, 20, 24
    WS = f"s[{SRD_WS}:{SRD_WS+3}]"
    s_wave, s_xcc, s_tick, s_role, s_Q, s_j = 13, 12, 15, 34, 35, 36
    s_memsrc, s_qkvdst, s_qkvsrc, s_partdst, s_partsrc, s_memdst, s_k, s_step, s_pc, s_v = 40, 41, 42, 43, 44, 45, 46, 47, 48, 49
    s_hi, s_lo, s_c = 50, 52, 54
    t0, t1, t2 = 56, 57, 58
    s_nc, s_msk = 59, 95
    v_r3 = 20
    v_zero, vCnt, s_cnt = 4, 5, 88
    s_lastq, s_lastm, s_touch, s_partsrc2, s_touch2 = 90, 91, 92, 93, 94
    v_lane, v_idx = 2, 3
    v_offC, v_offA, v_l16, v_w1q, v_w1v, v_r1, v_d1, v_w2, v_r2, v_l4, v_dM, v_l16b = range(4, 16)
    v_t = 16
    vA = 24
    vVM = 40
    vK = 48
    vV = 80
    acc1 = 112
    vS = 136
    vP = 148
    vU = 160
    vUb = 192
    acc2 = 224
    vUm = 112
    vOne = 244
    vB = 136
    vPub = 252
    vTch = 128
    vTch = 156
    A(f"""
    s_cmp_ge_u32 s2, 256
    s_cbranch_scc1 {L('end')}
    """)
    if codepf:
        A("s_getpc_b64 s[30:31]")
        A("s_bfe_u32 s32, s2, 0x20003")
        A("s_lshl_b32 s32, s32, 16")
        A("v_lshlrev_b32 v4, 7, v0")
        A("v_add_u32 v4, s32, v4")
        A(f"v_min_u32 v5, {codepf - 256}, v4")
        A("v_add_u32 v4, 0x8000, v4")
        A(f"v_min_u32 v4, {codepf - 256}, v4")
        A("global_load_dword v6, v5, s[30:31]")
        A("global_load_dword v7, v4, s[30:31]")
    A(f"""
    {"s_memrealtime s[28:29]" if stamp else ""}
    s_load_dwordx2 s[4:5], s[0:1], {KA_DBG}
    s_load_dwordx2 s[6:7], s[0:1], {KA_WS}
    s_load_dwordx4 s[60:63], s[0:1], {KA_WQ}
    s_load_dwordx4 s[8:11], s[0:1], {KA_X}
    s_load_dwordx4 s[64:67], s[0:1], {KA_WV}
    s_getreg_b32 s{s_xcc}, hwreg(HW_REG_XCC_ID)
    s_and_b32 s{s_xcc}, s{s_xcc}, 7
    {"s_min_u32 s12, s12, 5" if fakex else ""}
    v_lshrrev_b32 v1, 6, v0
    v_and_b32 v{v_lane}, 63, v0
    s_nop 1
    v_readfirstlane_b32 s{s_wave}, v1
    s_waitcnt lgkmcnt(0)
    """)
    make_srd(A, SRD_DBG, 4, 256)
    if stamp: A("s_mov_b32 s3, s28")
    make_srd(A, SRD_WS, 6, WS_SIZE)
    DBG = f"s[{SRD_DBG}:{SRD_DBG+3}]"
    A(f"""
    s_lshl_b32 s{t0}, s{s_xcc}, 2
    s_add_u32 s{t1}, s{t0}, 112
    s_cmp_ge_u32 s{s_xcc}, 4
    s_cselect_b32 s{t0}, s{t1}, s{t0}
    v_mov_b32 v{v_t}, s{t0}
    v_mov_b32 v{v_t+1}, 1
    v_mov_b32 v{v_t+2}, 32
    v_mov_b32 v{v_t+3}, 1
    v_cmp_eq_u32 vcc, 0, v0
    s_and_saveexec_b64 s[32:33], vcc
    s_cbranch_execz {L('t0')}
    buffer_atomic_add v{v_t+1}, v{v_t}, {DBG}, 0 offen sc0
    {L('t0')}:
    s_mov_b64 exec, s[32:33]
    """)
    if init2: init2[0](A, L)
    if stamp: A('s_memrealtime s[40:41]')
    else: A("s_waitcnt vmcnt(0)")
    A(f"""
    v_cmp_eq_u32 vcc, 0, v0
    s_and_saveexec_b64 s[32:33], vcc
    s_cbranch_execz {L('t1')}
    v_mov_b32 v{v_t+4}, 0
    ds_write_b32 v{v_t+4}, v{v_t+1}
    s_waitcnt lgkmcnt(0)
    {L('t1')}:
    s_mov_b64 exec, s[32:33]
    """)
    if init2: init2[1](A, L)
    if stamp: A('s_memrealtime s[42:43]')
    def last_actions(a):
        A(f"buffer_store_dword v{a+3}, v{a+2}, {DBG}, 0 offen sc1")
        if ready2:
            A("s_mov_b64 exec, 15")
            A(f"v_lshlrev_b32 v{a}, 2, v{v_lane}")
            for k in range(4):
                A(f"s_mov_b32 s{t0}, {ready2[k]:#x}"); A(f"v_writelane_b32 v{a+1}, s{t0}, {k}")
            A(f"s_mov_b32 s{t0}, {WS_RDY}")
            A(f"buffer_atomic_or v{a+1}, v{a}, {WS}, s{t0} offen")
    def early_signal(a, tag):
        if not ready2: return
        A("s_cmp_ge_u32 s2, 16")
        A(f"s_cbranch_scc1 {L(tag+'_e')}")
        A(f"v_mov_b32 v{a}, 164"); A(f"v_mov_b32 v{a+1}, 1")
        A(f"buffer_atomic_add v{a+1}, v{a}, {DBG}, 0 offen sc0")
        A("s_waitcnt vmcnt(0)")
        A(f"v_readfirstlane_b32 s{t0}, v{a+1}")
        A(f"s_cmp_eq_u32 s{t0}, 15")
        A(f"s_cbranch_scc0 {L(tag+'_e')}")
        A(f"v_mov_b32 v{a}, 68"); A(f"v_mov_b32 v{a+1}, 1")
        A(f"buffer_store_dword v{a+1}, v{a}, {DBG}, 0 offen sc1")
        A("s_nop 1")
        A.label(L(tag + '_e'))
    def signal_init(tag):
        A(f"""
        s_barrier
        s_cmp_lg_u32 s{s_wave}, 0
        s_cbranch_scc1 {L(tag+'_s2')}
        s_mov_b64 exec, 1
        """)
        early_signal(v_t, tag)
        A(f"""
        v_mov_b32 v{v_t}, 160
        v_mov_b32 v{v_t+1}, 1
        v_mov_b32 v{v_t+2}, 64
        v_mov_b32 v{v_t+3}, 1
        buffer_atomic_add v{v_t+1}, v{v_t}, {DBG}, 0 offen sc0
        s_waitcnt vmcnt(0)
        v_readfirstlane_b32 s{t0}, v{v_t+1}
        s_cmp_eq_u32 s{t0}, 255
        s_cbranch_scc0 {L(tag+'_s1')}
        """)
        last_actions(v_t)
        A(f"""
        {L(tag+'_s1')}:
        s_mov_b64 exec, -1
        {L(tag+'_s2')}:
        """)
    A(f"""
    s_barrier
    v_mov_b32 v{v_t+4}, 0
    ds_read_b32 v{v_t+1}, v{v_t+4}
    s_waitcnt lgkmcnt(0)
    v_readfirstlane_b32 s{s_tick}, v{v_t+1}
    s_barrier
    s_mov_b32 s38, 1
    s_mul_i32 s{s_role}, s{s_xcc}, {q0}
    s_add_u32 s{s_role}, s{s_role}, s{s_tick}
    s_cmp_lt_u32 s{s_xcc}, {NX}
    s_cselect_b32 s71, {q0}, 0
    s_cmp_lt_u32 s{s_tick}, s71
    s_cbranch_scc1 {L('haverole')}
    s_sub_u32 s80, s{s_tick}, s71
    s_and_b32 s14, s80, 15
    s_lshl_b32 s{t0}, s{s_xcc}, 4
    s_add_u32 s14, s14, s{t0}
    s_mov_b32 s81, 1
    s_mov_b32 s71, s{s_xcc}
    """)
    def flagwait(tag, all_waves, off=64):
        A(f"v_mov_b32 v{v_t}, {off}")
        A(f"s_mov_b32 s{s_pc}, {POLLMAX}")
        A.label(L(tag))
        A(f"buffer_load_dword v{v_t+1}, v{v_t}, {DBG}, 0 offen sc1")
        A(f"s_sub_u32 s{s_pc}, s{s_pc}, 1")
        A(f"s_cbranch_scc1 {L('end')}")
        A("s_waitcnt vmcnt(0)")
        A(f"v_readfirstlane_b32 s{t0}, v{v_t+1}")
        A(f"s_cmp_lg_u32 s{t0}, 0")
        A(f"s_cbranch_scc1 {L(tag+'_ok')}")
        A("s_sleep 4")
        A(f"s_branch {L(tag)}")
        A.label(L(tag + '_ok'))
    if init2:
        A("s_waitcnt vmcnt(0)")
        if stamp: A('s_memrealtime s[44:45]')
        signal_init('ws')
        A(f"s_cmp_lg_u32 s{s_wave}, 0")
        A(f"s_cbranch_scc1 {L('i5')}")
        flagwait('iw2', False, 68 if ready2 else 64)
        A.label(L('i5'))
        A("s_barrier")
        if stamp:
            A("s_waitcnt lgkmcnt(0)")
            A("v_mov_b32 v4, s3"); A("v_mov_b32 v5, s40"); A("v_mov_b32 v6, s42"); A("v_mov_b32 v7, s44"); A("v_mov_b32 v8, 0")
            A("s_lshl_b32 s24, s14, 10"); A(f"s_add_u32 s24, s24, {WS_DUMMY + 65536}")
            A("s_mov_b64 exec, 1"); A(f"buffer_store_dwordx4 v[4:7], v8, {WS}, s24 offen"); A("s_mov_b64 exec, -1")
    if init:
        A(f"""
        v_mov_b32 v{v_t}, 44
        v_mov_b32 v{v_t+1}, 1
        v_cmp_eq_u32 vcc, 0, v0
        s_and_saveexec_b64 s[32:33], vcc
        s_cbranch_execz {L('i1')}
        buffer_atomic_add v{v_t+1}, v{v_t}, {DBG}, 0 offen sc0
        s_waitcnt vmcnt(0)
        v_mov_b32 v{v_t+4}, 0
        ds_write_b32 v{v_t+4}, v{v_t+1}
        s_waitcnt lgkmcnt(0)
        {L('i1')}:
        s_mov_b64 exec, s[32:33]
        s_barrier
        v_mov_b32 v{v_t+4}, 0
        ds_read_b32 v{v_t+1}, v{v_t+4}
        s_waitcnt lgkmcnt(0)
        v_readfirstlane_b32 s30, v{v_t+1}
        s_cmp_ge_u32 s30, 128
        s_cbranch_scc1 {L('i3')}
        """)
        init(A, L)
        A(f"""
        s_waitcnt vmcnt(0)
        s_barrier
        s_cmp_lg_u32 s{s_wave}, 0
        s_cbranch_scc1 {L('i4')}
        v_mov_b32 v{v_t}, 160
        v_mov_b32 v{v_t+1}, 1
        v_mov_b32 v{v_t+2}, 64
        v_mov_b32 v{v_t+3}, 1
        s_mov_b64 exec, 1
        buffer_atomic_add v{v_t+1}, v{v_t}, {DBG}, 0 offen sc0
        s_waitcnt vmcnt(0)
        v_readfirstlane_b32 s{t0}, v{v_t+1}
        s_cmp_eq_u32 s{t0}, 127
        s_cbranch_scc0 {L('i2')}
        buffer_store_dword v{v_t+3}, v{v_t+2}, {DBG}, 0 offen sc1
        {L('i2')}:
        s_mov_b64 exec, -1
        {L('i3')}:
        s_cmp_lg_u32 s{s_wave}, 0
        s_cbranch_scc1 {L('i4')}
        """)
        flagwait('iw', False)
        A.label(L('i4'))
        A("s_barrier")
    def repair(A, L2):
        D2 = "s[76:79]"
        A(f"s_cmp_eq_u32 s81, 0")
        A(f"s_cbranch_scc1 {L('rp_end')}")
        A(f"v_lshlrev_b32 v24, 2, v{v_lane}")
        A(f"buffer_load_dword v25, v24, {D2}, 0 offen sc1")
        A("s_waitcnt vmcnt(0)")
        A("s_mov_b32 s24, 0")
        for x in range(8):
            A(f"v_readlane_b32 s25, v25, {WX(x)}"); A("s_add_u32 s24, s24, s25")
        A("s_cmp_lt_u32 s24, 256")
        A(f"s_cbranch_scc1 {L('rp_end')}")
        A("s_mov_b32 s81, 0")
        A("s_mov_b32 s25, 0")
        A("s_mov_b32 s26, s80")
        for x in range(8):
            A(f"v_readlane_b32 s24, v25, {WX(x)}")
            A(f"s_max_u32 s27, s24, {QU[x]}")
            A(f"s_sub_u32 s27, s27, {QU[x]}")
            A(f"s_cmp_gt_u32 s71, {x}")
            A(f"s_cselect_b32 s27, s27, 0")
            A(f"s_add_u32 s26, s26, s27")
            A(f"s_min_u32 s24, s24, {QU[x]}")
            A(f"s_sub_u32 s24, {QU[x]}, s24")
            A(f"s_add_u32 s25, s25, s24")
        A("s_cmp_ge_u32 s26, s25")
        A(f"s_cbranch_scc1 {L('rp_end')}")
        for x in range(8):
            A(f"v_readlane_b32 s24, v25, {WX(x)}")
            A(f"s_min_u32 s24, s24, {QU[x]}")
            A(f"s_add_u32 s8, s24, s26")
            A(f"s_add_u32 s8, s8, {QB[x]}")
            A(f"s_sub_u32 s24, {QU[x]}, s24")
            A(f"s_cmp_lt_u32 s26, s24")
            A(f"s_cbranch_scc1 {L('rp_take')}")
            A(f"s_sub_u32 s26, s26, s24")
        A(f"s_branch {L('rp_end')}")
        A.label(L('rp_take'))
        A("s_lshl_b32 s8, s8, 16")
        A("s_or_b32 s8, s8, 15")
        A(f"s_branch {L('bc')}")
        A.label(L('rp_end'))
    def repair_stub(A, L2):
        A.label(L('j_rep'))
        A(f"s_mov_b32 s{s_role}, s11")
        A("s_mov_b32 s38, 0")
        A(f"s_mov_b32 s{SRD_DBG}, s76"); A(f"s_mov_b32 s{SRD_DBG+1}, s77"); A(f"s_mov_b32 s{SRD_DBG+2}, 256"); A(f"s_mov_b32 s{SRD_DBG+3}, 0x00020000")
        A("s_barrier")
        A(f"s_branch {L('haverole')}")
    A.label(L('wentry'))
    A(f"s_mov_b32 s76, s{SRD_DBG}"); A(f"s_mov_b32 s77, s{SRD_DBG+1}"); A("s_mov_b32 s78, 256"); A("s_mov_b32 s79, 0x00020000")
    if worker: worker(A, L, repair, repair_stub)
    A(f"s_branch {L('end')}")
    A.label(L('haverole'))
    A(f"""
    s_lshr_b32 s{s_Q}, s{s_role}, 4
    s_and_b32 s{s_j}, s{s_role}, 15
    s_mov_b32 s{s_hi}, 0
    s_mov_b32 s{s_hi+1}, -1
    s_mov_b32 s{s_lo}, -1
    s_mov_b32 s{s_lo+1}, 0
    s_mov_b32 s{s_c}, {f2u(SCALE_LOG2E):#x}
    s_mov_b32 s{s_c+1}, {f2u(SCALE_LOG2E):#x}
    s_mov_b32 s{s_nc}, {f2u(-SCALE_LOG2E):#x}
    s_mov_b32 s{s_msk}, 0xffff0000
    """)
    n_, g_ = v_t, v_t + 1
    a, b, c, d_ = v_t + 2, v_t + 3, v_t + 4, v_t + 5
    A(f"""
    v_and_b32 v{n_}, 15, v{v_lane}
    v_lshrrev_b32 v{g_}, 4, v{v_lane}
    v_lshlrev_b32 v{v_l16}, 4, v{v_lane}
    v_add_u32 v{v_l16b}, 0x1000, v{v_l16}
    v_lshlrev_b32 v{v_l4}, 2, v{v_lane}
    v_lshlrev_b32 v{v_d1}, 3, v{v_lane}
    v_mov_b32 v{v_idx}, 0x44444444
    v_mov_b32 v{a}, 0xeeeeeeee
    v_cmp_lt_u32 vcc, 7, v{n_}
    s_nop 1
    v_cndmask_b32 v{v_idx}, v{v_idx}, v{a}, vcc
    v_lshrrev_b32 v{d_}, 5, v{v_lane}          ; t
    v_and_b32 v{c}, 1, v{g_}                   ; g'
    v_lshrrev_b32 v{a}, 2, v{n_}
    v_lshl_add_u32 v{b}, v{a}, 1, v{c}         ; 2G+g'
    v_mul_u32_u24 v{a}, 144, v{b}              ; (2G+g')*(128+16)
    v_lshl_add_u32 v{a}, v{d_}, 4, v{a}
    v_and_b32 v{b}, 3, v{n_}
    v_lshl_add_u32 v{a}, v{b}, 2, v{a}
    s_mul_i32 s{t0}, s{s_wave}, 3584
    v_add_u32 v{v_w1q}, s{t0}, v{a}
    v_lshrrev_b32 v{a}, 3, v{n_}
    v_lshl_add_u32 v{a}, v{a}, 2, v{c}
    v_bfe_u32 v{b}, v{n_}, 1, 1
    v_lshl_add_u32 v{a}, v{b}, 1, v{a}
    v_mul_u32_u24 v{a}, 144, v{a}
    v_bfe_u32 v{b}, v{n_}, 2, 1
    v_lshl_add_u32 v{a}, v{b}, 4, v{a}
    v_lshl_add_u32 v{a}, v{d_}, 3, v{a}
    v_and_b32 v{b}, 1, v{n_}
    v_lshl_add_u32 v{a}, v{b}, 2, v{a}
    s_add_u32 s{t0}, s{t0}, 2304
    v_add_u32 v{v_w1v}, s{t0}, v{a}
    v_lshrrev_b32 v{a}, 3, v{v_lane}
    v_lshl_add_u32 v{a}, v{a}, 4, v{v_l16}
    s_mul_i32 s{t0}, s{s_wave}, 1152
    v_add_u32 v{v_r1}, s{t0}, v{a}
    v_lshlrev_b32 v{a}, 8, v{g_}
    v_lshl_add_u32 v{a}, v{n_}, 3, v{a}
    s_cmp_eq_u32 s{s_wave}, 2
    s_cbranch_scc1 {L('d1v')}
    v_mov_b32 v{v_d1}, v{a}
    s_cmp_eq_u32 s{s_wave}, 3
    s_cbranch_scc0 {L('d1v')}
    v_lshrrev_b32 v{a}, 3, v{v_lane}
    v_and_b32 v{b}, 7, v{v_lane}
    v_lshlrev_b32 v{v_d1}, 8, v{a}
    v_lshl_add_u32 v{v_d1}, v{b}, 3, v{v_d1}
    v_lshrrev_b32 v{v_r1}, 2, v{b}
    v_lshlrev_b32 v{v_r1}, 2, v{v_r1}
    v_lshrrev_b32 v{v_offC}, 2, v{a}
    v_add_u32 v{v_r1}, v{v_r1}, v{v_offC}
    v_mul_u32_u24 v{v_r1}, 144, v{v_r1}
    v_and_b32 v{a}, 3, v{a}
    v_lshl_add_u32 v{v_r1}, v{a}, 5, v{v_r1}
    v_and_b32 v{b}, 3, v{b}
    v_lshl_add_u32 v{v_r1}, v{b}, 3, v{v_r1}
    v_add_u32 v{v_r1}, 2304, v{v_r1}
    {L('d1v')}:
    v_lshrrev_b32 v{a}, 3, v{n_}
    v_lshl_add_u32 v{a}, v{a}, 1, v{c}
    v_mul_u32_u24 v{a}, 160, v{a}
    v_mul_u32_u24 v{b}, 640, v{d_}
    v_add_u32 v{a}, v{a}, v{b}
    v_and_b32 v{b}, 7, v{n_}
    v_lshl_add_u32 v{a}, v{b}, 2, v{a}
    s_mul_i32 s{t0}, s{s_wave}, 2560
    s_add_u32 s{t0}, s{t0}, 14336
    v_add_u32 v{v_w2}, s{t0}, v{a}
    v_lshlrev_b32 v{a}, 3, v{v_lane}
    v_lshl_add_u32 v{a}, v{g_}, 5, v{a}
    s_mul_i32 s{t0}, s{s_wave}, 640
    s_add_u32 s{t0}, s{t0}, 14336
    v_add_u32 v{v_r2}, s{t0}, v{a}
    """)
    for r in range(8):
        if r in (0, 2, 4, 6): A(f"v_mov_b32 v{vOne+r}, 0x3f803f80")
        else: A(f"v_mov_b32 v{vOne+r}, 0")
    A(f"s_mov_b64 exec, s[{s_lo}:{s_lo+1}]")
    A(f"v_mov_b32 v{vOne+5}, 0x3f803f80"); A(f"v_mov_b32 v{vOne+7}, 0x3f803f80")
    A("s_mov_b64 exec, -1")
    for nt in range(4):
        A(f"v_mov_b32 v{vUb+8*nt+1}, 0"); A(f"v_mov_b32 v{vUb+8*nt+3}, 0")
    A(f"""
    s_lshl_b32 s{s_memsrc}, s{s_Q}, 14
    s_lshl_b32 s{t0}, s{s_wave}, 12
    s_add_u32 s{s_memsrc}, s{s_memsrc}, s{t0}
    s_add_u32 s{s_memsrc}, s{s_memsrc}, {WS_CH + CH_MEM}
    s_mul_i32 s{t1}, s{s_Q}, {4*HB}
    s_add_u32 s{t1}, s{t1}, {WS_CH + CH_QKV}
    s_mul_i32 s{t0}, s{s_wave}, {HB}
    s_add_u32 s{s_qkvsrc}, s{t1}, s{t0}
    s_lshr_b32 s{t0}, s{s_j}, 2
    s_mul_i32 s{t0}, s{t0}, {HB}
    s_add_u32 s{t1}, s{t1}, s{t0}
    s_and_b32 s{t0}, s{s_j}, 3
    s_lshl_b32 s{t2}, s{t0}, 10
    s_add_u32 s{s_qkvdst}, s{t1}, s{t2}
    s_lshl_b32 s{t2}, s{s_wave}, 7
    s_add_u32 s{s_qkvdst}, s{s_qkvdst}, s{t2}
    s_lshl_b32 s{t2}, s{t0}, 9
    s_add_u32 s{t2}, s{t2}, s{t1}
    s_add_u32 s{t2}, s{t2}, 4096
    s_cmp_eq_u32 s{s_wave}, 2
    s_cselect_b32 s{s_qkvdst}, s{t2}, s{s_qkvdst}
    s_lshl_b32 s{t2}, s{t0}, 6
    s_add_u32 s{t2}, s{t2}, s{t1}
    s_add_u32 s{t2}, s{t2}, 6144
    s_cmp_eq_u32 s{s_wave}, 3
    s_cselect_b32 s{s_qkvdst}, s{t2}, s{s_qkvdst}
    s_lshl_b32 s{t0}, s{s_j}, 13
    s_add_u32 s{t0}, s{t0}, {WS_CH + CH_PART}
    s_lshl_b32 s{t1}, s{s_wave}, 8
    s_add_u32 s{s_partsrc}, s{t0}, s{t1}
    s_add_u32 s{s_partsrc2}, s{s_partsrc}, 4096
    s_lshl_b32 s{t2}, s{s_Q}, 10
    s_add_u32 s{s_partdst}, s{s_partsrc}, s{t2}
    s_lshl_b32 s{s_memdst}, s{s_Q}, 14
    s_lshl_b32 s{t0}, s{s_wave}, 8
    s_add_u32 s{s_memdst}, s{s_memdst}, s{t0}
    s_lshl_b32 s{t0}, s{s_j}, 10
    s_add_u32 s{s_memdst}, s{s_memdst}, s{t0}
    s_add_u32 s{s_memdst}, s{s_memdst}, {WS_CH + CH_MEM + CH_STEP}
    s_lshl_b32 s{t0}, s{s_Q}, 2
    s_add_u32 s{t0}, s{t0}, s{s_wave}
    s_lshl_b32 s{t0}, s{t0}, 13
    s_add_u32 s{s_k}, s{t0}, {WS_K}
    s_add_u32 s{s_v}, s{t0}, {WS_VT}
    s_lshl_b32 s{s_touch}, s{s_Q}, 15
    s_lshl_b32 s{t0}, s{s_j}, 11
    s_add_u32 s{s_touch}, s{s_touch}, s{t0}
    s_and_b32 s{t0}, s{s_wave}, 1
    s_lshl_b32 s{t0}, s{t0}, 10
    s_add_u32 s{s_touch}, s{s_touch}, s{t0}
    s_mov_b32 s{t0}, {WS_K + 2*262144}
    s_mov_b32 s{t1}, {WS_VT + 2*262144}
    s_cmp_ge_u32 s{s_wave}, 2
    s_cselect_b32 s{t0}, s{t1}, s{t0}
    s_add_u32 s{s_touch}, s{s_touch}, s{t0}
    s_mul_i32 s{t0}, s{s_role}, 2048
    s_lshl_b32 s{t1}, s{s_wave}, 10
    s_add_u32 s{t0}, s{t0}, s{t1}
    s_add_u32 s{t0}, s{t0}, {WS_CH + CH_QKV + CH_STEP}
    s_lshl_b32 s{t1}, s{s_role}, 10
    s_add_u32 s{t1}, s{t1}, {WS_CH + CH_MEM + 2*CH_STEP}
    s_cmp_ge_u32 s{s_wave}, 2
    s_cselect_b32 s{s_touch2}, s{t1}, s{t0}
    s_mov_b32 s{s_lastq}, {WS_DUMMY}
    s_mov_b32 s{s_lastm}, {WS_DUMMY}
    """)
    for r in range(3): A(f"v_mov_b32 v{vPub+r}, 0")
    LW = 24576
    vq, vo, vtr1, vtr2 = vA, vA + 1, vA + 2, vA + 4
    A(f"""
    v_lshrrev_b32 v{a}, 2, v{v_lane}
    v_lshlrev_b32 v{a}, 13, v{a}
    v_and_b32 v{b}, 3, v{v_lane}
    v_lshl_add_u32 v{vq}, v{b}, 4, v{a}
    v_lshrrev_b32 v{a}, 3, v{v_lane}
    v_lshlrev_b32 v{a}, 11, v{a}
    v_and_b32 v{b}, 7, v{v_lane}
    v_lshl_add_u32 v{vo}, v{b}, 4, v{a}
    s_lshl_b32 s68, s{s_wave}, 15
    s_add_u32 s68, s68, {LW}
    s_lshl_b32 s69, s{s_wave}, 21
    s_lshl_b32 s{t0}, s{s_role}, 6
    s_add_u32 s69, s69, s{t0}
    s_lshl_b32 s70, s{s_Q}, 2
    s_add_u32 s70, s70, s{s_wave}
    s_lshl_b32 s70, s70, 18
    s_lshl_b32 s{t0}, s{s_j}, 7
    s_add_u32 s70, s70, s{t0}
    v_lshrrev_b32 v{d_}, 2, v{n_}            ; r
    v_and_b32 v{b}, 1, v{d_}
    v_lshrrev_b32 v{a}, 1, v{d_}
    v_lshl_add_u32 v{c}, v{a}, 3, v{b}
    v_lshrrev_b32 v{vtr1+1}, 1, v{g_}
    v_lshl_add_u32 v{c}, v{vtr1+1}, 4, v{c}
    v_and_b32 v{vtr2+1}, 1, v{g_}
    v_lshl_add_u32 v{c}, v{vtr2+1}, 2, v{c}
    v_lshlrev_b32 v{c}, 6, v{c}
    v_and_b32 v{vtr1}, 3, v{n_}
    v_lshlrev_b32 v{vtr1}, 3, v{vtr1}
    v_add_u32 v{c}, v{c}, v{vtr1}
    v_mov_b32 v{vtr2}, v{vtr1}
    v_add_u32 v{vtr1}, s68, v{c}
    v_lshl_add_u32 v{c}, v{g_}, 2, v{d_}
    v_lshlrev_b32 v{c}, 7, v{c}
    v_add_u32 v{c}, v{c}, v{vtr2}
    v_add_u32 v{vtr2}, s68, v{c}
    """)
    ptrs = [60, 62, 64, 66]
    wnt_all = wnt
    def wdma(m):
        wnt = wnt_all if (m in wntm) else ''
        make_srd(A, SRD_W, ptrs[m], 8 << 20)
        reg = (word.index(m) & 1) * 16384
        for i in range(16):
            A(f"s_add_u32 m0, s68, {reg + i*1024}")
            if m < 3:
                A(f"s_add_u32 s{t0}, s69, {i*16*8192}")
                A(f"buffer_load_dwordx4 v{vq}, s[{SRD_W}:{SRD_W+3}], s{t0} offen{wnt} lds")
            else:
                A(f"s_add_u32 s{t0}, s70, {i*8*2048}")
                A(f"buffer_load_dwordx4 v{vo}, s[{SRD_W}:{SRD_W+3}], s{t0} offen{wnt} lds")
    def aW1(tile, ks): return (tile * 4 + ks) * 8
    def aW2(nt, ks): return 192 + (nt * 2 + ks) * 8
    def wtr(m):
        reg = (word.index(m) & 1) * 16384
        cnt = 0
        for t in range(2 if m < 3 else 4):
            for ks in range(4 if m < 3 else 2):
                for h in range(2):
                    for u in range(2):
                        if m < 3:
                            d = aW1(2 * m + t, ks) + 4 * h + 2 * u
                            off = reg + (64 * ks + 32 * h + 2 * u) * 64 + t * 32
                            A(f"ds_read_b64_tr_b16 a[{d}:{d+1}], v{vtr1} offset:{off}")
                        else:
                            d = aW2(t, ks) + 4 * h + 2 * u
                            off = reg + (64 * ks + 32 * h + 16 * u) * 128 + t * 32
                            A(f"ds_read_b64_tr_b16 a[{d}:{d+1}], v{vtr2} offset:{off}")
                        cnt += 1
                        if cnt % 8 == 0: A("s_waitcnt lgkmcnt(0)")
    def kvload(base, sreg):
        ops = []
        for i in range(8):
            vo_ = v_l16 if i < 4 else v_l16b
            ops.append(f"buffer_load_dwordx4 v[{base+4*i}:{base+4*i+3}], v{vo_}, {WS}, s{sreg} offen offset:{(i%4)*1024} sc1")
        return ops
    def maxops(regs, tmp):
        rest = list(regs); ops = []
        ops.append(f"v_max3_u32 v{tmp}, v{rest[0]}, v{rest[1]}, v{rest[2]}"); rest = rest[3:]
        while len(rest) >= 2:
            ops.append(f"v_max3_u32 v{tmp}, v{tmp}, v{rest[0]}, v{rest[1]}"); rest = rest[2:]
        if rest: ops.append(f"v_max_u32 v{tmp}, v{tmp}, v{rest[0]}")
        return ops
    def checkops(regs, lab, tmp):
        return maxops(regs, tmp) + [f"v_cmp_eq_u32 vcc, -1, v{tmp}", f"s_cbranch_vccnz {lab}"]
    def hook(tag):
        A(f"s_and_b32 s{t0}, s{s_pc}, 63")
        A(f"s_cmp_eq_u32 s{t0}, 0")
        A(f"s_cbranch_scc0 {L(tag+'_h')}")
        A("buffer_wbl2 sc1")
        A.label(L(tag + '_h'))
    def stamp_t(k):
        if trace:
            A("s_memrealtime s[72:73]")
            A(f"s_and_b32 s74, s{s_step}, 7"); A("s_lshl_b32 s74, s74, 3"); A(f"s_add_u32 s74, s74, {k}")
            A("s_mov_b32 m0, s74")
            lab = A.newlabel("tr")
            A(f"s_lshr_b32 s74, s{s_step}, 3"); A("s_cmp_eq_u32 s74, 4")
            A("s_waitcnt lgkmcnt(0)")
            A(f"s_cbranch_scc0 {lab}")
            A("v_writelane_b32 v255, s72, m0")
            A.label(lab)
        elif stamp and rounds and k in (0, 2, 4):
            A(f"s_sub_u32 s74, {POLLMAX}, s{s_pc}"); A(f"s_add_u32 s{80+k}, s{80+k}, s74")
        elif stamp and not rounds:
            A("s_memtime s[72:73]"); A("s_waitcnt lgkmcnt(0)")
            A("s_sub_u32 s74, s72, s76"); A(f"s_add_u32 s{80+k}, s{80+k}, s74"); A("s_mov_b32 s76, s72")
    def utok_ops():
        mf = []
        for kk in range(4):
            for T in range(2):
                for nt in range(4):
                    d = vU + (T * 4 + nt) * 4; w = aW2(nt, kk >> 1) + 4 * (kk & 1); va = vV + (T * 4 + kk) * 4
                    C = "0" if kk == 0 else f"v[{d}:{d+3}]"
                    mf.append(f"v_mfma_f32_16x16x32_bf16 v[{d}:{d+3}], v[{va}:{va+3}], a[{w}:{w+3}], {C}")
        cv = []
        for T in range(2):
            for nt in range(4):
                d = vU + (T * 4 + nt) * 4
                cv.append(f"v_cvt_pk_bf16_f32 v{vUb+8*nt+4*T}, v{d}, v{d+1}")
                cv.append(f"v_cvt_pk_bf16_f32 v{vUb+8*nt+4*T+2}, v{d+2}, v{d+3}")
        return mf, cv
    def halves(d0, d1):
        return [f"v_permlane32_swap_b32 v{d0+r}, v{d1+r}" for r in range(4)] + [f"v_add_f32 v{d0+r}, v{d0+r}, v{d1+r}" for r in range(4)]
    if init2:
        A("s_cmp_eq_u32 s38, 0")
        A(f"s_cbranch_scc1 {L('cs1')}")
        A("s_waitcnt vmcnt(0)")
        A("s_barrier")
        A(f"s_cmp_lg_u32 s{s_wave}, 0")
        A(f"s_cselect_b32 s38, 0, 1")
        A(f"s_cbranch_scc1 {L('cs1')}")
        A("s_mov_b64 exec, 1")
        early_signal(100, 'cs')
        A("v_mov_b32 v100, 160"); A("v_mov_b32 v101, 1"); A("v_mov_b32 v102, 64"); A("v_mov_b32 v103, 1")
        A(f"buffer_atomic_add v101, v100, {DBG}, 0 offen sc0")
        A("s_mov_b64 exec, -1")
        A.label(L('cs1'))
    wdma(word[0]); wdma(word[1])
    if init2:
        A("s_cmp_eq_u32 s38, 0")
        A(f"s_cbranch_scc1 {L('cs2')}")
        A("s_waitcnt vmcnt(32)")
        A(f"v_readfirstlane_b32 s{t0}, v101")
        A(f"s_cmp_eq_u32 s{t0}, 255")
        A(f"s_cbranch_scc0 {L('cs2')}")
        A("s_mov_b64 exec, 1")
        last_actions(100)
        A("s_mov_b64 exec, -1")
        A("s_waitcnt vmcnt(0)")
        A.label(L('cs2'))
    if not wreg:
        A("s_waitcnt vmcnt(16)"); wtr(word[0]); wdma(word[2])
        A("s_waitcnt vmcnt(16)"); wtr(word[1]); wdma(word[3])
        A("s_waitcnt vmcnt(16)"); wtr(word[2])
        A("s_waitcnt vmcnt(0)"); wtr(word[3])
    else:
        RB = 104
        for m in (2, 3):
            make_srd(A, SRD_W, ptrs[m], 8 << 20)
            for i in range(16):
                r = RB + (m - 2) * 64 + 4 * i
                if m < 3:
                    A(f"s_add_u32 s{t0}, s69, {i*16*8192}")
                    A(f"buffer_load_dwordx4 v[{r}:{r+3}], v{vq}, s[{SRD_W}:{SRD_W+3}], s{t0} offen")
                else:
                    A(f"s_add_u32 s{t0}, s70, {i*8*2048}")
                    A(f"buffer_load_dwordx4 v[{r}:{r+3}], v{vo}, s[{SRD_W}:{SRD_W+3}], s{t0} offen")
        A(f"v_add_u32 v{vA+6}, s68, v{v_l16}")
        A("s_waitcnt vmcnt(48)"); wtr(0)
        A("s_waitcnt vmcnt(32)"); wtr(1)
        for m in (2, 3):
            A(f"s_waitcnt vmcnt({16 if m == 2 else 0})")
            for i in range(16):
                r = RB + (m - 2) * 64 + 4 * i
                A(f"ds_write_b128 v{vA+6}, v[{r}:{r+3}] offset:{(m & 1)*16384 + i*1024}")
                if i % 8 == 7: A("s_waitcnt lgkmcnt(0)")
            wtr(m)
        for nt in range(4):
            A(f"v_mov_b32 v{vUb+8*nt+1}, 0"); A(f"v_mov_b32 v{vUb+8*nt+3}, 0")
    def cntwait(tag, sidx, val):
        A(f"s_mov_b32 s{s_pc}, {POLLMAX}")
        A.label(L(tag))
        A(f"buffer_load_dword v{vCnt}, v{v_zero}, {WS}, s{sidx} offen sc1")
        A(f"s_sub_u32 s{s_pc}, s{s_pc}, 1")
        A(f"s_cbranch_scc1 {L('bail')}")
        A("s_waitcnt vmcnt(0)")
        A(f"v_readfirstlane_b32 s{t0}, v{vCnt}")
        A(f"s_cmp_ge_u32 s{t0}, {val}")
        A(f"s_cbranch_scc1 {L(tag+'_ok')}")
        A("s_sleep 2")
        A(f"s_branch {L(tag)}")
        A.label(L(tag + '_ok'))
    A(f"v_mov_b32 v{v_zero}, 0")
    if stamp:
        A("s_memrealtime s[72:73]"); A("s_waitcnt lgkmcnt(0)"); A("s_mov_b32 s75, s72")
    A("s_mov_b32 s89, 64")
    A(f"s_mov_b32 s{s_cnt}, {WS_CNT + C_KVG*128}")
    if init or init2: flagwait('cw', True)
    if engine: cntwait('kv0', s_cnt, kv0n)
    for o in kvload(vK, s_k): A(o)
    for o in kvload(vV, s_v): A(o)
    A("s_waitcnt vmcnt(0)")
    mf, cv = utok_ops()
    for o in mf: A(o)
    A("s_nop 7")
    for o in cv: A(o)
    A(f"s_add_u32 s{s_v}, s{s_v}, 262144")
    for r in range(24): A(f"v_mov_b32 v{acc1+r}, 0")
    A(f"s_mov_b32 s{s_step}, 0")
    for p in range(4): A(f"v_add_u32 v{v_r3+p}, {p*3584}, v{v_r1}")
    if stamp:
        for k in range(8): A(f"s_mov_b32 s{80+k}, 0")
        A("s_memtime s[76:77]"); A("s_memrealtime s[78:79]"); A("s_waitcnt lgkmcnt(0)")
    A("s_barrier")
    for ks in range(4): A(f"buffer_load_dwordx4 v[{vA+4*ks}:{vA+4*ks+3}], v{v_l16}, {WS}, s{s_memsrc} offen offset:{ks*1024} sc1")
    A(f"s_mov_b32 s{s_pc}, {POLLMAX}")
    A(f"s_branch {L('loop')}")
    def pkadd(d, a, b): return f"v_pk_add_f32 v[{d}:{d+1}], v[{a}:{a+1}], v[{b}:{b+1}]"
    def pkmul(d, a, b): return f"v_pk_mul_f32 v[{d}:{d+1}], v[{a}:{a+1}], v[{b}:{b+1}]"
    def halves(d0, d1):
        return [f"v_permlane32_swap_b32 v{d0+r}, v{d1+r}" for r in range(4)] + [pkadd(d0, d0, d1), pkadd(d0 + 2, d0 + 2, d1 + 2)]
    def cload(ks): return f"buffer_load_dwordx4 v[{vA+4*ks}:{vA+4*ks+3}], v{v_l16}, {WS}, s{s_memsrc} offen offset:{ks*1024} sc1"
    def aload(ks): return f"buffer_load_dwordx4 v[{vA+4*ks}:{vA+4*ks+3}], v{v_l16}, {WS}, s{s_qkvsrc} offen offset:{ks*1024} sc1"
    def vmload(u): return f"buffer_load_dwordx4 v[{vVM+4*u}:{vVM+4*u+3}], v{v_l16b}, {WS}, s{s_qkvsrc} offen offset:{u*1024} sc1"
    def tmo(tag):
        A(f"s_sub_u32 s{s_pc}, s{s_pc}, 1")
        A(f"s_cbranch_scc1 {L('bail')}")
        hook(tag)
    def chk4(base, lab):
        return checkops(range(base, base + 4), lab, v_t)
    A.label(L('redo1'))
    A("s_nop 15")
    for r in range(24): A(f"v_mov_b32 v{acc1+r}, 0")
    A.label(L('pc'))
    for ks in range(4): A(cload(ks))
    tmo('pc')
    A.label(L('loop'))
    A("s_waitcnt vmcnt(0)")
    for o in checkops([vA + 4 * i + 3 for i in range(4)], L('pc'), v_t): A(o)
    stamp_t(0)
    if clk:
        A("s_memtime s[72:73]"); A("s_memrealtime s[74:75]"); A(f"s_mov_b32 m0, s{s_step}"); A("s_waitcnt lgkmcnt(0)")
        A("v_writelane_b32 v255, s72, m0"); A("v_writelane_b32 v1, s74, m0")
    mf = []
    for tile in range(6):
        for ks in range(4):
            d = acc1 + 4 * tile; w = aW1(tile, ks)
            mf.append(f"v_smfmac_f32_16x16x64_bf16 v[{d}:{d+3}], v[{vA+4*ks}:{vA+4*ks+3}], a[{w}:{w+7}], v{v_idx}")
    chk = checkops([vA + i for i in range(16) if i % 4 != 3], L('redo1'), v_t)
    vl = [] if (nokv or vpos != 0) else kvload(vV, s_v)
    interleave(A, mf[:16], chk + vl, per=1)
    post = []
    for which in range(2):
        d0 = acc1 + 8 * which
        post += halves(d0, d0 + 4) + [f"ds_write_b32 v{v_w1q}, v{d0+r} offset:{which*1152 + r*32}" for r in range(4)]
    interleave(A, mf[16:20], post[:10], per=3)
    interleave(A, mf[20:], post[10:], per=3)
    A("s_nop 6")
    for o in halves(acc1 + 16, acc1 + 20): A(o)
    for r in range(4): A(f"ds_write_b32 v{v_w1v}, v{acc1+16+r} offset:{r*32}")
    for r in range(8): A(f"v_mov_b32 v{acc2+r}, 0")
    A("s_waitcnt lgkmcnt(0)")
    if trace: stamp_t(7)
    A("s_barrier")
    A(f"s_cmp_eq_u32 s{s_wave}, 3")
    A(f"s_cbranch_scc0 {L('s1a')}")
    for p in range(4):
        A(f"ds_read2_b64 v[{vU+4*p}:{vU+4*p+3}], v{v_r3+p} offset0:0 offset1:36")
    A(f"s_branch {L('s1b')}")
    A.label(L('s1a'))
    for p in range(4):
        A(f"ds_read_b128 v[{vU+4*p}:{vU+4*p+3}], v{v_r1} offset:{p*3584}")
    A.label(L('s1b'))
    for r in range(8, 20): A(f"v_mov_b32 v{acc2+r}, 0")
    A("s_waitcnt lgkmcnt(2)")
    A(pkadd(vU, vU, vU + 4)); A(pkadd(vU + 2, vU + 2, vU + 6))
    A("s_waitcnt lgkmcnt(0)")
    A(pkadd(vU + 8, vU + 8, vU + 12)); A(pkadd(vU + 10, vU + 10, vU + 14))
    A(pkadd(vU, vU, vU + 8)); A(pkadd(vU + 2, vU + 2, vU + 10))
    A(f"v_cvt_pk_bf16_f32 v{vPub}, v{vU}, v{vU+1}")
    A(f"v_cvt_pk_bf16_f32 v{vPub+1}, v{vU+2}, v{vU+3}")
    A(f"v_min_u32 v{vPub}, -2, v{vPub}")
    A(f"v_min_u32 v{vPub+1}, -2, v{vPub+1}")
    A(f"buffer_store_dwordx2 v[{vPub}:{vPub+1}], v{v_d1}, {WS}, s{s_qkvdst} offen")
    A(f"s_mov_b32 s{s_lastq}, s{s_qkvdst}")
    A(f"s_cmp_eq_u32 s{s_step}, {nsteps-1}")
    A(f"s_cbranch_scc1 {L('fin')}")
    stamp_t(1)
    if dlyA: A(f"s_sleep {dlyA}")
    for ks in range(4): A(aload(ks))
    A(vmload(0)); A(vmload(1))
    A(f"s_mov_b32 s{s_pc}, {POLLMAX}")
    for r in range(16): A(f"v_mov_b32 v{vUm+r}, 0")
    A(f"s_branch {L('pa1')}")
    A.label(L('pa'))
    for ks in range(4): A(aload(ks))
    A(vmload(0)); A(vmload(1))
    tmo('pa')
    A.label(L('pa1'))
    A("s_waitcnt vmcnt(0)")
    for o in checkops([vA + 4 * i + 3 for i in range(6)], L('pa'), v_t): A(o)
    stamp_t(2)
    mf = []
    for ks in range(4):
        R = f"v[{vA+4*ks}:{vA+4*ks+3}]"
        for t in range(3):
            d = vS + 4 * t
            Aop = R if t == 2 else f"v[{vK+(t*4+ks)*4}:{vK+(t*4+ks)*4+3}]"
            C = "0" if ks == 0 else f"v[{d}:{d+3}]"
            mf.append(f"v_mfma_f32_16x16x32_bf16 v[{d}:{d+3}], {Aop}, {R}, {C}")
    chk = checkops([vA + i for i in range(24) if i % 4 != 3], L('pa'), v_t)
    interleave(A, mf, chk, per=1)
    um = []
    for nt in range(4):
        for ks in range(2):
            d = vUm + 4 * nt; w = aW2(nt, ks)
            um.append(f"v_smfmac_f32_16x16x64_bf16 v[{d}:{d+3}], v[{vVM+4*ks}:{vVM+4*ks+3}], a[{w}:{w+7}], v{v_idx}")
    mx, tt = v_t, v_t + 2
    A(um[0]); A("s_nop 6")
    sm1 = [f"v_max3_f32 v{mx}, v{vS}, v{vS+1}, v{vS+2}", f"v_max3_f32 v{mx}, v{mx}, v{vS+3}, v{vS+4}",
           f"v_max3_f32 v{mx}, v{mx}, v{vS+5}, v{vS+6}", f"v_max_f32 v{mx}, v{mx}, v{vS+7}", um[1],
           f"s_mov_b64 exec, s[{s_hi}:{s_hi+1}]", f"v_max3_f32 v{mx}, v{mx}, v{vS+8}, v{vS+9}", f"v_max3_f32 v{mx}, v{mx}, v{vS+10}, v{vS+11}",
           "s_mov_b64 exec, -1", f"v_mov_b32 v{tt}, v{mx}"]
    for o in sm1: A(o)
    A(um[2])
    A("s_nop 0")
    A(f"v_permlane32_swap_b32 v{mx}, v{tt}")
    A(f"v_max_f32 v{mx}, v{mx}, v{tt}")
    A(f"v_mov_b32 v{tt}, v{mx}")
    A(um[3])
    A("s_nop 0")
    A(f"v_permlane16_swap_b32 v{mx}, v{tt}")
    A(f"v_max_f32 v{mx}, v{mx}, v{tt}")
    ex = []
    for i in (8, 10, 0, 2, 4, 6):
        ex.append(f"v_pk_add_f32 v[{vS+i}:{vS+i+1}], v[{vS+i}:{vS+i+1}], v[{mx}:{mx+1}] op_sel_hi:[1,0] neg_lo:[0,1] neg_hi:[0,1]")
    for i in (8, 10, 0, 2, 4, 6):
        ex.append(f"v_pk_mul_f32 v[{vS+i}:{vS+i+1}], v[{vS+i}:{vS+i+1}], s[{s_c}:{s_c+1}]")
    for i in list(range(8, 12)) + list(range(8)): ex.append(f"v_exp_f32 v{vS+i}, v{vS+i}")
    k = 0
    vl2 = kvload(vV, s_v) if vpos == 1 else []
    for i, o in enumerate(ex):
        A(o)
        if i % 5 == 4 and k < 4: A(um[4 + k]); k += 1
        if i % 2 == 1 and vl2: A(vl2.pop(0))
    Pb, X = vP + 4, vP + 6
    A(f"v_cvt_pk_bf16_f32 v{Pb}, v{vS+8}, v{vS+9}")
    A(f"v_cvt_pk_bf16_f32 v{Pb+1}, v{vS+10}, v{vS+11}")
    A(f"s_mov_b64 exec, s[{s_lo}:{s_lo+1}]")
    A(f"v_mov_b32 v{Pb}, 0"); A(f"v_mov_b32 v{Pb+1}, 0")
    A("s_mov_b64 exec, -1")
    A(f"v_mov_b32 v{X}, v{Pb}"); A(f"v_mov_b32 v{X+1}, v{Pb+1}")
    for i in range(4): A(f"v_cvt_pk_bf16_f32 v{vP+i}, v{vS+2*i}, v{vS+2*i+1}")
    A(f"v_permlane16_swap_b32 v{Pb}, v{X}")
    A(f"v_permlane16_swap_b32 v{Pb+1}, v{X+1}")
    for nt in range(2):
        d = vUm + 4 * nt
        A(f"v_cvt_pk_bf16_f32 v{vUb+8*nt+5}, v{d}, v{d+1}"); A(f"v_cvt_pk_bf16_f32 v{vUb+8*nt+7}, v{d+2}, v{d+3}")
    for i, src in enumerate((Pb, Pb + 1, X, X + 1)):
        A(f"v_mov_b32_dpp v{vP+i}, v{src} row_shr:8 row_mask:0xf bank_mask:0xc")
    d = vUm + 8
    A(f"v_cvt_pk_bf16_f32 v{vUb+21}, v{d}, v{d+1}"); A(f"v_cvt_pk_bf16_f32 v{vUb+23}, v{d+2}, v{d+3}")
    PA = f"v[{vP}:{vP+3}]"
    lr = acc2 + 16
    def fin_mf(nt):
        d = acc2 + 4 * nt
        return f"v_smfmac_f32_16x16x64_bf16 v[{d}:{d+3}], {PA}, v[{vUb+8*nt}:{vUb+8*nt+7}], v{v_idx}"
    A(f"v_smfmac_f32_16x16x64_bf16 v[{lr}:{lr+3}], {PA}, v[{vOne}:{vOne+7}], v{v_idx}")
    d = vUm + 12
    A(f"v_cvt_pk_bf16_f32 v{vUb+29}, v{d}, v{d+1}"); A(f"v_cvt_pk_bf16_f32 v{vUb+31}, v{d+2}, v{d+3}")
    for nt in range(4): A(fin_mf(nt))
    A("s_nop 1")
    lt = vS
    for r in range(4): A(f"v_mov_b32 v{lt+r}, v{lr+r}")
    h0 = halves(acc2, acc2 + 4)
    A(h0[0])
    for r in range(4): A(f"v_permlane32_swap_b32 v{lr+r}, v{lt+r}")
    A(pkadd(lr, lr, lt)); A(pkadd(lr + 2, lr + 2, lt + 2))
    for r in range(4): A(f"v_rcp_f32 v{lr+r}, v{lr+r}")
    for o in h0[1:]: A(o)
    for st in range(2):
        d0 = acc2 + 8 * st
        if st == 1:
            for o in halves(d0, d0 + 4): A(o)
        A(pkmul(d0, d0, lr)); A(pkmul(d0 + 2, d0 + 2, lr + 2))
        for r in range(4): A(f"ds_write_b32 v{v_w2}, v{d0+r} offset:{r*32+st*1280}")
    A(f"s_add_u32 s{s_k}, s{s_k}, 262144")
    A(f"s_add_u32 s{s_v}, s{s_v}, 262144")
    A("s_waitcnt lgkmcnt(0)")
    A("s_barrier")
    for p in range(4):
        A(f"ds_read_b64 v[{vB+2*p}:{vB+2*p+1}], v{v_r2} offset:{p*2560}")
    A("s_mov_b32 s96, 0x11111111"); A("s_mov_b32 s97, 0x11111111")
    A("s_waitcnt lgkmcnt(2)")
    A(pkadd(vB, vB, vB + 2))
    A("s_waitcnt lgkmcnt(0)")
    A(pkadd(vB + 4, vB + 4, vB + 6))
    A(pkadd(vB, vB, vB + 4))
    A(f"v_cvt_pk_bf16_f32 v{vB+8}, v{vB}, v{vB+1}")
    A(f"v_min_u32 v{vB+8}, -2, v{vB+8}")
    A("s_nop 1")
    A(f"v_mov_b32_dpp v{vB+9}, v{vB+8} quad_perm:[1,1,1,1] row_mask:0xf bank_mask:0xf")
    A(f"v_mov_b32_dpp v{vB+10}, v{vB+8} quad_perm:[2,2,2,2] row_mask:0xf bank_mask:0xf")
    A(f"v_mov_b32_dpp v{vB+11}, v{vB+8} quad_perm:[3,3,3,3] row_mask:0xf bank_mask:0xf")
    A("s_mov_b64 exec, s[96:97]")
    A(f"buffer_store_dwordx4 v[{vB+8}:{vB+11}], v{v_l4}, {WS}, s{s_partdst} offen sc1")
    A("s_mov_b64 exec, -1")
    stamp_t(3)
    mf, cv = utok_ops()
    side = []
    if vpos == 1: A("s_waitcnt vmcnt(1)")
    if engine:
        A(f"v_readfirstlane_b32 s{t0}, v{vCnt}")
        A(f"s_cmp_ge_u32 s{t0}, s89")
        A(f"s_cbranch_scc1 {L('kvn_ok')}")
        cntwait('kvn', s_cnt, "s89")
        A(f"s_add_u32 s{t0}, s{s_step}, 3")
        A(f"s_min_u32 s{t0}, s{t0}, 63")
        A(f"s_lshr_b32 s{t1}, s{t0}, 3")
        A(f"s_add_u32 s{t1}, s{t1}, {C_KV}")
        A(f"s_lshr_b32 s{t0}, s{t0}, 2")
        A(f"s_add_u32 s{t2}, s{t0}, {C_KVG}")
        A(f"s_cmp_lt_u32 s{t0}, 4")
        A(f"s_cselect_b32 s89, 64, 32")
        A(f"s_cselect_b32 s{t0}, s{t2}, s{t1}")
        A(f"s_lshl_b32 s{t0}, s{t0}, 7")
        A(f"s_add_u32 s{s_cnt}, s{t0}, {WS_CNT}")
        if not pipeB:
            A(f"s_bitcmp1_b32 s{s_wave}, 0")
            A(f"s_cbranch_scc0 {L('nowt')}")
            A(f"v_mov_b32 v{vTch}, v{vPub}"); A(f"v_mov_b32 v{vTch+1}, v{vPub+1}")
            A(f"v_mov_b32_dpp v{vTch+2}, v{vPub} quad_perm:[1,1,3,3] row_mask:0xf bank_mask:0xf")
            A(f"v_mov_b32_dpp v{vTch+3}, v{vPub+1} quad_perm:[1,1,3,3] row_mask:0xf bank_mask:0xf")
            A("s_mov_b32 exec_lo, 0x55555555"); A("s_mov_b32 exec_hi, 0x55555555")
            A(f"buffer_store_dwordx4 v[{vTch}:{vTch+3}], v{v_d1}, {WS}, s{s_lastq} offen sc1")
            A("s_mov_b64 exec, -1")
            A.label(L('nowt'))
    if pipeB:
        setr = [vA, vA + 8, vA + 16]
        def pset(k):
            for q in range(8):
                sb = s_partsrc if q < 4 else s_partsrc2
                A(f"buffer_load_dword v{setr[k]+q}, v{v_l4}, {WS}, s{sb} offen offset:{(q%4)*1024} sc1")
        def merge(k, lab_done):
            for q in range(8): A(f"v_min_u32 v{vB+q}, v{vB+q}, v{setr[k]+q}")
            for o in maxops(range(vB, vB + 8), v_t): A(o)
            A(f"v_cmp_eq_u32 vcc, -1, v{v_t}")
            A(f"s_cbranch_vccz {lab_done}")
        side = [f"v_mov_b32 v{vB+q}, -1" for q in range(8)] + [f"v_mov_b32 v{acc1+r}, 0" for r in range(24)]
        wt = [f"v_mov_b32 v{vP}, v{vPub}", f"v_mov_b32 v{vP+1}, v{vPub+1}",
              f"v_mov_b32_dpp v{vP+2}, v{vPub} quad_perm:[1,1,3,3] row_mask:0xf bank_mask:0xf",
              f"v_mov_b32_dpp v{vP+3}, v{vPub+1} quad_perm:[1,1,3,3] row_mask:0xf bank_mask:0xf"]
        interleave(A, mf[:nW], wt + side, per=2 if nW < 32 else 1)
        if dlyB: A(f"s_sleep {dlyB}")
        stamp_t(6)
        pset(0)
        A("s_mov_b32 exec_lo, 0x55555555"); A("s_mov_b32 exec_hi, 0x55555555")
        A(f"buffer_store_dwordx4 v[{vP}:{vP+3}], v{v_d1}, {WS}, s{s_lastq} offen sc1")
        A("s_mov_b64 exec, -1")
        vm = kvload(vK, s_k) + [f"buffer_load_dwordx4 v[{vTch}:{vTch+3}], v{v_l16}, {WS}, s{s_touch} offen sc1",
                                f"buffer_load_dwordx4 v[{vTch}:{vTch+3}], v{v_l16}, {WS}, s{s_touch2} offen sc1",
                                f"buffer_load_dword v{vCnt}, v{v_zero}, {WS}, s{s_cnt} offen sc1"]
        interleave(A, mf[nW:], vm, per=2)
        pset(1)
        A("s_nop 3")
        for o in cv: A(o)
        for r in (s_memsrc, s_qkvdst, s_qkvsrc, s_partdst, s_touch2): A(f"s_add_u32 s{r}, s{r}, {CH_STEP}")
        A(f"s_add_u32 s{s_touch}, s{s_touch}, 262144"); A(f"s_add_u32 s{s_step}, s{s_step}, 1")
        A(f"s_mov_b32 s{s_pc}, {POLLMAX}")
        pset(2)
        A("s_waitcnt vmcnt(28)")
        merge(0, L('pbd'))
        A.label(L('pb'))
        for k in (0, 1, 2):
            if k == 0: tmo('pb')
            pset(k)
            A("s_waitcnt vmcnt(16)")
            merge((k + 1) % 3, L('pbd'))
        A(f"s_branch {L('pb')}")
        A.label(L('pbd'))
    else:
        if not nokv: side += kvload(vK, s_k)
        if not notouch:
            side.append(f"buffer_load_dwordx4 v[{vTch}:{vTch+3}], v{v_l16}, {WS}, s{s_touch} offen sc1")
            side.append(f"buffer_load_dwordx4 v[{vTch}:{vTch+3}], v{v_l16}, {WS}, s{s_touch2} offen sc1")
        if engine: side.append(f"buffer_load_dword v{vCnt}, v{v_zero}, {WS}, s{s_cnt} offen sc1")
        interleave(A, mf[:nW], side, per=1)
        if dlyB: A(f"s_sleep {dlyB}")
        stamp_t(6)
        def pbloads():
            for q in range(8):
                sb = s_partsrc if q < 4 else s_partsrc2
                A(f"buffer_load_dword v{vB+q}, v{v_l4}, {WS}, s{sb} offen offset:{(q%4)*1024} sc1")
        pbloads()
        A(f"s_mov_b32 s{s_pc}, {POLLMAX}")
        side = [f"v_mov_b32 v{acc1+r}, 0" for r in range(24)]
        side += [f"s_add_u32 s{r}, s{r}, {CH_STEP}" for r in (s_memsrc, s_qkvdst, s_qkvsrc, s_partdst, s_touch2)]
        side += [f"s_add_u32 s{s_touch}, s{s_touch}, 262144", f"s_add_u32 s{s_step}, s{s_step}, 1"]
        interleave(A, mf[nW:], side, per=2)
        A("s_nop 3")
        for o in cv: A(o)
        A(f"s_branch {L('pb1')}")
        A.label(L('pb'))
        pbloads()
        tmo('pb')
        A.label(L('pb1'))
        A("s_waitcnt vmcnt(0)")
        for o in checkops(range(vB, vB + 8), L('pb'), v_t): A(o)
    stamp_t(4)
    e = vS + 8
    x0 = vP
    for q in range(0, 8, 2):
        tgt = x0 + q
        A(f"v_lshlrev_b32 v{tgt}, 16, v{vB+q}"); A(f"v_and_b32 v{tgt+1}, s{s_msk}, v{vB+q}")
        A(f"v_lshlrev_b32 v{e}, 16, v{vB+q+1}"); A(f"v_and_b32 v{e+1}, s{s_msk}, v{vB+q+1}")
        A(pkadd(tgt, tgt, e))
    A(pkadd(x0, x0, x0 + 2)); A(pkadd(x0 + 4, x0 + 4, x0 + 6)); A(pkadd(x0, x0, x0 + 4))
    A(f"v_cvt_pk_bf16_f32 v{vPub+2}, v{x0}, v{x0+1}")
    A(f"v_min_u32 v{vPub+2}, -2, v{vPub+2}")
    A(f"buffer_store_dword v{vPub+2}, v{v_l4}, {WS}, s{s_memdst} offen")
    if dlyC: A(f"s_sleep {dlyC}")
    for ks in range(4): A(cload(ks))
    A(f"s_mov_b32 s{s_lastm}, s{s_memdst}")
    for r in (s_partsrc, s_partsrc2, s_memdst): A(f"s_add_u32 s{r}, s{r}, {CH_STEP}")
    A(f"s_mov_b32 s{s_pc}, {POLLMAX}")
    stamp_t(5)
    A(f"s_branch {L('loop')}")
    A.label(L('bail'))
    A(f"""
    v_mov_b32 v{v_t}, 48
    v_mov_b32 v{v_t+1}, 1
    s_mov_b64 exec, 1
    buffer_atomic_add v{v_t+1}, v{v_t}, {DBG}, 0 offen
    s_mov_b64 exec, -1
    """)
    A(f"s_branch {L('end')}")
    A.label(L('fin'))
    if engine:
        A(f"buffer_store_dwordx2 v[{vPub}:{vPub+1}], v{v_d1}, {WS}, s{s_lastq} offen sc1")
        A(f"buffer_store_dword v{vPub+2}, v{v_l4}, {WS}, s{s_lastm} offen sc1")
        A("s_barrier")
        A.label(L('fin2'))
    if stamp:
        A(f"s_load_dwordx2 s[4:5], s[0:1], {KA_WS if engine else 80}")
        A("s_memrealtime s[72:73]")
        A("s_waitcnt lgkmcnt(0)")
        make_srd(A, 24, 4, WS_SIZE if engine else 1 << 20)
        A("s_sub_u32 s87, s72, s78")
        if engine: A("s_mov_b32 s86, s78"); A("s_mov_b32 s85, s75"); A("s_mov_b32 s84, s3")
        A("s_waitcnt vmcnt(0)")
        for k in range(8): A(f"v_mov_b32 v{vA+k}, s{80+k}")
        A(f"""
        s_lshl_b32 s{t0}, s{s_role}, 7
        s_lshl_b32 s{t1}, s{s_wave}, 5
        s_add_u32 s{t0}, s{t0}, s{t1}
        s_lshl_b32 s{t1}, s{t0}, 3
        s_add_u32 s{t1}, s{t1}, {65536 + (WS_DUMMY + 0x80000 if engine else 0)}
        s_add_u32 s{t0}, s{t0}, {WS_DUMMY + 0x80000 if engine else 0}
        buffer_store_dword v255, v{v_l4}, s[24:27], s{t1} offen
        v_mov_b32 v{v_t}, 0
        s_mov_b64 exec, 1
        buffer_store_dwordx4 v[{vA}:{vA+3}], v{v_t}, s[24:27], s{t0} offen
        buffer_store_dwordx4 v[{vA+4}:{vA+7}], v{v_t}, s[24:27], s{t0} offen offset:16
        """)
    if clk:
        A("s_mov_b64 exec, -1")
        A(f"s_lshl_b32 s{t0}, s{s_role}, 2"); A(f"s_add_u32 s{t0}, s{t0}, s{s_wave}"); A(f"s_lshl_b32 s{t0}, s{t0}, 9")
        A(f"s_add_u32 s{t0}, s{t0}, {WS_DUMMY + 0x80000}")
        A(f"buffer_store_dword v255, v{v_l4}, {WS}, s{t0} offen"); A(f"buffer_store_dword v1, v{v_l4}, {WS}, s{t0} offen offset:256")
    if engine:
        A("s_mov_b64 exec, -1")
        A(f"s_add_u32 s14, s{s_role}, 128")
        A("s_mov_b32 s81, 0")
        A(f"s_branch {L('wentry')}")
    A.label(L('end'))
    A("s_endpgm")
    if after: after(A, L)
    return dict(lds=24576 + 4 * 32768)

if __name__ == "__main__":
    A = Asm()
    A.raw('.amdgcn_target "amdgcn-amd-amdhsa--gfx950"')
    hdr = []
    var = [dict(stamp=True, nW=32), dict(stamp=True, nW=24), dict(stamp=True, nW=32, dlyC=3), dict(stamp=True, nW=32, dlyC=5), dict(stamp=True, nW=32, dlyA=2, dlyC=3), dict(stamp=True, nW=32, dlyA=3, dlyC=4),
           dict(stamp=True, nW=32, dlyB=2, dlyC=3), dict(stamp=True, nW=28, dlyA=2, dlyC=4), dict(stamp=True, rounds=True, nW=32, dlyA=2, dlyC=3)]
    for i, d in enumerate(var):
        n = f"chain{i}_kernel"
        r = gen_chain(A, n, **d)
        hdr.append(f"; @launch kernel={n} grid=(256,1,1) block=(256,1,1) lds={r['lds']}")
    for i in range(len(var)):
        kernel_desc(A, f"chain{i}_kernel", 512, 102, accum=256)
    open("chain.s", "w").write("\n".join(hdr) + "\n" + A.text())
```

```python
from asmlib import *
from layout import *
from gemm import Gemm
from k_misc import ln_row, ln_core, f2u, SC

T_END, T_KVS, T_KVL, T_QA, T_WO, T_LN, T_F1, T_F2, T_QO, T_AT, T_WOS, T_LNR, T_F1S, T_F2S, T_FIN = range(15)
S_A, S_B, S_DONE = 10, 11, 98
WS = "s[16:19]"

def depwait(A, L, tag):
    A(f"""
    s_bitcmp1_b32 s8, 31
    s_cbranch_scc0 {L(tag+'_dw2')}
    s_cmp_lg_u32 s13, 0
    s_cbranch_scc1 {L(tag+'_dw1')}
    s_mov_b32 s52, {WS_RDY}
    s_bfe_u32 s53, s8, 0x50018
    s_mov_b32 s54, {1 << 20}
    v_mov_b32 v1, 0
    {L(tag+'_dw0')}:
    buffer_load_dword v3, v1, {WS}, s52 offen sc1
    s_sub_u32 s54, s54, 1
    s_cbranch_scc1 {L('end')}
    s_waitcnt vmcnt(0)
    v_readfirstlane_b32 s55, v3
    s_bitcmp1_b32 s55, s53
    s_cbranch_scc1 {L(tag+'_dw1')}
    s_sleep 2
    s_branch {L(tag+'_dw0')}
    {L(tag+'_dw1')}:
    s_barrier
    {L(tag+'_dw2')}:
    """)

def store_frag(A, g, base, s_seg0head, sc1=True):
    t = g.v_wa[0]; cnt = 0
    sc = " sc1" if sc1 else ""
    for n in range(g.nt):
        for p in range(g.mt // 2):
            d = t + 4 * (cnt % (g.mh * 2))
            a0 = g.fetch(2 * p, n, g.v_xb[0] + 8 * (cnt % 2)); a1 = g.fetch(2 * p + 1, n, g.v_xb[0] + 8 * (cnt % 2) + 4); cnt += 1
            A(f"v_cvt_pk_bf16_f32 v{d}, v{a0}, v{a0+1}"); A(f"v_cvt_pk_bf16_f32 v{d+1}, v{a0+2}, v{a0+3}")
            A(f"v_cvt_pk_bf16_f32 v{d+2}, v{a1}, v{a1+1}"); A(f"v_cvt_pk_bf16_f32 v{d+3}, v{a1+2}, v{a1+3}")
            A(f"buffer_store_dwordx4 v[{d}:{d+3}], v3, {WS}, s26 offen offset:{1024*p}{sc}")
        A(f"s_add_u32 s26, s26, {4096 if n % 2 == 0 else 32*8192 - 4096}")

def body_kv(A, L, tag, BM, BN, NS):
    ncb = 4096 // BN
    A(f"""
    s_cmp_ge_u32 s{S_B}, {ncb}
    s_cselect_b32 s4, s64, s62
    s_cselect_b32 s5, s65, s63
    s_cmp_ge_u32 s{S_B}, {2*ncb}
    s_cselect_b32 s4, s60, s4
    s_cselect_b32 s5, s61, s5
    s_mov_b32 s29, {WS_VT}
    s_cselect_b32 s29, {WS_Q}, s29
    """)
    make_srd(A, 20, 4, 1024 * 4096 * 2)
    per = (BM // 32) * CH_STEP // (2 * ncb)
    A(f"s_cmp_ge_u32 s{S_B}, {2*ncb}")
    A(f"s_cbranch_scc1 {L(tag+'_na')}")
    if BM == 128: A(f"s_branch {L(tag+'_na')}")
    A(f"s_mul_i32 s24, s{S_A}, {(BM//32)*CH_STEP}")
    A(f"s_mul_i32 s25, s{S_B}, {per}")
    A(f"s_add_u32 s24, s24, s25")
    A(f"s_add_u32 s24, s24, {WS_CH}")
    A("v_lshlrev_b32 v3, 4, v0")
    for r in range(4, 8): A(f"v_mov_b32 v{r}, -1")
    A(f"s_mov_b32 s25, {per // 4096}")
    A.label(L(tag + '_al'))
    A(f"buffer_store_dwordx4 v[4:7], v3, {WS}, s24 offen sc1")
    A("s_add_u32 s24, s24, 4096"); A("s_sub_u32 s25, s25, 1"); A("s_cmp_lg_u32 s25, 0")
    A(f"s_cbranch_scc1 {L(tag+'_al')}")
    A.label(L(tag + '_na'))
    A(f"""
    s_mul_i32 s24, s{S_A}, {BM*2048}
    s_add_u32 s24, s24, {WS_XN}
    s_and_b32 s12, s{S_B}, {ncb-1}
    s_mul_i32 s25, s12, {BN*2}
    s_cmp_ge_u32 s{S_B}, {ncb}
    s_cbranch_scc1 {L(tag+'_v')}
    s_mov_b32 s29, {WS_K}
    """)
    g = Gemm(A, tag, BM, BN, 2, 2, NS, 1024, 2048, 8192, vbase=4, sbase=30, agpr=True, spread=2, xsc1=True)
    g.setup(13, 2, 1)
    A(f"s_branch {L(tag+'_m')}")
    A.label(L(tag + '_v'))
    g.setup(13, 2, 0, nat_as_perm=True)
    A.label(L(tag + '_m'))
    g.mainloop(1, 16, 20, 24, 25)
    A(f"""
    v_lshlrev_b32 v3, 4, v2
    s_mul_i32 s26, s{S_A}, {BM//32}
    s_mul_i32 s27, s{g.s_wm}, {g.TM//32}
    s_add_u32 s26, s26, s27
    s_lshl_b32 s26, s26, 18
    s_mul_i32 s27, s12, {BN}
    s_mul_i32 s28, s{g.s_wn}, {g.TN}
    s_add_u32 s27, s27, s28
    s_lshr_b32 s28, s27, 7
    s_lshl_b32 s28, s28, 13
    s_add_u32 s26, s26, s28
    s_and_b32 s27, s27, 127
    s_lshl_b32 s27, s27, 5
    s_add_u32 s26, s26, s27
    s_add_u32 s26, s26, s29
    s_nop 3
    """)
    store_frag(A, g, 0, 26)
    A(f"s_branch {L('done')}")
    return g.lds_bytes

def attention(A, g, Qb, vK, vR, free, lds_v, s_out, vl, sc1=True):
    S = free; P = free + 24; O = free + 40; F = free + 56
    vtrv, vtrm, off = lds_v
    for n in range(2):
        for ks in range(4):
            for t in range(3):
                d = S + 12 * n + 4 * t
                Aop = f"v[{vR+4*ks}:{vR+4*ks+3}]" if t == 2 else f"v[{vK+(t*4+ks)*4}:{vK+(t*4+ks)*4+3}]"
                q = Qb + (n * 4 + ks) * 4
                C = "0" if ks == 0 else f"v[{d}:{d+3}]"
                A(f"v_mfma_f32_16x16x32_bf16 v[{d}:{d+3}], {Aop}, v[{q}:{q+3}], {C}")
    A("s_nop 7")
    mx, tt, sm = vl['t'], vl['t'] + 1, vl['t'] + 2
    for n in range(2):
        s_ = S + 12 * n
        for o in range(8):
            A(f"v_cmp_gt_i32 vcc, {o - 16*n}, v{vl['thr']}")
            A("s_nop 1")
            A(f"v_cndmask_b32 v{s_+o}, v{s_+o}, v{vl['ninf']}, vcc")
        A(f"""
        v_max3_f32 v{mx}, v{s_}, v{s_+1}, v{s_+2}
        v_max3_f32 v{mx}, v{mx}, v{s_+3}, v{s_+4}
        v_max3_f32 v{mx}, v{mx}, v{s_+5}, v{s_+6}
        v_max_f32 v{mx}, v{mx}, v{s_+7}
        s_mov_b64 exec, s[36:37]
        v_max3_f32 v{mx}, v{mx}, v{s_+8}, v{s_+9}
        v_max3_f32 v{mx}, v{mx}, v{s_+10}, v{s_+11}
        s_mov_b64 exec, -1
        v_mov_b32 v{tt}, v{mx}
        s_nop 1
        v_permlane32_swap_b32 v{mx}, v{tt}
        v_max_f32 v{mx}, v{mx}, v{tt}
        v_mov_b32 v{tt}, v{mx}
        s_nop 1
        v_permlane16_swap_b32 v{mx}, v{tt}
        v_max_f32 v{mx}, v{mx}, v{tt}
        """)
        for i in range(12): A(f"v_sub_f32 v{s_+i}, v{s_+i}, v{mx}")
        for i in range(12): A(f"v_mul_f32 v{s_+i}, s34, v{s_+i}")
        for i in range(12): A(f"v_exp_f32 v{s_+i}, v{s_+i}")
        A("s_mov_b64 exec, s[38:39]")
        for i in range(4): A(f"v_mov_b32 v{s_+8+i}, 0")
        A("s_mov_b64 exec, -1")
        A(f"v_add_f32 v{sm}, v{s_}, v{s_+1}")
        for i in range(2, 12): A(f"v_add_f32 v{sm}, v{sm}, v{s_+i}")
        for sw in ("v_permlane32_swap_b32", "v_permlane16_swap_b32"):
            A(f"v_mov_b32 v{tt}, v{sm}"); A("s_nop 1"); A(f"{sw} v{sm}, v{tt}"); A(f"v_add_f32 v{sm}, v{sm}, v{tt}")
        A(f"v_rcp_f32 v{sm}, v{sm}")
        A("s_nop 0")
        for i in range(12): A(f"v_mul_f32 v{s_+i}, v{s_+i}, v{sm}")
        for i in range(6): A(f"v_cvt_pk_bf16_f32 v{P+8*n+i}, v{s_+2*i}, v{s_+2*i+1}")
    A(f"s_waitcnt vmcnt({vl['vwait']})")
    sc = " sc1" if sc1 else ""
    for p in range(4):
        for t in range(2):
            for u in range(2):
                A(f"ds_read_b64_tr_b16 v[{F+4*t+2*u}:{F+4*t+2*u+1}], v{vtrv} offset:{off + p*1024 + 8*t + 64*u}")
            A(f"ds_read_b64_tr_b16 v[{F+8+2*t}:{F+8+2*t+1}], v{vtrm} offset:{off + p*64 + 8*t}")
        A("s_waitcnt lgkmcnt(0)")
        for n in range(2):
            for t in range(2):
                d = O + (n * 2 + t) * 4
                A(f"v_mfma_f32_16x16x32_bf16 v[{d}:{d+3}], v[{F+4*t}:{F+4*t+3}], v[{P+8*n}:{P+8*n+3}], 0")
        A("s_nop 3")
        for n in range(2):
            for t in range(2):
                d = O + (n * 2 + t) * 4
                A(f"v_mfma_f32_16x16x16_bf16 v[{d}:{d+3}], v[{F+8+2*t}:{F+8+2*t+1}], v[{P+8*n+4}:{P+8*n+5}], v[{d}:{d+3}]")
        A("s_nop 7")
        for n in range(2):
            d = S + 8 * (p & 1) + 4 * n
            a0 = O + n * 8; a1 = a0 + 4
            A(f"v_cvt_pk_bf16_f32 v{d}, v{a0}, v{a0+1}"); A(f"v_cvt_pk_bf16_f32 v{d+1}, v{a0+2}, v{a0+3}")
            A(f"v_cvt_pk_bf16_f32 v{d+2}, v{a1}, v{a1+1}"); A(f"v_cvt_pk_bf16_f32 v{d+3}, v{a1+2}, v{a1+3}")
            A(f"buffer_store_dwordx4 v[{d}:{d+3}], v{vl['o']}, {WS}, s{s_out + n} offen offset:{64*p}{sc}")

def chain_wait(A, L, tag, nseg, vR, vK, tmp, vl16, vl16b, vt, psleep=12, CS=CH_STEP, KS_=262144):
    A(f"s_add_u32 s33, s30, {(nseg-1)*CS + 7168}")
    A(f"s_mov_b32 s35, {1 << 19}")
    A.label(L(tag + '_w1'))
    A(f"buffer_load_dwordx4 v[{tmp}:{tmp+3}], v{vl16}, {WS}, s33 offen sc1")
    A("s_sub_u32 s35, s35, 1")
    A(f"s_cbranch_scc1 {L('end')}")
    A("s_waitcnt vmcnt(0)")
    A(f"v_cmp_eq_u32 vcc, -1, v{tmp+3}")
    A(f"s_cbranch_vccz {L(tag+'_w2')}")
    A(f"s_sleep {psleep}")
    A(f"s_branch {L(tag+'_w1')}")
    A.label(L(tag + '_w2'))
    for sg in range(nseg):
        A(f"s_add_u32 s33, s30, {sg*CS}")
        for i in range(4):
            A(f"buffer_load_dwordx4 v[{vR[sg]+4*i}:{vR[sg]+4*i+3}], v{vl16}, {WS}, s33 offen offset:{i*1024} sc1")
        for i in range(2):
            A(f"buffer_load_dwordx4 v[{tmp+8*sg+4*i}:{tmp+8*sg+4*i+3}], v{vl16b}, {WS}, s33 offen offset:{2048+i*1024} sc1")
    A("s_sub_u32 s35, s35, 1")
    A(f"s_cbranch_scc1 {L('end')}")
    A("s_waitcnt vmcnt(0)")
    rr = [vR[sg] + i for sg in range(nseg) for i in range(16)]
    A(f"v_max3_u32 v{vt}, v{rr[0]}, v{rr[1]}, v{rr[2]}")
    for i in range(3, len(rr) - 1, 2): A(f"v_max3_u32 v{vt}, v{vt}, v{rr[i]}, v{rr[i+1]}")
    A(f"v_max_u32 v{vt}, v{vt}, v{rr[-1]}")
    A("s_mov_b32 exec_lo, 0x00ff00ff"); A("s_mov_b32 exec_hi, 0x00ff00ff")
    A(f"v_mov_b32 v{vt}, 0")
    A("s_mov_b64 exec, -1")
    for i in range(0, 8 * nseg, 2): A(f"v_max3_u32 v{vt}, v{vt}, v{tmp+i}, v{tmp+i+1}")
    A(f"v_cmp_eq_u32 vcc, -1, v{vt}")
    A(f"s_cbranch_vccnz {L(tag+'_w2')}")
    for sg in range(nseg):
        A(f"s_add_u32 s32, s28, {sg*KS_}")
        for i in range(8):
            A(f"buffer_load_dwordx4 v[{vK[sg]+4*i}:{vK[sg]+4*i+3}], v{vl16 if i < 4 else vl16b}, {WS}, s32 offen offset:{(i%4)*1024} sc1")

def att_setup(A, vt, vtrv, vtrm, vthr, vo_, vninf):
    n_, g_ = vt, vt + 1
    A(f"""
    v_and_b32 v{n_}, 15, v2
    v_lshrrev_b32 v{g_}, 4, v2
    v_lshrrev_b32 v{vt+2}, 1, v{g_}
    v_lshlrev_b32 v{vtrv}, 12, v{vt+2}
    v_and_b32 v{vt+2}, 3, v{n_}
    v_lshl_add_u32 v{vtrv}, v{vt+2}, 8, v{vtrv}
    v_and_b32 v{vt+3}, 1, v{g_}
    v_lshl_add_u32 v{vtrv}, v{vt+3}, 7, v{vtrv}
    v_lshrrev_b32 v{vt+4}, 2, v{n_}
    v_lshl_add_u32 v{vtrv}, v{vt+4}, 4, v{vtrv}
    v_add_u32 v{vtrv}, s31, v{vtrv}
    v_lshl_add_u32 v{vtrm}, v{vt+3}, 2, v{vt+4}
    v_lshlrev_b32 v{vtrm}, 8, v{vtrm}
    v_lshl_add_u32 v{vtrm}, v{vt+2}, 4, v{vtrm}
    v_add_u32 v{vtrm}, s31, v{vtrm}
    v_add_u32 v{vtrm}, 0x2000, v{vtrm}
    v_lshlrev_b32 v{vt+2}, 3, v{g_}
    v_sub_u32 v{vthr}, v{n_}, v{vt+2}
    v_lshlrev_b32 v{vo_}, 13, v{n_}
    v_lshl_add_u32 v{vo_}, v{g_}, 4, v{vo_}
    v_mov_b32 v{vninf}, 0xff800000
    s_lshl_b32 s32, s26, 18
    s_lshl_b32 s33, s{S_B}, 8
    s_add_u32 s32, s32, s33
    s_add_u32 s32, s32, {WS_O}
    s_add_u32 s33, s32, {16*8192}
    """)

def body_qa(A, L, tag, BM=256, NS=3):
    nseg = BM // 128
    make_srd(A, 20, 60, 1024 * 4096 * 2)
    A(f"""
    s_mul_i32 s24, s{S_A}, {BM*2048}
    s_add_u32 s24, s24, {WS_XN}
    s_lshl_b32 s25, s{S_B}, 8
    """)
    g = Gemm(A, tag, BM, 128, 4, 1, NS, 1024, 2048, 8192, vbase=4, sbase=40, agpr=True, spread=2)
    g.setup(13, 2, 0)
    b0 = (g.v_end + 3) // 4 * 4
    vK = [b0 + 48 * i for i in range(nseg)]; vR = [v + 32 for v in vK]
    m0 = b0 + 48 * nseg
    vl16, vl16b, vtrv, vtrm, vthr, vo_, vninf, vt = m0, m0 + 1, m0 + 2, m0 + 3, m0 + 4, m0 + 5, m0 + 6, m0 + 7
    Qb = (m0 + 12 + 3) // 4 * 4
    assert Qb + 32 <= 256
    free = g.v_wa[0]; assert g.v_xr - free >= 64 or True
    A(f"""
    v_lshlrev_b32 v{vl16}, 4, v2
    v_add_u32 v{vl16b}, 0x1000, v{vl16}
    s_mul_i32 s26, s{S_A}, {BM//32}
    s_mul_i32 s27, s13, {nseg}
    s_add_u32 s26, s26, s27
    s_lshl_b32 s27, s26, 5
    s_add_u32 s27, s27, s{S_B}
    s_lshl_b32 s27, s27, 13
    s_add_u32 s28, s27, {WS_K}
    s_add_u32 s29, s27, {WS_VT}
    s_lshl_b32 s30, s26, 19
    s_lshl_b32 s31, s{S_B}, 13
    s_add_u32 s30, s30, s31
    s_add_u32 s30, s30, {WS_CH + CH_QKV}
    s_mov_b32 s34, {f2u(SC):#x}
    s_mov_b32 s36, 0
    s_mov_b32 s37, -1
    s_mov_b32 s38, -1
    s_mov_b32 s39, 0
    """)
    chain_wait(A, L, tag, nseg, vR, vK, Qb, vl16, vl16b, vt)
    g.mainloop(0, 16, 20, 24, 25)
    A("s_barrier")
    A(f"s_mul_i32 s31, s13, {10240*nseg}")
    for sg in range(nseg):
        for i in range(10):
            A(f"s_add_u32 m0, s31, {sg*10240 + i*1024}")
            if i < 8: A(f"s_add_u32 s35, s29, {sg*262144 + i*1024}")
            else:     A(f"s_add_u32 s35, s30, {sg*CH_STEP + 6144 + (i-8)*1024}")
            A(f"buffer_load_dwordx4 v{vl16}, {WS}, s35 offen sc1 lds")
    att_setup(A, vt, vtrv, vtrm, vthr, vo_, vninf)
    fr = 4
    assert b0 - fr >= 72, (b0,)
    for sg in range(nseg):
        for n in range(2):
            for ks in range(4):
                d = Qb + (n * 4 + ks) * 4
                a0 = g.fetch(2 * ks, 2 * sg + n, fr); a1 = g.fetch(2 * ks + 1, 2 * sg + n, fr + 4)
                A(f"v_cvt_pk_bf16_f32 v{d}, v{a0}, v{a0+1}"); A(f"v_cvt_pk_bf16_f32 v{d+1}, v{a0+2}, v{a0+3}")
                A(f"v_cvt_pk_bf16_f32 v{d+2}, v{a1}, v{a1+1}"); A(f"v_cvt_pk_bf16_f32 v{d+3}, v{a1+2}, v{a1+3}")
        A("s_nop 1")
        vw = 10 * (nseg - 1) if sg == 0 else 8
        attention(A, g, Qb, vK[sg], vR[sg], fr, (vtrv, vtrm, sg * 10240), 32, dict(thr=vthr, o=vo_, ninf=vninf, t=vt, vwait=vw))
        if sg + 1 < nseg:
            A(f"s_add_u32 s32, s32, {32*8192}"); A(f"s_add_u32 s33, s33, {32*8192}")
    A(f"s_branch {L('done')}")
    return g.lds_bytes

def body_res(A, L, tag, ka_w, K, ws_x, res_from_x, to_out, BM=128, BN=128, NS=4):
    A(f"s_load_dwordx2 s[4:5], s[0:1], {ka_w}")
    A(f"s_load_dwordx2 s[6:7], s[0:1], {KA_X if res_from_x else KA_OUT}")
    A("s_waitcnt lgkmcnt(0)")
    make_srd(A, 20, 4, K * 1024 * 2)
    make_srd(A, 24 + 4, 6, 2048 * 2048)
    A(f"""
    s_mul_i32 s24, s{S_A}, {BM*K*2}
    s_add_u32 s24, s24, {ws_x}
    s_mul_i32 s25, s{S_B}, {BN*2}
    """)
    g = Gemm(A, tag, BM, BN, 2, 2, NS, K, K * 2, 2048, vbase=4, sbase=40, kperm=True, spread=min(2, 2), xsc1=True)
    g.setup(13, 2, 0)
    vr_, vs_ = g.v_end, g.v_end + 1
    R = (g.v_end + 3) // 2 * 2
    npair = g.mt // 2
    A(f"""
    v_and_b32 v3, 15, v2
    v_lshlrev_b32 v3, 11, v3
    v_lshrrev_b32 v{vs_}, 4, v2
    v_lshl_add_u32 v{vr_}, v{vs_}, 3, v3
    v_lshl_add_u32 v{vs_}, v{vs_}, 4, v3
    s_mul_i32 s26, s{S_A}, {BM}
    s_mul_i32 s27, s{g.s_wm}, {g.TM}
    s_add_u32 s26, s26, s27
    s_lshl_b32 s26, s26, 11
    s_add_u32 s26, s26, s25
    s_mul_i32 s27, s{g.s_wn}, {g.TN*2}
    s_add_u32 s26, s26, s27
    s_add_u32 s27, s26, {WS_H}
    """)
    rs, rb_ = ("s[28:31]", 26) if res_from_x else (WS, 27)
    rsc = "" if res_from_x else " sc1"
    for n in range(g.nt):
        A(f"s_add_u32 s32, s{rb_}, {n*16*2048}")
        for m in range(g.mt):
            r = R + (n * g.mt + m) * 2
            A(f"buffer_load_dwordx2 v[{r}:{r+1}], v{vr_}, {rs}, s32 offen offset:{m*32}{rsc}")
    g.mainloop(0, 16, 20, 24, 25)
    A("s_nop 7")
    t_ = g.v_wa[0]
    os_, ob_ = ("s[28:31]", 26) if to_out else (WS, 27)
    osc = "" if to_out else " sc1"
    cnt = 0
    for n in range(g.nt):
        A(f"s_add_u32 s32, s{ob_}, {n*16*2048}")
        for p in range(npair):
            d = t_ + 8 * (cnt % 2); cnt += 1
            for t in range(2):
                a = g.acc(2 * p + t, n)
                for h in range(2):
                    rr = R + (n * g.mt + 2 * p + t) * 2 + h
                    A(f"v_cvt_pk_bf16_f32 v{d+4}, v{a+2*h}, v{a+2*h+1}")
                    A(f"v_lshlrev_b32 v{d+5}, 16, v{d+4}")
                    A(f"v_and_b32 v{d+4}, 0xffff0000, v{d+4}")
                    A(f"v_lshlrev_b32 v{d+6}, 16, v{rr}")
                    A(f"v_and_b32 v{d+7}, 0xffff0000, v{rr}")
                    A(f"v_add_f32 v{d+5}, v{d+5}, v{d+6}")
                    A(f"v_add_f32 v{d+4}, v{d+4}, v{d+7}")
                    A(f"v_cvt_pk_bf16_f32 v{d+2*t+h}, v{d+5}, v{d+4}")
            A("s_nop 1")
            A(f"v_permlane32_swap_b32 v{d}, v{d+2}"); A(f"v_permlane32_swap_b32 v{d+1}, v{d+3}")
            A("s_nop 1")
            A(f"v_permlane16_swap_b32 v{d}, v{d+2}"); A(f"v_permlane16_swap_b32 v{d+1}, v{d+3}")
            A(f"buffer_store_dwordx4 v[{d}:{d+3}], v{vs_}, {os_}, s32 offen offset:{64*p}{osc}")
    A(f"s_branch {L('done')}")
    assert R + g.nt * g.mt * 2 <= 256
    return g.lds_bytes

def silu_store(A, g, t_):
    cnt = 0
    for n in range(g.nt):
        for p in range(g.mt // 2):
            d = t_ + 4 * (cnt % 4); cnt += 1
            e = g.v_xb[0]
            for t in range(2):
                a = g.acc(2 * p + t, n)
                for h in range(2):
                    A(f"v_cvt_pk_bf16_f32 v{e}, v{a+2*h}, v{a+2*h+1}")
                    A(f"v_lshlrev_b32 v{a+2*h}, 16, v{e}")
                    A(f"v_and_b32 v{a+2*h+1}, 0xffff0000, v{e}")
                for r in range(4): A(f"v_mul_f32 v{e+r}, s28, v{a+r}")
                for r in range(4): A(f"v_exp_f32 v{e+r}, v{e+r}")
                A("s_nop 0")
                for r in range(4): A(f"v_add_f32 v{e+r}, 1.0, v{e+r}")
                for r in range(4): A(f"v_rcp_f32 v{e+r}, v{e+r}")
                A("s_nop 0")
                for r in range(4): A(f"v_mul_f32 v{a+r}, v{a+r}, v{e+r}")
                A(f"v_cvt_pk_bf16_f32 v{d+2*t}, v{a}, v{a+1}")
                A(f"v_cvt_pk_bf16_f32 v{d+2*t+1}, v{a+2}, v{a+3}")
            A(f"buffer_store_dwordx4 v[{d}:{d+3}], v3, {WS}, s26 offen offset:{64*p} sc1")
        A(f"s_add_u32 s26, s26, {16*7168}")

def body_f1(A, L, tag, BM=256, BN=128, NS=3):
    A(f"s_cmp_ge_u32 s{S_B}, {3584//BN}")
    A(f"s_cbranch_scc1 {L('skip')}")
    A(f"s_load_dwordx2 s[4:5], s[0:1], {KA_W1}")
    A("s_waitcnt lgkmcnt(0)")
    make_srd(A, 20, 4, 1024 * 3584 * 2)
    A(f"""
    s_mul_i32 s24, s{S_A}, {BM*2048}
    s_add_u32 s24, s24, {WS_HN}
    s_mul_i32 s25, s{S_B}, {BN*2}
    """)
    g = Gemm(A, tag, BM, BN, 2, 2, NS, 1024, 2048, 7168, vbase=4, sbase=40, spread=2, xsc1=True)
    g.setup(13, 2, 0)
    g.mainloop(0, 16, 20, 24, 25, mid=(lambda: depwait(A, L, tag)) if BN == 64 else None)
    t_ = g.v_wa[0]
    A(f"""
    v_and_b32 v3, 15, v2
    v_mul_u32_u24 v3, 7168, v3
    v_lshrrev_b32 v1, 4, v2
    v_lshl_add_u32 v3, v1, 4, v3
    s_mul_i32 s26, s{S_A}, {BM}
    s_mul_i32 s27, s{g.s_wm}, {g.TM}
    s_add_u32 s26, s26, s27
    s_mul_i32 s26, s26, 7168
    s_mul_i32 s27, s{S_B}, {BN*2}
    s_add_u32 s26, s26, s27
    s_mul_i32 s27, s{g.s_wn}, {g.TN*2}
    s_add_u32 s26, s26, s27
    s_add_u32 s26, s26, {WS_F1}
    s_mov_b32 s28, {f2u(-1.4426950408889634):#x}
    s_nop 4
    """)
    silu_store(A, g, t_)
    A(f"s_branch {L('done')}")
    return g.lds_bytes

def body_ln(A, L, tag, rows_per_wave=4):
    A(f"""
    v_lshlrev_b32 v3, 4, v2
    s_mul_i32 s26, s{S_A}, {4*rows_per_wave}
    s_mul_i32 s27, s13, {rows_per_wave}
    s_add_u32 s26, s26, s27
    s_lshl_b32 s26, s26, 11
    s_add_u32 s27, s26, {WS_HN}
    s_add_u32 s26, s26, {WS_H}
    s_mov_b32 s28, {rows_per_wave}
    """)
    A.label(L(tag + '_l'))
    ln_row(A, 16, 26, 16, 27, 3, sc1=True)
    A(f"""
    s_add_u32 s26, s26, 2048
    s_add_u32 s27, s27, 2048
    s_sub_u32 s28, s28, 1
    s_cmp_lg_u32 s28, 0
    s_cbranch_scc1 {L(tag+'_l')}
    s_branch {L('done')}
    """)
    return 0

def body_at(A, L, tag, nh=1):
    vK = [76 + 80 * i for i in range(nh)]; vR = [v + 32 for v in vK]; Qb = [v + 48 for v in vK]
    m0 = 76 + 80 * nh
    tmp = 4
    vl16, vl16b, vtrv, vtrm, vthr, vo_, vninf, vt = m0, m0 + 1, m0 + 2, m0 + 3, m0 + 4, m0 + 5, m0 + 6, m0 + 7
    assert vt + 8 <= 256
    A(f"""
    s_mul_i32 s{S_B}, s{S_B}, {nh}
    v_lshlrev_b32 v{vl16}, 4, v2
    v_add_u32 v{vl16b}, 0x1000, v{vl16}
    s_lshl_b32 s26, s{S_A}, 2
    s_add_u32 s26, s26, s13
    s_lshl_b32 s27, s26, 5
    s_add_u32 s27, s27, s{S_B}
    s_lshl_b32 s27, s27, 13
    s_add_u32 s28, s27, {WS_K}
    s_add_u32 s29, s27, {WS_VT}
    s_add_u32 s27, s27, {WS_Q}
    s_lshl_b32 s30, s26, 19
    s_lshl_b32 s31, s{S_B}, 13
    s_add_u32 s30, s30, s31
    s_add_u32 s30, s30, {WS_CH + CH_QKV}
    s_mov_b32 s34, {f2u(SC):#x}
    s_mov_b32 s36, 0
    s_mov_b32 s37, -1
    s_mov_b32 s38, -1
    s_mov_b32 s39, 0
    s_mul_i32 s31, s13, {10240*nh}
    """)
    for h in range(nh):
        for i in range(8):
            A(f"buffer_load_dwordx4 v[{Qb[h]+4*i}:{Qb[h]+4*i+3}], v{vl16 if i < 4 else vl16b}, {WS}, s27 offen offset:{(i%4)*1024} sc1")
        A("s_add_u32 s27, s27, 8192")
    att_setup(A, vt, vtrv, vtrm, vthr, vo_, vninf)
    chain_wait(A, L, tag, nh, vR, vK, tmp, vl16, vl16b, vt, psleep=2, CS=HB, KS_=8192)
    for h in range(nh):
        for i in range(10):
            A(f"s_add_u32 m0, s31, {h*10240 + i*1024}")
            if i < 8: A(f"s_add_u32 s35, s29, {h*8192 + i*1024}")
            else:     A(f"s_add_u32 s35, s30, {h*HB + 6144 + (i-8)*1024}")
            A(f"buffer_load_dwordx4 v{vl16}, {WS}, s35 offen sc1 lds")
    A(f"""
    s_lshl_b32 s32, s26, 18
    s_lshl_b32 s33, s{S_B}, 8
    s_add_u32 s32, s32, s33
    s_add_u32 s32, s32, {WS_O}
    s_add_u32 s33, s32, {16*8192}
    s_waitcnt vmcnt({10*nh})
    """)
    for h in range(nh):
        vw = 10 * (nh - 1) if h == 0 else 8
        attention(A, None, Qb[h], vK[h], vR[h], 4, (vtrv, vtrm, h * 10240), 32, dict(thr=vthr, o=vo_, ninf=vninf, t=vt, vwait=vw))
        if h + 1 < nh: A("s_add_u32 s32, s32, 256"); A("s_add_u32 s33, s33, 256")
    A(f"s_branch {L('done')}")
    return 40960 * nh

def body_red4(A, L, tag, fin):
    A(f"s_load_dwordx2 s[6:7], s[0:1], {KA_OUT if fin else KA_X}")
    A(f"""
    v_lshlrev_b32 v3, 4, v2
    v_lshlrev_b32 v1, 5, v2
    s_and_b32 s26, s{S_B}, 31
    s_lshr_b32 s35, s{S_B}, 5
    s_lshl_b32 s26, s26, 2
    s_add_u32 s26, s26, s13
    s_lshl_b32 s26, s26, 2
    s_lshl_b32 s27, s{S_A}, 9
    s_add_u32 s27, s27, s26
    s_lshl_b32 s27, s27, 12
    s_add_u32 s27, s27, {WS_P2 if fin else WS_P1}
    s_lshl_b32 s32, s{S_A}, 7
    s_add_u32 s32, s32, s26
    s_lshl_b32 s32, s32, 11
    s_add_u32 s33, s32, {WS_H}
    s_add_u32 s34, s32, {WS_HN}
    s_waitcnt lgkmcnt(0)
    """)
    make_srd(A, 28, 6, 2048 * 2048)
    P = lambda r: 32 + 40 * r
    for r in range(4):
        for i in range(16): A(f"v_mov_b32 v{P(r)+16+i}, 0")
    A("s_cmp_eq_u32 s35, 0")
    A(f"s_cbranch_scc1 {L(tag+'_np')}")
    for r in range(4):
        A(f"s_add_u32 s36, s27, {128*4096 + r*4096}")
        for i in range(4):
            q = P(r) + 16 + 4 * i
            A(f"buffer_load_dwordx4 v[{q}:{q+3}], v1, {WS}, s36 offen offset:{(i>>1)*2048 + (i&1)*16} sc1")
    A.label(L(tag + '_np'))
    for r in range(4):
        A(f"s_add_u32 s36, s27, {r*4096}")
        for i in range(4):
            q = P(r) + 4 * i
            A(f"buffer_load_dwordx4 v[{q}:{q+3}], v1, {WS}, s36 offen offset:{(i>>1)*2048 + (i&1)*16} sc1")
        q = P(r) + 32
        if fin:
            A(f"s_add_u32 s36, s33, {r*2048}")
            A(f"buffer_load_dwordx4 v[{q}:{q+3}], v3, {WS}, s36 offen sc1"); A(f"buffer_load_dwordx4 v[{q+4}:{q+7}], v3, {WS}, s36 offen offset:1024 sc1")
        else:
            A(f"s_add_u32 s36, s32, {r*2048}")
            A(f"buffer_load_dwordx4 v[{q}:{q+3}], v3, s[28:31], s36 offen"); A(f"buffer_load_dwordx4 v[{q+4}:{q+7}], v3, s[28:31], s36 offen offset:1024")
    nst = 2 if fin else 4
    for r in range(4):
        p = P(r)
        A(f"s_waitcnt vmcnt({(3-r)*6 + r*nst})")
        for i in range(0, 16, 2): A(f"v_pk_add_f32 v[{p+i}:{p+i+1}], v[{p+i}:{p+i+1}], v[{p+16+i}:{p+17+i}]")
        o = p + 16
        for i in range(8):
            A(f"v_cvt_pk_bf16_f32 v4, v{p+2*i}, v{p+2*i+1}")
            A(f"v_lshlrev_b32 v5, 16, v4"); A(f"v_and_b32 v4, 0xffff0000, v4")
            A(f"v_lshlrev_b32 v6, 16, v{p+32+i}"); A(f"v_and_b32 v7, 0xffff0000, v{p+32+i}")
            A(f"v_add_f32 v5, v5, v6"); A(f"v_add_f32 v4, v4, v7")
            A(f"v_cvt_pk_bf16_f32 v{o+i}, v5, v4")
            if not fin:
                A(f"v_lshlrev_b32 v{16+2*i}, 16, v{o+i}"); A(f"v_and_b32 v{17+2*i}, 0xffff0000, v{o+i}")
        if fin:
            A(f"buffer_store_dwordx4 v[{o}:{o+3}], v3, s[28:31], s32 offen"); A(f"buffer_store_dwordx4 v[{o+4}:{o+7}], v3, s[28:31], s32 offen offset:1024")
            A("s_add_u32 s32, s32, 2048")
        else:
            A(f"buffer_store_dwordx4 v[{o}:{o+3}], v3, {WS}, s33 offen sc1"); A(f"buffer_store_dwordx4 v[{o+4}:{o+7}], v3, {WS}, s33 offen offset:1024 sc1")
            ln_core(A, 16, 34, 3, " sc1")
            A("s_add_u32 s33, s33, 2048"); A("s_add_u32 s34, s34, 2048")
            A("s_nop 1")
    A(f"s_branch {L('done')}")
    return 0

def body_small(A, L, tag, kind):
    ka, K, ldx, ldw, wsx, wbytes = {'wos': (KA_WO, 1024, 8192, 2048, WS_O, 4096*2048), 'f2s': (KA_W2, 896, 7168, 2048, WS_F1, 3584*2048),
                                    'f1s': (KA_W1, 1024, 2048, 7168, WS_HN, 1024*7168)}[kind]
    A(f"s_load_dwordx2 s[4:5], s[0:1], {ka}")
    A(f"s_mul_i32 s24, s{S_A}, {128*ldx}")
    A(f"s_add_u32 s24, s24, {wsx}")
    if kind == 'f1s':
        A(f"s_lshl_b32 s25, s{S_B}, 7")
    else:
        A(f"""
        s_and_b32 s12, s{S_B}, 15
        s_lshr_b32 s29, s{S_B}, 4
        s_mul_i32 s26, s29, {K*2}
        s_add_u32 s24, s24, s26
        s_mul_i32 s25, s29, {K*ldw}
        s_lshl_b32 s26, s12, 7
        s_add_u32 s25, s25, s26
        """)
    A("s_waitcnt lgkmcnt(0)")
    make_srd(A, 20, 4, wbytes)
    g = Gemm(A, tag, 128, 64, 2, 2, 4, K, ldx, ldw, vbase=4, sbase=40, kperm=(kind != 'f1s'), spread=2, xsc1=True)
    g.setup(13, 2, 0)
    g.mainloop(0, 16, 20, 24, 25)
    if kind == 'f1s':
        t_ = g.v_wa[0]
        A(f"""
        v_and_b32 v3, 15, v2
        v_mul_u32_u24 v3, 7168, v3
        v_lshrrev_b32 v1, 4, v2
        v_lshl_add_u32 v3, v1, 4, v3
        s_lshl_b32 s26, s{S_A}, 7
        s_lshl_b32 s27, s{g.s_wm}, 6
        s_add_u32 s26, s26, s27
        s_mul_i32 s26, s26, 7168
        s_lshl_b32 s27, s{S_B}, 7
        s_add_u32 s26, s26, s27
        s_lshl_b32 s27, s{g.s_wn}, 6
        s_add_u32 s26, s26, s27
        s_add_u32 s26, s26, {WS_F1}
        s_mov_b32 s28, {f2u(-1.4426950408889634):#x}
        s_nop 4
        """)
        silu_store(A, g, t_)
    else:
        base = WS_P1 if kind == 'wos' else WS_P2
        A(f"""
        v_and_b32 v3, 15, v2
        v_lshlrev_b32 v3, 12, v3
        v_lshrrev_b32 v1, 4, v2
        v_lshl_add_u32 v3, v1, 4, v3
        s_lshl_b32 s26, s{S_A}, 2
        s_add_u32 s26, s26, s29
        s_lshl_b32 s26, s26, 7
        s_lshl_b32 s27, s{g.s_wm}, 6
        s_add_u32 s26, s26, s27
        s_lshl_b32 s26, s26, 12
        s_lshl_b32 s27, s12, 8
        s_add_u32 s26, s26, s27
        s_lshl_b32 s27, s{g.s_wn}, 7
        s_add_u32 s26, s26, s27
        s_add_u32 s26, s26, {base}
        s_nop 4
        """)
        for n in range(g.nt):
            for m in range(g.mt):
                a = g.acc(m, n)
                A(f"buffer_store_dwordx4 v[{a}:{a+3}], v3, {WS}, s26 offen offset:{64*m} sc1")
            A(f"s_add_u32 s26, s26, {16*4096}")
    A(f"s_branch {L('done')}")
    return g.lds_bytes

def body_red(A, L, tag, fin):
    A(f"s_load_dwordx2 s[6:7], s[0:1], {KA_OUT if fin else KA_X}")
    A(f"""
    v_lshlrev_b32 v3, 4, v2
    v_lshlrev_b32 v1, 5, v2
    s_and_b32 s26, s{S_B}, 31
    s_lshr_b32 s35, s{S_B}, 5
    s_lshl_b32 s26, s26, 2
    s_add_u32 s26, s26, s13
    s_lshl_b32 s27, s{S_A}, 9
    s_add_u32 s27, s27, s26
    s_lshl_b32 s27, s27, 12
    s_add_u32 s27, s27, {WS_P2 if fin else WS_P1}
    s_lshl_b32 s32, s{S_A}, 7
    s_add_u32 s32, s32, s26
    s_lshl_b32 s32, s32, 11               ; row*2048
    s_add_u32 s33, s32, {WS_H}
    s_add_u32 s34, s32, {WS_HN}
    s_waitcnt lgkmcnt(0)
    """)
    make_srd(A, 28, 6, 2048 * 2048)
    P = 32
    for r in range(P + 16, P + 128): A(f"v_mov_b32 v{r}, 0")
    depwait(A, L, tag)
    A("v_lshlrev_b32 v3, 4, v2"); A("v_lshlrev_b32 v1, 5, v2")
    for k in range(8):
        if k:
            A(f"s_cmp_lt_u32 s35, {k}")
            A(f"s_cbranch_scc1 {L(tag+'_np')}")
        for i in range(4):
            r = P + 16 * k + 4 * i
            A(f"buffer_load_dwordx4 v[{r}:{r+3}], v1, {WS}, s27 offen offset:{(i>>1)*2048 + (i&1)*16} sc1")
        A(f"s_add_u32 s27, s27, {128*4096}")
    A.label(L(tag + '_np'))
    if fin:
        A(f"buffer_load_dwordx4 v[8:11], v3, {WS}, s33 offen sc1"); A(f"buffer_load_dwordx4 v[12:15], v3, {WS}, s33 offen offset:1024 sc1")
    else:
        A(f"buffer_load_dwordx4 v[8:11], v3, s[28:31], s32 offen"); A(f"buffer_load_dwordx4 v[12:15], v3, s[28:31], s32 offen offset:1024")
    A("s_waitcnt vmcnt(0)")
    def pk(d, a): A(f"v_pk_add_f32 v[{d}:{d+1}], v[{d}:{d+1}], v[{a}:{a+1}]")
    A("s_cmp_lt_u32 s35, 4")
    A(f"s_cbranch_scc1 {L(tag+'_h4')}")
    for i in range(0, 64, 2): pk(P + i, P + 64 + i)
    A.label(L(tag + '_h4'))
    for i in range(0, 32, 2): pk(P + i, P + 32 + i)
    for i in range(0, 16, 2): pk(P + i, P + 16 + i)
    for i in range(8):
        A(f"v_cvt_pk_bf16_f32 v4, v{P+2*i}, v{P+2*i+1}")
        A(f"v_lshlrev_b32 v5, 16, v4"); A(f"v_and_b32 v4, 0xffff0000, v4")
        A(f"v_lshlrev_b32 v6, 16, v{8+i}"); A(f"v_and_b32 v7, 0xffff0000, v{8+i}")
        A(f"v_add_f32 v5, v5, v6"); A(f"v_add_f32 v4, v4, v7")
        A(f"v_cvt_pk_bf16_f32 v{P+64+i}, v5, v4")
        if not fin:
            A(f"v_lshlrev_b32 v{16+2*i}, 16, v{P+64+i}"); A(f"v_and_b32 v{17+2*i}, 0xffff0000, v{P+64+i}")
    o = P + 64
    if fin:
        A(f"buffer_store_dwordx4 v[{o}:{o+3}], v3, s[28:31], s32 offen"); A(f"buffer_store_dwordx4 v[{o+4}:{o+7}], v3, s[28:31], s32 offen offset:1024")
    else:
        A(f"buffer_store_dwordx4 v[{o}:{o+3}], v3, {WS}, s33 offen sc1"); A(f"buffer_store_dwordx4 v[{o+4}:{o+7}], v3, {WS}, s33 offen offset:1024 sc1")
        ln_core(A, 16, 34, 3, " sc1")
    A(f"s_branch {L('done')}")
    return 0

def pre_part(A, L, tag, which, BN, w8=False):
    ka, Ktot, ldx, wsx, base = {'wo': (KA_WO, 4096, 8192, WS_O, WS_P1), 'f2': (KA_W2, 3584, 7168, WS_F1, WS_P2)}[which]
    A(f"s_load_dwordx2 s[4:5], s[0:1], {ka}")
    A(f"s_mov_b32 s48, {ldx}")
    A(f"s_mov_b32 s50, {base}")
    A(f"s_mov_b32 s51, {Ktot*2048}")
    A(f"s_mul_i32 s24, s{S_A}, {128*ldx}")
    A(f"s_add_u32 s24, s24, {wsx}")
    if BN == 128:
        A(f"s_and_b32 s12, s{S_B}, 7")
        A(f"s_bfe_u32 s29, s{S_B}, 0x20003")
        A(f"s_lshr_b32 s26, s{S_B}, 5")
        A(f"s_lshr_b32 s27, {Ktot}, s26")
        A(f"s_lshr_b32 s49, s27, 8")
        A(f"s_sub_u32 s49, s49, 1")
        A(f"s_mul_i32 s27, s27, s29")
    elif w8:
        A(f"s_lshr_b32 s12, s{S_B}, 4"); A("s_lshl_b32 s12, s12, 1"); A(f"s_and_b32 s26, s{S_B}, 1"); A("s_add_u32 s12, s12, s26")
        A(f"s_bfe_u32 s29, s{S_B}, 0x30001")
        A(f"s_lshl_b32 s27, s29, 9")
        A(f"s_mov_b32 s49, 1")
    else:
        A(f"s_lshr_b32 s12, s{S_B}, 3"); A("s_lshl_b32 s12, s12, 1"); A(f"s_and_b32 s26, s{S_B}, 1"); A("s_add_u32 s12, s12, s26")
        A(f"s_bfe_u32 s29, s{S_B}, 0x20001")
        A(f"s_lshl_b32 s27, s29, 10")
        A(f"s_mov_b32 s49, 3")
        if which == 'f2':
            A("s_cmp_eq_u32 s29, 3"); A("s_cselect_b32 s49, 1, s49")
    A(f"s_lshl_b32 s26, s27, 1")
    A(f"s_add_u32 s24, s24, s26")
    A(f"s_lshl_b32 s25, s27, 11")
    A(f"s_mul_i32 s26, s12, {BN*2}")
    A(f"s_add_u32 s25, s25, s26")
    A(f"s_branch {L('b_g%d' % BN)}")

def body_part(A, L, BN):
    tag = f"g{BN}"
    A("s_waitcnt lgkmcnt(0)")
    A("s_mov_b32 s20, s4"); A("s_and_b32 s21, s5, 0xffff"); A("s_mov_b32 s22, s51"); A("s_mov_b32 s23, 0x00020000")
    g = Gemm(A, tag, 128, BN, 2, 2, 4, 1024, "s48", 2048, vbase=4, sbase=40, kperm=True, spread=2, xsc1=True)
    g.setup(13, 2, 0)
    g.mainloop(0, 16, 20, 24, 25, s_groups=49, mid=(lambda: depwait(A, L, tag)) if BN == 64 else None)
    A(f"""
    v_and_b32 v3, 15, v2
    v_lshlrev_b32 v3, 12, v3
    v_lshrrev_b32 v1, 4, v2
    v_lshl_add_u32 v3, v1, 4, v3
    s_lshl_b32 s26, s{S_A}, 2
    s_add_u32 s26, s26, s29
    s_lshl_b32 s26, s26, 7
    s_lshl_b32 s27, s{g.s_wm}, 6
    s_add_u32 s26, s26, s27
    s_lshl_b32 s26, s26, 12
    s_mul_i32 s27, s12, {BN*4}
    s_add_u32 s26, s26, s27
    s_mul_i32 s27, s{g.s_wn}, {BN*2}
    s_add_u32 s26, s26, s27
    s_add_u32 s26, s26, s50
    s_nop 4
    """)
    for n in range(g.nt):
        for m in range(g.mt):
            a = g.acc(m, n)
            A(f"buffer_store_dwordx4 v[{a}:{a+3}], v3, {WS}, s26 offen offset:{64*m} sc1")
        A(f"s_add_u32 s26, s26, {16*4096}")
    A(f"s_branch {L('done')}")
    return g.lds_bytes

PROBE0 = WS_CH + 3 * CH_STEP + CH_QKV + 31 * HB + 8188
def gen_worker(A, L, table_label, MAXT, POLLMAX=1 << 20, wstamp=False, psleep=3, exh0=0, repair=None, repair_stub=None, premask=0, tiny=False):
    A(f"""
    s_getpc_b64 s[100:101]
    {L('pc0')}:
    s_add_u32 s100, s100, {table_label}-{L('pc0')}
    s_addc_u32 s101, s101, 0
    s_bfe_u32 s88, s14, 0x30004
    s_mul_i32 s99, s14, {MAXT*8}
    {L('next')}:
    {"s_memrealtime s[90:91]" if wstamp else ""}
    s_add_u32 s99, s99, 8
    s_cmp_lg_u32 s13, 0
    s_cbranch_scc1 {L('go2')}
    s_mov_b32 s29, {POLLMAX}
    s_mov_b32 s97, s88
    s_mov_b32 s83, 0
    {L('grp')}:
    s_lshl_b32 s96, s97, 9
    s_add_u32 s96, s96, {WS_TK}
    v_lshlrev_b32 v5, 2, v2
    v_add_u32 v5, {WS_RDY}, v5
    s_lshl_b32 s24, s97, 7
    s_add_u32 s24, s24, {128 - 32}
    s_mov_b64 exec, 0xf00
    v_add_u32 v5, s24, v5
    s_mov_b32 exec_lo, 0xffff0000
    s_mov_b32 exec_hi, 0
    v_lshlrev_b32 v5, 21, v2
    v_add_u32 v5, {(PROBE0 - (16 << 21)) & 0xffffffff:#x}, v5
    {L('scan')}:
    s_mov_b64 exec, -1
    """)
    repair(A, L)
    A(f"""
    s_mov_b32 exec_lo, 0xffff0f0f
    s_mov_b32 exec_hi, 0
    buffer_load_dword v24, v5, {WS}, 0 offen sc1
    s_waitcnt vmcnt(0)
    v_cmp_eq_u32 vcc, -1, v24
    s_mov_b64 exec, -1
    v_readlane_b32 s24, v24, 0
    v_readlane_b32 s25, v24, 1
    v_readlane_b32 s26, v24, 2
    v_readlane_b32 s27, v24, 3
    v_readlane_b32 s84, v24, 8
    v_readlane_b32 s85, v24, 9
    v_readlane_b32 s86, v24, 10
    v_readlane_b32 s87, v24, 11
    s_or_b32 s86, s86, {(exh0 >> 64) & 0xffffffff:#x}
    s_or_b32 s87, s87, {(exh0 >> 96) & 0xffffffff:#x}
    s_and_b32 s28, s24, s84
    s_and_b32 s28, s28, {premask:#x}
    s_lshl_b32 s28, s28, 2
    s_andn2_b32 s28, s28, s24
    s_lshr_b32 s30, vcc_lo, 16
    s_andn2_b32 s24, s24, s30
    s_andn2_b32 s28, s28, s84
    s_mov_b32 s35, s28
    s_andn2_b64 s[24:25], s[24:25], s[84:85]
    s_andn2_b64 s[26:27], s[26:27], s[86:87]
    {L('pick')}:
    s_ff1_i32_b64 s30, s[24:25]
    s_cmp_lg_u32 s30, -1
    s_cbranch_scc0 {L('pick2')}
    s_bitset0_b64 s[24:25], s30
    s_branch {L('claim')}
    {L('pick2')}:
    s_ff1_i32_b64 s30, s[26:27]
    s_cmp_lg_u32 s30, -1
    s_cbranch_scc0 {L('pick3')}
    s_bitset0_b64 s[26:27], s30
    s_add_u32 s30, s30, 64
    s_branch {L('claim')}
    {L('pick3')}:
    s_ff1_i32_b32 s30, s35
    s_cmp_lg_u32 s30, -1
    s_cbranch_scc0 {L('idle')}
    s_bitset0_b32 s35, s30
    {L('claim')}:
    s_lshl_b32 s31, s30, 3
    s_load_dwordx2 s[8:9], s[100:101], s31
    s_lshl_b32 s31, s30, 2
    v_mov_b32 v30, s31
    v_mov_b32 v31, 1
    s_mov_b64 exec, 1
    buffer_atomic_add v31, v30, {WS}, s96 offen sc0
    s_waitcnt vmcnt(0) lgkmcnt(0)
    s_mov_b64 exec, -1
    v_readfirstlane_b32 s31, v31
    s_lshr_b32 s32, s8, 25
    s_add_u32 s33, s31, 1
    s_cmp_lt_u32 s33, s32
    s_cbranch_scc1 {L('got')}
    {L('ex3')}:
    s_cmp_lt_u32 s31, s32
    s_cbranch_scc0 {L('pick')}
    s_lshr_b32 s33, s30, 5
    s_lshl_b32 s33, s33, 2
    s_lshl_b32 s34, s97, 7
    s_add_u32 s33, s33, s34
    s_add_u32 s33, s33, {WS_RDY + 128}
    s_lshl_b32 s34, 1, s30
    v_mov_b32 v30, s33
    v_mov_b32 v31, s34
    s_mov_b64 exec, 1
    buffer_atomic_or v31, v30, {WS}, 0 offen
    s_mov_b64 exec, -1
    {L('got')}:
    s_bfe_u32 s32, s8, 0x40010
    s_lshl_b32 s32, s32, 4
    s_bfe_u32 s33, s8, 0x30014
    s_lshl_b32 s33, s97, s33
    s_add_u32 s32, s32, s33
    s_bfe_u32 s33, s8, 0x20017
    s_lshl_b32 s33, s31, s33
    s_add_u32 s32, s32, s33
    s_and_b32 s8, s8, 0xffff
    s_lshl_b32 s32, s32, 16
    s_or_b32 s8, s8, s32
    s_cmp_ge_u32 s30, 32
    s_cbranch_scc1 {L('bc')}
    s_bitcmp1_b32 s28, s30
    s_cbranch_scc0 {L('bc')}
    s_bitset1_b32 s8, 31
    s_lshl_b32 s32, s30, 24
    s_or_b32 s8, s8, s32
    s_branch {L('bc')}
    {L('idle')}:
    s_and_b64 s[24:25], s[84:85], s[86:87]
    s_cmp_eq_u64 s[24:25], -1
    s_cbranch_scc0 {L('idle2')}
    s_add_u32 s83, s83, 1
    s_cmp_ge_u32 s83, 8
    s_cbranch_scc1 {L('quit')}
    {L('rot')}:
    s_add_u32 s97, s97, 1
    s_and_b32 s97, s97, 7
    s_branch {L('grp')}
    {L('idle2')}:
    s_mov_b32 s83, 0
    s_sleep {psleep}
    s_sub_u32 s29, s29, 1
    s_cbranch_scc1 {L('quit')}
    s_and_b32 s24, s29, 63
    s_cmp_eq_u32 s24, 0
    s_cbranch_scc1 {L('rot')}
    s_branch {L('scan')}
    {L('quit')}:
    s_mov_b32 s8, 0
    {L('bc')}:
    v_mov_b32 v30, {LDS_TAB}
    v_mov_b32 v28, s8
    v_mov_b32 v29, s9
    ds_write_b64 v30, v[28:29]
    s_waitcnt lgkmcnt(0)
    {L('go2')}:
    s_barrier
    v_mov_b32 v30, {LDS_TAB}
    ds_read_b64 v[28:29], v30
    s_waitcnt lgkmcnt(0)
    v_readfirstlane_b32 s8, v28
    v_readfirstlane_b32 s82, v29
    {"s_memrealtime s[92:93]" if wstamp else ""}
    s_and_b32 s12, s8, 15
    s_cmp_eq_u32 s12, 0
    s_cbranch_scc1 {L('end')}
    s_bfe_u32 s{S_A}, s8, 0x40004
    s_bfe_u32 s{S_DONE}, s8, 0x80008
    s_bfe_u32 s{S_B}, s8, 0x80010
    """)
    labels = {T_KVS: 'kvs', T_KVL: 'kvl', T_WO: 'wo', T_F1: 'f1', T_F2: 'f2', T_QO: 'kvl', T_AT: 'at', T_WOS: 'wos', T_LNR: 'lnr', T_F1S: 'f1s', T_F2S: 'f2s', T_FIN: 'fin', T_QA: 'wo8', T_LN: 'f28'}
    for t, n in labels.items():
        A(f"s_cmp_eq_u32 s12, {t}")
        A(f"s_cbranch_scc1 {L('j_'+n)}")
    A(f"s_cmp_eq_u32 s12, 15")
    A(f"s_cbranch_scc1 {L('j_rep')}")
    A(f"s_branch {L('end')}")
    repair_stub(A, L)
    for n in dict.fromkeys(labels.values()):
        A.label(L('j_' + n))
        A(f"s_branch {L('b_'+n)}")
    A.label(L('skip'))
    A("s_barrier")
    A(f"s_branch {L('next')}")
    A.label(L('done'))
    A(f"""
    s_waitcnt vmcnt(0)
    s_barrier
    s_cmp_lg_u32 s13, 1
    s_cbranch_scc1 {L('next')}
    """)
    if wstamp:
        A(f"""
        s_memrealtime s[94:95]
        s_lshl_b32 s24, s99, 1
        s_add_u32 s24, s24, {WS_DUMMY + 65536}
        s_waitcnt lgkmcnt(0)
        v_mov_b32 v4, s90
        v_mov_b32 v5, s92
        v_mov_b32 v6, s94
        s_lshl_b32 s25, s{S_A}, 8
        s_and_b32 s26, s8, 0x00ff000f
        s_or_b32 s25, s25, s26
        v_mov_b32 v7, s25
        v_mov_b32 v8, 0
        s_mov_b64 exec, 1
        buffer_store_dwordx4 v[4:7], v8, {WS}, s24 offen
        s_mov_b64 exec, -1
        s_nop 1
        """)
    A(f"""
    s_lshl_b32 s24, s{S_DONE}, 7
    s_add_u32 s24, s24, {WS_CNT}
    v_mov_b32 v4, 0
    v_mov_b32 v5, 1
    s_mov_b64 exec, 1
    buffer_atomic_add v5, v4, {WS}, s24 offen sc0
    s_and_b32 s25, s82, 255
    s_bfe_u32 s26, s82, 0x70008
    s_bfe_u32 s27, s82, 0x20010
    s_lshr_b32 s28, s26, 5
    s_lshl_b32 s28, s28, 2
    s_and_b32 s26, s26, 31
    s_lshl_b32 s27, s27, s26
    v_mov_b32 v6, s28
    v_mov_b32 v7, s27
    s_mov_b32 s28, {WS_RDY}
    s_waitcnt vmcnt(0)
    v_readfirstlane_b32 s26, v5
    s_add_u32 s26, s26, 1
    s_cmp_eq_u32 s26, s25
    s_cbranch_scc0 {L('nosucc')}
    buffer_atomic_or v7, v6, {WS}, s28 offen
    {L('nosucc')}:
    s_mov_b64 exec, -1
    s_branch {L('next')}
    """)
    lds = []
    A.label(L('b_wo'));  pre_part(A, L, 'wo', 'wo', 128)
    A.label(L('b_f2'));  pre_part(A, L, 'f2', 'f2', 128)
    A.label(L('b_wos')); pre_part(A, L, 'wos', 'wo', 64)
    A.label(L('b_f2s')); pre_part(A, L, 'f2s', 'f2', 64)
    A.label(L('b_wo8')); pre_part(A, L, 'wo8', 'wo', 64, True)
    A.label(L('b_f28')); pre_part(A, L, 'f28', 'f2', 64, True)
    def variant(name, alt):
        A.label(L('b_' + name))
        A(f"s_bitcmp1_b32 s82, 24")
        A(f"s_cbranch_scc1 {L('b_'+alt)}")
    variant('lnr', 'lnr4'); lds.append(body_red(A, L, 'lnr', False))
    variant('fin', 'fin4'); lds.append(body_red(A, L, 'fin', True))
    variant('at', 'at2');  lds.append(body_at(A, L, 'at'))
    A.label(L('b_lnr4')); lds.append(body_red4(A, L, 'lnr4', False))
    A.label(L('b_fin4')); lds.append(body_red4(A, L, 'fin4', True))
    A.label(L('b_at2')); lds.append(body_at(A, L, 'at2', 2))
    A.label(L('b_f1l')); lds.append(body_f1(A, L, 'f1l', 256, 128, 3))
    A.label(L('b_g64')); lds.append(body_part(A, L, 64))
    A.label(L('b_g128')); lds.append(body_part(A, L, 128))
    A.label(L('b_f1s')); lds.append(body_f1(A, L, 'f1s', 128, 64, 6))
    variant('f1', 'f1l'); lds.append(body_f1(A, L, 'f1', 128, 128, 4))
    if tiny:
        A.label(L('b_kvt')); lds.append(body_kv(A, L, 'kvt', 128, 64, 6))
        variant('kvs', 'kvt')
    else: A.label(L('b_kvs'))
    lds.append(body_kv(A, L, 'kvs', 128, 128, 4))
    A.label(L('b_kvl')); lds.append(body_kv(A, L, 'kvl', 256, 256, 2))
    return max(lds)

def task(t, a=0, b=0, done=C_SINK, d1=(0, 0), d2=(0, 0)):
    return (t | a << 8 | b << 16 | done << 24, d1[0] | d1[1] << 8 | d2[0] << 16 | d2[1] << 24)
```

```python
from asmlib import *
from layout import *
import math, struct

SCALE_LOG2E = (128 ** -0.5) * 1.4426950408889634
def f2u(x): return struct.unpack("<I", struct.pack("<f", x))[0]

def interleave(A, mf, side, per=3, start=0):
    k = 0
    for i, m in enumerate(mf):
        A(m)
        if i >= start:
            for _ in range(per):
                if k < len(side): A(side[k]); k += 1
    while k < len(side): A(side[k]); k += 1

def gen_chain(A, name="chain_kernel", dlyB=0, stamp=False, nsteps=64, POLLMAX=1 << 20, nokv=False, notouch=False, rounds=False, trace=False, worker=None, nW=16, dlyA=0, dlyC=0, engine=False, kv0n=128, after=None, NX=8, fakex=False, clk=False, vpos=1, init=None, init2=None, codepf=0, ready2=None, wreg=False, wnt='', wntm=(0, 1, 2, 3), word=(0, 1, 2, 3), pipeB=False, aimd=None):
    WX = lambda x: x if x < 4 else 28 + x
    QU = [128 // NX if x < NX else 0 for x in range(8)]; QB = [sum(QU[:x]) for x in range(8)]; q0 = 128 // NX
    kernel_begin(A, name)
    L = lambda s: f"{name}_{s}"
    SRD_WS, SRD_DBG, SRD_W = 16, 20, 24
    WS = f"s[{SRD_WS}:{SRD_WS+3}]"
    s_wave, s_xcc, s_tick, s_role, s_Q, s_j = 13, 12, 15, 34, 35, 36
    s_memsrc, s_qkvdst, s_qkvsrc, s_partdst, s_partsrc, s_memdst, s_k, s_step, s_pc, s_v = 40, 41, 42, 43, 44, 45, 46, 47, 48, 49
    s_hi, s_lo, s_c = 50, 52, 54
    t0, t1, t2 = 56, 57, 58
    s_nc, s_msk = 59, 95
    v_r3 = 20
    v_zero, vCnt, s_cnt = 4, 5, 88
    s_lastq, s_lastm, s_touch, s_partsrc2, s_touch2 = 90, 91, 92, 93, 94
    v_lane, v_idx = 2, 3
    v_offC, v_offA, v_l16, v_w1q, v_w1v, v_r1, v_d1, v_w2, v_r2, v_l4, v_dM, v_l16b = range(4, 16)
    v_t = 16
    vA = 24
    vVM = 40
    vK = 48
    vV = 80
    acc1 = 112
    vS = 136
    vP = 148
    vU = 160
    vUb = 192
    acc2 = 224
    vUm = 112
    vOne = 244
    vB = 136
    vPub = 252
    vTch = 128
    vTch = 156
    A(f"""
    s_cmp_ge_u32 s2, 256
    s_cbranch_scc1 {L('end')}
    """)
    if codepf:
        A("s_getpc_b64 s[30:31]")
        A.label(L('cpf'))
        A("s_bfe_u32 s32, s2, 0x10003")
        A("s_lshl_b32 s32, s32, 16")
        A("v_lshlrev_b32 v4, 7, v0")
        A("v_add_u32 v4, s32, v4")
        A(f"v_min_u32 v5, main_tasks-{L('cpf')}, v4")
        A("v_add_u32 v4, 0x8000, v4")
        A(f"v_min_u32 v4, main_tasks-{L('cpf')}, v4")
        A("global_load_dword v6, v5, s[30:31]")
        A("global_load_dword v7, v4, s[30:31]")
    A(f"""
    {"s_memrealtime s[28:29]" if stamp else ""}
    s_load_dwordx2 s[4:5], s[0:1], {KA_DBG}
    s_load_dwordx2 s[6:7], s[0:1], {KA_WS}
    s_load_dwordx4 s[60:63], s[0:1], {KA_WQ}
    s_load_dwordx4 s[8:11], s[0:1], {KA_X}
    s_load_dwordx4 s[64:67], s[0:1], {KA_WV}
    s_getreg_b32 s{s_xcc}, hwreg(HW_REG_XCC_ID)
    s_and_b32 s{s_xcc}, s{s_xcc}, 7
    {"s_min_u32 s12, s12, 5" if fakex else ""}
    v_lshrrev_b32 v1, 6, v0
    v_and_b32 v{v_lane}, 63, v0
    s_nop 1
    v_readfirstlane_b32 s{s_wave}, v1
    s_waitcnt lgkmcnt(0)
    """)
    make_srd(A, SRD_DBG, 4, 256)
    if stamp: A("s_mov_b32 s3, s28")
    make_srd(A, SRD_WS, 6, WS_SIZE)
    DBG = f"s[{SRD_DBG}:{SRD_DBG+3}]"
    A(f"""
    s_lshl_b32 s{t0}, s{s_xcc}, 2
    s_add_u32 s{t1}, s{t0}, 112
    s_cmp_ge_u32 s{s_xcc}, 4
    s_cselect_b32 s{t0}, s{t1}, s{t0}
    v_mov_b32 v{v_t}, s{t0}
    v_mov_b32 v{v_t+1}, 1
    v_mov_b32 v{v_t+2}, 32
    v_mov_b32 v{v_t+3}, 1
    v_cmp_eq_u32 vcc, 0, v0
    s_and_saveexec_b64 s[32:33], vcc
    s_cbranch_execz {L('t0')}
    buffer_atomic_add v{v_t+1}, v{v_t}, {DBG}, 0 offen sc0
    {L('t0')}:
    s_mov_b64 exec, s[32:33]
    """)
    if init2: init2[0](A, L)
    if stamp: A('s_memrealtime s[40:41]')
    else: A("s_waitcnt vmcnt(0)")
    A(f"""
    v_cmp_eq_u32 vcc, 0, v0
    s_and_saveexec_b64 s[32:33], vcc
    s_cbranch_execz {L('t1')}
    v_mov_b32 v{v_t+4}, 0
    ds_write_b32 v{v_t+4}, v{v_t+1}
    s_waitcnt lgkmcnt(0)
    {L('t1')}:
    s_mov_b64 exec, s[32:33]
    """)
    if init2: init2[1](A, L)
    if stamp: A('s_memrealtime s[42:43]')
    def last_actions(a):
        A(f"buffer_store_dword v{a+3}, v{a+2}, {DBG}, 0 offen sc1")
        if ready2:
            A("s_mov_b64 exec, 15")
            A(f"v_lshlrev_b32 v{a}, 2, v{v_lane}")
            for k in range(4):
                A(f"s_mov_b32 s{t0}, {ready2[k]:#x}"); A(f"v_writelane_b32 v{a+1}, s{t0}, {k}")
            A(f"s_mov_b32 s{t0}, {WS_RDY}")
            A(f"buffer_atomic_or v{a+1}, v{a}, {WS}, s{t0} offen")
    def early_signal(a, tag):
        if not ready2: return
        A("s_cmp_ge_u32 s2, 16")
        A(f"s_cbranch_scc1 {L(tag+'_e')}")
        A(f"v_mov_b32 v{a}, 164"); A(f"v_mov_b32 v{a+1}, 1")
        A(f"buffer_atomic_add v{a+1}, v{a}, {DBG}, 0 offen sc0")
        A("s_waitcnt vmcnt(0)")
        A(f"v_readfirstlane_b32 s{t0}, v{a+1}")
        A(f"s_cmp_eq_u32 s{t0}, 15")
        A(f"s_cbranch_scc0 {L(tag+'_e')}")
        A(f"v_mov_b32 v{a}, 68"); A(f"v_mov_b32 v{a+1}, 1")
        A(f"buffer_store_dword v{a+1}, v{a}, {DBG}, 0 offen sc1")
        A("s_nop 1")
        A.label(L(tag + '_e'))
    def signal_init(tag):
        A(f"""
        s_barrier
        s_cmp_lg_u32 s{s_wave}, 0
        s_cbranch_scc1 {L(tag+'_s2')}
        s_mov_b64 exec, 1
        """)
        early_signal(v_t, tag)
        A(f"""
        v_mov_b32 v{v_t}, 160
        v_mov_b32 v{v_t+1}, 1
        v_mov_b32 v{v_t+2}, 64
        v_mov_b32 v{v_t+3}, 1
        buffer_atomic_add v{v_t+1}, v{v_t}, {DBG}, 0 offen sc0
        s_waitcnt vmcnt(0)
        v_readfirstlane_b32 s{t0}, v{v_t+1}
        s_cmp_eq_u32 s{t0}, 255
        s_cbranch_scc0 {L(tag+'_s1')}
        """)
        last_actions(v_t)
        A(f"""
        {L(tag+'_s1')}:
        s_mov_b64 exec, -1
        {L(tag+'_s2')}:
        """)
    A(f"""
    s_barrier
    v_mov_b32 v{v_t+4}, 0
    ds_read_b32 v{v_t+1}, v{v_t+4}
    s_waitcnt lgkmcnt(0)
    v_readfirstlane_b32 s{s_tick}, v{v_t+1}
    s_barrier
    s_mov_b32 s38, 1
    s_mul_i32 s{s_role}, s{s_xcc}, {q0}
    s_add_u32 s{s_role}, s{s_role}, s{s_tick}
    s_cmp_lt_u32 s{s_xcc}, {NX}
    s_cselect_b32 s71, {q0}, 0
    s_cmp_lt_u32 s{s_tick}, s71
    s_cbranch_scc1 {L('haverole')}
    s_sub_u32 s80, s{s_tick}, s71
    s_and_b32 s14, s80, 15
    s_lshl_b32 s{t0}, s{s_xcc}, 4
    s_add_u32 s14, s14, s{t0}
    s_mov_b32 s81, 1
    s_mov_b32 s71, s{s_xcc}
    """)
    def flagwait(tag, all_waves, off=64):
        A(f"v_mov_b32 v{v_t}, {off}")
        A(f"s_mov_b32 s{s_pc}, {POLLMAX}")
        A.label(L(tag))
        A(f"buffer_load_dword v{v_t+1}, v{v_t}, {DBG}, 0 offen sc1")
        A(f"s_sub_u32 s{s_pc}, s{s_pc}, 1")
        A(f"s_cbranch_scc1 {L('end')}")
        A("s_waitcnt vmcnt(0)")
        A(f"v_readfirstlane_b32 s{t0}, v{v_t+1}")
        A(f"s_cmp_lg_u32 s{t0}, 0")
        A(f"s_cbranch_scc1 {L(tag+'_ok')}")
        A("s_sleep 4")
        A(f"s_branch {L(tag)}")
        A.label(L(tag + '_ok'))
    if init2:
        A("s_waitcnt vmcnt(0)")
        if stamp: A('s_memrealtime s[44:45]')
        signal_init('ws')
        A(f"s_cmp_lg_u32 s{s_wave}, 0")
        A(f"s_cbranch_scc1 {L('i5')}")
        flagwait('iw2', False, 68 if ready2 else 64)
        A.label(L('i5'))
        A("s_barrier")
        if stamp:
            A("s_waitcnt lgkmcnt(0)")
            A("v_mov_b32 v4, s3"); A("v_mov_b32 v5, s40"); A("v_mov_b32 v6, s42"); A("v_mov_b32 v7, s44"); A("v_mov_b32 v8, 0")
            A("s_lshl_b32 s24, s14, 10"); A(f"s_add_u32 s24, s24, {WS_DUMMY + 65536}")
            A("s_mov_b64 exec, 1"); A(f"buffer_store_dwordx4 v[4:7], v8, {WS}, s24 offen"); A("s_mov_b64 exec, -1")
    if init:
        A(f"""
        v_mov_b32 v{v_t}, 44
        v_mov_b32 v{v_t+1}, 1
        v_cmp_eq_u32 vcc, 0, v0
        s_and_saveexec_b64 s[32:33], vcc
        s_cbranch_execz {L('i1')}
        buffer_atomic_add v{v_t+1}, v{v_t}, {DBG}, 0 offen sc0
        s_waitcnt vmcnt(0)
        v_mov_b32 v{v_t+4}, 0
        ds_write_b32 v{v_t+4}, v{v_t+1}
        s_waitcnt lgkmcnt(0)
        {L('i1')}:
        s_mov_b64 exec, s[32:33]
        s_barrier
        v_mov_b32 v{v_t+4}, 0
        ds_read_b32 v{v_t+1}, v{v_t+4}
        s_waitcnt lgkmcnt(0)
        v_readfirstlane_b32 s30, v{v_t+1}
        s_cmp_ge_u32 s30, 128
        s_cbranch_scc1 {L('i3')}
        """)
        init(A, L)
        A(f"""
        s_waitcnt vmcnt(0)
        s_barrier
        s_cmp_lg_u32 s{s_wave}, 0
        s_cbranch_scc1 {L('i4')}
        v_mov_b32 v{v_t}, 160
        v_mov_b32 v{v_t+1}, 1
        v_mov_b32 v{v_t+2}, 64
        v_mov_b32 v{v_t+3}, 1
        s_mov_b64 exec, 1
        buffer_atomic_add v{v_t+1}, v{v_t}, {DBG}, 0 offen sc0
        s_waitcnt vmcnt(0)
        v_readfirstlane_b32 s{t0}, v{v_t+1}
        s_cmp_eq_u32 s{t0}, 127
        s_cbranch_scc0 {L('i2')}
        buffer_store_dword v{v_t+3}, v{v_t+2}, {DBG}, 0 offen sc1
        {L('i2')}:
        s_mov_b64 exec, -1
        {L('i3')}:
        s_cmp_lg_u32 s{s_wave}, 0
        s_cbranch_scc1 {L('i4')}
        """)
        flagwait('iw', False)
        A.label(L('i4'))
        A("s_barrier")
    def repair(A, L2):
        D2 = "s[76:79]"
        A(f"s_cmp_eq_u32 s81, 0")
        A(f"s_cbranch_scc1 {L('rp_end')}")
        A(f"v_lshlrev_b32 v24, 2, v{v_lane}")
        A(f"buffer_load_dword v25, v24, {D2}, 0 offen sc1")
        A("s_waitcnt vmcnt(0)")
        A("s_mov_b32 s24, 0")
        for x in range(8):
            A(f"v_readlane_b32 s25, v25, {WX(x)}"); A("s_add_u32 s24, s24, s25")
        A("s_cmp_lt_u32 s24, 256")
        A(f"s_cbranch_scc1 {L('rp_end')}")
        A("s_mov_b32 s81, 0")
        A("s_mov_b32 s25, 0")
        A("s_mov_b32 s26, s80")
        for x in range(8):
            A(f"v_readlane_b32 s24, v25, {WX(x)}")
            A(f"s_max_u32 s27, s24, {QU[x]}")
            A(f"s_sub_u32 s27, s27, {QU[x]}")
            A(f"s_cmp_gt_u32 s71, {x}")
            A(f"s_cselect_b32 s27, s27, 0")
            A(f"s_add_u32 s26, s26, s27")
            A(f"s_min_u32 s24, s24, {QU[x]}")
            A(f"s_sub_u32 s24, {QU[x]}, s24")
            A(f"s_add_u32 s25, s25, s24")
        A("s_cmp_ge_u32 s26, s25")
        A(f"s_cbranch_scc1 {L('rp_end')}")
        for x in range(8):
            A(f"v_readlane_b32 s24, v25, {WX(x)}")
            A(f"s_min_u32 s24, s24, {QU[x]}")
            A(f"s_add_u32 s8, s24, s26")
            A(f"s_add_u32 s8, s8, {QB[x]}")
            A(f"s_sub_u32 s24, {QU[x]}, s24")
            A(f"s_cmp_lt_u32 s26, s24")
            A(f"s_cbranch_scc1 {L('rp_take')}")
            A(f"s_sub_u32 s26, s26, s24")
        A(f"s_branch {L('rp_end')}")
        A.label(L('rp_take'))
        A("s_lshl_b32 s8, s8, 16")
        A("s_or_b32 s8, s8, 15")
        A(f"s_branch {L('bc')}")
        A.label(L('rp_end'))
    def repair_stub(A, L2):
        A.label(L('j_rep'))
        A(f"s_mov_b32 s{s_role}, s11")
        A("s_mov_b32 s38, 0")
        A(f"s_mov_b32 s{SRD_DBG}, s76"); A(f"s_mov_b32 s{SRD_DBG+1}, s77"); A(f"s_mov_b32 s{SRD_DBG+2}, 256"); A(f"s_mov_b32 s{SRD_DBG+3}, 0x00020000")
        A("s_barrier")
        A(f"s_branch {L('haverole')}")
    A.label(L('wentry'))
    A(f"s_mov_b32 s76, s{SRD_DBG}"); A(f"s_mov_b32 s77, s{SRD_DBG+1}"); A("s_mov_b32 s78, 256"); A("s_mov_b32 s79, 0x00020000")
    if worker: worker(A, L, repair, repair_stub)
    A(f"s_branch {L('end')}")
    A.label(L('haverole'))
    A(f"""
    s_lshr_b32 s{s_Q}, s{s_role}, 4
    s_and_b32 s{s_j}, s{s_role}, 15
    s_mov_b32 s{s_hi}, 0
    s_mov_b32 s{s_hi+1}, -1
    s_mov_b32 s{s_lo}, -1
    s_mov_b32 s{s_lo+1}, 0
    s_mov_b32 s{s_c}, {f2u(SCALE_LOG2E):#x}
    s_mov_b32 s{s_c+1}, {f2u(SCALE_LOG2E):#x}
    s_mov_b32 s{s_nc}, {f2u(-SCALE_LOG2E):#x}
    s_mov_b32 s{s_msk}, 0xffff0000
    """)
    n_, g_ = v_t, v_t + 1
    a, b, c, d_ = v_t + 2, v_t + 3, v_t + 4, v_t + 5
    A(f"""
    v_and_b32 v{n_}, 15, v{v_lane}
    v_lshrrev_b32 v{g_}, 4, v{v_lane}
    v_lshlrev_b32 v{v_l16}, 4, v{v_lane}
    v_add_u32 v{v_l16b}, 0x1000, v{v_l16}
    v_lshlrev_b32 v{v_l4}, 2, v{v_lane}
    v_lshlrev_b32 v{v_d1}, 3, v{v_lane}
    v_mov_b32 v{v_idx}, 0x44444444
    v_mov_b32 v{a}, 0xeeeeeeee
    v_cmp_lt_u32 vcc, 7, v{n_}
    s_nop 1
    v_cndmask_b32 v{v_idx}, v{v_idx}, v{a}, vcc
    v_lshrrev_b32 v{d_}, 5, v{v_lane}          ; t
    v_and_b32 v{c}, 1, v{g_}                   ; g'
    v_lshrrev_b32 v{a}, 2, v{n_}
    v_lshl_add_u32 v{b}, v{a}, 1, v{c}         ; 2G+g'
    v_mul_u32_u24 v{a}, 144, v{b}              ; (2G+g')*(128+16)
    v_lshl_add_u32 v{a}, v{d_}, 4, v{a}
    v_and_b32 v{b}, 3, v{n_}
    v_lshl_add_u32 v{a}, v{b}, 2, v{a}
    s_mul_i32 s{t0}, s{s_wave}, 3584
    v_add_u32 v{v_w1q}, s{t0}, v{a}
    v_lshrrev_b32 v{a}, 3, v{n_}
    v_lshl_add_u32 v{a}, v{a}, 2, v{c}
    v_bfe_u32 v{b}, v{n_}, 1, 1
    v_lshl_add_u32 v{a}, v{b}, 1, v{a}
    v_mul_u32_u24 v{a}, 144, v{a}
    v_bfe_u32 v{b}, v{n_}, 2, 1
    v_lshl_add_u32 v{a}, v{b}, 4, v{a}
    v_lshl_add_u32 v{a}, v{d_}, 3, v{a}
    v_and_b32 v{b}, 1, v{n_}
    v_lshl_add_u32 v{a}, v{b}, 2, v{a}
    s_add_u32 s{t0}, s{t0}, 2304
    v_add_u32 v{v_w1v}, s{t0}, v{a}
    v_lshrrev_b32 v{a}, 3, v{v_lane}
    v_lshl_add_u32 v{a}, v{a}, 4, v{v_l16}
    s_mul_i32 s{t0}, s{s_wave}, 1152
    v_add_u32 v{v_r1}, s{t0}, v{a}
    v_lshlrev_b32 v{a}, 8, v{g_}
    v_lshl_add_u32 v{a}, v{n_}, 3, v{a}
    s_cmp_eq_u32 s{s_wave}, 2
    s_cbranch_scc1 {L('d1v')}
    v_mov_b32 v{v_d1}, v{a}
    s_cmp_eq_u32 s{s_wave}, 3
    s_cbranch_scc0 {L('d1v')}
    v_lshrrev_b32 v{a}, 3, v{v_lane}
    v_and_b32 v{b}, 7, v{v_lane}
    v_lshlrev_b32 v{v_d1}, 8, v{a}
    v_lshl_add_u32 v{v_d1}, v{b}, 3, v{v_d1}
    v_lshrrev_b32 v{v_r1}, 2, v{b}
    v_lshlrev_b32 v{v_r1}, 2, v{v_r1}
    v_lshrrev_b32 v{v_offC}, 2, v{a}
    v_add_u32 v{v_r1}, v{v_r1}, v{v_offC}
    v_mul_u32_u24 v{v_r1}, 144, v{v_r1}
    v_and_b32 v{a}, 3, v{a}
    v_lshl_add_u32 v{v_r1}, v{a}, 5, v{v_r1}
    v_and_b32 v{b}, 3, v{b}
    v_lshl_add_u32 v{v_r1}, v{b}, 3, v{v_r1}
    v_add_u32 v{v_r1}, 2304, v{v_r1}
    {L('d1v')}:
    v_lshrrev_b32 v{a}, 3, v{n_}
    v_lshl_add_u32 v{a}, v{a}, 1, v{c}
    v_mul_u32_u24 v{a}, 160, v{a}
    v_mul_u32_u24 v{b}, 640, v{d_}
    v_add_u32 v{a}, v{a}, v{b}
    v_and_b32 v{b}, 7, v{n_}
    v_lshl_add_u32 v{a}, v{b}, 2, v{a}
    s_mul_i32 s{t0}, s{s_wave}, 2560
    s_add_u32 s{t0}, s{t0}, 14336
    v_add_u32 v{v_w2}, s{t0}, v{a}
    v_lshlrev_b32 v{a}, 3, v{v_lane}
    v_lshl_add_u32 v{a}, v{g_}, 5, v{a}
    s_mul_i32 s{t0}, s{s_wave}, 640
    s_add_u32 s{t0}, s{t0}, 14336
    v_add_u32 v{v_r2}, s{t0}, v{a}
    """)
    for r in range(8):
        if r in (0, 2, 4, 6): A(f"v_mov_b32 v{vOne+r}, 0x3f803f80")
        else: A(f"v_mov_b32 v{vOne+r}, 0")
    A(f"s_mov_b64 exec, s[{s_lo}:{s_lo+1}]")
    A(f"v_mov_b32 v{vOne+5}, 0x3f803f80"); A(f"v_mov_b32 v{vOne+7}, 0x3f803f80")
    A("s_mov_b64 exec, -1")
    for nt in range(4):
        A(f"v_mov_b32 v{vUb+8*nt+1}, 0"); A(f"v_mov_b32 v{vUb+8*nt+3}, 0")
    A(f"""
    s_lshl_b32 s{s_memsrc}, s{s_Q}, 14
    s_lshl_b32 s{t0}, s{s_wave}, 12
    s_add_u32 s{s_memsrc}, s{s_memsrc}, s{t0}
    s_add_u32 s{s_memsrc}, s{s_memsrc}, {WS_CH + CH_MEM}
    s_mul_i32 s{t1}, s{s_Q}, {4*HB}
    s_add_u32 s{t1}, s{t1}, {WS_CH + CH_QKV}
    s_mul_i32 s{t0}, s{s_wave}, {HB}
    s_add_u32 s{s_qkvsrc}, s{t1}, s{t0}
    s_lshr_b32 s{t0}, s{s_j}, 2
    s_mul_i32 s{t0}, s{t0}, {HB}
    s_add_u32 s{t1}, s{t1}, s{t0}
    s_and_b32 s{t0}, s{s_j}, 3
    s_lshl_b32 s{t2}, s{t0}, 10
    s_add_u32 s{s_qkvdst}, s{t1}, s{t2}
    s_lshl_b32 s{t2}, s{s_wave}, 7
    s_add_u32 s{s_qkvdst}, s{s_qkvdst}, s{t2}
    s_lshl_b32 s{t2}, s{t0}, 9
    s_add_u32 s{t2}, s{t2}, s{t1}
    s_add_u32 s{t2}, s{t2}, 4096
    s_cmp_eq_u32 s{s_wave}, 2
    s_cselect_b32 s{s_qkvdst}, s{t2}, s{s_qkvdst}
    s_lshl_b32 s{t2}, s{t0}, 6
    s_add_u32 s{t2}, s{t2}, s{t1}
    s_add_u32 s{t2}, s{t2}, 6144
    s_cmp_eq_u32 s{s_wave}, 3
    s_cselect_b32 s{s_qkvdst}, s{t2}, s{s_qkvdst}
    s_lshl_b32 s{t0}, s{s_j}, 13
    s_add_u32 s{t0}, s{t0}, {WS_CH + CH_PART}
    s_lshl_b32 s{t1}, s{s_wave}, 8
    s_add_u32 s{s_partsrc}, s{t0}, s{t1}
    s_add_u32 s{s_partsrc2}, s{s_partsrc}, 4096
    s_lshl_b32 s{t2}, s{s_Q}, 10
    s_add_u32 s{s_partdst}, s{s_partsrc}, s{t2}
    s_lshl_b32 s{s_memdst}, s{s_Q}, 14
    s_lshl_b32 s{t0}, s{s_wave}, 8
    s_add_u32 s{s_memdst}, s{s_memdst}, s{t0}
    s_lshl_b32 s{t0}, s{s_j}, 10
    s_add_u32 s{s_memdst}, s{s_memdst}, s{t0}
    s_add_u32 s{s_memdst}, s{s_memdst}, {WS_CH + CH_MEM + CH_STEP}
    s_lshl_b32 s{t0}, s{s_Q}, 2
    s_add_u32 s{t0}, s{t0}, s{s_wave}
    s_lshl_b32 s{t0}, s{t0}, 13
    s_add_u32 s{s_k}, s{t0}, {WS_K}
    s_add_u32 s{s_v}, s{t0}, {WS_VT}
    s_lshl_b32 s{s_touch}, s{s_Q}, 15
    s_lshl_b32 s{t0}, s{s_j}, 11
    s_add_u32 s{s_touch}, s{s_touch}, s{t0}
    s_and_b32 s{t0}, s{s_wave}, 1
    s_lshl_b32 s{t0}, s{t0}, 10
    s_add_u32 s{s_touch}, s{s_touch}, s{t0}
    s_mov_b32 s{t0}, {WS_K + 2*262144}
    s_mov_b32 s{t1}, {WS_VT + 2*262144}
    s_cmp_ge_u32 s{s_wave}, 2
    s_cselect_b32 s{t0}, s{t1}, s{t0}
    s_add_u32 s{s_touch}, s{s_touch}, s{t0}
    s_mul_i32 s{t0}, s{s_role}, 2048
    s_lshl_b32 s{t1}, s{s_wave}, 10
    s_add_u32 s{t0}, s{t0}, s{t1}
    s_add_u32 s{t0}, s{t0}, {WS_CH + CH_QKV + CH_STEP}
    s_lshl_b32 s{t1}, s{s_role}, 10
    s_add_u32 s{t1}, s{t1}, {WS_CH + CH_MEM + 2*CH_STEP}
    s_cmp_ge_u32 s{s_wave}, 2
    s_cselect_b32 s{s_touch2}, s{t1}, s{t0}
    s_mov_b32 s{s_lastq}, {WS_DUMMY}
    s_mov_b32 s{s_lastm}, {WS_DUMMY}
    """)
    for r in range(3): A(f"v_mov_b32 v{vPub+r}, 0")
    LW = 24576
    vq, vo, vtr1, vtr2 = vA, vA + 1, vA + 2, vA + 4
    A(f"""
    v_lshrrev_b32 v{a}, 2, v{v_lane}
    v_lshlrev_b32 v{a}, 13, v{a}
    v_and_b32 v{b}, 3, v{v_lane}
    v_lshl_add_u32 v{vq}, v{b}, 4, v{a}
    v_lshrrev_b32 v{a}, 3, v{v_lane}
    v_lshlrev_b32 v{a}, 11, v{a}
    v_and_b32 v{b}, 7, v{v_lane}
    v_lshl_add_u32 v{vo}, v{b}, 4, v{a}
    s_lshl_b32 s68, s{s_wave}, 15
    s_add_u32 s68, s68, {LW}
    s_lshl_b32 s69, s{s_wave}, 21
    s_lshl_b32 s{t0}, s{s_role}, 6
    s_add_u32 s69, s69, s{t0}
    s_lshl_b32 s70, s{s_Q}, 2
    s_add_u32 s70, s70, s{s_wave}
    s_lshl_b32 s70, s70, 18
    s_lshl_b32 s{t0}, s{s_j}, 7
    s_add_u32 s70, s70, s{t0}
    v_lshrrev_b32 v{d_}, 2, v{n_}            ; r
    v_and_b32 v{b}, 1, v{d_}
    v_lshrrev_b32 v{a}, 1, v{d_}
    v_lshl_add_u32 v{c}, v{a}, 3, v{b}
    v_lshrrev_b32 v{vtr1+1}, 1, v{g_}
    v_lshl_add_u32 v{c}, v{vtr1+1}, 4, v{c}
    v_and_b32 v{vtr2+1}, 1, v{g_}
    v_lshl_add_u32 v{c}, v{vtr2+1}, 2, v{c}
    v_lshlrev_b32 v{c}, 6, v{c}
    v_and_b32 v{vtr1}, 3, v{n_}
    v_lshlrev_b32 v{vtr1}, 3, v{vtr1}
    v_add_u32 v{c}, v{c}, v{vtr1}
    v_mov_b32 v{vtr2}, v{vtr1}
    v_add_u32 v{vtr1}, s68, v{c}
    v_lshl_add_u32 v{c}, v{g_}, 2, v{d_}
    v_lshlrev_b32 v{c}, 7, v{c}
    v_add_u32 v{c}, v{c}, v{vtr2}
    v_add_u32 v{vtr2}, s68, v{c}
    """)
    ptrs = [60, 62, 64, 66]
    wnt_all = wnt
    def wdma(m):
        wnt = wnt_all if (m in wntm) else ''
        make_srd(A, SRD_W, ptrs[m], 8 << 20)
        reg = (word.index(m) & 1) * 16384
        for i in range(16):
            A(f"s_add_u32 m0, s68, {reg + i*1024}")
            if m < 3:
                A(f"s_add_u32 s{t0}, s69, {i*16*8192}")
                A(f"buffer_load_dwordx4 v{vq}, s[{SRD_W}:{SRD_W+3}], s{t0} offen{wnt} lds")
            else:
                A(f"s_add_u32 s{t0}, s70, {i*8*2048}")
                A(f"buffer_load_dwordx4 v{vo}, s[{SRD_W}:{SRD_W+3}], s{t0} offen{wnt} lds")
    def aW1(tile, ks): return (tile * 4 + ks) * 8
    def aW2(nt, ks): return 192 + (nt * 2 + ks) * 8
    def wtr(m):
        reg = (word.index(m) & 1) * 16384
        cnt = 0
        for t in range(2 if m < 3 else 4):
            for ks in range(4 if m < 3 else 2):
                for h in range(2):
                    for u in range(2):
                        if m < 3:
                            d = aW1(2 * m + t, ks) + 4 * h + 2 * u
                            off = reg + (64 * ks + 32 * h + 2 * u) * 64 + t * 32
                            A(f"ds_read_b64_tr_b16 a[{d}:{d+1}], v{vtr1} offset:{off}")
                        else:
                            d = aW2(t, ks) + 4 * h + 2 * u
                            off = reg + (64 * ks + 32 * h + 16 * u) * 128 + t * 32
                            A(f"ds_read_b64_tr_b16 a[{d}:{d+1}], v{vtr2} offset:{off}")
                        cnt += 1
                        if cnt % 8 == 0: A("s_waitcnt lgkmcnt(0)")
    def kvload(base, sreg):
        ops = []
        for i in range(8):
            vo_ = v_l16 if i < 4 else v_l16b
            ops.append(f"buffer_load_dwordx4 v[{base+4*i}:{base+4*i+3}], v{vo_}, {WS}, s{sreg} offen offset:{(i%4)*1024} sc1")
        return ops
    def maxops(regs, tmp):
        rest = list(regs); ops = []
        ops.append(f"v_max3_u32 v{tmp}, v{rest[0]}, v{rest[1]}, v{rest[2]}"); rest = rest[3:]
        while len(rest) >= 2:
            ops.append(f"v_max3_u32 v{tmp}, v{tmp}, v{rest[0]}, v{rest[1]}"); rest = rest[2:]
        if rest: ops.append(f"v_max_u32 v{tmp}, v{tmp}, v{rest[0]}")
        return ops
    def checkops(regs, lab, tmp):
        return maxops(regs, tmp) + [f"v_cmp_eq_u32 vcc, -1, v{tmp}", f"s_cbranch_vccnz {lab}"]
    def hook(tag):
        A(f"s_and_b32 s{t0}, s{s_pc}, 63")
        A(f"s_cmp_eq_u32 s{t0}, 0")
        A(f"s_cbranch_scc0 {L(tag+'_h')}")
        A("buffer_wbl2 sc1")
        A.label(L(tag + '_h'))
    def stamp_t(k):
        if trace:
            A("s_memrealtime s[72:73]")
            A(f"s_and_b32 s74, s{s_step}, 7"); A("s_lshl_b32 s74, s74, 3"); A(f"s_add_u32 s74, s74, {k}")
            A("s_mov_b32 m0, s74")
            lab = A.newlabel("tr")
            A(f"s_lshr_b32 s74, s{s_step}, 3"); A("s_cmp_eq_u32 s74, 4")
            A("s_waitcnt lgkmcnt(0)")
            A(f"s_cbranch_scc0 {lab}")
            A("v_writelane_b32 v255, s72, m0")
            A.label(lab)
        elif stamp and rounds and k in (0, 2, 4):
            A(f"s_sub_u32 s74, {POLLMAX}, s{s_pc}"); A(f"s_add_u32 s{80+k}, s{80+k}, s74")
        elif stamp and not rounds:
            A("s_memtime s[72:73]"); A("s_waitcnt lgkmcnt(0)")
            A("s_sub_u32 s74, s72, s76"); A(f"s_add_u32 s{80+k}, s{80+k}, s74"); A("s_mov_b32 s76, s72")
    def utok_ops():
        mf = []
        for kk in range(4):
            for T in range(2):
                for nt in range(4):
                    d = vU + (T * 4 + nt) * 4; w = aW2(nt, kk >> 1) + 4 * (kk & 1); va = vV + (T * 4 + kk) * 4
                    C = "0" if kk == 0 else f"v[{d}:{d+3}]"
                    mf.append(f"v_mfma_f32_16x16x32_bf16 v[{d}:{d+3}], v[{va}:{va+3}], a[{w}:{w+3}], {C}")
        cv = []
        for T in range(2):
            for nt in range(4):
                d = vU + (T * 4 + nt) * 4
                cv.append(f"v_cvt_pk_bf16_f32 v{vUb+8*nt+4*T}, v{d}, v{d+1}")
                cv.append(f"v_cvt_pk_bf16_f32 v{vUb+8*nt+4*T+2}, v{d+2}, v{d+3}")
        return mf, cv
    def halves(d0, d1):
        return [f"v_permlane32_swap_b32 v{d0+r}, v{d1+r}" for r in range(4)] + [f"v_add_f32 v{d0+r}, v{d0+r}, v{d1+r}" for r in range(4)]
    if init2:
        A("s_cmp_eq_u32 s38, 0")
        A(f"s_cbranch_scc1 {L('cs1')}")
        A("s_waitcnt vmcnt(0)")
        A("s_barrier")
        A(f"s_cmp_lg_u32 s{s_wave}, 0")
        A(f"s_cselect_b32 s38, 0, 1")
        A(f"s_cbranch_scc1 {L('cs1')}")
        A("s_mov_b64 exec, 1")
        early_signal(100, 'cs')
        A("v_mov_b32 v100, 160"); A("v_mov_b32 v101, 1"); A("v_mov_b32 v102, 64"); A("v_mov_b32 v103, 1")
        A(f"buffer_atomic_add v101, v100, {DBG}, 0 offen sc0")
        A("s_mov_b64 exec, -1")
        A.label(L('cs1'))
    wdma(word[0]); wdma(word[1])
    if init2:
        A("s_cmp_eq_u32 s38, 0")
        A(f"s_cbranch_scc1 {L('cs2')}")
        A("s_waitcnt vmcnt(32)")
        A(f"v_readfirstlane_b32 s{t0}, v101")
        A(f"s_cmp_eq_u32 s{t0}, 255")
        A(f"s_cbranch_scc0 {L('cs2')}")
        A("s_mov_b64 exec, 1")
        last_actions(100)
        A("s_mov_b64 exec, -1")
        A("s_waitcnt vmcnt(0)")
        A.label(L('cs2'))
    if not wreg:
        A("s_waitcnt vmcnt(16)"); wtr(word[0]); wdma(word[2])
        A("s_waitcnt vmcnt(16)"); wtr(word[1]); wdma(word[3])
        A("s_waitcnt vmcnt(16)"); wtr(word[2])
        A("s_waitcnt vmcnt(0)"); wtr(word[3])
    else:
        RB = 104
        for m in (2, 3):
            make_srd(A, SRD_W, ptrs[m], 8 << 20)
            for i in range(16):
                r = RB + (m - 2) * 64 + 4 * i
                if m < 3:
                    A(f"s_add_u32 s{t0}, s69, {i*16*8192}")
                    A(f"buffer_load_dwordx4 v[{r}:{r+3}], v{vq}, s[{SRD_W}:{SRD_W+3}], s{t0} offen")
                else:
                    A(f"s_add_u32 s{t0}, s70, {i*8*2048}")
                    A(f"buffer_load_dwordx4 v[{r}:{r+3}], v{vo}, s[{SRD_W}:{SRD_W+3}], s{t0} offen")
        A(f"v_add_u32 v{vA+6}, s68, v{v_l16}")
        A("s_waitcnt vmcnt(48)"); wtr(0)
        A("s_waitcnt vmcnt(32)"); wtr(1)
        for m in (2, 3):
            A(f"s_waitcnt vmcnt({16 if m == 2 else 0})")
            for i in range(16):
                r = RB + (m - 2) * 64 + 4 * i
                A(f"ds_write_b128 v{vA+6}, v[{r}:{r+3}] offset:{(m & 1)*16384 + i*1024}")
                if i % 8 == 7: A("s_waitcnt lgkmcnt(0)")
            wtr(m)
        for nt in range(4):
            A(f"v_mov_b32 v{vUb+8*nt+1}, 0"); A(f"v_mov_b32 v{vUb+8*nt+3}, 0")
    def cntwait(tag, sidx, val):
        A(f"s_mov_b32 s{s_pc}, {POLLMAX}")
        A.label(L(tag))
        A(f"buffer_load_dword v{vCnt}, v{v_zero}, {WS}, s{sidx} offen sc1")
        A(f"s_sub_u32 s{s_pc}, s{s_pc}, 1")
        A(f"s_cbranch_scc1 {L('bail')}")
        A("s_waitcnt vmcnt(0)")
        A(f"v_readfirstlane_b32 s{t0}, v{vCnt}")
        A(f"s_cmp_ge_u32 s{t0}, {val}")
        A(f"s_cbranch_scc1 {L(tag+'_ok')}")
        A("s_sleep 2")
        A(f"s_branch {L(tag)}")
        A.label(L(tag + '_ok'))
    A(f"v_mov_b32 v{v_zero}, 0")
    if stamp:
        A("s_memrealtime s[72:73]"); A("s_waitcnt lgkmcnt(0)"); A("s_mov_b32 s75, s72")
    A("s_mov_b32 s89, 64")
    A(f"s_mov_b32 s{s_cnt}, {WS_CNT + C_KVG*128}")
    if init or init2: flagwait('cw', True)
    if engine: cntwait('kv0', s_cnt, kv0n)
    for o in kvload(vK, s_k): A(o)
    for o in kvload(vV, s_v): A(o)
    A("s_waitcnt vmcnt(0)")
    mf, cv = utok_ops()
    for o in mf: A(o)
    A("s_nop 7")
    for o in cv: A(o)
    A(f"s_add_u32 s{s_v}, s{s_v}, 262144")
    for r in range(24): A(f"v_mov_b32 v{acc1+r}, 0")
    A(f"s_mov_b32 s{s_step}, 0")
    A("s_mov_b32 s39, 8")
    for p in range(4): A(f"v_add_u32 v{v_r3+p}, {p*3584}, v{v_r1}")
    if stamp:
        for k in range(8): A(f"s_mov_b32 s{80+k}, 0")
        A("s_memtime s[76:77]"); A("s_memrealtime s[78:79]"); A("s_waitcnt lgkmcnt(0)")
    A("s_barrier")
    for ks in range(4): A(f"buffer_load_dwordx4 v[{vA+4*ks}:{vA+4*ks+3}], v{v_l16}, {WS}, s{s_memsrc} offen offset:{ks*1024} sc1")
    A(f"s_mov_b32 s{s_pc}, {POLLMAX}")
    A(f"s_branch {L('loop')}")
    def pkadd(d, a, b): return f"v_pk_add_f32 v[{d}:{d+1}], v[{a}:{a+1}], v[{b}:{b+1}]"
    def pkmul(d, a, b): return f"v_pk_mul_f32 v[{d}:{d+1}], v[{a}:{a+1}], v[{b}:{b+1}]"
    def halves(d0, d1):
        return [f"v_permlane32_swap_b32 v{d0+r}, v{d1+r}" for r in range(4)] + [pkadd(d0, d0, d1), pkadd(d0 + 2, d0 + 2, d1 + 2)]
    def cload(ks): return f"buffer_load_dwordx4 v[{vA+4*ks}:{vA+4*ks+3}], v{v_l16}, {WS}, s{s_memsrc} offen offset:{ks*1024} sc1"
    def aload(ks): return f"buffer_load_dwordx4 v[{vA+4*ks}:{vA+4*ks+3}], v{v_l16}, {WS}, s{s_qkvsrc} offen offset:{ks*1024} sc1"
    def vmload(u): return f"buffer_load_dwordx4 v[{vVM+4*u}:{vVM+4*u+3}], v{v_l16b}, {WS}, s{s_qkvsrc} offen offset:{u*1024} sc1"
    def tmo(tag):
        A(f"s_sub_u32 s{s_pc}, s{s_pc}, 1")
        A(f"s_cbranch_scc1 {L('bail')}")
        hook(tag)
    def chk4(base, lab):
        return checkops(range(base, base + 4), lab, v_t)
    A.label(L('redo1'))
    A("s_nop 15")
    for r in range(24): A(f"v_mov_b32 v{acc1+r}, 0")
    A.label(L('pc'))
    for ks in range(4): A(cload(ks))
    tmo('pc')
    A.label(L('loop'))
    A("s_waitcnt vmcnt(0)")
    for o in checkops([vA + 4 * i + 3 for i in range(4)], L('pc'), v_t): A(o)
    stamp_t(0)
    if clk:
        A("s_memtime s[72:73]"); A("s_memrealtime s[74:75]"); A(f"s_mov_b32 m0, s{s_step}"); A("s_waitcnt lgkmcnt(0)")
        A("v_writelane_b32 v255, s72, m0"); A("v_writelane_b32 v1, s74, m0")
    mf = []
    for tile in range(6):
        for ks in range(4):
            d = acc1 + 4 * tile; w = aW1(tile, ks)
            mf.append(f"v_smfmac_f32_16x16x64_bf16 v[{d}:{d+3}], v[{vA+4*ks}:{vA+4*ks+3}], a[{w}:{w+7}], v{v_idx}")
    chk = checkops([vA + i for i in range(16) if i % 4 != 3], L('redo1'), v_t)
    vl = [] if (nokv or vpos != 0) else kvload(vV, s_v)
    interleave(A, mf[:16], chk + vl, per=1)
    post = []
    for which in range(2):
        d0 = acc1 + 8 * which
        post += halves(d0, d0 + 4) + [f"ds_write_b32 v{v_w1q}, v{d0+r} offset:{which*1152 + r*32}" for r in range(4)]
    interleave(A, mf[16:20], post[:10], per=3)
    interleave(A, mf[20:], post[10:], per=3)
    A("s_nop 6")
    for o in halves(acc1 + 16, acc1 + 20): A(o)
    for r in range(4): A(f"ds_write_b32 v{v_w1v}, v{acc1+16+r} offset:{r*32}")
    for r in range(8): A(f"v_mov_b32 v{acc2+r}, 0")
    A("s_waitcnt lgkmcnt(0)")
    if trace: stamp_t(7)
    A("s_barrier")
    A(f"s_cmp_eq_u32 s{s_wave}, 3")
    A(f"s_cbranch_scc0 {L('s1a')}")
    for p in range(4):
        A(f"ds_read2_b64 v[{vU+4*p}:{vU+4*p+3}], v{v_r3+p} offset0:0 offset1:36")
    A(f"s_branch {L('s1b')}")
    A.label(L('s1a'))
    for p in range(4):
        A(f"ds_read_b128 v[{vU+4*p}:{vU+4*p+3}], v{v_r1} offset:{p*3584}")
    A.label(L('s1b'))
    for r in range(8, 20): A(f"v_mov_b32 v{acc2+r}, 0")
    A("s_waitcnt lgkmcnt(2)")
    A(pkadd(vU, vU, vU + 4)); A(pkadd(vU + 2, vU + 2, vU + 6))
    A("s_waitcnt lgkmcnt(0)")
    A(pkadd(vU + 8, vU + 8, vU + 12)); A(pkadd(vU + 10, vU + 10, vU + 14))
    A(pkadd(vU, vU, vU + 8)); A(pkadd(vU + 2, vU + 2, vU + 10))
    A(f"v_cvt_pk_bf16_f32 v{vPub}, v{vU}, v{vU+1}")
    A(f"v_cvt_pk_bf16_f32 v{vPub+1}, v{vU+2}, v{vU+3}")
    A(f"v_min_u32 v{vPub}, -2, v{vPub}")
    A(f"v_min_u32 v{vPub+1}, -2, v{vPub+1}")
    A(f"buffer_store_dwordx2 v[{vPub}:{vPub+1}], v{v_d1}, {WS}, s{s_qkvdst} offen")
    A(f"s_mov_b32 s{s_lastq}, s{s_qkvdst}")
    A(f"s_cmp_eq_u32 s{s_step}, {nsteps-1}")
    A(f"s_cbranch_scc1 {L('fin')}")
    stamp_t(1)
    if dlyA: A(f"s_sleep {dlyA}")
    for ks in range(4): A(aload(ks))
    A(vmload(0)); A(vmload(1))
    A(f"s_mov_b32 s{s_pc}, {POLLMAX}")
    for r in range(16): A(f"v_mov_b32 v{vUm+r}, 0")
    A(f"s_branch {L('pa1')}")
    A.label(L('pa'))
    for ks in range(4): A(aload(ks))
    A(vmload(0)); A(vmload(1))
    tmo('pa')
    A.label(L('pa1'))
    A("s_waitcnt vmcnt(0)")
    for o in checkops([vA + 4 * i + 3 for i in range(6)], L('pa'), v_t): A(o)
    stamp_t(2)
    mf = []
    for ks in range(4):
        R = f"v[{vA+4*ks}:{vA+4*ks+3}]"
        for t in range(3):
            d = vS + 4 * t
            Aop = R if t == 2 else f"v[{vK+(t*4+ks)*4}:{vK+(t*4+ks)*4+3}]"
            C = "0" if ks == 0 else f"v[{d}:{d+3}]"
            mf.append(f"v_mfma_f32_16x16x32_bf16 v[{d}:{d+3}], {Aop}, {R}, {C}")
    chk = checkops([vA + i for i in range(24) if i % 4 != 3], L('pa'), v_t)
    interleave(A, mf, chk, per=1)
    um = []
    for nt in range(4):
        for ks in range(2):
            d = vUm + 4 * nt; w = aW2(nt, ks)
            um.append(f"v_smfmac_f32_16x16x64_bf16 v[{d}:{d+3}], v[{vVM+4*ks}:{vVM+4*ks+3}], a[{w}:{w+7}], v{v_idx}")
    mx, tt = v_t, v_t + 2
    A(um[0]); A("s_nop 6")
    sm1 = [f"v_max3_f32 v{mx}, v{vS}, v{vS+1}, v{vS+2}", f"v_max3_f32 v{mx}, v{mx}, v{vS+3}, v{vS+4}",
           f"v_max3_f32 v{mx}, v{mx}, v{vS+5}, v{vS+6}", f"v_max_f32 v{mx}, v{mx}, v{vS+7}", um[1],
           f"s_mov_b64 exec, s[{s_hi}:{s_hi+1}]", f"v_max3_f32 v{mx}, v{mx}, v{vS+8}, v{vS+9}", f"v_max3_f32 v{mx}, v{mx}, v{vS+10}, v{vS+11}",
           "s_mov_b64 exec, -1", f"v_mov_b32 v{tt}, v{mx}"]
    for o in sm1: A(o)
    A(um[2])
    A("s_nop 0")
    A(f"v_permlane32_swap_b32 v{mx}, v{tt}")
    A(f"v_max_f32 v{mx}, v{mx}, v{tt}")
    A(f"v_mov_b32 v{tt}, v{mx}")
    A(um[3])
    A("s_nop 0")
    A(f"v_permlane16_swap_b32 v{mx}, v{tt}")
    A(f"v_max_f32 v{mx}, v{mx}, v{tt}")
    ex = []
    for i in (8, 10, 0, 2, 4, 6):
        ex.append(f"v_pk_add_f32 v[{vS+i}:{vS+i+1}], v[{vS+i}:{vS+i+1}], v[{mx}:{mx+1}] op_sel_hi:[1,0] neg_lo:[0,1] neg_hi:[0,1]")
    for i in (8, 10, 0, 2, 4, 6):
        ex.append(f"v_pk_mul_f32 v[{vS+i}:{vS+i+1}], v[{vS+i}:{vS+i+1}], s[{s_c}:{s_c+1}]")
    for i in list(range(8, 12)) + list(range(8)): ex.append(f"v_exp_f32 v{vS+i}, v{vS+i}")
    k = 0
    vl2 = kvload(vV, s_v) if vpos == 1 else []
    for i, o in enumerate(ex):
        A(o)
        if i % 5 == 4 and k < 4: A(um[4 + k]); k += 1
        if i % 2 == 1 and vl2: A(vl2.pop(0))
    Pb, X = vP + 4, vP + 6
    A(f"v_cvt_pk_bf16_f32 v{Pb}, v{vS+8}, v{vS+9}")
    A(f"v_cvt_pk_bf16_f32 v{Pb+1}, v{vS+10}, v{vS+11}")
    A(f"s_mov_b64 exec, s[{s_lo}:{s_lo+1}]")
    A(f"v_mov_b32 v{Pb}, 0"); A(f"v_mov_b32 v{Pb+1}, 0")
    A("s_mov_b64 exec, -1")
    A(f"v_mov_b32 v{X}, v{Pb}"); A(f"v_mov_b32 v{X+1}, v{Pb+1}")
    for i in range(4): A(f"v_cvt_pk_bf16_f32 v{vP+i}, v{vS+2*i}, v{vS+2*i+1}")
    A(f"v_permlane16_swap_b32 v{Pb}, v{X}")
    A(f"v_permlane16_swap_b32 v{Pb+1}, v{X+1}")
    for nt in range(2):
        d = vUm + 4 * nt
        A(f"v_cvt_pk_bf16_f32 v{vUb+8*nt+5}, v{d}, v{d+1}"); A(f"v_cvt_pk_bf16_f32 v{vUb+8*nt+7}, v{d+2}, v{d+3}")
    for i, src in enumerate((Pb, Pb + 1, X, X + 1)):
        A(f"v_mov_b32_dpp v{vP+i}, v{src} row_shr:8 row_mask:0xf bank_mask:0xc")
    d = vUm + 8
    A(f"v_cvt_pk_bf16_f32 v{vUb+21}, v{d}, v{d+1}"); A(f"v_cvt_pk_bf16_f32 v{vUb+23}, v{d+2}, v{d+3}")
    PA = f"v[{vP}:{vP+3}]"
    lr = acc2 + 16
    def fin_mf(nt):
        d = acc2 + 4 * nt
        return f"v_smfmac_f32_16x16x64_bf16 v[{d}:{d+3}], {PA}, v[{vUb+8*nt}:{vUb+8*nt+7}], v{v_idx}"
    A(f"v_smfmac_f32_16x16x64_bf16 v[{lr}:{lr+3}], {PA}, v[{vOne}:{vOne+7}], v{v_idx}")
    d = vUm + 12
    A(f"v_cvt_pk_bf16_f32 v{vUb+29}, v{d}, v{d+1}"); A(f"v_cvt_pk_bf16_f32 v{vUb+31}, v{d+2}, v{d+3}")
    for nt in range(4): A(fin_mf(nt))
    A("s_nop 1")
    lt = vS
    for r in range(4): A(f"v_mov_b32 v{lt+r}, v{lr+r}")
    h0 = halves(acc2, acc2 + 4)
    A(h0[0])
    for r in range(4): A(f"v_permlane32_swap_b32 v{lr+r}, v{lt+r}")
    A(pkadd(lr, lr, lt)); A(pkadd(lr + 2, lr + 2, lt + 2))
    for r in range(4): A(f"v_rcp_f32 v{lr+r}, v{lr+r}")
    for o in h0[1:]: A(o)
    for st in range(2):
        d0 = acc2 + 8 * st
        if st == 1:
            for o in halves(d0, d0 + 4): A(o)
        A(pkmul(d0, d0, lr)); A(pkmul(d0 + 2, d0 + 2, lr + 2))
        for r in range(4): A(f"ds_write_b32 v{v_w2}, v{d0+r} offset:{r*32+st*1280}")
    A(f"s_add_u32 s{s_k}, s{s_k}, 262144")
    A(f"s_add_u32 s{s_v}, s{s_v}, 262144")
    A("s_waitcnt lgkmcnt(0)")
    A("s_barrier")
    for p in range(4):
        A(f"ds_read_b64 v[{vB+2*p}:{vB+2*p+1}], v{v_r2} offset:{p*2560}")
    A("s_mov_b32 s96, 0x11111111"); A("s_mov_b32 s97, 0x11111111")
    A("s_waitcnt lgkmcnt(2)")
    A(pkadd(vB, vB, vB + 2))
    A("s_waitcnt lgkmcnt(0)")
    A(pkadd(vB + 4, vB + 4, vB + 6))
    A(pkadd(vB, vB, vB + 4))
    A(f"v_cvt_pk_bf16_f32 v{vB+8}, v{vB}, v{vB+1}")
    A(f"v_min_u32 v{vB+8}, -2, v{vB+8}")
    A("s_nop 1")
    A(f"v_mov_b32_dpp v{vB+9}, v{vB+8} quad_perm:[1,1,1,1] row_mask:0xf bank_mask:0xf")
    A(f"v_mov_b32_dpp v{vB+10}, v{vB+8} quad_perm:[2,2,2,2] row_mask:0xf bank_mask:0xf")
    A(f"v_mov_b32_dpp v{vB+11}, v{vB+8} quad_perm:[3,3,3,3] row_mask:0xf bank_mask:0xf")
    A("s_mov_b64 exec, s[96:97]")
    A(f"buffer_store_dwordx4 v[{vB+8}:{vB+11}], v{v_l4}, {WS}, s{s_partdst} offen sc1")
    A("s_mov_b64 exec, -1")
    stamp_t(3)
    mf, cv = utok_ops()
    side = []
    if vpos == 1: A("s_waitcnt vmcnt(1)")
    if engine:
        A(f"v_readfirstlane_b32 s{t0}, v{vCnt}")
        A(f"s_cmp_ge_u32 s{t0}, s89")
        A(f"s_cbranch_scc1 {L('kvn_ok')}")
        cntwait('kvn', s_cnt, "s89")
        A(f"s_add_u32 s{t0}, s{s_step}, 3")
        A(f"s_min_u32 s{t0}, s{t0}, 63")
        A(f"s_lshr_b32 s{t1}, s{t0}, 3")
        A(f"s_add_u32 s{t1}, s{t1}, {C_KV}")
        A(f"s_lshr_b32 s{t0}, s{t0}, 2")
        A(f"s_add_u32 s{t2}, s{t0}, {C_KVG}")
        A(f"s_cmp_lt_u32 s{t0}, 4")
        A(f"s_cselect_b32 s89, 64, 32")
        A(f"s_cselect_b32 s{t0}, s{t2}, s{t1}")
        A(f"s_lshl_b32 s{t0}, s{t0}, 7")
        A(f"s_add_u32 s{s_cnt}, s{t0}, {WS_CNT}")
        if not pipeB:
            A(f"s_bitcmp1_b32 s{s_wave}, 0")
            A(f"s_cbranch_scc0 {L('nowt')}")
            A(f"v_mov_b32 v{vTch}, v{vPub}"); A(f"v_mov_b32 v{vTch+1}, v{vPub+1}")
            A(f"v_mov_b32_dpp v{vTch+2}, v{vPub} quad_perm:[1,1,3,3] row_mask:0xf bank_mask:0xf")
            A(f"v_mov_b32_dpp v{vTch+3}, v{vPub+1} quad_perm:[1,1,3,3] row_mask:0xf bank_mask:0xf")
            A("s_mov_b32 exec_lo, 0x55555555"); A("s_mov_b32 exec_hi, 0x55555555")
            A(f"buffer_store_dwordx4 v[{vTch}:{vTch+3}], v{v_d1}, {WS}, s{s_lastq} offen sc1")
            A("s_mov_b64 exec, -1")
            A.label(L('nowt'))
    if pipeB:
        setr = [vA, vA + 8, vA + 16]
        def pset(k):
            for q in range(8):
                sb = s_partsrc if q < 4 else s_partsrc2
                A(f"buffer_load_dword v{setr[k]+q}, v{v_l4}, {WS}, s{sb} offen offset:{(q%4)*1024} sc1")
        def merge(k, lab_done):
            for q in range(8): A(f"v_min_u32 v{vB+q}, v{vB+q}, v{setr[k]+q}")
            for o in maxops(range(vB, vB + 8), v_t): A(o)
            A(f"v_cmp_eq_u32 vcc, -1, v{v_t}")
            A(f"s_cbranch_vccz {lab_done}")
        side = [f"v_mov_b32 v{vB+q}, -1" for q in range(8)] + [f"v_mov_b32 v{acc1+r}, 0" for r in range(24)]
        wt = [f"v_mov_b32 v{vP}, v{vPub}", f"v_mov_b32 v{vP+1}, v{vPub+1}",
              f"v_mov_b32_dpp v{vP+2}, v{vPub} quad_perm:[1,1,3,3] row_mask:0xf bank_mask:0xf",
              f"v_mov_b32_dpp v{vP+3}, v{vPub+1} quad_perm:[1,1,3,3] row_mask:0xf bank_mask:0xf"]
        interleave(A, mf[:nW], wt + side, per=2 if nW < 32 else 1)
        if dlyB: A(f"s_sleep {dlyB}")
        stamp_t(6)
        pset(0)
        A("s_mov_b32 exec_lo, 0x55555555"); A("s_mov_b32 exec_hi, 0x55555555")
        A(f"buffer_store_dwordx4 v[{vP}:{vP+3}], v{v_d1}, {WS}, s{s_lastq} offen sc1")
        A("s_mov_b64 exec, -1")
        vm = kvload(vK, s_k) + [f"buffer_load_dwordx4 v[{vTch}:{vTch+3}], v{v_l16}, {WS}, s{s_touch} offen sc1",
                                f"buffer_load_dwordx4 v[{vTch}:{vTch+3}], v{v_l16}, {WS}, s{s_touch2} offen sc1",
                                f"buffer_load_dword v{vCnt}, v{v_zero}, {WS}, s{s_cnt} offen sc1"]
        interleave(A, mf[nW:], vm, per=2)
        pset(1)
        A("s_nop 3")
        for o in cv: A(o)
        for r in (s_memsrc, s_qkvdst, s_qkvsrc, s_partdst, s_touch2): A(f"s_add_u32 s{r}, s{r}, {CH_STEP}")
        A(f"s_add_u32 s{s_touch}, s{s_touch}, 262144"); A(f"s_add_u32 s{s_step}, s{s_step}, 1")
        A(f"s_mov_b32 s{s_pc}, {POLLMAX}")
        pset(2)
        A("s_waitcnt vmcnt(28)")
        merge(0, L('pbd'))
        A.label(L('pb'))
        for k in (0, 1, 2):
            if k == 0: tmo('pb')
            pset(k)
            A("s_waitcnt vmcnt(16)")
            merge((k + 1) % 3, L('pbd'))
        A(f"s_branch {L('pb')}")
        A.label(L('pbd'))
    else:
        if not nokv: side += kvload(vK, s_k)
        if not notouch:
            side.append(f"buffer_load_dwordx4 v[{vTch}:{vTch+3}], v{v_l16}, {WS}, s{s_touch} offen sc1")
            side.append(f"buffer_load_dwordx4 v[{vTch}:{vTch+3}], v{v_l16}, {WS}, s{s_touch2} offen sc1")
        if engine: side.append(f"buffer_load_dword v{vCnt}, v{v_zero}, {WS}, s{s_cnt} offen sc1")
        interleave(A, mf[:nW], side, per=1)
        if dlyB: A(f"s_sleep {dlyB}")
        if aimd:
            A(f"s_lshr_b32 s{t0}, s39, 2")
            A.label(L('bo'))
            A(f"s_sub_u32 s{t0}, s{t0}, 1")
            A(f"s_cbranch_scc1 {L('bo1')}")
            A("s_sleep 1")
            A(f"s_branch {L('bo')}")
            A.label(L('bo1'))
        stamp_t(6)
        def pbloads():
            for q in range(8):
                sb = s_partsrc if q < 4 else s_partsrc2
                A(f"buffer_load_dword v{vB+q}, v{v_l4}, {WS}, s{sb} offen offset:{(q%4)*1024} sc1")
        pbloads()
        A(f"s_mov_b32 s{s_pc}, {POLLMAX}")
        side = [f"v_mov_b32 v{acc1+r}, 0" for r in range(24)]
        side += [f"s_add_u32 s{r}, s{r}, {CH_STEP}" for r in (s_memsrc, s_qkvdst, s_qkvsrc, s_partdst, s_touch2)]
        side += [f"s_add_u32 s{s_touch}, s{s_touch}, 262144", f"s_add_u32 s{s_step}, s{s_step}, 1"]
        interleave(A, mf[nW:], side, per=2)
        A("s_nop 3")
        for o in cv: A(o)
        A(f"s_branch {L('pb1')}")
        A.label(L('pb'))
        pbloads()
        tmo('pb')
        A.label(L('pb1'))
        A("s_waitcnt vmcnt(0)")
        for o in checkops(range(vB, vB + 8), L('pb'), v_t): A(o)
    stamp_t(4)
    e = vS + 8
    x0 = vP
    for q in range(0, 8, 2):
        tgt = x0 + q
        A(f"v_lshlrev_b32 v{tgt}, 16, v{vB+q}"); A(f"v_and_b32 v{tgt+1}, s{s_msk}, v{vB+q}")
        A(f"v_lshlrev_b32 v{e}, 16, v{vB+q+1}"); A(f"v_and_b32 v{e+1}, s{s_msk}, v{vB+q+1}")
        A(pkadd(tgt, tgt, e))
    A(pkadd(x0, x0, x0 + 2)); A(pkadd(x0 + 4, x0 + 4, x0 + 6)); A(pkadd(x0, x0, x0 + 4))
    A(f"v_cvt_pk_bf16_f32 v{vPub+2}, v{x0}, v{x0+1}")
    A(f"v_min_u32 v{vPub+2}, -2, v{vPub+2}")
    A(f"buffer_store_dword v{vPub+2}, v{v_l4}, {WS}, s{s_memdst} offen")
    if aimd:
        up, down, mx_ = aimd
        A(f"s_add_u32 s{t0}, s39, {up}"); A(f"s_min_u32 s{t0}, s{t0}, {mx_}")
        A(f"s_max_u32 s{t1}, s39, {down}"); A(f"s_sub_u32 s{t1}, s{t1}, {down}")
        A(f"s_cmp_eq_u32 s{s_pc}, {POLLMAX}")
        A(f"s_cselect_b32 s39, s{t1}, s{t0}")
    if dlyC: A(f"s_sleep {dlyC}")
    for ks in range(4): A(cload(ks))
    A(f"s_mov_b32 s{s_lastm}, s{s_memdst}")
    for r in (s_partsrc, s_partsrc2, s_memdst): A(f"s_add_u32 s{r}, s{r}, {CH_STEP}")
    A(f"s_mov_b32 s{s_pc}, {POLLMAX}")
    stamp_t(5)
    A(f"s_branch {L('loop')}")
    A.label(L('bail'))
    A(f"""
    v_mov_b32 v{v_t}, 48
    v_mov_b32 v{v_t+1}, 1
    s_mov_b64 exec, 1
    buffer_atomic_add v{v_t+1}, v{v_t}, {DBG}, 0 offen
    s_mov_b64 exec, -1
    """)
    A(f"s_branch {L('end')}")
    A.label(L('fin'))
    if engine:
        A(f"buffer_store_dwordx2 v[{vPub}:{vPub+1}], v{v_d1}, {WS}, s{s_lastq} offen sc1")
        A(f"buffer_store_dword v{vPub+2}, v{v_l4}, {WS}, s{s_lastm} offen sc1")
        A("s_barrier")
        A.label(L('fin2'))
    if stamp:
        A(f"s_load_dwordx2 s[4:5], s[0:1], {KA_WS if engine else 80}")
        A("s_memrealtime s[72:73]")
        A("s_waitcnt lgkmcnt(0)")
        make_srd(A, 24, 4, WS_SIZE if engine else 1 << 20)
        A("s_sub_u32 s87, s72, s78")
        if engine: A("s_mov_b32 s86, s78"); A("s_mov_b32 s85, s75"); A("s_mov_b32 s84, s3")
        A("s_waitcnt vmcnt(0)")
        for k in range(8): A(f"v_mov_b32 v{vA+k}, s{80+k}")
        A(f"""
        s_lshl_b32 s{t0}, s{s_role}, 7
        s_lshl_b32 s{t1}, s{s_wave}, 5
        s_add_u32 s{t0}, s{t0}, s{t1}
        s_lshl_b32 s{t1}, s{t0}, 3
        s_add_u32 s{t1}, s{t1}, {65536 + (WS_DUMMY + 0x80000 if engine else 0)}
        s_add_u32 s{t0}, s{t0}, {WS_DUMMY + 0x80000 if engine else 0}
        buffer_store_dword v255, v{v_l4}, s[24:27], s{t1} offen
        v_mov_b32 v{v_t}, 0
        s_mov_b64 exec, 1
        buffer_store_dwordx4 v[{vA}:{vA+3}], v{v_t}, s[24:27], s{t0} offen
        buffer_store_dwordx4 v[{vA+4}:{vA+7}], v{v_t}, s[24:27], s{t0} offen offset:16
        """)
    if clk:
        A("s_mov_b64 exec, -1")
        A(f"s_lshl_b32 s{t0}, s{s_role}, 2"); A(f"s_add_u32 s{t0}, s{t0}, s{s_wave}"); A(f"s_lshl_b32 s{t0}, s{t0}, 9")
        A(f"s_add_u32 s{t0}, s{t0}, {WS_DUMMY + 0x80000}")
        A(f"buffer_store_dword v255, v{v_l4}, {WS}, s{t0} offen"); A(f"buffer_store_dword v1, v{v_l4}, {WS}, s{t0} offen offset:256")
    if engine:
        A("s_mov_b64 exec, -1")
        A(f"s_add_u32 s14, s{s_role}, 128")
        A("s_mov_b32 s81, 0")
        A(f"s_branch {L('wentry')}")
    A.label(L('end'))
    A("s_endpgm")
    if after: after(A, L)
    return dict(lds=24576 + 4 * 32768)

if __name__ == "__main__":
    A = Asm()
    A.raw('.amdgcn_target "amdgcn-amd-amdhsa--gfx950"')
    hdr = []
    var = [dict(stamp=True, nW=32), dict(stamp=True, nW=24), dict(stamp=True, nW=32, dlyC=3), dict(stamp=True, nW=32, dlyC=5), dict(stamp=True, nW=32, dlyA=2, dlyC=3), dict(stamp=True, nW=32, dlyA=3, dlyC=4),
           dict(stamp=True, nW=32, dlyB=2, dlyC=3), dict(stamp=True, nW=28, dlyA=2, dlyC=4), dict(stamp=True, rounds=True, nW=32, dlyA=2, dlyC=3)]
    for i, d in enumerate(var):
        n = f"chain{i}_kernel"
        r = gen_chain(A, n, **d)
        hdr.append(f"; @launch kernel={n} grid=(256,1,1) block=(256,1,1) lds={r['lds']}")
    for i in range(len(var)):
        kernel_desc(A, f"chain{i}_kernel", 512, 102, accum=256)
    open("chain.s", "w").write("\n".join(hdr) + "\n" + A.text())
```

```python
from asmlib import *
from layout import *
from gemm import Gemm
from k_misc import ln_row, ln_core, f2u, SC

T_END, T_KVS, T_KVL, T_QA, T_WO, T_LN, T_F1, T_F2, T_QO, T_AT, T_WOS, T_LNR, T_F1S, T_F2S, T_FIN = range(15)
S_A, S_B, S_DONE = 10, 11, 98
WS = "s[16:19]"

def depwait(A, L, tag):
    A(f"""
    s_bitcmp1_b32 s8, 31
    s_cbranch_scc0 {L(tag+'_dw2')}
    s_cmp_lg_u32 s13, 0
    s_cbranch_scc1 {L(tag+'_dw1')}
    s_mov_b32 s52, {WS_RDY}
    s_bfe_u32 s53, s8, 0x50018
    s_mov_b32 s54, {1 << 20}
    v_mov_b32 v1, 0
    {L(tag+'_dw0')}:
    buffer_load_dword v3, v1, {WS}, s52 offen sc1
    s_sub_u32 s54, s54, 1
    s_cbranch_scc1 {L('end')}
    s_waitcnt vmcnt(0)
    v_readfirstlane_b32 s55, v3
    s_bitcmp1_b32 s55, s53
    s_cbranch_scc1 {L(tag+'_dw1')}
    s_sleep 2
    s_branch {L(tag+'_dw0')}
    {L(tag+'_dw1')}:
    s_barrier
    {L(tag+'_dw2')}:
    """)

def store_frag(A, g, base, s_seg0head, sc1=True):
    t = g.v_wa[0]; cnt = 0
    sc = " sc1" if sc1 else ""
    for n in range(g.nt):
        for p in range(g.mt // 2):
            d = t + 4 * (cnt % (g.mh * 2))
            a0 = g.fetch(2 * p, n, g.v_xb[0] + 8 * (cnt % 2)); a1 = g.fetch(2 * p + 1, n, g.v_xb[0] + 8 * (cnt % 2) + 4); cnt += 1
            A(f"v_cvt_pk_bf16_f32 v{d}, v{a0}, v{a0+1}"); A(f"v_cvt_pk_bf16_f32 v{d+1}, v{a0+2}, v{a0+3}")
            A(f"v_cvt_pk_bf16_f32 v{d+2}, v{a1}, v{a1+1}"); A(f"v_cvt_pk_bf16_f32 v{d+3}, v{a1+2}, v{a1+3}")
            A(f"buffer_store_dwordx4 v[{d}:{d+3}], v3, {WS}, s26 offen offset:{1024*p}{sc}")
        A(f"s_add_u32 s26, s26, {4096 if n % 2 == 0 else 32*8192 - 4096}")

def body_kv(A, L, tag, BM, BN, NS):
    ncb = 4096 // BN
    A(f"""
    s_cmp_ge_u32 s{S_B}, {ncb}
    s_cselect_b32 s4, s64, s62
    s_cselect_b32 s5, s65, s63
    s_cmp_ge_u32 s{S_B}, {2*ncb}
    s_cselect_b32 s4, s60, s4
    s_cselect_b32 s5, s61, s5
    s_mov_b32 s29, {WS_VT}
    s_cselect_b32 s29, {WS_Q}, s29
    """)
    make_srd(A, 20, 4, 1024 * 4096 * 2)
    per = (BM // 32) * CH_STEP // (2 * ncb)
    A(f"s_cmp_ge_u32 s{S_B}, {2*ncb}")
    A(f"s_cbranch_scc1 {L(tag+'_na')}")
    if BM == 128: A(f"s_branch {L(tag+'_na')}")
    A(f"s_mul_i32 s24, s{S_A}, {(BM//32)*CH_STEP}")
    A(f"s_mul_i32 s25, s{S_B}, {per}")
    A(f"s_add_u32 s24, s24, s25")
    A(f"s_add_u32 s24, s24, {WS_CH}")
    A("v_lshlrev_b32 v3, 4, v0")
    for r in range(4, 8): A(f"v_mov_b32 v{r}, -1")
    A(f"s_mov_b32 s25, {per // 4096}")
    A.label(L(tag + '_al'))
    A(f"buffer_store_dwordx4 v[4:7], v3, {WS}, s24 offen sc1")
    A("s_add_u32 s24, s24, 4096"); A("s_sub_u32 s25, s25, 1"); A("s_cmp_lg_u32 s25, 0")
    A(f"s_cbranch_scc1 {L(tag+'_al')}")
    A.label(L(tag + '_na'))
    A(f"""
    s_mul_i32 s24, s{S_A}, {BM*2048}
    s_add_u32 s24, s24, {WS_XN}
    s_and_b32 s12, s{S_B}, {ncb-1}
    s_mul_i32 s25, s12, {BN*2}
    s_cmp_ge_u32 s{S_B}, {ncb}
    s_cbranch_scc1 {L(tag+'_v')}
    s_mov_b32 s29, {WS_K}
    """)
    g = Gemm(A, tag, BM, BN, 2, 2, NS, 1024, 2048, 8192, vbase=4, sbase=30, agpr=True, spread=2, xsc1=True)
    g.setup(13, 2, 1)
    A(f"s_branch {L(tag+'_m')}")
    A.label(L(tag + '_v'))
    g.setup(13, 2, 0, nat_as_perm=True)
    A.label(L(tag + '_m'))
    g.mainloop(1, 16, 20, 24, 25)
    A(f"""
    v_lshlrev_b32 v3, 4, v2
    s_mul_i32 s26, s{S_A}, {BM//32}
    s_mul_i32 s27, s{g.s_wm}, {g.TM//32}
    s_add_u32 s26, s26, s27
    s_lshl_b32 s26, s26, 18
    s_mul_i32 s27, s12, {BN}
    s_mul_i32 s28, s{g.s_wn}, {g.TN}
    s_add_u32 s27, s27, s28
    s_lshr_b32 s28, s27, 7
    s_lshl_b32 s28, s28, 13
    s_add_u32 s26, s26, s28
    s_and_b32 s27, s27, 127
    s_lshl_b32 s27, s27, 5
    s_add_u32 s26, s26, s27
    s_add_u32 s26, s26, s29
    s_nop 3
    """)
    store_frag(A, g, 0, 26)
    A(f"s_branch {L('done')}")
    return g.lds_bytes

def attention(A, g, Qb, vK, vR, free, lds_v, s_out, vl, sc1=True):
    S = free; P = free + 24; O = free + 40; F = free + 56
    vtrv, vtrm, off = lds_v
    for n in range(2):
        for ks in range(4):
            for t in range(3):
                d = S + 12 * n + 4 * t
                Aop = f"v[{vR+4*ks}:{vR+4*ks+3}]" if t == 2 else f"v[{vK+(t*4+ks)*4}:{vK+(t*4+ks)*4+3}]"
                q = Qb + (n * 4 + ks) * 4
                C = "0" if ks == 0 else f"v[{d}:{d+3}]"
                A(f"v_mfma_f32_16x16x32_bf16 v[{d}:{d+3}], {Aop}, v[{q}:{q+3}], {C}")
    A("s_nop 7")
    mx, tt, sm = vl['t'], vl['t'] + 1, vl['t'] + 2
    for n in range(2):
        s_ = S + 12 * n
        for o in range(8):
            A(f"v_cmp_gt_i32 vcc, {o - 16*n}, v{vl['thr']}")
            A("s_nop 1")
            A(f"v_cndmask_b32 v{s_+o}, v{s_+o}, v{vl['ninf']}, vcc")
        A(f"""
        v_max3_f32 v{mx}, v{s_}, v{s_+1}, v{s_+2}
        v_max3_f32 v{mx}, v{mx}, v{s_+3}, v{s_+4}
        v_max3_f32 v{mx}, v{mx}, v{s_+5}, v{s_+6}
        v_max_f32 v{mx}, v{mx}, v{s_+7}
        s_mov_b64 exec, s[36:37]
        v_max3_f32 v{mx}, v{mx}, v{s_+8}, v{s_+9}
        v_max3_f32 v{mx}, v{mx}, v{s_+10}, v{s_+11}
        s_mov_b64 exec, -1
        v_mov_b32 v{tt}, v{mx}
        s_nop 1
        v_permlane32_swap_b32 v{mx}, v{tt}
        v_max_f32 v{mx}, v{mx}, v{tt}
        v_mov_b32 v{tt}, v{mx}
        s_nop 1
        v_permlane16_swap_b32 v{mx}, v{tt}
        v_max_f32 v{mx}, v{mx}, v{tt}
        """)
        for i in range(12): A(f"v_sub_f32 v{s_+i}, v{s_+i}, v{mx}")
        for i in range(12): A(f"v_mul_f32 v{s_+i}, s34, v{s_+i}")
        for i in range(12): A(f"v_exp_f32 v{s_+i}, v{s_+i}")
        A("s_mov_b64 exec, s[38:39]")
        for i in range(4): A(f"v_mov_b32 v{s_+8+i}, 0")
        A("s_mov_b64 exec, -1")
        A(f"v_add_f32 v{sm}, v{s_}, v{s_+1}")
        for i in range(2, 12): A(f"v_add_f32 v{sm}, v{sm}, v{s_+i}")
        for sw in ("v_permlane32_swap_b32", "v_permlane16_swap_b32"):
            A(f"v_mov_b32 v{tt}, v{sm}"); A("s_nop 1"); A(f"{sw} v{sm}, v{tt}"); A(f"v_add_f32 v{sm}, v{sm}, v{tt}")
        A(f"v_rcp_f32 v{sm}, v{sm}")
        A("s_nop 0")
        for i in range(12): A(f"v_mul_f32 v{s_+i}, v{s_+i}, v{sm}")
        for i in range(6): A(f"v_cvt_pk_bf16_f32 v{P+8*n+i}, v{s_+2*i}, v{s_+2*i+1}")
    A(f"s_waitcnt vmcnt({vl['vwait']})")
    sc = " sc1" if sc1 else ""
    for p in range(4):
        for t in range(2):
            for u in range(2):
                A(f"ds_read_b64_tr_b16 v[{F+4*t+2*u}:{F+4*t+2*u+1}], v{vtrv} offset:{off + p*1024 + 8*t + 64*u}")
            A(f"ds_read_b64_tr_b16 v[{F+8+2*t}:{F+8+2*t+1}], v{vtrm} offset:{off + p*64 + 8*t}")
        A("s_waitcnt lgkmcnt(0)")
        for n in range(2):
            for t in range(2):
                d = O + (n * 2 + t) * 4
                A(f"v_mfma_f32_16x16x32_bf16 v[{d}:{d+3}], v[{F+4*t}:{F+4*t+3}], v[{P+8*n}:{P+8*n+3}], 0")
        A("s_nop 3")
        for n in range(2):
            for t in range(2):
                d = O + (n * 2 + t) * 4
                A(f"v_mfma_f32_16x16x16_bf16 v[{d}:{d+3}], v[{F+8+2*t}:{F+8+2*t+1}], v[{P+8*n+4}:{P+8*n+5}], v[{d}:{d+3}]")
        A("s_nop 7")
        for n in range(2):
            d = S + 8 * (p & 1) + 4 * n
            a0 = O + n * 8; a1 = a0 + 4
            A(f"v_cvt_pk_bf16_f32 v{d}, v{a0}, v{a0+1}"); A(f"v_cvt_pk_bf16_f32 v{d+1}, v{a0+2}, v{a0+3}")
            A(f"v_cvt_pk_bf16_f32 v{d+2}, v{a1}, v{a1+1}"); A(f"v_cvt_pk_bf16_f32 v{d+3}, v{a1+2}, v{a1+3}")
            A(f"buffer_store_dwordx4 v[{d}:{d+3}], v{vl['o']}, {WS}, s{s_out + n} offen offset:{64*p}{sc}")

def chain_wait(A, L, tag, nseg, vR, vK, tmp, vl16, vl16b, vt, psleep=12, CS=CH_STEP, KS_=262144):
    A(f"s_add_u32 s33, s30, {(nseg-1)*CS + 7168}")
    A(f"s_mov_b32 s35, {1 << 19}")
    A.label(L(tag + '_w1'))
    A(f"buffer_load_dwordx4 v[{tmp}:{tmp+3}], v{vl16}, {WS}, s33 offen sc1")
    A("s_sub_u32 s35, s35, 1")
    A(f"s_cbranch_scc1 {L('end')}")
    A("s_waitcnt vmcnt(0)")
    A(f"v_cmp_eq_u32 vcc, -1, v{tmp+3}")
    A(f"s_cbranch_vccz {L(tag+'_w2')}")
    A(f"s_sleep {psleep}")
    A(f"s_branch {L(tag+'_w1')}")
    A.label(L(tag + '_w2'))
    for sg in range(nseg):
        A(f"s_add_u32 s33, s30, {sg*CS}")
        for i in range(4):
            A(f"buffer_load_dwordx4 v[{vR[sg]+4*i}:{vR[sg]+4*i+3}], v{vl16}, {WS}, s33 offen offset:{i*1024} sc1")
        for i in range(2):
            A(f"buffer_load_dwordx4 v[{tmp+8*sg+4*i}:{tmp+8*sg+4*i+3}], v{vl16b}, {WS}, s33 offen offset:{2048+i*1024} sc1")
    A("s_sub_u32 s35, s35, 1")
    A(f"s_cbranch_scc1 {L('end')}")
    A("s_waitcnt vmcnt(0)")
    rr = [vR[sg] + i for sg in range(nseg) for i in range(16)]
    A(f"v_max3_u32 v{vt}, v{rr[0]}, v{rr[1]}, v{rr[2]}")
    for i in range(3, len(rr) - 1, 2): A(f"v_max3_u32 v{vt}, v{vt}, v{rr[i]}, v{rr[i+1]}")
    A(f"v_max_u32 v{vt}, v{vt}, v{rr[-1]}")
    A("s_mov_b32 exec_lo, 0x00ff00ff"); A("s_mov_b32 exec_hi, 0x00ff00ff")
    A(f"v_mov_b32 v{vt}, 0")
    A("s_mov_b64 exec, -1")
    for i in range(0, 8 * nseg, 2): A(f"v_max3_u32 v{vt}, v{vt}, v{tmp+i}, v{tmp+i+1}")
    A(f"v_cmp_eq_u32 vcc, -1, v{vt}")
    A(f"s_cbranch_vccnz {L(tag+'_w2')}")
    for sg in range(nseg):
        A(f"s_add_u32 s32, s28, {sg*KS_}")
        for i in range(8):
            A(f"buffer_load_dwordx4 v[{vK[sg]+4*i}:{vK[sg]+4*i+3}], v{vl16 if i < 4 else vl16b}, {WS}, s32 offen offset:{(i%4)*1024} sc1")

def att_setup(A, vt, vtrv, vtrm, vthr, vo_, vninf):
    n_, g_ = vt, vt + 1
    A(f"""
    v_and_b32 v{n_}, 15, v2
    v_lshrrev_b32 v{g_}, 4, v2
    v_lshrrev_b32 v{vt+2}, 1, v{g_}
    v_lshlrev_b32 v{vtrv}, 12, v{vt+2}
    v_and_b32 v{vt+2}, 3, v{n_}
    v_lshl_add_u32 v{vtrv}, v{vt+2}, 8, v{vtrv}
    v_and_b32 v{vt+3}, 1, v{g_}
    v_lshl_add_u32 v{vtrv}, v{vt+3}, 7, v{vtrv}
    v_lshrrev_b32 v{vt+4}, 2, v{n_}
    v_lshl_add_u32 v{vtrv}, v{vt+4}, 4, v{vtrv}
    v_add_u32 v{vtrv}, s31, v{vtrv}
    v_lshl_add_u32 v{vtrm}, v{vt+3}, 2, v{vt+4}
    v_lshlrev_b32 v{vtrm}, 8, v{vtrm}
    v_lshl_add_u32 v{vtrm}, v{vt+2}, 4, v{vtrm}
    v_add_u32 v{vtrm}, s31, v{vtrm}
    v_add_u32 v{vtrm}, 0x2000, v{vtrm}
    v_lshlrev_b32 v{vt+2}, 3, v{g_}
    v_sub_u32 v{vthr}, v{n_}, v{vt+2}
    v_lshlrev_b32 v{vo_}, 13, v{n_}
    v_lshl_add_u32 v{vo_}, v{g_}, 4, v{vo_}
    v_mov_b32 v{vninf}, 0xff800000
    s_lshl_b32 s32, s26, 18
    s_lshl_b32 s33, s{S_B}, 8
    s_add_u32 s32, s32, s33
    s_add_u32 s32, s32, {WS_O}
    s_add_u32 s33, s32, {16*8192}
    """)

def body_qa(A, L, tag, BM=256, NS=3):
    nseg = BM // 128
    make_srd(A, 20, 60, 1024 * 4096 * 2)
    A(f"""
    s_mul_i32 s24, s{S_A}, {BM*2048}
    s_add_u32 s24, s24, {WS_XN}
    s_lshl_b32 s25, s{S_B}, 8
    """)
    g = Gemm(A, tag, BM, 128, 4, 1, NS, 1024, 2048, 8192, vbase=4, sbase=40, agpr=True, spread=2)
    g.setup(13, 2, 0)
    b0 = (g.v_end + 3) // 4 * 4
    vK = [b0 + 48 * i for i in range(nseg)]; vR = [v + 32 for v in vK]
    m0 = b0 + 48 * nseg
    vl16, vl16b, vtrv, vtrm, vthr, vo_, vninf, vt = m0, m0 + 1, m0 + 2, m0 + 3, m0 + 4, m0 + 5, m0 + 6, m0 + 7
    Qb = (m0 + 12 + 3) // 4 * 4
    assert Qb + 32 <= 256
    free = g.v_wa[0]; assert g.v_xr - free >= 64 or True
    A(f"""
    v_lshlrev_b32 v{vl16}, 4, v2
    v_add_u32 v{vl16b}, 0x1000, v{vl16}
    s_mul_i32 s26, s{S_A}, {BM//32}
    s_mul_i32 s27, s13, {nseg}
    s_add_u32 s26, s26, s27
    s_lshl_b32 s27, s26, 5
    s_add_u32 s27, s27, s{S_B}
    s_lshl_b32 s27, s27, 13
    s_add_u32 s28, s27, {WS_K}
    s_add_u32 s29, s27, {WS_VT}
    s_lshl_b32 s30, s26, 19
    s_lshl_b32 s31, s{S_B}, 13
    s_add_u32 s30, s30, s31
    s_add_u32 s30, s30, {WS_CH + CH_QKV}
    s_mov_b32 s34, {f2u(SC):#x}
    s_mov_b32 s36, 0
    s_mov_b32 s37, -1
    s_mov_b32 s38, -1
    s_mov_b32 s39, 0
    """)
    chain_wait(A, L, tag, nseg, vR, vK, Qb, vl16, vl16b, vt)
    g.mainloop(0, 16, 20, 24, 25)
    A("s_barrier")
    A(f"s_mul_i32 s31, s13, {10240*nseg}")
    for sg in range(nseg):
        for i in range(10):
            A(f"s_add_u32 m0, s31, {sg*10240 + i*1024}")
            if i < 8: A(f"s_add_u32 s35, s29, {sg*262144 + i*1024}")
            else:     A(f"s_add_u32 s35, s30, {sg*CH_STEP + 6144 + (i-8)*1024}")
            A(f"buffer_load_dwordx4 v{vl16}, {WS}, s35 offen sc1 lds")
    att_setup(A, vt, vtrv, vtrm, vthr, vo_, vninf)
    fr = 4
    assert b0 - fr >= 72, (b0,)
    for sg in range(nseg):
        for n in range(2):
            for ks in range(4):
                d = Qb + (n * 4 + ks) * 4
                a0 = g.fetch(2 * ks, 2 * sg + n, fr); a1 = g.fetch(2 * ks + 1, 2 * sg + n, fr + 4)
                A(f"v_cvt_pk_bf16_f32 v{d}, v{a0}, v{a0+1}"); A(f"v_cvt_pk_bf16_f32 v{d+1}, v{a0+2}, v{a0+3}")
                A(f"v_cvt_pk_bf16_f32 v{d+2}, v{a1}, v{a1+1}"); A(f"v_cvt_pk_bf16_f32 v{d+3}, v{a1+2}, v{a1+3}")
        A("s_nop 1")
        vw = 10 * (nseg - 1) if sg == 0 else 8
        attention(A, g, Qb, vK[sg], vR[sg], fr, (vtrv, vtrm, sg * 10240), 32, dict(thr=vthr, o=vo_, ninf=vninf, t=vt, vwait=vw))
        if sg + 1 < nseg:
            A(f"s_add_u32 s32, s32, {32*8192}"); A(f"s_add_u32 s33, s33, {32*8192}")
    A(f"s_branch {L('done')}")
    return g.lds_bytes

def body_res(A, L, tag, ka_w, K, ws_x, res_from_x, to_out, BM=128, BN=128, NS=4):
    A(f"s_load_dwordx2 s[4:5], s[0:1], {ka_w}")
    A(f"s_load_dwordx2 s[6:7], s[0:1], {KA_X if res_from_x else KA_OUT}")
    A("s_waitcnt lgkmcnt(0)")
    make_srd(A, 20, 4, K * 1024 * 2)
    make_srd(A, 24 + 4, 6, 2048 * 2048)
    A(f"""
    s_mul_i32 s24, s{S_A}, {BM*K*2}
    s_add_u32 s24, s24, {ws_x}
    s_mul_i32 s25, s{S_B}, {BN*2}
    """)
    g = Gemm(A, tag, BM, BN, 2, 2, NS, K, K * 2, 2048, vbase=4, sbase=40, kperm=True, spread=min(2, 2), xsc1=True)
    g.setup(13, 2, 0)
    vr_, vs_ = g.v_end, g.v_end + 1
    R = (g.v_end + 3) // 2 * 2
    npair = g.mt // 2
    A(f"""
    v_and_b32 v3, 15, v2
    v_lshlrev_b32 v3, 11, v3
    v_lshrrev_b32 v{vs_}, 4, v2
    v_lshl_add_u32 v{vr_}, v{vs_}, 3, v3
    v_lshl_add_u32 v{vs_}, v{vs_}, 4, v3
    s_mul_i32 s26, s{S_A}, {BM}
    s_mul_i32 s27, s{g.s_wm}, {g.TM}
    s_add_u32 s26, s26, s27
    s_lshl_b32 s26, s26, 11
    s_add_u32 s26, s26, s25
    s_mul_i32 s27, s{g.s_wn}, {g.TN*2}
    s_add_u32 s26, s26, s27
    s_add_u32 s27, s26, {WS_H}
    """)
    rs, rb_ = ("s[28:31]", 26) if res_from_x else (WS, 27)
    rsc = "" if res_from_x else " sc1"
    for n in range(g.nt):
        A(f"s_add_u32 s32, s{rb_}, {n*16*2048}")
        for m in range(g.mt):
            r = R + (n * g.mt + m) * 2
            A(f"buffer_load_dwordx2 v[{r}:{r+1}], v{vr_}, {rs}, s32 offen offset:{m*32}{rsc}")
    g.mainloop(0, 16, 20, 24, 25)
    A("s_nop 7")
    t_ = g.v_wa[0]
    os_, ob_ = ("s[28:31]", 26) if to_out else (WS, 27)
    osc = "" if to_out else " sc1"
    cnt = 0
    for n in range(g.nt):
        A(f"s_add_u32 s32, s{ob_}, {n*16*2048}")
        for p in range(npair):
            d = t_ + 8 * (cnt % 2); cnt += 1
            for t in range(2):
                a = g.acc(2 * p + t, n)
                for h in range(2):
                    rr = R + (n * g.mt + 2 * p + t) * 2 + h
                    A(f"v_cvt_pk_bf16_f32 v{d+4}, v{a+2*h}, v{a+2*h+1}")
                    A(f"v_lshlrev_b32 v{d+5}, 16, v{d+4}")
                    A(f"v_and_b32 v{d+4}, 0xffff0000, v{d+4}")
                    A(f"v_lshlrev_b32 v{d+6}, 16, v{rr}")
                    A(f"v_and_b32 v{d+7}, 0xffff0000, v{rr}")
                    A(f"v_add_f32 v{d+5}, v{d+5}, v{d+6}")
                    A(f"v_add_f32 v{d+4}, v{d+4}, v{d+7}")
                    A(f"v_cvt_pk_bf16_f32 v{d+2*t+h}, v{d+5}, v{d+4}")
            A("s_nop 1")
            A(f"v_permlane32_swap_b32 v{d}, v{d+2}"); A(f"v_permlane32_swap_b32 v{d+1}, v{d+3}")
            A("s_nop 1")
            A(f"v_permlane16_swap_b32 v{d}, v{d+2}"); A(f"v_permlane16_swap_b32 v{d+1}, v{d+3}")
            A(f"buffer_store_dwordx4 v[{d}:{d+3}], v{vs_}, {os_}, s32 offen offset:{64*p}{osc}")
    A(f"s_branch {L('done')}")
    assert R + g.nt * g.mt * 2 <= 256
    return g.lds_bytes

def silu_store(A, g, t_):
    cnt = 0
    for n in range(g.nt):
        for p in range(g.mt // 2):
            d = t_ + 4 * (cnt % 4); cnt += 1
            e = g.v_xb[0]
            for t in range(2):
                a = g.acc(2 * p + t, n)
                for h in range(2):
                    A(f"v_cvt_pk_bf16_f32 v{e}, v{a+2*h}, v{a+2*h+1}")
                    A(f"v_lshlrev_b32 v{a+2*h}, 16, v{e}")
                    A(f"v_and_b32 v{a+2*h+1}, 0xffff0000, v{e}")
                for r in range(4): A(f"v_mul_f32 v{e+r}, s28, v{a+r}")
                for r in range(4): A(f"v_exp_f32 v{e+r}, v{e+r}")
                A("s_nop 0")
                for r in range(4): A(f"v_add_f32 v{e+r}, 1.0, v{e+r}")
                for r in range(4): A(f"v_rcp_f32 v{e+r}, v{e+r}")
                A("s_nop 0")
                for r in range(4): A(f"v_mul_f32 v{a+r}, v{a+r}, v{e+r}")
                A(f"v_cvt_pk_bf16_f32 v{d+2*t}, v{a}, v{a+1}")
                A(f"v_cvt_pk_bf16_f32 v{d+2*t+1}, v{a+2}, v{a+3}")
            A(f"buffer_store_dwordx4 v[{d}:{d+3}], v3, {WS}, s26 offen offset:{64*p} sc1")
        A(f"s_add_u32 s26, s26, {16*7168}")

def body_f1(A, L, tag, BM=256, BN=128, NS=3):
    A(f"s_cmp_ge_u32 s{S_B}, {3584//BN}")
    A(f"s_cbranch_scc1 {L('skip')}")
    A(f"s_load_dwordx2 s[4:5], s[0:1], {KA_W1}")
    A("s_waitcnt lgkmcnt(0)")
    make_srd(A, 20, 4, 1024 * 3584 * 2)
    A(f"""
    s_mul_i32 s24, s{S_A}, {BM*2048}
    s_add_u32 s24, s24, {WS_HN}
    s_mul_i32 s25, s{S_B}, {BN*2}
    """)
    g = Gemm(A, tag, BM, BN, 2, 2, NS, 1024, 2048, 7168, vbase=4, sbase=40, spread=2, xsc1=True)
    g.setup(13, 2, 0)
    g.mainloop(0, 16, 20, 24, 25, mid=(lambda: depwait(A, L, tag)) if BN == 64 else None)
    t_ = g.v_wa[0]
    A(f"""
    v_and_b32 v3, 15, v2
    v_mul_u32_u24 v3, 7168, v3
    v_lshrrev_b32 v1, 4, v2
    v_lshl_add_u32 v3, v1, 4, v3
    s_mul_i32 s26, s{S_A}, {BM}
    s_mul_i32 s27, s{g.s_wm}, {g.TM}
    s_add_u32 s26, s26, s27
    s_mul_i32 s26, s26, 7168
    s_mul_i32 s27, s{S_B}, {BN*2}
    s_add_u32 s26, s26, s27
    s_mul_i32 s27, s{g.s_wn}, {g.TN*2}
    s_add_u32 s26, s26, s27
    s_add_u32 s26, s26, {WS_F1}
    s_mov_b32 s28, {f2u(-1.4426950408889634):#x}
    s_nop 4
    """)
    silu_store(A, g, t_)
    A(f"s_branch {L('done')}")
    return g.lds_bytes

def body_ln(A, L, tag, rows_per_wave=4):
    A(f"""
    v_lshlrev_b32 v3, 4, v2
    s_mul_i32 s26, s{S_A}, {4*rows_per_wave}
    s_mul_i32 s27, s13, {rows_per_wave}
    s_add_u32 s26, s26, s27
    s_lshl_b32 s26, s26, 11
    s_add_u32 s27, s26, {WS_HN}
    s_add_u32 s26, s26, {WS_H}
    s_mov_b32 s28, {rows_per_wave}
    """)
    A.label(L(tag + '_l'))
    ln_row(A, 16, 26, 16, 27, 3, sc1=True)
    A(f"""
    s_add_u32 s26, s26, 2048
    s_add_u32 s27, s27, 2048
    s_sub_u32 s28, s28, 1
    s_cmp_lg_u32 s28, 0
    s_cbranch_scc1 {L(tag+'_l')}
    s_branch {L('done')}
    """)
    return 0

def body_at(A, L, tag, nh=1):
    vK = [76 + 80 * i for i in range(nh)]; vR = [v + 32 for v in vK]; Qb = [v + 48 for v in vK]
    m0 = 76 + 80 * nh
    tmp = 4
    vl16, vl16b, vtrv, vtrm, vthr, vo_, vninf, vt = m0, m0 + 1, m0 + 2, m0 + 3, m0 + 4, m0 + 5, m0 + 6, m0 + 7
    assert vt + 8 <= 256
    A(f"""
    s_mul_i32 s{S_B}, s{S_B}, {nh}
    v_lshlrev_b32 v{vl16}, 4, v2
    v_add_u32 v{vl16b}, 0x1000, v{vl16}
    s_lshl_b32 s26, s{S_A}, 2
    s_add_u32 s26, s26, s13
    s_lshl_b32 s27, s26, 5
    s_add_u32 s27, s27, s{S_B}
    s_lshl_b32 s27, s27, 13
    s_add_u32 s28, s27, {WS_K}
    s_add_u32 s29, s27, {WS_VT}
    s_add_u32 s27, s27, {WS_Q}
    s_lshl_b32 s30, s26, 19
    s_lshl_b32 s31, s{S_B}, 13
    s_add_u32 s30, s30, s31
    s_add_u32 s30, s30, {WS_CH + CH_QKV}
    s_mov_b32 s34, {f2u(SC):#x}
    s_mov_b32 s36, 0
    s_mov_b32 s37, -1
    s_mov_b32 s38, -1
    s_mov_b32 s39, 0
    s_mul_i32 s31, s13, {10240*nh}
    """)
    for h in range(nh):
        for i in range(8):
            A(f"buffer_load_dwordx4 v[{Qb[h]+4*i}:{Qb[h]+4*i+3}], v{vl16 if i < 4 else vl16b}, {WS}, s27 offen offset:{(i%4)*1024} sc1")
        A("s_add_u32 s27, s27, 8192")
    att_setup(A, vt, vtrv, vtrm, vthr, vo_, vninf)
    chain_wait(A, L, tag, nh, vR, vK, tmp, vl16, vl16b, vt, psleep=2, CS=HB, KS_=8192)
    for h in range(nh):
        for i in range(10):
            A(f"s_add_u32 m0, s31, {h*10240 + i*1024}")
            if i < 8: A(f"s_add_u32 s35, s29, {h*8192 + i*1024}")
            else:     A(f"s_add_u32 s35, s30, {h*HB + 6144 + (i-8)*1024}")
            A(f"buffer_load_dwordx4 v{vl16}, {WS}, s35 offen sc1 lds")
    A(f"""
    s_lshl_b32 s32, s26, 18
    s_lshl_b32 s33, s{S_B}, 8
    s_add_u32 s32, s32, s33
    s_add_u32 s32, s32, {WS_O}
    s_add_u32 s33, s32, {16*8192}
    s_waitcnt vmcnt({10*nh})
    """)
    for h in range(nh):
        vw = 10 * (nh - 1) if h == 0 else 8
        attention(A, None, Qb[h], vK[h], vR[h], 4, (vtrv, vtrm, h * 10240), 32, dict(thr=vthr, o=vo_, ninf=vninf, t=vt, vwait=vw))
        if h + 1 < nh: A("s_add_u32 s32, s32, 256"); A("s_add_u32 s33, s33, 256")
    A(f"s_branch {L('done')}")
    return 40960 * nh

def body_red4(A, L, tag, fin):
    A(f"s_load_dwordx2 s[6:7], s[0:1], {KA_OUT if fin else KA_X}")
    A(f"""
    v_lshlrev_b32 v3, 4, v2
    v_lshlrev_b32 v1, 5, v2
    s_and_b32 s26, s{S_B}, 31
    s_lshr_b32 s35, s{S_B}, 5
    s_lshl_b32 s26, s26, 2
    s_add_u32 s26, s26, s13
    s_lshl_b32 s26, s26, 2
    s_lshl_b32 s27, s{S_A}, 9
    s_add_u32 s27, s27, s26
    s_lshl_b32 s27, s27, 12
    s_add_u32 s27, s27, {WS_P2 if fin else WS_P1}
    s_lshl_b32 s32, s{S_A}, 7
    s_add_u32 s32, s32, s26
    s_lshl_b32 s32, s32, 11
    s_add_u32 s33, s32, {WS_H}
    s_add_u32 s34, s32, {WS_HN}
    s_waitcnt lgkmcnt(0)
    """)
    make_srd(A, 28, 6, 2048 * 2048)
    P = lambda r: 32 + 40 * r
    for r in range(4):
        for i in range(16): A(f"v_mov_b32 v{P(r)+16+i}, 0")
    A("s_cmp_eq_u32 s35, 0")
    A(f"s_cbranch_scc1 {L(tag+'_np')}")
    for r in range(4):
        A(f"s_add_u32 s36, s27, {128*4096 + r*4096}")
        for i in range(4):
            q = P(r) + 16 + 4 * i
            A(f"buffer_load_dwordx4 v[{q}:{q+3}], v1, {WS}, s36 offen offset:{(i>>1)*2048 + (i&1)*16} sc1")
    A.label(L(tag + '_np'))
    for r in range(4):
        A(f"s_add_u32 s36, s27, {r*4096}")
        for i in range(4):
            q = P(r) + 4 * i
            A(f"buffer_load_dwordx4 v[{q}:{q+3}], v1, {WS}, s36 offen offset:{(i>>1)*2048 + (i&1)*16} sc1")
        q = P(r) + 32
        if fin:
            A(f"s_add_u32 s36, s33, {r*2048}")
            A(f"buffer_load_dwordx4 v[{q}:{q+3}], v3, {WS}, s36 offen sc1"); A(f"buffer_load_dwordx4 v[{q+4}:{q+7}], v3, {WS}, s36 offen offset:1024 sc1")
        else:
            A(f"s_add_u32 s36, s32, {r*2048}")
            A(f"buffer_load_dwordx4 v[{q}:{q+3}], v3, s[28:31], s36 offen"); A(f"buffer_load_dwordx4 v[{q+4}:{q+7}], v3, s[28:31], s36 offen offset:1024")
    nst = 2 if fin else 4
    for r in range(4):
        p = P(r)
        A(f"s_waitcnt vmcnt({(3-r)*6 + r*nst})")
        for i in range(0, 16, 2): A(f"v_pk_add_f32 v[{p+i}:{p+i+1}], v[{p+i}:{p+i+1}], v[{p+16+i}:{p+17+i}]")
        o = p + 16
        for i in range(8):
            A(f"v_cvt_pk_bf16_f32 v4, v{p+2*i}, v{p+2*i+1}")
            A(f"v_lshlrev_b32 v5, 16, v4"); A(f"v_and_b32 v4, 0xffff0000, v4")
            A(f"v_lshlrev_b32 v6, 16, v{p+32+i}"); A(f"v_and_b32 v7, 0xffff0000, v{p+32+i}")
            A(f"v_add_f32 v5, v5, v6"); A(f"v_add_f32 v4, v4, v7")
            A(f"v_cvt_pk_bf16_f32 v{o+i}, v5, v4")
            if not fin:
                A(f"v_lshlrev_b32 v{16+2*i}, 16, v{o+i}"); A(f"v_and_b32 v{17+2*i}, 0xffff0000, v{o+i}")
        if fin:
            A(f"buffer_store_dwordx4 v[{o}:{o+3}], v3, s[28:31], s32 offen"); A(f"buffer_store_dwordx4 v[{o+4}:{o+7}], v3, s[28:31], s32 offen offset:1024")
            A("s_add_u32 s32, s32, 2048")
        else:
            A(f"buffer_store_dwordx4 v[{o}:{o+3}], v3, {WS}, s33 offen sc1"); A(f"buffer_store_dwordx4 v[{o+4}:{o+7}], v3, {WS}, s33 offen offset:1024 sc1")
            ln_core(A, 16, 34, 3, " sc1")
            A("s_add_u32 s33, s33, 2048"); A("s_add_u32 s34, s34, 2048")
            A("s_nop 1")
    A(f"s_branch {L('done')}")
    return 0

def body_small(A, L, tag, kind):
    ka, K, ldx, ldw, wsx, wbytes = {'wos': (KA_WO, 1024, 8192, 2048, WS_O, 4096*2048), 'f2s': (KA_W2, 896, 7168, 2048, WS_F1, 3584*2048),
                                    'f1s': (KA_W1, 1024, 2048, 7168, WS_HN, 1024*7168)}[kind]
    A(f"s_load_dwordx2 s[4:5], s[0:1], {ka}")
    A(f"s_mul_i32 s24, s{S_A}, {128*ldx}")
    A(f"s_add_u32 s24, s24, {wsx}")
    if kind == 'f1s':
        A(f"s_lshl_b32 s25, s{S_B}, 7")
    else:
        A(f"""
        s_and_b32 s12, s{S_B}, 15
        s_lshr_b32 s29, s{S_B}, 4
        s_mul_i32 s26, s29, {K*2}
        s_add_u32 s24, s24, s26
        s_mul_i32 s25, s29, {K*ldw}
        s_lshl_b32 s26, s12, 7
        s_add_u32 s25, s25, s26
        """)
    A("s_waitcnt lgkmcnt(0)")
    make_srd(A, 20, 4, wbytes)
    g = Gemm(A, tag, 128, 64, 2, 2, 4, K, ldx, ldw, vbase=4, sbase=40, kperm=(kind != 'f1s'), spread=2, xsc1=True)
    g.setup(13, 2, 0)
    g.mainloop(0, 16, 20, 24, 25)
    if kind == 'f1s':
        t_ = g.v_wa[0]
        A(f"""
        v_and_b32 v3, 15, v2
        v_mul_u32_u24 v3, 7168, v3
        v_lshrrev_b32 v1, 4, v2
        v_lshl_add_u32 v3, v1, 4, v3
        s_lshl_b32 s26, s{S_A}, 7
        s_lshl_b32 s27, s{g.s_wm}, 6
        s_add_u32 s26, s26, s27
        s_mul_i32 s26, s26, 7168
        s_lshl_b32 s27, s{S_B}, 7
        s_add_u32 s26, s26, s27
        s_lshl_b32 s27, s{g.s_wn}, 6
        s_add_u32 s26, s26, s27
        s_add_u32 s26, s26, {WS_F1}
        s_mov_b32 s28, {f2u(-1.4426950408889634):#x}
        s_nop 4
        """)
        silu_store(A, g, t_)
    else:
        base = WS_P1 if kind == 'wos' else WS_P2
        A(f"""
        v_and_b32 v3, 15, v2
        v_lshlrev_b32 v3, 12, v3
        v_lshrrev_b32 v1, 4, v2
        v_lshl_add_u32 v3, v1, 4, v3
        s_lshl_b32 s26, s{S_A}, 2
        s_add_u32 s26, s26, s29
        s_lshl_b32 s26, s26, 7
        s_lshl_b32 s27, s{g.s_wm}, 6
        s_add_u32 s26, s26, s27
        s_lshl_b32 s26, s26, 12
        s_lshl_b32 s27, s12, 8
        s_add_u32 s26, s26, s27
        s_lshl_b32 s27, s{g.s_wn}, 7
        s_add_u32 s26, s26, s27
        s_add_u32 s26, s26, {base}
        s_nop 4
        """)
        for n in range(g.nt):
            for m in range(g.mt):
                a = g.acc(m, n)
                A(f"buffer_store_dwordx4 v[{a}:{a+3}], v3, {WS}, s26 offen offset:{64*m} sc1")
            A(f"s_add_u32 s26, s26, {16*4096}")
    A(f"s_branch {L('done')}")
    return g.lds_bytes

def body_red(A, L, tag, fin):
    A(f"s_load_dwordx2 s[6:7], s[0:1], {KA_OUT if fin else KA_X}")
    A(f"""
    v_lshlrev_b32 v3, 4, v2
    v_lshlrev_b32 v1, 5, v2
    s_and_b32 s26, s{S_B}, 31
    s_lshr_b32 s35, s{S_B}, 5
    s_lshl_b32 s26, s26, 2
    s_add_u32 s26, s26, s13
    s_lshl_b32 s27, s{S_A}, 9
    s_add_u32 s27, s27, s26
    s_lshl_b32 s27, s27, 12
    s_add_u32 s27, s27, {WS_P2 if fin else WS_P1}
    s_lshl_b32 s32, s{S_A}, 7
    s_add_u32 s32, s32, s26
    s_lshl_b32 s32, s32, 11               ; row*2048
    s_add_u32 s33, s32, {WS_H}
    s_add_u32 s34, s32, {WS_HN}
    s_waitcnt lgkmcnt(0)
    """)
    make_srd(A, 28, 6, 2048 * 2048)
    P = 32
    for r in range(P + 16, P + 128): A(f"v_mov_b32 v{r}, 0")
    depwait(A, L, tag)
    A("v_lshlrev_b32 v3, 4, v2"); A("v_lshlrev_b32 v1, 5, v2")
    for k in range(8):
        if k:
            A(f"s_cmp_lt_u32 s35, {k}")
            A(f"s_cbranch_scc1 {L(tag+'_np')}")
        for i in range(4):
            r = P + 16 * k + 4 * i
            A(f"buffer_load_dwordx4 v[{r}:{r+3}], v1, {WS}, s27 offen offset:{(i>>1)*2048 + (i&1)*16} sc1")
        A(f"s_add_u32 s27, s27, {128*4096}")
    A.label(L(tag + '_np'))
    if fin:
        A(f"buffer_load_dwordx4 v[8:11], v3, {WS}, s33 offen sc1"); A(f"buffer_load_dwordx4 v[12:15], v3, {WS}, s33 offen offset:1024 sc1")
    else:
        A(f"buffer_load_dwordx4 v[8:11], v3, s[28:31], s32 offen"); A(f"buffer_load_dwordx4 v[12:15], v3, s[28:31], s32 offen offset:1024")
    A("s_waitcnt vmcnt(0)")
    def pk(d, a): A(f"v_pk_add_f32 v[{d}:{d+1}], v[{d}:{d+1}], v[{a}:{a+1}]")
    A("s_cmp_lt_u32 s35, 4")
    A(f"s_cbranch_scc1 {L(tag+'_h4')}")
    for i in range(0, 64, 2): pk(P + i, P + 64 + i)
    A.label(L(tag + '_h4'))
    for i in range(0, 32, 2): pk(P + i, P + 32 + i)
    for i in range(0, 16, 2): pk(P + i, P + 16 + i)
    for i in range(8):
        A(f"v_cvt_pk_bf16_f32 v4, v{P+2*i}, v{P+2*i+1}")
        A(f"v_lshlrev_b32 v5, 16, v4"); A(f"v_and_b32 v4, 0xffff0000, v4")
        A(f"v_lshlrev_b32 v6, 16, v{8+i}"); A(f"v_and_b32 v7, 0xffff0000, v{8+i}")
        A(f"v_add_f32 v5, v5, v6"); A(f"v_add_f32 v4, v4, v7")
        A(f"v_cvt_pk_bf16_f32 v{P+64+i}, v5, v4")
        if not fin:
            A(f"v_lshlrev_b32 v{16+2*i}, 16, v{P+64+i}"); A(f"v_and_b32 v{17+2*i}, 0xffff0000, v{P+64+i}")
    o = P + 64
    if fin:
        A(f"buffer_store_dwordx4 v[{o}:{o+3}], v3, s[28:31], s32 offen"); A(f"buffer_store_dwordx4 v[{o+4}:{o+7}], v3, s[28:31], s32 offen offset:1024")
    else:
        A(f"buffer_store_dwordx4 v[{o}:{o+3}], v3, {WS}, s33 offen sc1"); A(f"buffer_store_dwordx4 v[{o+4}:{o+7}], v3, {WS}, s33 offen offset:1024 sc1")
        ln_core(A, 16, 34, 3, " sc1")
    A(f"s_branch {L('done')}")
    return 0

def pre_part(A, L, tag, which, BN, w8=False):
    ka, Ktot, ldx, wsx, base = {'wo': (KA_WO, 4096, 8192, WS_O, WS_P1), 'f2': (KA_W2, 3584, 7168, WS_F1, WS_P2)}[which]
    A(f"s_load_dwordx2 s[4:5], s[0:1], {ka}")
    A(f"s_mov_b32 s48, {ldx}")
    A(f"s_mov_b32 s50, {base}")
    A(f"s_mov_b32 s51, {Ktot*2048}")
    A(f"s_mul_i32 s24, s{S_A}, {128*ldx}")
    A(f"s_add_u32 s24, s24, {wsx}")
    if BN == 128:
        A(f"s_and_b32 s12, s{S_B}, 7")
        A(f"s_bfe_u32 s29, s{S_B}, 0x20003")
        A(f"s_lshr_b32 s26, s{S_B}, 5")
        A(f"s_lshr_b32 s27, {Ktot}, s26")
        A(f"s_lshr_b32 s49, s27, {8 if NS128 == 4 else 7}")
        A(f"s_sub_u32 s49, s49, 1")
        A(f"s_mul_i32 s27, s27, s29")
    elif w8:
        A(f"s_lshr_b32 s12, s{S_B}, 4"); A("s_lshl_b32 s12, s12, 1"); A(f"s_and_b32 s26, s{S_B}, 1"); A("s_add_u32 s12, s12, s26")
        A(f"s_bfe_u32 s29, s{S_B}, 0x30001")
        A(f"s_lshl_b32 s27, s29, 9")
        A(f"s_mov_b32 s49, 1")
    else:
        A(f"s_lshr_b32 s12, s{S_B}, 3"); A("s_lshl_b32 s12, s12, 1"); A(f"s_and_b32 s26, s{S_B}, 1"); A("s_add_u32 s12, s12, s26")
        A(f"s_bfe_u32 s29, s{S_B}, 0x20001")
        A(f"s_lshl_b32 s27, s29, 10")
        A(f"s_mov_b32 s49, 3")
        if which == 'f2':
            A("s_cmp_eq_u32 s29, 3"); A("s_cselect_b32 s49, 1, s49")
    A(f"s_lshl_b32 s26, s27, 1")
    A(f"s_add_u32 s24, s24, s26")
    A(f"s_lshl_b32 s25, s27, 11")
    A(f"s_mul_i32 s26, s12, {BN*2}")
    A(f"s_add_u32 s25, s25, s26")
    A(f"s_branch {L('b_g%d' % BN)}")

NS128 = 4
def body_part(A, L, BN):
    NSP = NS128 if BN == 128 else 4
    tag = f"g{BN}"
    A("s_waitcnt lgkmcnt(0)")
    A("s_mov_b32 s20, s4"); A("s_and_b32 s21, s5, 0xffff"); A("s_mov_b32 s22, s51"); A("s_mov_b32 s23, 0x00020000")
    g = Gemm(A, tag, 128, BN, 2, 2, NSP, 1024, "s48", 2048, vbase=4, sbase=40, kperm=True, spread=2, xsc1=True)
    g.setup(13, 2, 0)
    g.mainloop(0, 16, 20, 24, 25, s_groups=49, mid=(lambda: depwait(A, L, tag)) if BN == 64 else None)
    A(f"""
    v_and_b32 v3, 15, v2
    v_lshlrev_b32 v3, 12, v3
    v_lshrrev_b32 v1, 4, v2
    v_lshl_add_u32 v3, v1, 4, v3
    s_lshl_b32 s26, s{S_A}, 2
    s_add_u32 s26, s26, s29
    s_lshl_b32 s26, s26, 7
    s_lshl_b32 s27, s{g.s_wm}, 6
    s_add_u32 s26, s26, s27
    s_lshl_b32 s26, s26, 12
    s_mul_i32 s27, s12, {BN*4}
    s_add_u32 s26, s26, s27
    s_mul_i32 s27, s{g.s_wn}, {BN*2}
    s_add_u32 s26, s26, s27
    s_add_u32 s26, s26, s50
    s_nop 4
    """)
    for n in range(g.nt):
        for m in range(g.mt):
            a = g.acc(m, n)
            A(f"buffer_store_dwordx4 v[{a}:{a+3}], v3, {WS}, s26 offen offset:{64*m} sc1")
        A(f"s_add_u32 s26, s26, {16*4096}")
    A(f"s_branch {L('done')}")
    return g.lds_bytes

PROBE0 = WS_CH + 3 * CH_STEP + CH_QKV + 31 * HB + 8188
def gen_worker(A, L, table_label, MAXT, POLLMAX=1 << 20, wstamp=False, psleep=3, exh0=0, repair=None, repair_stub=None, premask=0, tiny=False):
    A(f"""
    s_getpc_b64 s[100:101]
    {L('pc0')}:
    s_add_u32 s100, s100, {table_label}-{L('pc0')}
    s_addc_u32 s101, s101, 0
    s_bfe_u32 s88, s14, 0x30004
    s_mul_i32 s99, s14, {MAXT*8}
    {L('next')}:
    {"s_memrealtime s[90:91]" if wstamp else ""}
    s_add_u32 s99, s99, 8
    s_cmp_lg_u32 s13, 0
    s_cbranch_scc1 {L('go2')}
    s_mov_b32 s29, {POLLMAX}
    s_mov_b32 s97, s88
    s_mov_b32 s83, 0
    {L('grp')}:
    s_lshl_b32 s96, s97, 9
    s_add_u32 s96, s96, {WS_TK}
    v_lshlrev_b32 v5, 2, v2
    v_add_u32 v5, {WS_RDY}, v5
    s_lshl_b32 s24, s97, 7
    s_add_u32 s24, s24, {128 - 32}
    s_mov_b64 exec, 0xf00
    v_add_u32 v5, s24, v5
    s_mov_b32 exec_lo, 0xffff0000
    s_mov_b32 exec_hi, 0
    v_lshlrev_b32 v5, 21, v2
    v_add_u32 v5, {(PROBE0 - (16 << 21)) & 0xffffffff:#x}, v5
    {L('scan')}:
    s_mov_b64 exec, -1
    """)
    repair(A, L)
    A(f"""
    s_mov_b32 exec_lo, 0xffff0f0f
    s_mov_b32 exec_hi, 0
    buffer_load_dword v24, v5, {WS}, 0 offen sc1
    s_waitcnt vmcnt(0)
    v_cmp_eq_u32 vcc, -1, v24
    s_mov_b64 exec, -1
    v_readlane_b32 s24, v24, 0
    v_readlane_b32 s25, v24, 1
    v_readlane_b32 s26, v24, 2
    v_readlane_b32 s27, v24, 3
    v_readlane_b32 s84, v24, 8
    v_readlane_b32 s85, v24, 9
    v_readlane_b32 s86, v24, 10
    v_readlane_b32 s87, v24, 11
    s_or_b32 s86, s86, {(exh0 >> 64) & 0xffffffff:#x}
    s_or_b32 s87, s87, {(exh0 >> 96) & 0xffffffff:#x}
    s_and_b32 s28, s24, s84
    s_and_b32 s28, s28, {premask:#x}
    s_lshl_b32 s28, s28, 2
    s_andn2_b32 s28, s28, s24
    s_lshr_b32 s30, vcc_lo, 16
    s_andn2_b32 s24, s24, s30
    s_andn2_b32 s28, s28, s84
    s_mov_b32 s35, s28
    s_andn2_b64 s[24:25], s[24:25], s[84:85]
    s_andn2_b64 s[26:27], s[26:27], s[86:87]
    {L('pick')}:
    s_ff1_i32_b64 s30, s[24:25]
    s_cmp_lg_u32 s30, -1
    s_cbranch_scc0 {L('pick2')}
    s_bitset0_b64 s[24:25], s30
    s_branch {L('claim')}
    {L('pick2')}:
    s_ff1_i32_b64 s30, s[26:27]
    s_cmp_lg_u32 s30, -1
    s_cbranch_scc0 {L('pick3')}
    s_bitset0_b64 s[26:27], s30
    s_add_u32 s30, s30, 64
    s_branch {L('claim')}
    {L('pick3')}:
    s_ff1_i32_b32 s30, s35
    s_cmp_lg_u32 s30, -1
    s_cbranch_scc0 {L('idle')}
    s_bitset0_b32 s35, s30
    {L('claim')}:
    s_lshl_b32 s31, s30, 3
    s_load_dwordx2 s[8:9], s[100:101], s31
    s_lshl_b32 s31, s30, 2
    v_mov_b32 v30, s31
    v_mov_b32 v31, 1
    s_mov_b64 exec, 1
    buffer_atomic_add v31, v30, {WS}, s96 offen sc0
    s_waitcnt vmcnt(0) lgkmcnt(0)
    s_mov_b64 exec, -1
    v_readfirstlane_b32 s31, v31
    s_lshr_b32 s32, s8, 25
    s_add_u32 s33, s31, 1
    s_cmp_lt_u32 s33, s32
    s_cbranch_scc1 {L('got')}
    {L('ex3')}:
    s_cmp_lt_u32 s31, s32
    s_cbranch_scc0 {L('pick')}
    s_lshr_b32 s33, s30, 5
    s_lshl_b32 s33, s33, 2
    s_lshl_b32 s34, s97, 7
    s_add_u32 s33, s33, s34
    s_add_u32 s33, s33, {WS_RDY + 128}
    s_lshl_b32 s34, 1, s30
    v_mov_b32 v30, s33
    v_mov_b32 v31, s34
    s_mov_b64 exec, 1
    buffer_atomic_or v31, v30, {WS}, 0 offen
    s_mov_b64 exec, -1
    {L('got')}:
    s_bfe_u32 s32, s8, 0x40010
    s_lshl_b32 s32, s32, 4
    s_bfe_u32 s33, s8, 0x30014
    s_lshl_b32 s33, s97, s33
    s_add_u32 s32, s32, s33
    s_bfe_u32 s33, s8, 0x20017
    s_lshl_b32 s33, s31, s33
    s_add_u32 s32, s32, s33
    s_and_b32 s8, s8, 0xffff
    s_lshl_b32 s32, s32, 16
    s_or_b32 s8, s8, s32
    s_cmp_ge_u32 s30, 32
    s_cbranch_scc1 {L('bc')}
    s_bitcmp1_b32 s28, s30
    s_cbranch_scc0 {L('bc')}
    s_bitset1_b32 s8, 31
    s_lshl_b32 s32, s30, 24
    s_or_b32 s8, s8, s32
    s_branch {L('bc')}
    {L('idle')}:
    s_and_b64 s[24:25], s[84:85], s[86:87]
    s_cmp_eq_u64 s[24:25], -1
    s_cbranch_scc0 {L('idle2')}
    s_add_u32 s83, s83, 1
    s_cmp_ge_u32 s83, 8
    s_cbranch_scc1 {L('quit')}
    {L('rot')}:
    s_add_u32 s97, s97, 1
    s_and_b32 s97, s97, 7
    s_branch {L('grp')}
    {L('idle2')}:
    s_mov_b32 s83, 0
    s_sleep {psleep}
    s_sub_u32 s29, s29, 1
    s_cbranch_scc1 {L('quit')}
    s_and_b32 s24, s29, 63
    s_cmp_eq_u32 s24, 0
    s_cbranch_scc1 {L('rot')}
    s_branch {L('scan')}
    {L('quit')}:
    s_mov_b32 s8, 0
    {L('bc')}:
    v_mov_b32 v30, {LDS_TAB}
    v_mov_b32 v28, s8
    v_mov_b32 v29, s9
    ds_write_b64 v30, v[28:29]
    s_waitcnt lgkmcnt(0)
    {L('go2')}:
    s_barrier
    v_mov_b32 v30, {LDS_TAB}
    ds_read_b64 v[28:29], v30
    s_waitcnt lgkmcnt(0)
    v_readfirstlane_b32 s8, v28
    v_readfirstlane_b32 s82, v29
    {"s_memrealtime s[92:93]" if wstamp else ""}
    s_and_b32 s12, s8, 15
    s_cmp_eq_u32 s12, 0
    s_cbranch_scc1 {L('end')}
    s_bfe_u32 s{S_A}, s8, 0x40004
    s_bfe_u32 s{S_DONE}, s8, 0x80008
    s_bfe_u32 s{S_B}, s8, 0x80010
    """)
    labels = {T_KVS: 'kvs', T_KVL: 'kvl', T_WO: 'wo', T_F1: 'f1', T_F2: 'f2', T_QO: 'kvl', T_AT: 'at', T_WOS: 'wos', T_LNR: 'lnr', T_F1S: 'f1s', T_F2S: 'f2s', T_FIN: 'fin', T_QA: 'wo8', T_LN: 'f28'}
    for t, n in labels.items():
        A(f"s_cmp_eq_u32 s12, {t}")
        A(f"s_cbranch_scc1 {L('j_'+n)}")
    A(f"s_cmp_eq_u32 s12, 15")
    A(f"s_cbranch_scc1 {L('j_rep')}")
    A(f"s_branch {L('end')}")
    repair_stub(A, L)
    for n in dict.fromkeys(labels.values()):
        A.label(L('j_' + n))
        A(f"s_branch {L('b_'+n)}")
    A.label(L('skip'))
    A("s_barrier")
    A(f"s_branch {L('next')}")
    A.label(L('done'))
    A(f"""
    s_waitcnt vmcnt(0)
    s_barrier
    s_cmp_lg_u32 s13, 1
    s_cbranch_scc1 {L('next')}
    """)
    if wstamp:
        A(f"""
        s_memrealtime s[94:95]
        s_lshl_b32 s24, s99, 1
        s_add_u32 s24, s24, {WS_DUMMY + 65536}
        s_waitcnt lgkmcnt(0)
        v_mov_b32 v4, s90
        v_mov_b32 v5, s92
        v_mov_b32 v6, s94
        s_lshl_b32 s25, s{S_A}, 8
        s_and_b32 s26, s8, 0x00ff000f
        s_or_b32 s25, s25, s26
        v_mov_b32 v7, s25
        v_mov_b32 v8, 0
        s_mov_b64 exec, 1
        buffer_store_dwordx4 v[4:7], v8, {WS}, s24 offen
        s_mov_b64 exec, -1
        s_nop 1
        """)
    A(f"""
    s_lshl_b32 s24, s{S_DONE}, 7
    s_add_u32 s24, s24, {WS_CNT}
    v_mov_b32 v4, 0
    v_mov_b32 v5, 1
    s_mov_b64 exec, 1
    buffer_atomic_add v5, v4, {WS}, s24 offen sc0
    s_and_b32 s25, s82, 255
    s_bfe_u32 s26, s82, 0x70008
    s_bfe_u32 s27, s82, 0x20010
    s_lshr_b32 s28, s26, 5
    s_lshl_b32 s28, s28, 2
    s_and_b32 s26, s26, 31
    s_lshl_b32 s27, s27, s26
    v_mov_b32 v6, s28
    v_mov_b32 v7, s27
    s_mov_b32 s28, {WS_RDY}
    s_waitcnt vmcnt(0)
    v_readfirstlane_b32 s26, v5
    s_add_u32 s26, s26, 1
    s_cmp_eq_u32 s26, s25
    s_cbranch_scc0 {L('nosucc')}
    buffer_atomic_or v7, v6, {WS}, s28 offen
    {L('nosucc')}:
    s_mov_b64 exec, -1
    s_branch {L('next')}
    """)
    lds = []
    A.label(L('b_wo'));  pre_part(A, L, 'wo', 'wo', 128)
    A.label(L('b_f2'));  pre_part(A, L, 'f2', 'f2', 128)
    A.label(L('b_wos')); pre_part(A, L, 'wos', 'wo', 64)
    A.label(L('b_f2s')); pre_part(A, L, 'f2s', 'f2', 64)
    A.label(L('b_wo8')); pre_part(A, L, 'wo8', 'wo', 64, True)
    A.label(L('b_f28')); pre_part(A, L, 'f28', 'f2', 64, True)
    def variant(name, alt):
        A.label(L('b_' + name))
        A(f"s_bitcmp1_b32 s82, 24")
        A(f"s_cbranch_scc1 {L('b_'+alt)}")
    variant('lnr', 'lnr4'); lds.append(body_red(A, L, 'lnr', False))
    variant('fin', 'fin4'); lds.append(body_red(A, L, 'fin', True))
    variant('at', 'at2');  lds.append(body_at(A, L, 'at'))
    A.label(L('b_lnr4')); lds.append(body_red4(A, L, 'lnr4', False))
    A.label(L('b_fin4')); lds.append(body_red4(A, L, 'fin4', True))
    A.label(L('b_at2')); lds.append(body_at(A, L, 'at2', 2))
    A.label(L('b_f1l')); lds.append(body_f1(A, L, 'f1l', 256, 128, 3 if NS128 == 4 else 2))
    A.label(L('b_g64')); lds.append(body_part(A, L, 64))
    A.label(L('b_g128')); lds.append(body_part(A, L, 128))
    A.label(L('b_f1s')); lds.append(body_f1(A, L, 'f1s', 128, 64, 6))
    variant('f1', 'f1l'); lds.append(body_f1(A, L, 'f1', 128, 128, NS128))
    if tiny:
        A.label(L('b_kvt')); lds.append(body_kv(A, L, 'kvt', 128, 64, 6))
        variant('kvs', 'kvt')
    else: A.label(L('b_kvs'))
    lds.append(body_kv(A, L, 'kvs', 128, 128, NS128))
    A.label(L('b_kvl')); lds.append(body_kv(A, L, 'kvl', 256, 256, 2))
    return max(lds)

def task(t, a=0, b=0, done=C_SINK, d1=(0, 0), d2=(0, 0)):
    return (t | a << 8 | b << 16 | done << 24, d1[0] | d1[1] << 8 | d2[0] << 16 | d2[1] << 24)
```

```python
import build3, k_engine
base_c = dict(codepf=1, vpos=0, word=(1,2,0,3), dlyA=0, dlyC=4)
S = dict(ntiny=0, modes="BBBBBBMMMMMMMFFE")
build3.build('p_a.s', stamp=True, sched_kw=S, chain_kw=base_c)
k_engine.NS128 = 2
build3.build('p_b.s', stamp=True, sched_kw=S, chain_kw=base_c)
```
